```python
import torch

def _softmax(x, axis=-1):
    return torch.softmax(x, dim=axis)

def _gelu(x):
    return torch.nn.functional.gelu(x, approximate='tanh')

def _silu(x):
    return torch.nn.functional.silu(x)

def _sigmoid(x):
    return torch.sigmoid(x)

def _layernorm(x, axis=-1, eps=1e-05):
    m = x.mean(dim=axis, keepdim=True)
    v = x.var(dim=axis, keepdim=True, unbiased=False)
    return (x - m) / torch.sqrt(v + eps)

def _scatter_add(tgt, idx, src, axis=0):
    return tgt.clone().index_add_(axis, idx, src)

def _segment_sum(src, seg, n):
    out = torch.zeros((n,) + src.shape[1:], dtype=src.dtype)
    return out.index_add_(0, seg, src)

def _pad(x, pw):
    flat = tuple((v for pair in reversed(pw) for v in pair))
    return torch.nn.functional.pad(x, flat)
kernel_name = 'adaLN_cond__ssm_conv_h3__glu_gated_geglu__prompt'

def setup_inputs():

    _w = lambda a: (lambda t: t.to(torch.bfloat16) if t.is_floating_point() else t)(torch.as_tensor(a))

    def _A_setup():
        B, S, D = (1, 2048, 576)
        ks = 4
        return {'q': _w((lambda *s: torch.randn(*s, dtype=torch.bfloat16) * 0.05)(B, S, D)), 'k': _w((lambda *s: torch.randn(*s, dtype=torch.bfloat16) * 0.8)(B, S, D)), 'v': _w((lambda *s: torch.randn(*s, dtype=torch.bfloat16) * 0.8)(B, S, D)), 'shift_k': _w((lambda *s: torch.randn(*s, dtype=torch.bfloat16) * 0.8)(D, ks) * 0.5), 'ssm_k': _w((lambda *s: torch.randn(*s, dtype=torch.bfloat16) * 0.8)(D, S) * (1.0 / S ** 0.5)), 'ssm_D': _w((lambda *s: torch.randn(*s, dtype=torch.bfloat16) * 0.8)(D))}
    _A_in = _A_setup()

    def _B_setup():
        B, S, Dm, Df = (1, 2048, 576, 4608)
        return {'x': _w((lambda *s: torch.randn(*s, dtype=torch.bfloat16) * 0.05)(B, S, Dm)), 'w_gate': _w((lambda *s: torch.randn(*s, dtype=torch.bfloat16) * 1.6)(Dm, Df) * Dm ** (-0.5)), 'w_up': _w((lambda *s: torch.randn(*s, dtype=torch.bfloat16) * 1.6)(Dm, Df) * Dm ** (-0.5)), 'w_down': _w((lambda *s: torch.randn(*s, dtype=torch.bfloat16) * 1.6)(Df, Dm) * Df ** (-0.5))}
    _B_in = _B_setup()
    return {'A_q': _A_in['q'], 'A_k': _A_in['k'], 'A_v': _A_in['v'], 'A_shift_k': _A_in['shift_k'], 'A_ssm_k': _A_in['ssm_k'], 'A_ssm_D': _A_in['ssm_D'], 'B_x': _B_in['x'], 'B_w_gate': _B_in['w_gate'], 'B_w_up': _B_in['w_up'], 'B_w_down': _B_in['w_down'], 'c': _w((lambda *s: torch.randn(*s, dtype=torch.bfloat16) * 0.1)(1, 576) * 8.0), 'w_mod': _w((lambda *s: torch.randn(*s, dtype=torch.bfloat16) * 0.1)(576, 6 * 576) * 576 ** (-0.5) * 8.0)}

def reference(A_q, A_k, A_v, A_shift_k, A_ssm_k, A_ssm_D, B_x, B_w_gate, B_w_up, B_w_down, c, w_mod):

    def _A_ref(q, k, v, shift_k, ssm_k, ssm_D):
        B, S, D = q.shape
        ks = shift_k.shape[-1]
        k_pad = _pad(k, ((0, 0), (ks - 1, 0), (0, 0)))
        k_shift = torch.zeros_like(k)
        for t in range(ks):
            k_shift = k_shift + k_pad[:, t:t + S, :] * shift_k[:, ks - 1 - t][None, None, :]
        kv = k_shift * v
        L = 2 * S
        kv_pad = _pad(kv, ((0, 0), (0, S), (0, 0)))
        kf_pad = _pad(ssm_k, ((0, 0), (0, S)))
        kv_f = (lambda x, axes=(-2, -1): torch.fft.rfft2(x.float(), dim=axes))(kv_pad[:, None, :, :], axes=(1, 2))
        kf_f = (lambda x, axes=(-2, -1): torch.fft.rfft2(x.float(), dim=axes))(kf_pad[:, None, :], axes=(1, 2))
        kf_f = (lambda x, *d: x.permute(*d))(kf_f, 1, 2, 0)
        y_f = kv_f * kf_f[None, :, :, :]
        y = (lambda x, s, axes=(-2, -1): torch.fft.irfft2(x, s=s, dim=axes).to(torch.bfloat16))(y_f, (1, L), axes=(1, 2))[:, 0, :S, :]
        y = y + kv * ssm_D[None, None, :]
        return q * y

    def _B_ref(x, w_gate, w_up, w_down):
        g = torch.einsum('bsd,df->bsf', x, w_gate)
        u = torch.einsum('bsd,df->bsf', x, w_up)
        h = _gelu(g) * u
        return torch.einsum('bsf,fd->bsd', h, w_down)
    x = A_q
    mod = (_silu(c) @ w_mod).reshape(c.shape[0], 6, 1, -1)
    sa, ca, ga, sb, cb, gb = (mod[:, 0].clone(), mod[:, 1].clone(), mod[:, 2].clone(), mod[:, 3].clone(), mod[:, 4].clone(), mod[:, 5].clone())
    h = _layernorm(x, axis=-1) * (1 + ca) + sa
    x = x + ga * _A_ref(h, A_k, A_v, A_shift_k, A_ssm_k, A_ssm_D)
    h = _layernorm(x, axis=-1) * (1 + cb) + sb
    x = x + gb * _B_ref(h, B_w_gate, B_w_up, B_w_down)
    return x
```

```python
S, D, DF = 2048, 576, 4608
NB_SD = S*D*2
A_Q, A_K, A_V, A_SK, A_SSMK, A_SSMD, B_X, W_G, W_U, W_D, C_, W_MOD, OUT, DBG, WS = [8*i for i in range(15)]
WS_U   = 0x0000000
WS_Z   = 0x0240000
WS_H2  = 0x0480000
WS_X1  = 0x06C0000
WS_MOD = 0x0900000
WS_P   = 0x1000000
NB_P   = 16*16*4*9*4096

class Asm:
    def __init__(self):
        self.L = []
    def __call__(self, s):
        for line in s.strip('\n').split('\n'):
            line = line.strip()
            if line:
                self.L.append(line)
    def text(self):
        out = []
        for l in self.L:
            if l.endswith(':') or l.startswith('.'):
                out.append(l)
            else:
                out.append('  ' + l)
        return '\n'.join(out)

def srd(a, dst, ptr, nbytes, off=0):
    if off:
        a(f"s_add_u32 s{dst}, s{ptr}, {off:#x}\ns_addc_u32 s{dst+1}, s{ptr+1}, 0")
    else:
        a(f"s_mov_b32 s{dst}, s{ptr}\ns_mov_b32 s{dst+1}, s{ptr+1}")
    a(f"s_mov_b32 s{dst+2}, {nbytes:#x}\ns_mov_b32 s{dst+3}, 0x20000")

def lo(a, d, s):
    a(f"v_lshlrev_b32 v{d}, 16, v{s}")
def hi(a, d, s):
    a(f"v_and_b32 v{d}, 0xffff0000, v{s}")
def unpack(a, d, s, e):
    (hi if e & 1 else lo)(a, d, s + (e >> 1))

def kernel_head(name):
    return f".globl {name}\n.p2align 8\n.type {name},@function\n{name}:"

def kernel_desc(name, vgpr, sgpr, accum=None):
    if accum is None:
        accum = min(256, (vgpr + 3)//4*4)
    return "\n".join(['.p2align 6', f'.amdhsa_kernel {name}', f'  .amdhsa_next_free_vgpr {vgpr}',
        f'  .amdhsa_next_free_sgpr {sgpr}', f'  .amdhsa_accum_offset {accum}',
        '  .amdhsa_group_segment_fixed_size 0', '  .amdhsa_kernarg_size 120',
        '  .amdhsa_user_sgpr_count 2', '  .amdhsa_user_sgpr_kernarg_segment_ptr 1',
        '  .amdhsa_system_sgpr_workgroup_id_x 1', '  .amdhsa_float_denorm_mode_32 3', '.end_amdhsa_kernel'])
```

```python
from common import *
def gen_k0(name='kv_kernel'):
    a = Asm()
    a(kernel_head(name))
    a(f"""
    s_cmp_ge_u32 s2, 288
    s_cbranch_scc1 L_k0_end
    s_load_dwordx4 s[4:7], s[0:1], {A_K}
    s_load_dwordx2 s[8:9], s[0:1], {A_SK}
    s_load_dwordx2 s[10:11], s[0:1], {WS}
    s_mov_b32 s3, 0x1c71c71d
    s_mul_hi_u32 s28, s2, s3
    s_mul_i32 s3, s28, 9
    s_sub_u32 s29, s2, s3
    v_and_b32 v1, 7, v0
    v_lshrrev_b32 v2, 3, v0
    s_lshl_b32 s30, s28, 6
    s_lshl_b32 s31, s29, 7
    """)
    a(f"""
    v_lshlrev_b32 v3, 1, v2
    v_add_u32 v3, s30, v3
    v_mul_u32_u24 v3, 1152, v3
    v_lshlrev_b32 v4, 4, v1
    v_add_u32 v4, s31, v4
    v_add_u32 v13, v3, v4
    v_add_u32 v10, {(-3*1152) & 0xffffffff:#x}, v13
    v_add_u32 v11, {(-2*1152) & 0xffffffff:#x}, v13
    v_add_u32 v12, {(-1*1152) & 0xffffffff:#x}, v13
    v_lshlrev_b32 v5, 2, v4
    s_waitcnt lgkmcnt(0)
    """)
    srd(a, 12, 4, NB_SD)
    srd(a, 16, 6, NB_SD)
    srd(a, 20, 8, D*8)
    srd(a, 24, 10, NB_SD, WS_U)
    a("""
    buffer_load_dwordx4 v[16:19], v10, s[12:15], 0 offen
    buffer_load_dwordx4 v[20:23], v11, s[12:15], 0 offen
    buffer_load_dwordx4 v[24:27], v12, s[12:15], 0 offen
    buffer_load_dwordx4 v[28:31], v13, s[12:15], 0 offen
    buffer_load_dwordx4 v[32:35], v13, s[12:15], 0 offen offset:1152
    buffer_load_dwordx4 v[36:39], v13, s[16:19], 0 offen
    buffer_load_dwordx4 v[40:43], v13, s[16:19], 0 offen offset:1152
    buffer_load_dwordx4 v[44:47], v5, s[20:23], 0 offen
    buffer_load_dwordx4 v[48:51], v5, s[20:23], 0 offen offset:16
    buffer_load_dwordx4 v[52:55], v5, s[20:23], 0 offen offset:32
    buffer_load_dwordx4 v[56:59], v5, s[20:23], 0 offen offset:48
    """)
    a("""
    v_lshlrev_b32 v6, 8, v2
    v_lshl_add_u32 v6, v1, 4, v6
    v_and_b32 v7, 63, v0
    v_lshrrev_b32 v8, 6, v0
    v_and_b32 v9, 3, v7
    v_bfe_u32 v14, v7, 2, 2
    v_lshrrev_b32 v15, 4, v7
    v_lshlrev_b32 v60, 3, v15
    v_sub_u32 v60, v60, v14
    v_add_u32 v60, 7, v60
    v_lshlrev_b32 v60, 7, v60
    v_lshl_add_u32 v60, v8, 5, v60
    v_lshl_add_u32 v60, v9, 3, v60
    v_add_u32 v60, 0xfffffe00, v60
    v_and_b32 v61, 15, v7
    v_lshl_add_u32 v61, v8, 4, v61
    s_lshl_b32 s3, s29, 6
    v_add_u32 v61, s3, v61
    v_lshlrev_b32 v61, 12, v61
    v_lshl_add_u32 v61, v15, 4, v61
    s_lshl_b32 s3, s28, 7
    v_add_u32 v61, s3, v61
    s_waitcnt vmcnt(0)
    """)
    res0, res1 = 64, 72
    for e in range(8):
        t = [80, 81, 82, 83]
        for j in range(4):
            unpack(a, t[j], 44 + 2*e, j)
        kk = [84, 85, 86, 87, 88]
        for j in range(5):
            unpack(a, kk[j], 16 + 4*j, e)
        unpack(a, 89, 36, e); unpack(a, 90, 40, e)
        a(f"""
        v_mul_f32 v{res0+e}, v{kk[0]}, v{t[3]}
        v_mul_f32 v{res1+e}, v{kk[1]}, v{t[3]}
        v_fmac_f32 v{res0+e}, v{kk[1]}, v{t[2]}
        v_fmac_f32 v{res1+e}, v{kk[2]}, v{t[2]}
        v_fmac_f32 v{res0+e}, v{kk[2]}, v{t[1]}
        v_fmac_f32 v{res1+e}, v{kk[3]}, v{t[1]}
        v_fmac_f32 v{res0+e}, v{kk[3]}, v{t[0]}
        v_fmac_f32 v{res1+e}, v{kk[4]}, v{t[0]}
        v_mul_f32 v{res0+e}, v{res0+e}, v89
        v_mul_f32 v{res1+e}, v{res1+e}, v90
        """)
    for i in range(4):
        a(f"v_cvt_pk_bf16_f32 v{16+i}, v{res0+2*i}, v{res0+2*i+1}")
        a(f"v_cvt_pk_bf16_f32 v{20+i}, v{res1+2*i}, v{res1+2*i+1}")
    a("""
    ds_write_b128 v6, v[16:19]
    ds_write_b128 v6, v[20:23] offset:128
    s_waitcnt lgkmcnt(0)
    s_barrier
    ds_read_b64_tr_b16 v[24:25], v60 offset:512
    ds_read_b64_tr_b16 v[26:27], v60
    ds_read_b64_tr_b16 v[28:29], v60 offset:4608
    ds_read_b64_tr_b16 v[30:31], v60 offset:4096
    s_waitcnt lgkmcnt(2)
    buffer_store_dwordx4 v[24:27], v61, s[24:27], 0 offen
    s_waitcnt lgkmcnt(0)
    buffer_store_dwordx4 v[28:31], v61, s[24:27], 0 offen offset:64
    L_k0_end:
    s_endpgm
    """)
    return a.text(), kernel_desc(name, 96, 40), f"; @launch kernel={name} grid=(288,1,1) block=(256,1,1) lds=8192"
```

```python
from common import *
KSTR = 4160
WAVE_LDS = 4*KSTR + 4608
T_OFF = 4*WAVE_LDS
K1_LDS = T_OFF + 4*KSTR
NCONV = 144
NMOD = 54

def gen_conv(a):
    a(f"""
    s_load_dwordx4 s[4:7], s[0:1], {A_SSMK}
    s_load_dwordx2 s[10:11], s[0:1], {WS}
    v_lshrrev_b32 v1, 6, v0
    v_and_b32 v2, 63, v0
    s_nop 0
    v_readfirstlane_b32 s28, v1
    s_lshl_b32 s29, s2, 2
    s_add_u32 s29, s29, s28
    s_mul_i32 s30, s28, {WAVE_LDS}
    s_lshl_b32 s31, s29, 12
    v_lshlrev_b32 v3, 4, v2
    s_waitcnt lgkmcnt(0)
    s_add_u32 s12, s4, s31
    s_addc_u32 s13, s5, 0
    s_mov_b32 s14, 4096
    s_mov_b32 s15, 0x20000
    s_add_u32 s16, s10, s31
    s_addc_u32 s17, s11, 0
    s_mov_b32 s18, 4096
    s_mov_b32 s19, 0x20000
    """)
    assert WS_U == 0
    srd(a, 20, 6, D*2)
    srd(a, 24, 10, NB_SD, WS_Z)
    a(f"""
    v_lshrrev_b32 v4, 4, v2
    v_and_b32 v5, 15, v2
    v_add_u32 v6, v4, v5
    v_add_u32 v6, -16, v6
    v_lshlrev_b32 v6, 1, v6
    buffer_load_ushort v7, v6, s[12:15], 0 offen
    s_lshl_b32 s3, s29, 1
    v_mov_b32 v8, s3
    buffer_load_ushort v9, v8, s[20:23], 0 offen
    """)
    a(f"s_add_u32 m0, s30, {4*KSTR + 512}")
    a("s_nop 0")
    for i in range(4):
        a(f"buffer_load_dwordx4 v3, s[16:19], 0 offen offset:{i*1024} lds")
    for c in range(4):
        a(f"s_add_u32 m0, s30, {c*KSTR + 32}")
        if c:
            a(f"v_add_u32 v3, 2, v3")
        else:
            a("s_nop 0")
        for i in range(4):
            a(f"buffer_load_dwordx4 v3, s[12:15], 0 offen offset:{i*1024} lds")
    a(f"""
    v_mov_b32 v10, 0
    v_mov_b32 v11, 0
    v_lshlrev_b32 v12, 3, v2
    v_add_u32 v12, s30, v12
    ds_write_b64 v12, v[10:11] offset:{4*KSTR}
    v_mul_u32_u24 v13, {KSTR}, v4
    v_lshl_add_u32 v13, v5, 1, v13
    v_add_u32 v13, s30, v13
    """)
    a(f"""
    v_add_u32 v14, 1, v5
    v_and_b32 v15, 3, v14
    v_mul_u32_u24 v15, {KSTR}, v15
    v_lshrrev_b32 v14, 2, v14
    v_lshl_add_u32 v15, v14, 3, v15
    v_lshlrev_b32 v14, 4, v4
    v_sub_u32 v15, v15, v14
    v_add_u32 v15, 48, v15
    v_add_u32 v15, s30, v15
    v_lshlrev_b32 v16, 5, v5
    v_lshl_add_u32 v16, v4, 4, v16
    s_add_u32 s3, s30, {4*KSTR + 512 - 32 - 448}
    v_add_u32 v16, s3, v16
    """)
    a(f"""
    v_lshlrev_b32 v17, 5, v5
    v_lshl_add_u32 v17, v4, 3, v17
    s_mul_i32 s3, s28, {KSTR}
    s_add_u32 s3, s3, {T_OFF}
    v_add_u32 v17, s3, v17
    v_bfe_u32 v18, v2, 2, 2
    v_mul_u32_u24 v18, {KSTR}, v18
    v_lshl_add_u32 v18, v4, 5, v18
    v_and_b32 v19, 3, v2
    v_lshl_add_u32 v18, v19, 3, v18
    s_lshl_b32 s3, s28, 10
    s_add_u32 s3, s3, {T_OFF}
    v_add_u32 v18, s3, v18
    s_lshl_b32 s3, s2, 14
    s_lshl_b32 s33, s28, 12
    s_add_u32 s3, s3, s33
    v_lshlrev_b32 v19, 3, v2
    v_add_u32 v19, s3, v19
    s_waitcnt vmcnt(20)
    ds_write_b16 v13, v7
    """)
    a("""
    v_lshrrev_b32 v10, 3, v5
    v_add_u32 v10, 2, v10
    v_cmp_eq_u32 vcc, v10, v4
    v_and_b32 v11, 7, v5
    v_sub_u32 v11, 7, v11
    v_cndmask_b32 v9, 0, v9, vcc
    v_and_b32 v10, 1, v11
    v_lshlrev_b32 v10, 4, v10
    v_lshlrev_b32 v9, v10, v9
    v_lshrrev_b32 v11, 1, v11
    """)
    for r in range(4):
        a(f"v_cmp_eq_u32 vcc, {r}, v11\ns_nop 1\nv_cndmask_b32 v{20+r}, 0, v9, vcc")
    a("s_waitcnt vmcnt(0) lgkmcnt(0)")
    ACC = 24
    FR = 64
    def A(s, m1): return FR + 64*s + 4*m1
    def B(s, n1): return FR + 64*s + 32 + 4*n1
    def reads(m0):
        s = m0 & 1
        R = []
        for x in range(8):
            R.append(f"ds_read_b128 v[{B(s,x)}:{B(s,x)+3}], v16 offset:{512*x + 64*(7-m0)}")
            if x == 0:
                R.append(f"ds_read_b64 v[{A(s,0)}:{A(s,0)+1}], v15 offset:{64*m0}")
                R.append(f"ds_read_b64 v[{A(s,0)+2}:{A(s,0)+3}], v15 offset:{64*m0+8}")
        for x in range(1, 8):
            R.append(f"ds_read_b64 v[{A(s,x)}:{A(s,x)+1}], v15 offset:{512*x + 64*m0}")
            R.append(f"ds_read_b64 v[{A(s,x)+2}:{A(s,x)+3}], v15 offset:{512*x + 64*m0+8}")
        return R
    for r in reads(0): a(r)
    a("s_waitcnt lgkmcnt(14)")
    for w in range(8):
        a(f"v_mfma_f32_16x16x32_bf16 v[{ACC+4*w}:{ACC+4*w+3}], v[20:23], v[{B(0,w)}:{B(0,w)+3}], 0")
    for m0 in range(8):
        s = m0 & 1
        nxt = reads(m0+1) if m0 < 7 else []
        a("s_waitcnt lgkmcnt(0)")
        for m1 in range(8):
            for n1 in range(8 - m1):
                w = m1 + n1
                a(f"v_mfma_f32_16x16x32_bf16 v[{ACC+4*w}:{ACC+4*w+3}], v[{A(s,m1)}:{A(s,m1)+3}], v[{B(s,n1)}:{B(s,n1)+3}], v[{ACC+4*w}:{ACC+4*w+3}]")
                if nxt:
                    a(nxt.pop(0))
        assert not nxt
    a("s_nop 7")
    for w in range(8):
        a(f"v_cvt_pk_bf16_f32 v{64+2*w}, v{ACC+4*w}, v{ACC+4*w+1}")
        a(f"v_cvt_pk_bf16_f32 v{65+2*w}, v{ACC+4*w+2}, v{ACC+4*w+3}")
        a(f"ds_write_b64 v17, v[{64+2*w}:{65+2*w}] offset:{512*w}")
    a("s_waitcnt lgkmcnt(0)\ns_barrier")
    for i in range(8):
        a(f"ds_read_b64_tr_b16 v[{80+2*i}:{81+2*i}], v18 offset:{128*i}")
    for i in range(8):
        a(f"s_waitcnt lgkmcnt({7-i})")
        a(f"buffer_store_dwordx2 v[{80+2*i}:{81+2*i}], v19, s[24:27], 0 offen offset:{512*i}")
    a("s_endpgm")

def gen_mod(a):
    a(f"""
    s_load_dwordx4 s[4:7], s[0:1], {C_}
    s_load_dwordx2 s[10:11], s[0:1], {WS}
    s_sub_u32 s28, s2, {NCONV}
    v_and_b32 v1, 7, v0
    v_lshrrev_b32 v2, 3, v0
    v_mul_u32_u24 v3, 6912, v2
    v_lshl_add_u32 v3, v1, 4, v3
    s_lshl_b32 s3, s28, 7
    v_add_u32 v3, s3, v3
    v_lshlrev_b32 v4, 1, v0
    s_waitcnt lgkmcnt(0)
    """)
    srd(a, 12, 4, D*2)
    srd(a, 16, 6, D*6912)
    srd(a, 20, 10, 6912, WS_MOD)
    a("""
    buffer_load_ushort v5, v4, s[12:15], 0 offen
    buffer_load_ushort v6, v4, s[12:15], 0 offen offset:512
    buffer_load_ushort v7, v4, s[12:15], 0 offen offset:1024
    """)
    a("s_mov_b32 s30, 0")
    for i in range(18):
        a(f"buffer_load_dwordx4 v[{32+4*i}:{35+4*i}], v3, s[16:19], s30 offen")
        if i < 17: a(f"s_add_u32 s30, s30, {32*6912}")
    a("s_waitcnt vmcnt(18)")
    for r in (5, 6, 7):
        a(f"""
        v_lshlrev_b32 v{r}, 16, v{r}
        v_mul_f32 v8, 0xbfb8aa3b, v{r}
        v_exp_f32 v8, v8
        s_nop 0
        v_add_f32 v8, 1.0, v8
        v_rcp_f32 v8, v8
        s_nop 0
        v_mul_f32 v{r}, v{r}, v8
        v_cvt_pk_bf16_f32 v{r}, v{r}, v{r}
        v_lshlrev_b32 v{r}, 16, v{r}
        """)
    a("""
    v_lshlrev_b32 v9, 2, v0
    ds_write_b32 v9, v5
    ds_write_b32 v9, v6 offset:1024
    ds_write_b32 v9, v7 offset:2048
    v_lshlrev_b32 v10, 2, v2
    s_waitcnt lgkmcnt(0)
    s_barrier
    """)
    for i in range(18):
        a(f"ds_read_b32 v{104+i}, v10 offset:{128*i}")
    a("s_waitcnt lgkmcnt(0)")
    for i in range(18):
        a(f"s_waitcnt vmcnt({17-i})")
        for e in range(8):
            unpack(a, 11 + (e & 1), 32 + 4*i, e)
            if i == 0: a(f"v_mul_f32 v{16+e}, v{11+(e&1)}, v{104+i}")
            else:      a(f"v_fmac_f32 v{16+e}, v{11+(e&1)}, v{104+i}")
    a("""
    v_lshlrev_b32 v13, 8, v2
    v_lshl_add_u32 v13, v1, 5, v13
    ds_write_b128 v13, v[16:19] offset:4096
    ds_write_b128 v13, v[20:23] offset:4112
    s_waitcnt lgkmcnt(0)
    s_barrier
    v_cmp_gt_u32 vcc, 64, v0
    s_and_saveexec_b64 s[34:35], vcc
    s_cbranch_execz L_mod_end
    """)
    for i in range(32):
        a(f"ds_read_b32 v{32+i}, v9 offset:{4096 + 256*i}")
    a("s_waitcnt lgkmcnt(0)")
    for st in (16, 8, 4, 2, 1):
        for i in range(st):
            a(f"v_add_f32 v{32+i}, v{32+i}, v{32+i+st}")
    a("""
    v_cvt_pk_bf16_f32 v32, v32, v32
    s_mov_b32 s3, 0x1c71c71d
    s_mul_hi_u32 s29, s28, s3
    s_cmp_eq_u32 s29, 1
    s_cselect_b32 s30, 1.0, 0
    s_cmp_eq_u32 s29, 4
    s_cselect_b32 s30, 1.0, s30
    v_lshlrev_b32 v32, 16, v32
    v_add_f32 v32, s30, v32
    v_cvt_pk_bf16_f32 v32, v32, v32
    s_lshl_b32 s3, s28, 7
    v_add_u32 v4, s3, v4
    buffer_store_short v32, v4, s[20:23], 0 offen
    L_mod_end:
    s_endpgm
    """)

def gen_k1(name='conv_kernel'):
    a = Asm()
    a(kernel_head(name))
    a(f"""
    s_cmp_ge_u32 s2, {NCONV}
    s_cbranch_scc1 L_k1_mod
    """)
    gen_conv(a)
    a(f"""
    L_k1_mod:
    s_cmp_ge_u32 s2, {NCONV+NMOD}
    s_cbranch_scc1 L_mod_end
    """)
    gen_mod(a)
    return a.text(), kernel_desc(name, 192, 40), f"; @launch kernel={name} grid=({NCONV+NMOD},1,1) block=(256,1,1) lds={K1_LDS}"
```

```python
from common import *
def row_prologue(a):
    a("""
    s_and_b32 s3, s2, 7
    s_lshl_b32 s3, s3, 5
    s_lshr_b32 s28, s2, 3
    s_add_u32 s28, s28, s3
    v_and_b32 v1, 7, v0
    v_lshrrev_b32 v2, 3, v0
    s_lshl_b32 s3, s28, 3
    v_add_u32 v3, s3, v1
    """)

def row_stats(a, x, ldsoff, tag):
    a(f"v_add_f32 v40, v{x}, v{x+1}\nv_mul_f32 v41, v{x}, v{x}\nv_fmac_f32 v41, v{x+1}, v{x+1}")
    for e in range(2, 8):
        a(f"v_add_f32 v40, v40, v{x+e}\nv_fmac_f32 v41, v{x+e}, v{x+e}")
    a(f"""
    s_nop 1
    v_permlane32_swap_b32 v40, v41
    s_nop 1
    v_add_f32 v40, v40, v41
    v_mov_b32 v41, v40
    s_nop 1
    v_permlane16_swap_b32 v40, v41
    s_nop 1
    v_add_f32 v40, v40, v41
    s_nop 1
    v_add_f32_dpp v40, v40, v40 row_ror:8 row_mask:0xf bank_mask:0xf
    ds_write_b32 v8, v40 offset:{ldsoff}
    s_waitcnt lgkmcnt(0)
    s_barrier
    ds_read_b128 v[44:47], v9 offset:{ldsoff}
    ds_read_b128 v[48:51], v9 offset:{ldsoff+16}
    ds_read_b32 v52, v9 offset:{ldsoff+32}
    s_waitcnt lgkmcnt(1)
    v_add_f32 v44, v44, v45
    v_add_f32 v46, v46, v47
    v_add_f32 v48, v48, v49
    v_add_f32 v50, v50, v51
    v_add_f32 v44, v44, v46
    v_add_f32 v48, v48, v50
    s_waitcnt lgkmcnt(0)
    v_add_f32 v44, v44, v52
    v_add_f32 v40, v44, v48
    v_mul_f32 v40, 0x3ae38e39, v40
    v_mov_b32 v41, v40
    s_nop 1
    v_permlane32_swap_b32 v40, v41
    s_nop 1
    v_fma_f32 v41, -v40, v40, v41
    v_max_f32 v41, 0, v41
    v_add_f32 v41, 0x3727c5ac, v41
    v_rsq_f32 v42, v41
    s_nop 0
    v_mul_f32 v41, v40, v42
    v_sub_f32 v41, 0, v41
    v_mov_b32 v40, v42
    """)

def gen_k2(name='row_kernel'):
    a = Asm()
    a(kernel_head(name))
    a(f"""
    s_cmp_ge_u32 s2, 256
    s_cbranch_scc1 L_k2_end
    s_load_dwordx2 s[4:5], s[0:1], {A_Q}
    s_load_dwordx2 s[10:11], s[0:1], {WS}
    """)
    row_prologue(a)
    a("""
    v_mul_u32_u24 v4, 1152, v3
    v_lshl_add_u32 v4, v2, 4, v4
    v_lshlrev_b32 v5, 15, v2
    v_lshl_add_u32 v5, v3, 3, v5
    v_add_u32 v6, 0x4000, v5
    v_lshlrev_b32 v7, 4, v2
    s_waitcnt lgkmcnt(0)
    """)
    srd(a, 12, 4, NB_SD)
    srd(a, 16, 10, NB_SD, WS_Z)
    srd(a, 20, 10, 6912, WS_MOD)
    srd(a, 24, 10, NB_SD, WS_X1)
    srd(a, 32, 10, NB_SD, WS_H2)
    a("""
    buffer_load_dwordx4 v[12:15], v4, s[12:15], 0 offen
    buffer_load_dwordx2 v[16:17], v5, s[16:19], 0 offen
    buffer_load_dwordx2 v[18:19], v6, s[16:19], 0 offen
    buffer_load_dwordx4 v[20:23], v7, s[20:23], 0 offen
    buffer_load_dwordx4 v[24:27], v7, s[20:23], 0 offen offset:1152
    buffer_load_dwordx4 v[28:31], v7, s[20:23], 0 offen offset:2304
    buffer_load_dwordx4 v[32:35], v7, s[20:23], 0 offen offset:3456
    v_add_u32 v10, 4608, v7
    buffer_load_dwordx4 v[36:39], v10, s[20:23], 0 offen
    v_lshrrev_b32 v8, 6, v0
    v_lshlrev_b32 v8, 2, v8
    v_bfe_u32 v9, v0, 5, 1
    v_lshl_add_u32 v9, v9, 3, v1
    v_lshlrev_b32 v9, 6, v9
    v_add_u32 v8, v8, v9
    v_lshrrev_b32 v10, 5, v3
    v_mul_u32_u24 v10, 36864, v10
    v_lshl_add_u32 v10, v2, 9, v10
    v_and_b32 v11, 31, v3
    v_lshl_add_u32 v10, v11, 4, v10
    s_waitcnt vmcnt(7)
    """)
    Q = 56
    for e in range(8): unpack(a, Q+e, 12, e)
    row_stats(a, Q, 0, 'a')
    a("s_waitcnt vmcnt(2)")
    X = 64
    for e in range(8):
        a(f"v_fma_f32 v{X+e}, v{Q+e}, v40, v41")
        unpack(a, 44, 24, e); unpack(a, 45, 20, e)
        a(f"v_fma_f32 v{X+e}, v{X+e}, v44, v45")
        unpack(a, 46, 16, e); unpack(a, 47, 28, e)
        a(f"v_mul_f32 v{X+e}, v{X+e}, v46")
        a(f"v_fma_f32 v{X+e}, v{X+e}, v47, v{Q+e}")
    for i in range(4):
        a(f"v_cvt_pk_bf16_f32 v{72+i}, v{X+2*i}, v{X+2*i+1}")
    a("buffer_store_dwordx4 v[72:75], v4, s[24:27], 0 offen")
    for e in range(8): unpack(a, X+e, 72, e)
    row_stats(a, X, 1024, 'b')
    a("s_waitcnt vmcnt(1)")
    for e in range(8):
        a(f"v_fma_f32 v{X+e}, v{X+e}, v40, v41")
        unpack(a, 44, 36, e); unpack(a, 45, 32, e)
        a(f"v_fma_f32 v{X+e}, v{X+e}, v44, v45")
    for i in range(4):
        a(f"v_cvt_pk_bf16_f32 v{76+i}, v{X+2*i}, v{X+2*i+1}")
    a("""
    buffer_store_dwordx4 v[76:79], v10, s[32:35], 0 offen
    L_k2_end:
    s_endpgm
    """)
    return a.text(), kernel_desc(name, 80, 40), f"; @launch kernel={name} grid=(256,1,1) block=(576,1,1) lds=2048"

def gen_k4(name='red_kernel'):
    a = Asm()
    a(kernel_head(name))
    a(f"""
    s_cmp_ge_u32 s2, 256
    s_cbranch_scc1 L_k4_end
    s_load_dwordx2 s[4:5], s[0:1], {OUT}
    s_load_dwordx2 s[10:11], s[0:1], {WS}
    """)
    row_prologue(a)
    a("""
    v_lshrrev_b32 v4, 6, v0
    v_lshrrev_b32 v5, 5, v3
    v_mul_u32_u24 v5, 9, v5
    v_add_u32 v5, v5, v4
    v_lshlrev_b32 v5, 12, v5
    v_bfe_u32 v6, v0, 3, 2
    v_lshl_add_u32 v5, v6, 10, v5
    v_bfe_u32 v7, v0, 5, 1
    v_lshl_add_u32 v5, v7, 9, v5
    v_and_b32 v8, 31, v3
    v_lshl_add_u32 v5, v8, 4, v5
    v_lshlrev_b32 v9, 7, v4
    v_lshl_add_u32 v9, v6, 5, v9
    v_lshl_add_u32 v9, v7, 4, v9
    v_mul_u32_u24 v10, 1152, v3
    v_add_u32 v10, v10, v9
    s_waitcnt lgkmcnt(0)
    """)
    srd(a, 12, 4, NB_SD)
    srd(a, 16, 10, NB_P, WS_P)
    srd(a, 20, 10, 1152, WS_MOD + 5*1152)
    srd(a, 24, 10, NB_SD, WS_X1)
    a("s_mov_b32 s30, 0")
    for sl in range(16):
        a(f"buffer_load_dwordx4 v[{32+4*sl}:{35+4*sl}], v5, s[16:19], s30 offen")
        if sl < 15: a(f"s_add_u32 s30, s30, {16*4*9*4096}")
    a("""
    buffer_load_dwordx4 v[12:15], v10, s[24:27], 0 offen
    buffer_load_dwordx4 v[16:19], v9, s[20:23], 0 offen
    """)
    for sl in range(16):
        a(f"s_waitcnt vmcnt({17-sl})")
        for e in range(8):
            if sl == 0:
                unpack(a, 20+e, 32, e)
            else:
                unpack(a, 28+(e&1), 32+4*sl, e)
                a(f"v_add_f32 v{20+e}, v{20+e}, v{28+(e&1)}")
    a("s_nop 1")
    for e in range(4):
        a(f"v_permlane32_swap_b32 v{20+e}, v{24+e}")
    a("s_waitcnt vmcnt(0)")
    for e in range(8):
        unpack(a, 28, 12, e); unpack(a, 29, 16, e)
        a(f"v_fma_f32 v{20+e}, v{20+e}, v29, v28")
    for i in range(4):
        a(f"v_cvt_pk_bf16_f32 v{32+i}, v{20+2*i}, v{21+2*i}")
    a("""
    buffer_store_dwordx4 v[32:35], v10, s[12:15], 0 offen
    L_k4_end:
    s_endpgm
    """)
    return a.text(), kernel_desc(name, 96, 40), f"; @launch kernel={name} grid=(256,1,1) block=(576,1,1) lds=0"
```

```python
from common import *
SLOT = 36864
K3_LDS = 4*SLOT
C1, C2 = 0xc0135761, 0xbdd2d3e8

ACC, STG, HH = 0, 64, 128
TMP = 200
VC1 = 204
RB = 206
TF, TH, TD = 208, 210, 212
VF, VH, VD = 216, 220, 224
VL16 = 225
VT = 226
H2 = 0
FR = 144
S_W, S_D, S_H, S_P = 12, 16, 20, 24
S_WAVE, S_M0F, S_M0D = 28, 29, 30
S_BF, S_BH, S_DF, S_DH = 31, 32, 33, 34
S_SO, S_PO, S_C2, S_HO = 35, 36, 37, 38

def gen_k3(name='ffn_kernel', R=12, DBAR=7, DMA_GAP=4, BUDGET=6, store_flags='', stamp=False):
    a = Asm()
    a(kernel_head(name))
    a(f"""
    s_cmp_ge_u32 s2, 256
    s_cbranch_scc1 L_k3_end
    s_load_dwordx4 s[4:7], s[0:1], {W_G}
    s_load_dwordx2 s[8:9], s[0:1], {W_D}
    s_load_dwordx2 s[10:11], s[0:1], {WS}
    v_lshrrev_b32 v{VT}, 6, v0
    v_and_b32 v{VT+1}, 63, v0
    s_and_b32 s40, s2, 7
    v_readfirstlane_b32 s{S_WAVE}, v{VT}
    s_lshr_b32 s41, s2, 3
    s_and_b32 s42, s41, 1
    s_lshr_b32 s41, s41, 1
    s_mul_i32 s43, s40, 576
    s_mul_i32 s44, s42, 320
    s_add_u32 s44, s44, s43
    s_lshl_b32 s45, s42, 5
    s_add_u32 s45, s45, s43
    s_add_u32 s45, s45, 256
    s_lshl_b32 s{S_BF}, s44, 1
    s_lshl_b32 s{S_BH}, s45, 1
    s_mul_i32 s{S_DF}, s44, 1152
    s_mul_i32 s{S_DH}, s45, 1152
    s_lshl_b32 s46, s41, 2
    s_add_u32 s46, s46, s{S_WAVE}
    s_mul_i32 s{S_HO}, s46, 36864
    s_lshl_b32 s47, s40, 1
    s_add_u32 s47, s47, s42
    s_lshl_b32 s47, s47, 6
    s_add_u32 s47, s47, s46
    s_mul_i32 s{S_PO}, s47, {9*4096}
    s_mul_i32 s{S_M0F}, s{S_WAVE}, 9216
    s_lshl_b32 s{S_M0D}, s{S_WAVE}, 10
    s_mov_b32 s{S_C2}, {C2:#x}
    v_mov_b32 v{VC1}, {C1:#x}
    v_lshlrev_b32 v{VL16}, 4, v{VT+1}
    """)
    L, T0, T1, T2, T3 = VT+1, VT+2, VT+3, VT+4, VT+5
    WV = VT
    a(f"""
    v_lshrrev_b32 v{T0}, 3, v{L}
    v_bfe_u32 v{T1}, v{L}, 4, 1
    v_lshlrev_b32 v{T1}, 2, v{T1}
    v_and_b32 v{T2}, 7, v{L}
    v_xor_b32 v{T1}, v{T1}, v{T2}
    v_lshlrev_b32 v{T1}, 4, v{T1}
    v_and_b32 v{T2}, 1, v{WV}
    v_mul_u32_u24 v{T3}, 72, v{T2}
    v_add_u32 v{T3}, v{T3}, v{T0}
    v_mul_u32_u24 v{T3}, 9216, v{T3}
    v_add_u32 v{VF}, v{T3}, v{T1}
    v_add_u32 v{VF+1}, {8*9216-1024}, v{VF}
    v_add_u32 v{VF+2}, {2*(8*9216-1024)}, v{VF}
    v_add_u32 v{VF+3}, {3*(8*9216-1024)}, v{VF}
    s_waitcnt lgkmcnt(0)
    s_cmp_ge_u32 s{S_WAVE}, 2
    s_cselect_b32 s{S_W}, s6, s4
    s_cselect_b32 s{S_W+1}, s7, s5
    s_mov_b32 s{S_W+2}, {D*DF*2:#x}
    s_mov_b32 s{S_W+3}, 0x20000
    """)
    srd(a, S_H, 10, NB_SD, WS_H2)

    vm = []
    def vm_wait_n(tag):
        idx = max(i for i, t in enumerate(vm) if t == tag)
        return len(vm) - 1 - idx

    def dma_ops(st):
        slot = (st & 3)*SLOT
        ops = []
        if st < 18:
            if st < 16:
                base, vv, rs = S_BF, VF, 8*9216
                imm0 = (st >> 2)*128 + (st & 3)*144*9216
            else:
                base, vv, rs = S_BH, VH, 16*9216
                imm0 = (st - 16)*288*9216
            for j in range(9):
                grp = []
                if j % 4 == 0:
                    grp.append(f"s_add_u32 m0, s{S_M0F}, {slot + j*1024}")
                    grp.append(f"s_add_u32 s{S_SO}, s{base}, {imm0 + j*rs}")
                o = f" offset:{(j%4)*1024}" if j % 4 else ""
                grp.append(f"buffer_load_dwordx4 v{vv + j%4}, s[{S_W}:{S_W+3}], s{S_SO} offen{o} lds")
                ops.append(grp)
        else:
            b = st - 18
            for j in range(9):
                grp = [f"s_add_u32 m0, s{S_M0D}, {slot + j*4096}"]
                if j < 8: grp.append(f"s_add_u32 s{S_SO}, s{S_DF}, {32*j*1152 + b*128}")
                else:     grp.append(f"s_add_u32 s{S_SO}, s{S_DH}, {b*128}")
                grp.append(f"buffer_load_dwordx4 v{VD}, s[{S_D}:{S_D+3}], s{S_SO} offen lds")
                ops.append(grp)
        return ops
    def emit_dma(st):
        for grp in dma_ops(st):
            for ins in grp: a(ins)
            vm.append(('D', st))
    def emit_h2(q):
        for s in range(9*q, 9*q+9):
            if s % 4 == 0 or s == 9*q:
                a(f"s_add_u32 s39, s{S_HO}, {(s & ~3)*1024}")
            o = f" offset:{(s&3)*1024}" if s & 3 else ""
            a(f"buffer_load_dwordx4 a[{H2+4*s}:{H2+4*s+3}], v{VL16}, s[{S_H}:{S_H+3}], s39 offen{o}")
            vm.append(('D', q))
    for q in range(3):
        emit_dma(q); emit_h2(q)
    emit_h2(3)
    srd(a, S_D, 8, D*DF*2)
    srd(a, S_P, 10, NB_P, WS_P)
    a(f"""
    v_lshrrev_b32 v{T0}, 2, v{L}
    v_mul_u32_u24 v{T3}, 144, v{T2}
    v_add_u32 v{T3}, v{T3}, v{T0}
    v_mul_u32_u24 v{T3}, 9216, v{T3}
    v_and_b32 v{T0}, 3, v{L}
    v_lshl_add_u32 v{VH}, v{T0}, 4, v{T3}
    v_add_u32 v{VH+1}, {16*9216-1024}, v{VH}
    v_add_u32 v{VH+2}, {2*(16*9216-1024)}, v{VH}
    v_add_u32 v{VH+3}, {3*(16*9216-1024)}, v{VH}
    v_bfe_u32 v{T0}, v{L}, 3, 2
    v_lshl_add_u32 v{T0}, v{WV}, 2, v{T0}
    v_lshrrev_b32 v{T2}, 5, v{L}
    v_lshl_add_u32 v{T0}, v{T2}, 4, v{T0}
    v_mul_u32_u24 v{T0}, 1152, v{T0}
    v_add_u32 v{VD}, v{T0}, v{T1}
    """)
    a(f"""
    v_bfe_u32 v{T0}, v{L}, 2, 2
    v_bfe_u32 v{T1}, v{L}, 4, 1
    v_lshlrev_b32 v{T1}, 5, v{T1}
    v_and_b32 v{T3}, 3, v{L}
    v_lshl_add_u32 v{T1}, v{T3}, 3, v{T1}
    v_lshl_add_u32 v{T3}, v{T2}, 3, v{T0}
    v_lshl_add_u32 v{TH}, v{T3}, 6, v{T1}
    v_lshl_add_u32 v{T1}, v{T0}, 7, v{T1}
    v_lshrrev_b32 v{T0}, 1, v{T0}
    v_lshl_add_u32 v{T1}, v{T0}, 6, v{T1}
    v_lshl_add_u32 v{TF}, v{T2}, 10, v{T1}
    v_xor_b32 v{TF+1}, 64, v{TF}
    """)
    TDx = TF

    M = []
    for st in range(27):
        if st < 16:
            c, q = st >> 2, st & 3
            for ks in range(9):
                g = 9*q + ks
                for t, (mat, h) in enumerate([(0,0),(1,0),(0,1),(1,1)]):
                    imm = mat*18432 + ks*2048
                    M.append(dict(st=st, rb=h, imm=(imm, imm+512), B=f"a[{H2+4*g}:{H2+4*g+3}]",
                                  C=None if g == 0 else ACC+16*t, D=(STG if g == 35 else ACC)+16*t,
                                  done=('G', c, h) if (g == 35 and mat == 1) else None))
        elif st < 18:
            q = st - 16
            for ks in range(18):
                g = 18*q + ks
                for t in range(2):
                    imm = t*18432 + ks*1024
                    M.append(dict(st=st, rb=0, imm=(imm, imm+256), B=f"a[{H2+4*g}:{H2+4*g+3}]",
                                  C=None if g == 0 else ACC+16*t, D=ACC+16*t,
                                  done=('G', 4, 0) if (g == 35 and t == 1) else None))
        else:
            b = st - 18
            for ks in range(18):
                for h in range(2):
                    imm = (ks >> 1)*4096 + (ks & 1)*512
                    M.append(dict(st=st, rb=h, imm=(imm, imm+2048), B=f"v[{HH+4*ks}:{HH+4*ks+3}]", hh=ks,
                                  C=None if ks == 0 else ACC+32+16*h, D=(STG+16*h if ks == 17 else ACC+32+16*h),
                                  done=('O', b, h) if ks == 17 else None))
    N = len(M)
    assert N == 972

    Q = []
    def gelu_items(c, h, ready):
        if c < 4: G, U, kk0 = STG+32*h, STG+32*h+16, 4*c + 2*h
        else:     G, U, kk0 = ACC, ACC+16, 16
        for r0 in range(0, 16, 4):
            E = range(4)
            seq = []
            seq += [(f"v_mul_f32 v{TMP+e}, v{G+r0+e}, v{G+r0+e}", 1) for e in E]
            seq += [(f"v_fma_f32 v{TMP+e}, v{TMP+e}, s{S_C2}, v{VC1}", 1) for e in E]
            seq += [(f"v_mul_f32 v{TMP+e}, v{G+r0+e}, v{TMP+e}", 1) for e in E]
            seq += [(f"v_exp_f32 v{TMP+e}, v{TMP+e}", 2) for e in E]
            seq += [(f"v_mul_f32 v{U+r0+e}, v{G+r0+e}, v{U+r0+e}", 1) for e in E]
            seq += [(f"v_add_f32 v{TMP+e}, 1.0, v{TMP+e}", 1) for e in E]
            seq += [(f"v_rcp_f32 v{TMP+e}, v{TMP+e}", 2) for e in E]
            seq += [(f"v_mul_f32 v{U+r0+e}, v{U+r0+e}, v{TMP+e}", 1) for e in E]
            kk = kk0 + (r0 >> 3)
            d = HH + 4*kk + ((r0 & 7) >> 1)
            seq += [(f"v_cvt_pk_bf16_f32 v{d+i}, v{U+r0+2*i}, v{U+r0+2*i+1}", 1) for i in range(2)]
            for n, (ins, w) in enumerate(seq):
                Q.append(dict(ins=ins, w=w, tiles=(G, U), hh=kk if n >= len(seq)-2 else None, ready=ready, vm=None))
    def out_items(b, h, ready):
        Sg = STG + 16*h
        for i in range(2):
            for x in range(4):
                Q.append(dict(ins=f"v_cvt_pk_bf16_f32 v{Sg+8*i+x}, v{Sg+8*i+2*x}, v{Sg+8*i+2*x+1}", w=1, tiles=(Sg,), hh=None, ready=ready, vm=None))
            if h == 0 and i == 0:
                Q.append(dict(ins=f"s_add_u32 s39, s{S_PO}, {b*4096}", w=1, tiles=(Sg,), hh=None, ready=ready, vm=None))
            o = f" offset:{(2*h+i)*1024}" if (2*h+i) else ""
            Q.append(dict(ins=f"buffer_store_dwordx4 v[{Sg+8*i}:{Sg+8*i+3}], v{VL16}, s[{S_P}:{S_P+3}], s39 offen{o}{store_flags}", w=1, tiles=(Sg,), hh=None, ready=ready, vm='S'))

    cnt = [0]
    def E(ins):
        a(ins); cnt[0] += 1
    def emit_q():
        it = Q[0]
        if cnt[0] < it['ready']:
            n = it['ready'] - cnt[0]
            while n > 0:
                k = min(n, 16); E(f"s_nop {k-1}"); cnt[0] += k-1; n -= k
        Q.pop(0); E(it['ins'])
        if it['vm']: vm.append((it['vm'], 0))
        return it

    lds = []
    covered = [-1]
    rd_next = [0]
    rd_gap = {}
    enabled_stage = [0]
    cur_rb_stage = [-1]
    def set_rb(st):
        slot = (st & 3)*SLOT
        if 16 <= st < 18:
            E(f"v_add_u32 v{RB}, {slot}, v{TH}")
        else:
            E(f"v_add_u32 v{RB}, {slot}, v{TF}")
            E(f"v_add_u32 v{RB+1}, {slot}, v{TF+1}")
        cur_rb_stage[0] = st
    def can_read(i):
        j = rd_next[0] >> 1
        return j < N and j - i <= R - 1 and M[j]['st'] <= enabled_stage[0]
    def emit_read(i):
        j, p = rd_next[0] >> 1, rd_next[0] & 1
        n = 0
        if M[j]['st'] != cur_rb_stage[0]:
            c0 = cnt[0]; set_rb(M[j]['st']); n += cnt[0] - c0
        f = FR + 4*(j % R) + 2*p
        E(f"ds_read_b64_tr_b16 a[{f}:{f+1}], v{RB + M[j]['rb']} offset:{M[j]['imm'][p]}")
        lds.append(j); rd_next[0] += 1
        if p: rd_gap[j] = i
        return n + 1
    def wait_reads(i):
        if covered[0] >= i: return
        while (rd_next[0] >> 1) <= i: emit_read(i - 1)
        tgt = i
        for k in range(i+1, min(i+4, N)):
            if k in rd_gap and rd_gap[k] <= i - 4: tgt = k
            else: break
        n = sum(1 for j in lds if j > tgt)
        E(f"s_waitcnt lgkmcnt({min(n, 15)})")
        covered[0] = tgt

    dq = []
    dq += [(3, g) for g in dma_ops(3)]
    next_dma_gap = [1]

    E(f"s_waitcnt vmcnt({vm_wait_n(('D', 0))})")
    E("s_barrier")
    if stamp:
        E("s_memtime s[50:51]")
    while can_read(-1) and len(lds) < 14: emit_read(-1)

    for i in range(N):
        m = M[i]
        flushed = False
        def needs(it):
            if m.get('hh') is not None and it['hh'] == m['hh']: return True
            if m['D'] in it['tiles'] and m['D'] != m['C']: return True
            return False
        while any(needs(it) for it in Q):
            emit_q(); flushed = True
        if flushed: E("s_nop 1"); cnt[0] += 1
        wait_reads(i)
        f = FR + 4*(i % R)
        Cs = "0" if m['C'] is None else f"v[{m['C']}:{m['C']+15}]"
        E(f"v_mfma_f32_32x32x16_bf16 v[{m['D']}:{m['D']+15}], a[{f}:{f+3}], {m['B']}, {Cs}")
        if m['done']:
            kind, x, h = m['done']
            (gelu_items if kind == 'G' else out_items)(x, h, cnt[0] + 13)
        used = 0
        st = m['st']
        if (i + 1 + DBAR) % 36 == 0 and st < 26:
            while (rd_next[0] >> 1) < N and M[rd_next[0] >> 1]['st'] <= st:
                used += emit_read(i)
            while dq and dq[0][0] <= st + 1:
                s_, g = dq.pop(0)
                for ins in g: E(ins)
                vm.append(('D', s_))
            E(f"s_waitcnt vmcnt({vm_wait_n(('D', st+1))}) lgkmcnt(0)")
            E("s_barrier")
            used += 2
            covered[0] = (rd_next[0] >> 1) - 1
            enabled_stage[0] = st + 1
            if st + 4 < 27:
                dq += [(st+4, g) for g in dma_ops(st+4)]
            next_dma_gap[0] = i + 1
        nr = 0
        while nr < 3 and can_read(i):
            used += emit_read(i); nr += 1
        if dq and i >= next_dma_gap[0]:
            s_, g = dq.pop(0)
            for ins in g: E(ins); used += 1
            vm.append(('D', s_))
            next_dma_gap[0] = i + DMA_GAP
        while Q and cnt[0] >= Q[0]['ready'] and used + Q[0]['w'] <= BUDGET - (1 if covered[0] < i + 1 else 0):
            used += emit_q()['w']
    while Q: emit_q()
    if stamp:
        a(f"""
        s_memtime s[52:53]
        s_waitcnt vmcnt(0)
        s_memtime s[54:55]
        s_load_dwordx2 s[4:5], s[0:1], {WS}
        s_waitcnt lgkmcnt(0)
        s_sub_u32 s52, s52, s50
        s_sub_u32 s54, s54, s50
        """)
        srd(a, 56, 4, 65536, 0x8000000)
        a(f"""
        s_lshl_b32 s3, s2, 5
        s_lshl_b32 s6, s{S_WAVE}, 3
        s_add_u32 s3, s3, s6
        v_mov_b32 v{TMP}, s52
        v_mov_b32 v{TMP+1}, s54
        v_mov_b32 v{TMP+2}, s3
        buffer_store_dwordx2 v[{TMP}:{TMP+1}], v{TMP+2}, s[56:59], 0 offen
        """)
    a("L_k3_end:\ns_endpgm")
    return a.text(), kernel_desc(name, 256 + FR + 4*R, 64, 256), f"; @launch kernel={name} grid=(256,1,1) block=(256,1,1) lds={K3_LDS}"
```

```python
import sys
from common import *
from k0 import gen_k0
from k1 import gen_k1
from k2 import gen_k2, gen_k4
from k3 import gen_k3
REF = 'adaLN_cond__ssm_conv_h3__glu_gated_geglu__prompt.s.ref'
def build(parts):
    pre = [l for l in open(REF).read().split('\n') if l.startswith(';') and '@launch' not in l and 'Override launch' not in l and 'grid=ceil' not in l]
    out = pre + [p[2] for p in parts]
    out += ['.amdgcn_target "amdgcn-amd-amdhsa--gfx950"', '.text']
    seen = set()
    for p in parts:
        if p[0] not in seen: out.append(p[0])
        seen.add(p[0])
    out.append('.section .rodata,"a"')
    seen = set()
    for p in parts:
        if p[1] not in seen: out.append(p[1])
        seen.add(p[1])
    return '\n'.join(out) + '\n'
def full(**kw):
    return build([gen_k0(), gen_k1(), gen_k2(), gen_k3(**kw), gen_k4()])
if __name__ == '__main__':
    dst = sys.argv[1] if len(sys.argv) > 1 else 'adaLN_cond__ssm_conv_h3__glu_gated_geglu__prompt.s'
    open(dst, 'w').write(full())
```

```python
from gen import *
def empty(name, grid=256):
    return (kernel_head(name) + "\n  s_endpgm", kernel_desc(name, 8, 16), f"; @launch kernel={name} grid=({grid},1,1) block=(64,1,1) lds=0")
base = [gen_k0(), gen_k1(), gen_k2(), gen_k3(), gen_k4()]
open('v_base.s','w').write(build(base))
open('v_e4.s','w').write(build(base + [empty('e_kernel')]*4))
open('v_e8.s','w').write(build(base + [empty('e_kernel')]*8))
open('v_pre4.s','w').write(build([empty('e_kernel')]*4 + base))
open('v_ffn2.s','w').write(build(base[:4] + [base[3]] + base[4:]))
open('v_all2.s','w').write(build(base + base))
```

```python
S, D, DF = 2048, 576, 4608
NB_SD = S*D*2
A_Q, A_K, A_V, A_SK, A_SSMK, A_SSMD, B_X, W_G, W_U, W_D, C_, W_MOD, OUT, DBG, WS = [8*i for i in range(15)]
WS_U   = 0x0000000
WS_Z   = 0x0240000
WS_H2  = 0x0480000
WS_X1  = 0x06C0000
WS_MOD = 0x0900000
WS_P   = 0x1000000
NB_P   = 16*16*4*9*4096

class Asm:
    def __init__(self):
        self.L = []
    def __call__(self, s):
        for line in s.strip('\n').split('\n'):
            line = line.strip()
            if line:
                self.L.append(line)
    def text(self):
        out = []
        for l in self.L:
            if l.endswith(':') or l.startswith('.'):
                out.append(l)
            else:
                out.append('  ' + l)
        return '\n'.join(out)

def srd(a, dst, ptr, nbytes, off=0):
    if off:
        a(f"s_add_u32 s{dst}, s{ptr}, {off:#x}\ns_addc_u32 s{dst+1}, s{ptr+1}, 0")
    else:
        a(f"s_mov_b32 s{dst}, s{ptr}\ns_mov_b32 s{dst+1}, s{ptr+1}")
    a(f"s_mov_b32 s{dst+2}, {nbytes:#x}\ns_mov_b32 s{dst+3}, 0x20000")

def lo(a, d, s):
    a(f"v_lshlrev_b32 v{d}, 16, v{s}")
def hi(a, d, s):
    a(f"v_and_b32 v{d}, 0xffff0000, v{s}")
def unpack(a, d, s, e):
    (hi if e & 1 else lo)(a, d, s + (e >> 1))

def kernel_head(name):
    return f".globl {name}\n.p2align 8\n.type {name},@function\n{name}:"

def kernel_desc(name, vgpr, sgpr, accum=None):
    if STAMP[0]: sgpr = 100
    if accum is None:
        accum = min(256, (vgpr + 3)//4*4)
    return "\n".join(['.p2align 6', f'.amdhsa_kernel {name}', f'  .amdhsa_next_free_vgpr {vgpr}',
        f'  .amdhsa_next_free_sgpr {sgpr}', f'  .amdhsa_accum_offset {accum}',
        '  .amdhsa_group_segment_fixed_size 0', '  .amdhsa_kernarg_size 120',
        '  .amdhsa_user_sgpr_count 2', '  .amdhsa_user_sgpr_kernarg_segment_ptr 1',
        '  .amdhsa_system_sgpr_workgroup_id_x 1', '  .amdhsa_float_denorm_mode_32 3', '.end_amdhsa_kernel'])

_pcn = [0]
def code_srd(a, dst, tmp, start, end):
    _pcn[0] += 1
    l = f"L_pc_{_pcn[0]}"
    a(f"""
    s_getpc_b64 s[{tmp}:{tmp+1}]
    {l}:
    s_add_u32 s{dst}, s{tmp}, {start}-{l}
    s_addc_u32 s{dst+1}, s{tmp+1}, 0
    s_mov_b32 s{dst+2}, {end}-{start}
    s_mov_b32 s{dst+3}, 0x20000
    """)

STAMP = [False]
def stamp(a, i):
    if STAMP[0]: a(f"s_memrealtime s[{72+2*i}:{73+2*i}]")
def stamp_flush(a, kern, n, vt):
    if not STAMP[0]: return
    a(f"s_waitcnt vmcnt(0)\ns_memrealtime s[{72+2*n}:{73+2*n}]\ns_load_dwordx2 s[90:91], s[0:1], {WS}\ns_mov_b64 exec, -1\ns_waitcnt lgkmcnt(0)")
    srd(a, 92, 90, 0x40000, 0x8200000 + kern*0x40000)
    a(f"v_lshrrev_b32 v{vt}, 6, v0\nv_lshlrev_b32 v{vt}, 5, v{vt}\ns_lshl_b32 s90, s2, 9\nv_add_u32 v{vt}, s90, v{vt}")
    for i in range(n+1):
        a(f"v_mov_b32 v{vt+1}, s{72+2*i}\nbuffer_store_dword v{vt+1}, v{vt}, s[92:95], 0 offen offset:{4*i}")
```

```python
from common import *
import math, struct
SLOT = 24576
NSLOT = 6
RING = NSLOT*SLOT
_c1 = 2*math.sqrt(2/math.pi)*math.log2(math.e); _c2 = _c1*0.044715
ALPHA = _c2**(1/3)
KT = _c1/ALPHA
def f2u(x): return struct.unpack('<I', struct.pack('<f', x))[0]

P_Q, P_K, P_V, P_SK, P_SSMK, P_SSMD, P_WG, P_WU, P_WD, P_C, P_WMOD, P_OUT, P_WS = 64, 66, 68, 70, 72, 74, 78, 80, 82, 84, 86, 88, 92
S_TAG, S_WAVE, S_SPIN, S_ONE = 94, 95, 96, 97
S_MT, S_GI, S_OOB = 49, 50, 51
S_FL = 60
LANE = 254
ACC, STG, HH = 0, 64, 128
TMP = 200
RBH = 204
TF, TH, TD = 208, 209, 210
VF, VH, VD = 216, 220, 224
VL16 = 225
RBF = 226
H2 = 0
FR = 144
X1A = 208
S_W, S_D, S_H, S_P = 12, 16, 20, 24
S_M0F, S_M0D = 29, 30
S_BF, S_BH, S_DF, S_DH = 31, 32, 33, 34
S_SO, S_PO, S_KT, S_HO, S_HS, S_SS = 35, 36, 37, 38, 39, 48
OBUF = [ACC+32, STG, ACC, STG+32]

def isize(ins):
    op = ins.split()[0]
    if op.endswith(':'): return 0
    if op in ('s_waitcnt', 's_barrier', 's_nop', 's_cbranch_scc1', 's_branch'): return 4
    if op in ('v_mul_f32', 'v_add_f32', 'v_rcp_f32', 'v_exp_f32') and '0x' not in ins and '-' not in ins: return 4
    return 8

class Hops:
    def __init__(self, prefix):
        self.prefix, self.n, self.bytes = prefix, 0, 1 << 20
    def add(self, ins): self.bytes += isize(ins)
    def due(self, margin=40): return self.bytes >= 128 - margin
    def emit(self):
        s = f"{self.prefix}_{self.n}:\ns_cbranch_scc1 @HOP@{self.prefix}@{self.n}@"
        self.n += 1; self.bytes = 4
        return s
    def resolve(self, a, ncall):
        nseg = 4*ncall
        self.start = [self.n*k//nseg for k in range(nseg+1)]
        ends = {self.start[k+1]-1: k//4 for k in range(nseg)}
        for i, l in enumerate(a.L):
            if f'@HOP@{self.prefix}@' in l:
                n = int(l.split('@')[3])
                tgt = f"{self.prefix}_ret{ends[n]}" if n in ends else f"{self.prefix}_{n+1}"
                a.L[i] = f"s_cbranch_scc1 {tgt}"
            elif f'@CALL@{self.prefix}@' in l:
                c, w = int(l.split('@')[3]), int(l.split('@')[4])
                a.L[i] = f"s_cbranch_scc1 {self.prefix}_{self.start[4*c+w]}"
    def call(self, a, c):
        for w in range(4):
            a(f"s_cmp_eq_u32 s{S_WAVE}, {w}")
            a.L.append(f"@CALL@{self.prefix}@{c}@{w}@")
        a(f"{self.prefix}_ret{c}:")

def down_items(interleave):
    it = []
    if interleave:
        it += [(0, k) for k in range(6)] + [(1, k) for k in range(6)]
        it += [(0, 6), (0, 7), (1, 6), (1, 7), (0, 8), (1, 8)]
        b0 = 2
    else:
        b0 = 0
    for b in range(b0, 9):
        it += [(b, k) for k in range(9)]
    return it

def base_ops(dst, T, npair, ntile):
    ops = []
    for p in range(npair):
        ops.append(f"v_add_u32 v{dst+ntile*p}, {2*SLOT*p}, v{T}")
        for t in range(1, ntile):
            ops.append(f"v_xor_b32 v{dst+ntile*p+t}, {32*t}, v{dst+ntile*p}")
    return ops

def dma_ops(st, DI):
    slot = (st % NSLOT)*SLOT
    ops = []
    if st < 27:
        if st < 24:
            base, vv, rs = S_BF, VF, 8*9216
            imm0 = (st // 6)*128 + (st % 6)*96*9216
        else:
            base, vv, rs = S_BH, VH, 16*9216
            imm0 = (st - 24)*192*9216
        for j in range(6):
            sc = []
            if j % 4 == 0:
                sc = [f"s_add_u32 m0, s{S_M0F}, {slot + j*1024}", f"s_add_u32 s{S_SO}, s{base}, {imm0 + j*rs}"]
            o = f" offset:{(j%4)*1024}" if j % 4 else ""
            ops.append((sc, f"buffer_load_dwordx4 v{vv + j%4}, s[{S_W}:{S_W+3}], s{S_SO} offen{o} lds"))
    else:
        for j, (b, k) in enumerate(DI[6*(st-27):6*(st-27)+6]):
            sc = [f"s_add_u32 m0, s{S_M0D}, {slot + j*4096}",
                  f"s_add_u32 s{S_SO}, s{S_DF}, {32*k*1152 + b*128}" if k < 8 else f"s_add_u32 s{S_SO}, s{S_DH}, {b*128}"]
            ops.append((sc, f"buffer_load_dwordx4 v{VD}, s[{S_D}:{S_D+3}], s{S_SO} offen lds"))
    return ops

def ffn_prefill(a, stages):
    for st in stages:
        for sc, ins in dma_ops(st, None):
            for s_ in sc: a(s_)
            a(ins)

def ffn_setup(a, T):
    L, T0, T1, T2, T3 = LANE, T, T+1, T+2, T+3
    RS = 8*9216 - 1024; RH = 16*9216 - 1024
    a(f"""
    s_and_b32 s40, s2, 7
    s_and_b32 s42, s{S_GI}, 1
    s_mul_i32 s43, s40, 576
    s_mul_i32 s44, s42, 320
    s_add_u32 s44, s44, s43
    s_lshl_b32 s45, s42, 5
    s_add_u32 s45, s45, s43
    s_add_u32 s45, s45, 256
    s_lshl_b32 s{S_BF}, s44, 1
    s_lshl_b32 s{S_BH}, s45, 1
    s_mul_i32 s{S_DF}, s44, 1152
    s_mul_i32 s{S_DH}, s45, 1152
    s_lshl_b32 s46, s{S_MT}, 2
    s_add_u32 s46, s46, s{S_WAVE}
    s_mul_i32 s{S_HO}, s46, 36864
    s_lshl_b32 s47, s{S_GI}, 6
    s_add_u32 s47, s47, s46
    s_mul_i32 s{S_PO}, s47, {9*4096}
    s_mul_i32 s{S_M0F}, s{S_WAVE}, 6144
    s_lshl_b32 s{S_M0D}, s{S_WAVE}, 10
    s_mov_b32 s{S_KT}, {f2u(-KT):#x}
    s_cmp_ge_u32 s{S_WAVE}, 2
    s_cselect_b32 s{S_W}, s{P_WU}, s{P_WG}
    s_cselect_b32 s{S_W+1}, s{P_WU+1}, s{P_WG+1}
    s_mov_b32 s{S_W+2}, {D*DF*2:#x}
    s_mov_b32 s{S_W+3}, 0x20000
    s_and_b32 s40, s{S_WAVE}, 1
    s_mul_i32 s41, s40, {48*9216}
    s_mul_i32 s42, s40, {96*9216}
    s_mul_i32 s43, s{S_WAVE}, {8*1152}
    v_lshlrev_b32 v{VL16}, 4, v{L}
    v_lshrrev_b32 v{T0}, 3, v{L}
    v_bfe_u32 v{T1}, v{L}, 4, 1
    v_lshlrev_b32 v{T1}, 1, v{T1}
    v_and_b32 v{T2}, 7, v{L}
    v_xor_b32 v{T1}, v{T1}, v{T2}
    v_lshlrev_b32 v{T1}, 4, v{T1}
    v_mul_u32_u24 v{T3}, 9216, v{T0}
    v_add_u32 v{T3}, s41, v{T3}
    v_add_u32 v{VF}, v{T3}, v{T1}
    v_xor_b32 v{T1}, 64, v{T1}
    v_add_u32 v{VF+1}, v{T3}, v{T1}
    v_add_u32 v{VF+2}, {2*RS}, v{VF}
    v_add_u32 v{VF+3}, {3*RS}, v{VF+1}
    v_add_u32 v{VF+1}, {RS}, v{VF+1}
    """)
    srd(a, S_D, P_WD, D*DF*2)
    a(f"""
    v_lshrrev_b32 v{T0}, 2, v{L}
    v_mul_u32_u24 v{T3}, 9216, v{T0}
    v_add_u32 v{T3}, s42, v{T3}
    v_and_b32 v{T0}, 3, v{L}
    v_lshrrev_b32 v{T1}, 5, v{L}
    v_lshlrev_b32 v{T1}, 1, v{T1}
    v_xor_b32 v{T0}, v{T0}, v{T1}
    v_lshl_add_u32 v{VH}, v{T0}, 4, v{T3}
    v_add_u32 v{VH+1}, {RH}, v{VH}
    v_add_u32 v{VH+2}, {2*RH}, v{VH}
    v_add_u32 v{VH+3}, {3*RH}, v{VH}
    v_lshrrev_b32 v{T0}, 3, v{L}
    v_mul_u32_u24 v{T1}, 1152, v{T0}
    v_add_u32 v{T1}, s43, v{T1}
    v_and_b32 v{T0}, 6, v{T0}
    v_and_b32 v{T2}, 7, v{L}
    v_xor_b32 v{T0}, v{T0}, v{T2}
    v_lshl_add_u32 v{VD}, v{T0}, 4, v{T1}
    v_lshrrev_b32 v{T2}, 4, v{L}
    v_bfe_u32 v{T0}, v{L}, 2, 2
    v_and_b32 v{T3}, 3, v{L}
    v_lshlrev_b32 v{T3}, 3, v{T3}
    v_lshl_add_u32 v{T1}, v{T2}, 3, v{T0}
    v_lshl_add_u32 v{TF}, v{T1}, 7, v{T3}
    v_lshl_add_u32 v{TH}, v{T1}, 6, v{T3}
    v_lshl_add_u32 v{T1}, v{T2}, 2, v{T0}
    v_lshl_add_u32 v{TD}, v{T1}, 7, v{T3}
    v_bfe_u32 v{T1}, v{T1}, 1, 2
    v_lshl_add_u32 v{TD}, v{T1}, 5, v{TD}
    v_and_b32 v{T2}, 1, v{T2}
    v_lshl_add_u32 v{TH}, v{T2}, 5, v{TH}
    v_lshrrev_b32 v{T0}, 1, v{T0}
    v_lshl_add_u32 v{T0}, v{T2}, 1, v{T0}
    v_lshl_add_u32 v{TF}, v{T0}, 5, v{TF}
    """)
    for o in base_ops(RBF, TF, 3, 4) + base_ops(RBH, TH, 2, 2): a(o)

def ffn_setup2(a, T):
    srd(a, S_H, P_WS, NB_SD, WS_H2)
    srd(a, S_P, P_WS, NB_P, WS_P)

def ffn_main(a, hops=None, R=16, DBAR=16, RD_MARGIN=6, MINLEAD=5, store_flags=' sc1', interleave=True, NPRO=2, verbose=False,
             DEBT=2.0, WM=8, GSPAN=44, HSPAN=30, stamper=None):
    DI = down_items(interleave)
    NST = 27 + (len(DI) + 5)//6
    vm = []
    def vm_wait_n(tag):
        idx = [i for i, t in enumerate(vm) if t == tag]
        if not idx: return None
        n = len(vm) - 1 - max(idx)
        assert n <= 63
        return n
    def h2_ops(q):
        ops = []
        for mt in range(2):
            for n, ks in enumerate(range(3*q, 3*q+3)):
                sc = [f"s_add_u32 s{S_HS}, s{S_HO}, {mt*18432 + 3*q*1024}"] if n == 0 else []
                o = f" offset:{n*1024}" if n else ""
                r = H2 + 8*ks + 4*mt
                ops.append((sc, f"buffer_load_dwordx4 a[{r}:{r+3}], v{VL16}, s[{S_H}:{S_H+3}], s{S_HS} offen{o} sc1"))
        return ops
    dq = []
    for q in range(6):
        ops = h2_ops(q)
        if q < NPRO:
            for sc, ins in ops:
                for s_ in sc: a(s_)
                a(ins); vm.append(('D', q))
        else:
            dq += [[q, list(sc), ins] for sc, ins in ops]

    F = []; M = []
    def tile(base, idx): return base + 4*idx
    for st in range(NST):
        if st < 27:
            full = st < 24
            nks = 3 if full else 6
            nft = 4 if full else 2
            c = st // 6 if full else 4
            k0 = 3*(st % 6) if full else 6*(st - 24)
            rowb = 128 if full else 64
            for kb in range(0, nks, 3):
                for ft in range(nft):
                    for mat in range(2):
                        f0 = len(F)
                        for x in range(3):
                            imm = mat*12288 + (kb + x)*32*rowb
                            F.append(dict(st=st, rb=ft, imm=(imm, imm + 4*rowb)))
                        for mt in range(2):
                            for x in range(3):
                                ks = k0 + kb + x
                                t = (ft*2 + mat)*2 + mt
                                last = ks == 17
                                Dd = tile(STG if (last and full) else ACC, t)
                                M.append(dict(st=st, f=f0+x, B=f"a[{H2+8*ks+4*mt}:{H2+8*ks+4*mt+3}]",
                                              C=None if ks == 0 else tile(ACC, t), D=Dd,
                                              done=('G', c, ft, mt) if (last and mat == 1) else None))
        else:
            items = DI[6*(st-27):6*(st-27)+6]
            j = 0
            while j < len(items):
                b = items[j][0]
                n = 1
                while n < 3 and j + n < len(items) and items[j+n][0] == b: n += 1
                ab = OBUF[b % 4]
                for ct in range(4):
                    f0 = len(F)
                    for x in range(n):
                        imm = (j + x)*4096
                        F.append(dict(st=st, rb=ct, imm=(imm, imm + 2048)))
                    for mt in range(2):
                        for x in range(n):
                            k = items[j+x][1]
                            t = mt*4 + ct
                            M.append(dict(st=st, f=f0+x, B=f"v[{HH+8*k+4*mt}:{HH+8*k+4*mt+3}]", hh=(k, mt),
                                          C=None if k == 0 else tile(ab, t), D=tile(ab, t),
                                          done=('O', b, ct, mt) if (k == 8 and (ct & 1)) else None))
                j += n
    N = len(M)
    assert N == 1944
    for i, m in enumerate(M): F[m['f']]['last'] = i
    for i, m in reversed(list(enumerate(M))): F[m['f']]['first'] = i
    st_end = {}
    for i, m in enumerate(M): st_end[m['st']] = i + 1

    Q = []
    def add(ins, w, regs, hh=None, ready=0, vmt=None, sc=False):
        Q.append(dict(ins=ins, w=w, regs=regs, hh=hh, ready=ready, vm=vmt, sc=sc))
    def gelu_items(c, ft, mt, ready):
        base = STG if c < 4 else ACC
        G, U = tile(base, (ft*2)*2 + mt), tile(base, (ft*2+1)*2 + mt)
        k = (2*c + (ft >> 1)) if c < 4 else 8
        d = HH + 8*k + 4*mt + 2*(ft & 1)
        E = range(4)
        seq = []
        seq += [(f"v_fma_f32 v{TMP+e}, -v{G+e}, v{G+e}, s{S_KT}", 1) for e in E]
        seq += [(f"v_mul_f32 v{TMP+e}, v{G+e}, v{TMP+e}", 1) for e in E]
        seq += [(f"v_exp_f32 v{TMP+e}, v{TMP+e}", 2) for e in E]
        seq += [(f"v_mul_f32 v{U+e}, v{G+e}, v{U+e}", 1) for e in E]
        seq += [(f"v_add_f32 v{TMP+e}, 1.0, v{TMP+e}", 1) for e in E]
        seq += [(f"v_rcp_f32 v{TMP+e}, v{TMP+e}", 2) for e in E]
        seq += [(f"v_mul_f32 v{U+e}, v{U+e}, v{TMP+e}", 1) for e in E]
        seq += [(f"v_cvt_pk_bf16_f32 v{d+i}, v{U+2*i}, v{U+2*i+1}", 1) for i in range(2)]
        for n, (ins, w) in enumerate(seq):
            add(ins, w, (G, U), hh=(k, mt) if n >= len(seq)-2 else None, ready=ready)
    def out_items(b, ct, mt, ready):
        t0 = tile(OBUF[b % 4], mt*4 + ct - 1)
        regs = (t0, t0+4)
        for x in range(4):
            add(f"v_cvt_pk_bf16_f32 v{t0+x}, v{t0+2*x}, v{t0+2*x+1}", 1, regs, ready=ready)
        ip = ct >> 1
        if ct == 1 and mt == 0:
            add(f"s_add_u32 s{S_SS}, s{S_PO}, {b*4096}", 0, regs, ready=ready, sc=True)
        o = f" offset:{(2*mt+ip)*1024}" if (2*mt+ip) else ""
        add(f"buffer_store_dwordx4 v[{t0}:{t0+3}], v{VL16}, s[{S_P}:{S_P+3}], s{S_SS} offen{o}{store_flags}", 2, regs, ready=ready, vmt='S')

    cnt = [0]
    def E_(ins):
        cnt[0] += 1
        a(ins)
        if hops: hops.add(ins)
    def emit_q():
        it = Q[0]
        if cnt[0] < it['ready']:
            n = it['ready'] - cnt[0]
            while n > 0:
                k = min(n, 16); E_(f"s_nop {k-1}"); cnt[0] += k-1; n -= k
        Q.pop(0); E_(it['ins'])
        if it['vm']: vm.append((it['vm'], 0))
        return it
    def needs(m, it):
        if m.get('hh') is not None and it['hh'] == m['hh']: return True
        if m['D'] in it['regs'] and m['D'] != m['C']: return True
        return False
    def deadline(i):
        worst = 0.0; cum = 0; dl_cache = {}
        for it in Q:
            cum += it['w']
            key = (it['regs'], it['hh'])
            if key not in dl_cache:
                dl = None
                for j in range(i+1, min(N, i+400)):
                    if needs(M[j], it): dl = j; break
                dl_cache[key] = dl
            dl = dl_cache[key]
            if dl is not None:
                worst = max(worst, cum/max(1, dl - i - 1))
        if Q and worst == 0: worst = cum/max(1, min(N - i, 60))
        return worst

    lds = []; covered = [-1]; rd_next = [0]; rd_gap = {}; enabled = [0]
    def rbreg(fr):
        sl = fr['st'] % NSLOT
        if 24 <= fr['st'] < 27: return RBH + 2*(sl >> 1) + fr['rb'], (sl & 1)*SLOT
        return RBF + 4*(sl >> 1) + fr['rb'], (sl & 1)*SLOT
    def can_read(i):
        j = rd_next[0] >> 1
        if j >= len(F) or F[j]['st'] > enabled[0]: return False
        return j < R or F[j-R]['last'] <= i
    def emit_read(i):
        j, p = rd_next[0] >> 1, rd_next[0] & 1
        f = FR + 4*(j % R) + 2*p
        assert not (F[j]['st'] >= 27 and any(it['regs'] == ('rb',) for it in Q))
        r_, o_ = rbreg(F[j])
        E_(f"ds_read_b64_tr_b16 a[{f}:{f+1}], v{r_} offset:{F[j]['imm'][p] + o_}")
        lds.append(j); rd_next[0] += 1
        if p: rd_gap[j] = i
    def emit_wait(i_next, i):
        fj = M[i_next]['f']
        if covered[0] >= fj: return False
        while (rd_next[0] >> 1) <= fj:
            assert can_read(i), (i, fj)
            emit_read(i)
        tgt = fj
        for k in range(fj+1, min(fj+6, len(F))):
            if k in rd_gap and rd_gap[k] <= i - WM: tgt = k
            else: break
        n = sum(1 for j in lds if j > tgt)
        E_(f"s_waitcnt lgkmcnt({min(n, 15)})")
        covered[0] = tgt
        return True

    while can_read(-1) and len(lds) < 12: emit_read(-1)
    E_(f"s_waitcnt vmcnt({vm_wait_n(('D', 0))})")
    if stamper: stamper()
    E_("s_cmp_eq_u32 0, 1")
    emit_wait(0, -1)

    stats = dict(over=0, flush=0)
    cred_r = 0.0; cred_v = 0.0; cred_g = 0.0
    for i in range(N):
        m = M[i]
        flushed = False
        while any(needs(m, it) for it in Q):
            stats['flush'] += emit_q()['w']; flushed = True
        if flushed: E_("s_nop 1"); cnt[0] += 1
        f = FR + 4*(m['f'] % R)
        Cs = "0" if m['C'] is None else f"v[{m['C']}:{m['C']+3}]"
        E_(f"v_mfma_f32_16x16x32_bf16 v[{m['D']}:{m['D']+3}], a[{f}:{f+3}], {m['B']}, {Cs}")
        if m['done']:
            kind, x, y, mt = m['done']
            (gelu_items if kind == 'G' else out_items)(x, y, mt, cnt[0] + 9)
        st = m['st']
        used = 0; sc_used = 0
        if hops and hops.due(24):
            a(hops.emit()); cnt[0] += 1; sc_used = 1
        bar_gap = st_end[st] - DBAR - 1
        if i == bar_gap and st < NST - 1:
            while (rd_next[0] >> 1) < len(F) and F[rd_next[0] >> 1]['st'] <= st:
                emit_read(i); used += 1
            while dq and dq[0][0] <= st + 1:
                s_, sc, ins = dq.pop(0)
                for x in sc: E_(x)
                E_(ins); vm.append(('D', s_)); used += 2
            n = vm_wait_n(('D', st+1))
            E_(f"s_waitcnt vmcnt({n}) lgkmcnt(0)" if n is not None else "s_waitcnt lgkmcnt(0)")
            E_("s_barrier")
            sc_used = 2
            covered[0] = (rd_next[0] >> 1) - 1
            enabled[0] = st + 1
            if st + NSLOT < NST:
                dq += [[st+NSLOT, list(sc), ins] for sc, ins in dma_ops(st+NSLOT, DI)]
            if st + 1 == 24:
                Q[0:0] = [dict(ins=o, w=1, regs=('rb',), hh=None, ready=0, vm=None, sc=False) for o in base_ops(RBF, TD, 3, 4)]
        if i + 1 < N and emit_wait(i + 1, i): sc_used += 1
        if not sc_used and hops and hops.due(48):
            a(hops.emit()); cnt[0] += 1; sc_used = 1
        if not sc_used and dq and dq[0][1]:
            E_(dq[0][1].pop(0)); sc_used = 1
        if not sc_used and Q and Q[0]['sc'] and cnt[0] >= Q[0]['ready']:
            emit_q(); sc_used = 1
        jn = rd_next[0] >> 1
        lead = (F[jn]['first'] - i) if jn < len(F) else 999
        es = enabled[0]
        rem_r = sum(2 for fr in F[jn:jn+70] if fr['st'] == es) - (rd_next[0] & 1) if jn < len(F) and F[jn]['st'] == es else 0
        dl_r = (st_end[es] - DBAR - 1 - RD_MARGIN) if es < NST - 1 else st_end[es] - 10
        cred_r = min(cred_r + rem_r/max(1, dl_r - i), 2.5)
        cred_v += deadline(i)
        npend = len(dq)
        if npend:
            span = GSPAN if st >= 4 else HSPAN
            cred_g = min(cred_g + max(6, npend)/span, 1.5)
        want_g = dq and not dq[0][1] and cred_g >= 1 and lead >= 2*MINLEAD
        if want_g and used == 0 and not sc_used:
            s_, sc, ins = dq.pop(0)
            E_(ins); vm.append(('D', s_)); cred_g -= 1; used = 2
        nd = 0
        if used < 2 and can_read(i):
            head2 = Q and Q[0]['w'] == 2 and cnt[0] >= Q[0]['ready']
            if lead < 2*MINLEAD or cred_r >= 2: nd = 2
            elif cred_r >= 1: nd = 2 if (head2 or want_g) else 1
            elif not Q: nd = 1
            while nd and used < 2 and can_read(i):
                emit_read(i); used += 1; nd -= 1; cred_r -= 1
        while Q and cnt[0] >= Q[0]['ready'] and not Q[0]['sc']:
            w = Q[0]['w']
            if used + w <= 2: pass
            elif cred_v >= DEBT + w and used + w <= 4 and used <= 2: stats['over'] += used + w - 2
            else: break
            emit_q(); used += w; cred_v -= w
        if not Q: cred_v = 0
    while Q: emit_q()
    if verbose: print('ffn schedule:', stats, 'instr', cnt[0], 'hops', hops.n if hops else 0)
```

```python
import sys
from common import *
from ffn import *
NAME = 'adaLN_cond__ssm_conv_h3__glu_gated_geglu__prompt_kernel'
WS_EPOCH = 0x0A00000
WS_FL = 0x0A10000
FA, FB, FC, FD = 0, 0x8000, 0x10000, 0x18000
NB_MOD = 6*D*4
KSTR = 4160
WAVE_LDS = 4*KSTR + 4608
T_OFF = 4*WAVE_LDS
STAT_OFF = RING
LDS_TOTAL = RING + 1024
NCONV, NMOD = 144, 54
QP, ST = 240, 252
DIAG = 255
SPIN_MAX = 200000

class G:
    def __init__(self, diag=False, **kw):
        self.a = Asm(); self.diag = diag; self.kw = kw; self.nl = 0; self.nst = 0; self.names = []
    def lab(self, p):
        self.nl += 1; return f"L_{p}{self.nl}"
    def stamp(self, idx):
        if self.diag:
            self.a(f"s_memrealtime s[98:99]\ns_waitcnt lgkmcnt(0)\nv_writelane_b32 v{DIAG}, s98, {idx}")

    def signal(self, base, idx_sgpr):
        a = self.a; l = self.lab('sig')
        a(f"""
        s_waitcnt vmcnt(0)
        s_barrier
        s_cmp_lg_u32 s{S_WAVE}, 0
        s_cbranch_scc1 {l}
        s_lshl_b32 s3, s{idx_sgpr}, 7
        s_add_u32 s3, s3, {base}
        v_mov_b32 v239, s{S_TAG}
        s_mov_b64 exec, 1
        buffer_store_dword v239, off, s[{S_FL}:{S_FL+3}], s3 sc1
        s_mov_b64 exec, -1
        {l}:
        """)
    def poll(self, vaddr, soff, sleep=1):
        a = self.a; l = self.lab('poll'); d = self.lab('pd')
        a(f"""
        s_mov_b32 s{S_SPIN}, 0
        {l}:
        buffer_load_dword v239, v{vaddr}, s[{S_FL}:{S_FL+3}], s{soff} offen sc1
        s_add_u32 s{S_SPIN}, s{S_SPIN}, 1
        s_waitcnt vmcnt(0)
        v_cmp_ne_u32 vcc, s{S_TAG}, v239
        s_cbranch_vccz {d}
        {'s_sleep ' + str(sleep) if sleep else ''}
        s_cmp_lt_u32 s{S_SPIN}, {SPIN_MAX}
        s_cbranch_scc1 {l}
        {d}:
        """)

    def row_ids(self, vr, vp, t):
        self.a(f"""
        s_lshl_b32 s3, s{S_MT}, 4
        s_add_u32 s3, s3, s{S_GI}
        s_lshl_b32 s3, s3, 3
        v_and_b32 v{vr}, 7, v{LANE}
        v_add_u32 v{vr}, s3, v{vr}
        v_bfe_u32 v{vp}, v{LANE}, 3, 1
        v_lshlrev_b32 v{vp}, 2, v{vp}
        v_bfe_u32 v{t}, v{LANE}, 5, 1
        v_lshl_add_u32 v{vp}, v{t}, 1, v{vp}
        v_bfe_u32 v{t}, v{LANE}, 4, 1
        v_add_u32 v{vp}, v{vp}, v{t}
        s_lshl_b32 s3, s{S_WAVE}, 3
        v_add_u32 v{vp}, s3, v{vp}
        """)
    def q_loads(self, srdq, t):
        a = self.a
        self.row_ids(t, t+1, t+2)
        srd(a, srdq, P_Q, NB_SD)
        a(f"""
        v_mul_u32_u24 v{t}, 1152, v{t}
        v_lshl_add_u32 v{t}, v{t+1}, 4, v{t}
        buffer_load_dwordx4 v[{QP}:{QP+3}], v{t}, s[{srdq}:{srdq+3}], 0 offen
        buffer_load_dwordx4 v[{QP+4}:{QP+7}], v{t}, s[{srdq}:{srdq+3}], 0 offen offset:512
        buffer_load_dwordx4 v[{QP+8}:{QP+11}], v{t}, s[{srdq}:{srdq+3}], s{S_OOB} offen offset:1024
        """)
    def stats(self, ldsoff, t, scale=None):
        a = self.a
        a(f"""
        v_mov_b32 v{t}, 0
        v_mov_b32 v{t+1}, 0
        v_bfe_u32 v{t+2}, v{LANE}, 5, 1
        v_and_b32 v{t+3}, 7, v{LANE}
        v_lshl_add_u32 v{t+2}, v{t+2}, 3, v{t+3}
        v_lshlrev_b32 v{t+2}, 4, v{t+2}
        s_lshl_b32 s3, s{S_WAVE}, 2
        v_add_u32 v{t+2}, {STAT_OFF + ldsoff}, v{t+2}
        v_add_u32 v{t+3}, s3, v{t+2}
        """)
        for i in range(12):
            a(f"v_dot2_f32_bf16 v{t}, v{QP+i}, s{S_ONE}, v{t}\nv_dot2_f32_bf16 v{t+1}, v{QP+i}, v{QP+i}, v{t+1}")
        a(f"""
        s_nop 2
        v_permlane32_swap_b32 v{t}, v{t+1}
        s_nop 1
        v_add_f32 v{t}, v{t}, v{t+1}
        v_mov_b32 v{t+1}, v{t}
        s_nop 1
        v_permlane16_swap_b32 v{t}, v{t+1}
        s_nop 1
        v_add_f32 v{t}, v{t}, v{t+1}
        s_nop 1
        v_add_f32_dpp v{t}, v{t}, v{t} row_ror:8 row_mask:0xf bank_mask:0xf
        ds_write_b32 v{t+3}, v{t}
        s_waitcnt lgkmcnt(0)
        s_barrier
        ds_read_b128 v[{t+4}:{t+7}], v{t+2}
        s_waitcnt lgkmcnt(0)
        v_add_f32 v{t+4}, v{t+4}, v{t+5}
        v_add_f32 v{t+6}, v{t+6}, v{t+7}
        v_add_f32 v{t}, v{t+4}, v{t+6}
        v_mul_f32 v{t}, 0x3ae38e39, v{t}
        v_mov_b32 v{t+1}, v{t}
        s_nop 1
        v_permlane32_swap_b32 v{t}, v{t+1}
        s_nop 1
        v_fma_f32 v{t+1}, -v{t}, v{t}, v{t+1}
        v_max_f32 v{t+1}, 0, v{t+1}
        v_add_f32 v{t+1}, 0x3727c5ac, v{t+1}
        v_rsq_f32 v{ST}, v{t+1}
        s_nop 0
        """)
        if scale: a(f"v_mul_f32 v{ST}, {f2u(scale):#x}, v{ST}")
        a(f"v_mul_f32 v{ST+1}, v{t}, v{ST}\nv_sub_f32 v{ST+1}, 0, v{ST+1}")

    def conv_path(self):
        a = self.a
        a(f"""
        s_lshr_b32 s40, s2, 4
        s_and_b32 s41, s2, 15
        v_and_b32 v1, 7, v0
        v_lshrrev_b32 v2, 3, v0
        s_lshl_b32 s42, s41, 7
        s_lshl_b32 s43, s40, 7
        v_lshl_add_u32 v3, v2, 2, s42
        v_mul_u32_u24 v3, 1152, v3
        v_lshl_add_u32 v4, v1, 4, s43
        v_add_u32 v13, v3, v4
        v_add_u32 v10, {(-3*1152) & 0xffffffff:#x}, v13
        v_add_u32 v11, {(-2*1152) & 0xffffffff:#x}, v13
        v_add_u32 v12, {(-1*1152) & 0xffffffff:#x}, v13
        v_lshlrev_b32 v5, 2, v4
        """)
        srd(a, 12, P_K, NB_SD); srd(a, 16, P_V, NB_SD); srd(a, 20, P_SK, D*8)
        for j in range(7):
            va, o = (10+j, 0) if j < 3 else (13, (j-3)*1152)
            a(f"buffer_load_dwordx4 v[{16+4*j}:{19+4*j}], v{va}, s[12:15], 0 offen" + (f" offset:{o}" if o else ""))
        for j in range(4):
            a(f"buffer_load_dwordx4 v[{60+4*j}:{63+4*j}], v5, s[20:23], 0 offen" + (f" offset:{16*j}" if j else ""))
        for j in range(4):
            a(f"buffer_load_dwordx4 v[{44+4*j}:{47+4*j}], v13, s[16:19], 0 offen" + (f" offset:{1152*j}" if j else ""))
        a(f"""
        s_lshl_b32 s44, s2, 2
        s_add_u32 s44, s44, s{S_WAVE}
        s_mul_i32 s45, s{S_WAVE}, {WAVE_LDS}
        s_lshl_b32 s46, s44, 12
        s_add_u32 s52, s{P_SSMK}, s46
        s_addc_u32 s53, s{P_SSMK+1}, 0
        s_mov_b32 s54, 4096
        s_mov_b32 s55, 0x20000
        v_lshrrev_b32 v144, 4, v{LANE}
        v_and_b32 v145, 15, v{LANE}
        v_add_u32 v142, v144, v145
        v_add_u32 v142, -16, v142
        v_lshlrev_b32 v142, 1, v142
        buffer_load_ushort v140, v142, s[52:55], 0 offen
        s_lshl_b32 s3, s44, 1
        """)
        srd(a, 56, P_SSMD, D*2)
        a(f"""
        buffer_load_ushort v141, off, s[56:59], s3
        v_lshlrev_b32 v143, 4, v{LANE}
        """)
        for c in range(4):
            a(f"s_add_u32 m0, s45, {c*KSTR + 32}")
            a("v_add_u32 v143, 2, v143" if c else "s_nop 0")
            for i in range(4):
                a(f"buffer_load_dwordx4 v143, s[52:55], 0 offen offset:{i*1024} lds")
        self.q_loads(56, 146)
        srd(a, 24, P_WS, NB_SD, WS_U)
        a(f"""
        v_lshlrev_b32 v6, 9, v2
        v_lshl_add_u32 v6, v1, 4, v6
        v_add_u32 v6, {T_OFF}, v6
        v_bfe_u32 v7, v{LANE}, 1, 1
        v_lshl_add_u32 v7, v144, 1, v7
        v_lshlrev_b32 v7, 3, v7
        v_bfe_u32 v8, v{LANE}, 2, 2
        v_sub_u32 v7, v7, v8
        v_add_u32 v7, 3, v7
        v_lshlrev_b32 v7, 7, v7
        v_and_b32 v8, 1, v{LANE}
        v_lshl_add_u32 v7, v8, 3, v7
        s_lshl_b32 s3, s{S_WAVE}, 5
        s_add_u32 s3, s3, {T_OFF}
        v_add_u32 v7, s3, v7
        s_lshl_b32 s3, s40, 6
        s_lshl_b32 s47, s{S_WAVE}, 4
        s_add_u32 s3, s3, s47
        v_and_b32 v8, 7, v{LANE}
        v_add_u32 v8, s3, v8
        v_lshlrev_b32 v8, 12, v8
        v_bfe_u32 v9, v{LANE}, 3, 1
        v_lshl_add_u32 v9, v144, 1, v9
        v_lshl_add_u32 v8, v9, 4, v8
        s_lshl_b32 s3, s41, 8
        v_add_u32 v8, s3, v8
        v_add_u32 v9, 0x8000, v8
        """)
        self.stamp(1)
        a("s_waitcnt vmcnt(25)")
        self.stamp(2)
        for cp in range(4):
            for j in range(4):
                f = lo if j % 2 == 0 else hi
                f(a, 80+2*j, 60+4*cp+(j >> 1)); f(a, 81+2*j, 62+4*cp+(j >> 1))
            for i in range(7):
                lo(a, 88+2*i, 16+4*i+cp); hi(a, 89+2*i, 16+4*i+cp)
            P = lambda x: f"v[{x}:{x+1}]"
            for r in range(4): a(f"v_pk_mul_f32 {P(110+2*r)}, {P(88+2*r)}, {P(86)}")
            for j in (1, 2, 3):
                for r in range(4): a(f"v_pk_fma_f32 {P(110+2*r)}, {P(88+2*(r+j))}, {P(86-2*j)}, {P(110+2*r)}")
            if cp == 0: a("s_waitcnt vmcnt(21)")
            for r in range(4):
                lo(a, 102+2*r, 44+4*r+cp); hi(a, 103+2*r, 44+4*r+cp)
            for r in range(4): a(f"v_pk_mul_f32 {P(110+2*r)}, {P(110+2*r)}, {P(102+2*r)}")
            for r in range(4): a(f"v_cvt_pk_bf16_f32 v{120+4*r+cp}, v{110+2*r}, v{111+2*r}")
        for r in range(4):
            a(f"ds_write_b128 v6, v[{120+4*r}:{123+4*r}]" + (f" offset:{128*r}" if r else ""))
        a("s_waitcnt lgkmcnt(0)\ns_barrier")
        n = 0
        for cb in range(2):
            for hq in range(2):
                o = hq*8192 + cb*16
                a(f"ds_read_b64_tr_b16 v[{16+4*n}:{17+4*n}], v7 offset:{o+512}")
                a(f"ds_read_b64_tr_b16 v[{18+4*n}:{19+4*n}], v7 offset:{o}")
                n += 1
        n = 0
        for cb in range(2):
            for hq in range(2):
                a(f"s_waitcnt lgkmcnt({6-2*n})")
                a(f"buffer_store_dwordx4 v[{16+4*n}:{19+4*n}], v{8+cb}, s[24:27], 0 offen" + (" offset:128" if hq else "") + " sc1")
                n += 1
        self.stamp(3)
        self.signal(FA, 2)
        self.stamp(4)
        a(f"""
        v_mov_b32 v10, 0
        v_mov_b32 v11, 0
        v_lshl_add_u32 v12, v{LANE}, 3, s45
        ds_write_b64 v12, v[10:11] offset:{4*KSTR}
        v_mul_u32_u24 v13, {KSTR}, v144
        v_lshl_add_u32 v13, v145, 1, v13
        v_add_u32 v13, s45, v13
        ds_write_b16 v13, v140
        v_add_u32 v14, 1, v145
        v_and_b32 v15, 3, v14
        v_mul_u32_u24 v15, {KSTR}, v15
        v_lshrrev_b32 v14, 2, v14
        v_lshl_add_u32 v15, v14, 3, v15
        v_lshlrev_b32 v14, 4, v144
        v_sub_u32 v15, v15, v14
        v_add_u32 v15, 48, v15
        v_add_u32 v15, s45, v15
        v_lshlrev_b32 v16, 5, v145
        v_lshl_add_u32 v16, v144, 4, v16
        s_add_u32 s3, s45, {4*KSTR + 512 - 32 - 448}
        v_add_u32 v16, s3, v16
        v_lshlrev_b32 v17, 4, v145
        v_lshl_add_u32 v17, v144, 2, v17
        s_mul_i32 s3, s{S_WAVE}, {KSTR}
        s_add_u32 s3, s3, {T_OFF}
        v_add_u32 v17, s3, v17
        v_bfe_u32 v18, v{LANE}, 2, 2
        v_mul_u32_u24 v18, {KSTR}, v18
        v_lshl_add_u32 v18, v144, 5, v18
        v_and_b32 v19, 3, v{LANE}
        v_lshl_add_u32 v18, v19, 3, v18
        s_lshl_b32 s3, s{S_WAVE}, 9
        s_add_u32 s3, s3, {T_OFF}
        v_add_u32 v18, s3, v18
        s_lshl_b32 s3, s2, 14
        s_lshl_b32 s47, s{S_WAVE}, 12
        s_add_u32 s3, s3, s47
        v_lshl_add_u32 v19, v{LANE}, 4, s3
        v_lshrrev_b32 v10, 3, v145
        v_add_u32 v10, 2, v10
        v_cmp_eq_u32 vcc, v10, v144
        v_and_b32 v11, 7, v145
        v_sub_u32 v11, 7, v11
        v_cndmask_b32 v9, 0, v141, vcc
        v_and_b32 v10, 1, v11
        v_lshlrev_b32 v10, 4, v10
        v_lshlrev_b32 v9, v10, v9
        v_lshrrev_b32 v11, 1, v11
        """)
        for r in range(4):
            a(f"v_cmp_eq_u32 vcc, {r}, v11\ns_nop 1\nv_cndmask_b32 v{20+r}, 0, v9, vcc")
        self.stats(0, 150)
        a(f"""
        s_add_u32 s56, s{P_WS}, s46
        s_addc_u32 s57, s{P_WS+1}, 0
        s_mov_b32 s58, 4096
        s_mov_b32 s59, 0x20000
        v_lshlrev_b32 v143, 4, v{LANE}
        v_lshlrev_b32 v146, 7, v145
        s_lshl_b32 s4, s40, 11
        """)
        assert WS_U == 0 and FA == 0
        srd(a, 24, P_WS, NB_SD, WS_Z)
        hops = Hops('L_ch')
        hops.call(a, 0)
        self.stamp(5)
        self.poll(146, 4, sleep=0)
        self.stamp(6)
        a(f"s_add_u32 m0, s45, {4*KSTR + 512}\ns_nop 0")
        for i in range(4):
            a(f"buffer_load_dwordx4 v143, s[56:59], 0 offen offset:{i*1024} sc1 lds")
        AC = 24; FRG = 64
        A = lambda s, m1: FRG + 64*s + 4*m1
        B = lambda s, n1: FRG + 64*s + 32 + 4*n1
        def rdA(m0):
            s = m0 & 1; R = []
            for x in range(8):
                R.append(f"ds_read_b64 v[{A(s,x)}:{A(s,x)+1}], v15 offset:{512*x + 64*m0}")
                R.append(f"ds_read_b64 v[{A(s,x)+2}:{A(s,x)+3}], v15 offset:{512*x + 64*m0+8}")
            return R
        def rdB(m0):
            s = m0 & 1
            return [f"ds_read_b128 v[{B(s,x)}:{B(s,x)+3}], v16 offset:{512*x + 64*(7-m0)}" for x in range(8)]
        def E(ins):
            a(ins); hops.add(ins)
        a("s_waitcnt lgkmcnt(0)")
        for r in rdA(0): a(r)
        a("s_waitcnt vmcnt(0)")
        self.stamp(7)
        for r in rdB(0): a(r)
        a("s_cmp_eq_u32 0, 1")
        for w in range(8):
            E(f"s_waitcnt lgkmcnt({7-w})")
            E(f"v_mfma_f32_16x16x32_bf16 v[{AC+4*w}:{AC+4*w+3}], v[20:23], v[{B(0,w)}:{B(0,w)+3}], 0")
        for m0 in range(8):
            s = m0 & 1
            nxt = []
            if m0 < 7:
                ra, rb = rdA(m0+1), rdB(m0+1)
                nxt = rb[:1] + ra[:2] + rb[1:] + ra[2:]
            if m0: E("s_waitcnt lgkmcnt(0)")
            for m1 in range(8):
                for n1 in range(8 - m1):
                    w = m1 + n1
                    E(f"v_mfma_f32_16x16x32_bf16 v[{AC+4*w}:{AC+4*w+3}], v[{A(s,m1)}:{A(s,m1)+3}], v[{B(s,n1)}:{B(s,n1)+3}], v[{AC+4*w}:{AC+4*w+3}]")
                    if hops.due(20): a(hops.emit())
                    if nxt: E(nxt.pop(0))
        hops.resolve(a, 1)
        self.stamp(8)
        a("s_nop 7")
        for w in range(8):
            a(f"v_cvt_pk_bf16_f32 v{64+2*w}, v{AC+4*w}, v{AC+4*w+2}")
            a(f"v_cvt_pk_bf16_f32 v{65+2*w}, v{AC+4*w+1}, v{AC+4*w+3}")
            a(f"ds_write2st64_b32 v17, v{64+2*w}, v{65+2*w} offset0:{w} offset1:{w+8}")
        a("s_waitcnt lgkmcnt(0)\ns_barrier")
        for i in range(4):
            a(f"ds_read_b64_tr_b16 v[{80+4*i}:{81+4*i}], v18 offset:{128*i}")
            a(f"ds_read_b64_tr_b16 v[{82+4*i}:{83+4*i}], v18 offset:{128*i+2048}")
        for i in range(4):
            a(f"s_waitcnt lgkmcnt({6-2*i})")
            a(f"buffer_store_dwordx4 v[{80+4*i}:{83+4*i}], v19, s[24:27], 0 offen" + (f" offset:{1024*i}" if i else "") + " sc1")
        self.stamp(9)
        ffn_setup(a, 100)
        self.signal(FB, 2)

    def side_path(self):
        a = self.a
        self.q_loads(56, 146)
        a(f"s_cmp_ge_u32 s2, {NCONV+NMOD}\ns_cbranch_scc1 L_nomod")
        a(f"""
        s_sub_u32 s40, s2, {NCONV}
        v_and_b32 v1, 7, v0
        v_lshrrev_b32 v2, 3, v0
        v_mul_u32_u24 v3, 6912, v2
        v_lshl_add_u32 v3, v1, 4, v3
        s_lshl_b32 s3, s40, 7
        v_add_u32 v3, s3, v3
        v_lshlrev_b32 v4, 1, v0
        """)
        srd(a, 12, P_C, D*2); srd(a, 16, P_WMOD, D*6912); srd(a, 20, P_WS, NB_MOD, WS_MOD)
        a("""
        buffer_load_ushort v5, v4, s[12:15], 0 offen
        buffer_load_ushort v6, v4, s[12:15], 0 offen offset:512
        buffer_load_ushort v7, v4, s[12:15], 0 offen offset:1024
        s_mov_b32 s41, 0
        """)
        for i in range(18):
            a(f"buffer_load_dwordx4 v[{32+4*i}:{35+4*i}], v3, s[16:19], s41 offen")
            if i < 17: a(f"s_add_u32 s41, s41, {32*6912}")
        a("s_waitcnt vmcnt(18)")
        for r in (5, 6, 7):
            a(f"""
            v_lshlrev_b32 v{r}, 16, v{r}
            v_mul_f32 v8, 0xbfb8aa3b, v{r}
            v_exp_f32 v8, v8
            s_nop 0
            v_add_f32 v8, 1.0, v8
            v_rcp_f32 v8, v8
            s_nop 0
            v_mul_f32 v{r}, v{r}, v8
            v_cvt_pk_bf16_f32 v{r}, v{r}, v{r}
            v_lshlrev_b32 v{r}, 16, v{r}
            """)
        a("""
        v_lshlrev_b32 v9, 2, v0
        ds_write_b32 v9, v5
        ds_write_b32 v9, v6 offset:1024
        ds_write_b32 v9, v7 offset:2048
        v_lshlrev_b32 v10, 2, v2
        s_waitcnt lgkmcnt(0)
        s_barrier
        """)
        for i in range(18):
            a(f"ds_read_b32 v{104+2*i}, v10 offset:{128*i}")
        a("s_waitcnt lgkmcnt(0)")
        for i in range(18):
            a(f"s_waitcnt vmcnt({17-i})")
            for x in range(4):
                t = 24 + 2*(x & 1)
                lo(a, t, 32+4*i+x); hi(a, t+1, 32+4*i+x)
                if i == 0: a(f"v_pk_mul_f32 v[{16+2*x}:{17+2*x}], v[{t}:{t+1}], v[{104+2*i}:{105+2*i}] op_sel_hi:[1,0]")
                else:      a(f"v_pk_fma_f32 v[{16+2*x}:{17+2*x}], v[{t}:{t+1}], v[{104+2*i}:{105+2*i}], v[{16+2*x}:{17+2*x}] op_sel_hi:[1,0,1]")
        a("""
        v_lshlrev_b32 v13, 8, v2
        v_lshl_add_u32 v13, v1, 5, v13
        ds_write_b128 v13, v[16:19] offset:4096
        ds_write_b128 v13, v[20:23] offset:4112
        s_waitcnt lgkmcnt(0)
        s_barrier
        """)
        a(f"s_cmp_lg_u32 s{S_WAVE}, 0\ns_cbranch_scc1 L_nomod")
        for i in range(32):
            a(f"ds_read_b32 v{32+i}, v9 offset:{4096 + 256*i}")
        a("s_waitcnt lgkmcnt(0)")
        for st in (16, 8, 4, 2):
            for i in range(0, st, 2):
                a(f"v_pk_add_f32 v[{32+i}:{33+i}], v[{32+i}:{33+i}], v[{32+i+st}:{33+i+st}]")
        a(f"""
        v_add_f32 v32, v32, v33
        s_mov_b32 s3, 0x1c71c71d
        v_cvt_pk_bf16_f32 v32, v32, v32
        s_mul_hi_u32 s41, s40, s3
        s_cmp_eq_u32 s41, 1
        s_cselect_b32 s42, 1.0, 0
        s_cmp_eq_u32 s41, 4
        s_cselect_b32 s42, 1.0, s42
        v_lshlrev_b32 v32, 16, v32
        v_add_f32 v32, s42, v32
        s_cmp_eq_u32 s41, 3
        s_cselect_b32 s43, {f2u(ALPHA):#x}, 1.0
        s_cmp_eq_u32 s41, 5
        s_cselect_b32 s43, {f2u(1/ALPHA**2):#x}, s43
        v_cvt_pk_bf16_f32 v32, v32, v32
        v_lshlrev_b32 v32, 16, v32
        v_mul_f32 v32, s43, v32
        s_lshl_b32 s3, s40, 8
        buffer_store_dword v32, v9, s[20:23], s3 offen sc1
        L_nomod:
        """)
        self.stamp(3)
        self.signal(FB, 2)
        self.stamp(4)
        self.stats(0, 150)
        a(f"""
        v_and_b32 v146, 15, v{LANE}
        v_lshlrev_b32 v146, 7, v146
        s_and_b32 s40, s2, 7
        s_lshl_b32 s4, s40, 11
        """)
        self.poll(146, 4, sleep=2)
        self.stamp(6)
        srd(a, 20, P_WG, D*DF*2); srd(a, 24, P_WU, D*DF*2); srd(a, 52, P_WD, D*DF*2)
        code_srd(a, 56, 4, 'L_common', 'L_code_end')
        a(f"""
        s_sub_u32 s41, s2, {NCONV}
        s_lshr_b32 s41, s41, 3
        s_lshl_b32 s41, s41, 2
        s_add_u32 s41, s41, s{S_WAVE}
        s_lshl_b32 s42, s41, 6
        v_add_u32 v1, s42, v{LANE}
        v_min_u32 v2, 7, v{LANE}
        s_lshl_b32 s43, s41, 10
        v_lshlrev_b32 v2, 7, v2
        buffer_load_dword v10, v2, s[56:59], s43 offen
        s_mul_i32 s43, s40, 1152
        s_mov_b32 s44, 0x1c71c71d
        """)
        for i in range(2):
            a(f"""
            v_mul_hi_u32 v3, s44, v1
            v_mul_u32_u24 v4, 9, v3
            v_sub_u32 v4, v1, v4
            v_mul_u32_u24 v3, 9216, v3
            v_lshl_add_u32 v3, v4, 7, v3
            buffer_load_dword v10, v3, s[20:23], s43 offen
            buffer_load_dword v10, v3, s[24:27], s43 offen
            v_add_u32 v1, 3584, v1
            """)
        a(f"""
        s_mul_i32 s43, s40, {576*1152}
        v_add_u32 v1, s42, v{LANE}
        v_lshlrev_b32 v3, 7, v1
        buffer_load_dword v10, v3, s[52:55], s43 offen
        v_add_u32 v1, 3584, v1
        v_min_u32 v1, 5183, v1
        v_lshlrev_b32 v3, 7, v1
        buffer_load_dword v10, v3, s[52:55], s43 offen
        """)
        ffn_setup(a, 100)

    def row_phase(self, hops):
        a = self.a; kw = self.kw
        NP1 = kw.get('NP1', 4)
        ffn_prefill(a, range(NP1))
        self.row_ids(14, 15, 12)
        srd(a, 20, P_WS, NB_SD, WS_Z); srd(a, 24, P_WS, NB_MOD, WS_MOD); srd(a, 52, P_WS, NB_SD, WS_H2)
        a(f"""
        v_lshlrev_b32 v136, 15, v15
        v_lshl_add_u32 v136, v14, 3, v136
        v_add_u32 v137, 0x4000, v136
        v_lshlrev_b32 v138, 5, v15
        v_add_u32 v139, 4608, v138
        v_add_u32 v141, 9216, v138
        v_lshrrev_b32 v140, 4, v14
        v_mul_u32_u24 v140, 18432, v140
        v_lshl_add_u32 v140, v15, 8, v140
        v_and_b32 v12, 15, v14
        v_lshl_add_u32 v140, v12, 4, v140
        s_lshl_b32 s3, s{S_WAVE}, 6
        v_add_u32 v146, s3, v{LANE}
        v_lshlrev_b32 v146, 7, v146
        s_mov_b32 s4, {FB}
        s_mov_b32 s5, 0x100000
        s_mov_b32 s6, 0x200000
        s_mov_b32 s7, 1024
        s_mov_b32 s8, 2048
        s_mov_b32 s9, 8192
        s_add_u32 s10, s{S_OOB}, 16384
        """)
        if hops: hops.call(a, 0)
        self.stamp(10)
        self.poll(146, 4, sleep=1)
        a("s_barrier")
        self.stamp(11)
        so = ['0', 's5', 's6']; sm = ['0', 's7', 's8']
        MV = lambda i, v: 16 + 40*i + 8*v
        def mload(i, v):
            va, o = ((138, 0), (138, 2304), (139, 0), (139, 2304), (141, 0))[v]
            for h in range(2):
                a(f"buffer_load_dwordx4 v[{MV(i,v)+4*h}:{MV(i,v)+4*h+3}], v{va}, s[24:27], {sm[i]} offen offset:{o+16*h} sc1")
        for i in range(3):
            a(f"buffer_load_dwordx2 v[{4*i}:{4*i+1}], v136, s[20:23], {so[i]} offen sc1")
            a(f"buffer_load_dwordx2 v[{4*i+2}:{4*i+3}], v137, s[20:23], {so[i]} offen sc1")
            for v in range(3): mload(i, v)
        for i in range(3):
            for v in (3, 4): mload(i, v)
        ffn_prefill(a, range(NP1, 6))
        later = 12 + 6*(6 - NP1)
        P = lambda x: f"v[{x}:{x+1}]"
        BC = "op_sel:[0,0,1] op_sel_hi:[1,0,1]"
        for i in range(3):
            a(f"s_waitcnt vmcnt({later + 8*(2-i)})")
            if i == 0: self.stamp(12)
            for c2 in range(0, 4, 2):
                cs = (c2, c2+1); X = {c: 144 + 6*(c & 1) for c in cs}
                for c in cs: lo(a, X[c], QP+4*i+c); hi(a, X[c]+1, QP+4*i+c)
                for c in cs: a(f"v_pk_fma_f32 {P(X[c]+2)}, {P(X[c])}, {P(ST)}, {P(ST)} {BC}")
                for c in cs: lo(a, X[c]+4, 4*i+c); hi(a, X[c]+5, 4*i+c)
                for c in cs: a(f"v_pk_fma_f32 {P(X[c]+2)}, {P(X[c]+2)}, {P(MV(i,1)+2*c)}, {P(MV(i,0)+2*c)}")
                for c in cs: a(f"v_pk_mul_f32 {P(X[c]+2)}, {P(X[c]+2)}, {P(X[c]+4)}")
                for c in cs: a(f"v_pk_fma_f32 {P(X[c]+2)}, {P(X[c]+2)}, {P(MV(i,2)+2*c)}, {P(X[c])}")
                for c in cs: a(f"v_cvt_pk_bf16_f32 v{QP+4*i+c}, v{X[c]+2}, v{X[c]+3}")
        self.stats(256, 160, scale=ALPHA)
        a(f"s_waitcnt vmcnt({6*(6-NP1)})")
        sh = ['0', 's9', 's10']
        for i in range(3):
            for c2 in range(0, 4, 2):
                cs = (c2, c2+1); X = {c: 144 + 6*(c & 1) for c in cs}
                for c in cs: lo(a, X[c], QP+4*i+c); hi(a, X[c]+1, QP+4*i+c)
                for c in cs: a(f"v_pk_fma_f32 {P(X[c])}, {P(X[c])}, {P(ST)}, {P(ST)} {BC}")
                for c in cs: a(f"v_pk_fma_f32 {P(X[c])}, {P(X[c])}, {P(MV(i,4)+2*c)}, {P(MV(i,3)+2*c)}")
                for c in cs: a(f"v_cvt_pk_bf16_f32 v{4*i+c}, v{X[c]}, v{X[c]+1}")
            a(f"buffer_store_dwordx4 v[{4*i}:{4*i+3}], v140, s[52:55], {sh[i]} offen sc1")
        self.stamp(13)
        for i in range(12): a(f"v_accvgpr_write_b32 a{X1A+i}, v{QP+i}")
        a(f"s_lshl_b32 s4, s{S_MT}, 4\ns_add_u32 s4, s4, s{S_GI}")
        self.signal(FC, 4)
        ffn_setup2(a, 100)
        a(f"""
        v_and_b32 v146, 15, v{LANE}
        v_lshlrev_b32 v146, 7, v146
        s_lshl_b32 s4, s{S_MT}, 11
        s_add_u32 s4, s4, {FC}
        """)
        if hops: hops.call(a, 1)
        self.stamp(14)
        self.poll(146, 4, sleep=0)
        self.stamp(15)

    def reduce_phase(self):
        a = self.a
        a(f"s_lshl_b32 s4, s{S_MT}, 4\ns_add_u32 s4, s4, s{S_GI}")
        self.stamp(17)
        self.signal(FD, 4)
        self.stamp(18)
        self.row_ids(216, 217, 218)
        srd(a, 12, P_OUT, NB_SD); srd(a, 20, P_WS, 2304, WS_MOD + 5*2304)
        a(f"""
        v_mul_u32_u24 v219, 1152, v216
        v_lshl_add_u32 v219, v217, 4, v219
        v_lshlrev_b32 v220, 5, v217
        v_lshrrev_b32 v221, 5, v216
        v_mul_u32_u24 v221, 9, v221
        v_add_u32 v221, s{S_WAVE}, v221
        v_lshlrev_b32 v221, 12, v221
        v_bfe_u32 v218, v216, 4, 1
        v_lshl_add_u32 v221, v218, 11, v221
        v_bfe_u32 v218, v{LANE}, 3, 1
        v_lshl_add_u32 v221, v218, 10, v221
        v_bfe_u32 v218, v{LANE}, 4, 1
        v_lshl_add_u32 v221, v218, 9, v221
        v_bfe_u32 v218, v{LANE}, 5, 1
        v_lshl_add_u32 v221, v218, 8, v221
        v_and_b32 v218, 15, v216
        v_lshl_add_u32 v221, v218, 4, v221
        v_add_u32 v222, 16384, v221
        v_add_u32 v223, 32768, v221
        v_add_u32 v223, s{S_OOB}, v223
        v_and_b32 v224, 15, v{LANE}
        v_lshlrev_b32 v224, 7, v224
        s_lshl_b32 s4, s{S_MT}, 11
        s_add_u32 s4, s4, {FD}
        s_mov_b32 s5, 0x3f80
        s_mov_b32 s6, 0x3f800000
        s_mov_b32 s7, 1024
        s_mov_b32 s8, 2048
        """)
        sm = ['0', 's7', 's8']
        for i in range(3):
            for h in range(2):
                a(f"buffer_load_dwordx4 v[{192+8*i+4*h}:{195+8*i+4*h}], v220, s[20:23], {sm[i]} offen offset:{16*h} sc1")
        self.poll(224, 4, sleep=0)
        self.stamp(19)
        for i in range(3):
            a("s_mov_b32 s9, 0")
            for sl in range(16):
                a(f"buffer_load_dwordx4 v[{64*i+4*sl}:{64*i+4*sl+3}], v{221+i}, s[{S_P}:{S_P+3}], s9 offen sc1")
                if sl < 15: a(f"s_add_u32 s9, s9, {NB_SD}")
        AC = 226
        for i in range(3):
            for e in range(8): a(f"v_mov_b32 v{AC+e}, 0")
            for sl in range(16):
                a(f"s_waitcnt vmcnt({47 - 16*i - sl + i})")
                for x in range(4):
                    a(f"v_dot2_f32_bf16 v{AC+2*x}, v{64*i+4*sl+x}, s5, v{AC+2*x}")
                    a(f"v_dot2_f32_bf16 v{AC+2*x+1}, v{64*i+4*sl+x}, s6, v{AC+2*x+1}")
            for x in range(4): a(f"v_accvgpr_read_b32 v{QP+x}, a{X1A+4*i+x}")
            for e in range(4): a(f"v_permlane32_swap_b32 v{AC+e}, v{AC+4+e}")
            for x in range(4):
                lo(a, 234, QP+x); hi(a, 235, QP+x)
                a(f"v_pk_fma_f32 v[234:235], v[{AC+2*x}:{AC+2*x+1}], v[{192+8*i+2*x}:{193+8*i+2*x}], v[234:235]")
                a(f"v_cvt_pk_bf16_f32 v{QP+4+x}, v234, v235")
            a(f"buffer_store_dwordx4 v[{QP+4}:{QP+7}], v219, s[12:15], {'s%d' % S_OOB if i == 2 else '0'} offen" + (f" offset:{512*i}" if i else ""))
            a("s_nop 1")
        self.stamp(20)

    def build(self):
        a = self.a; kw = self.kw
        a(kernel_head(NAME))
        a(f"""
        s_cmp_ge_u32 s2, 256
        s_cbranch_scc1 L_end
        s_load_dwordx16 s[64:79], s[0:1], 0
        s_load_dwordx8 s[80:87], s[0:1], 64
        s_load_dwordx4 s[88:91], s[0:1], 96
        s_load_dwordx2 s[92:93], s[0:1], 112
        """)
        if self.diag: a(f"v_mov_b32 v{DIAG}, 0")
        code_srd(a, 56, 4, 'L_start', 'L_common')
        a(f"""
        L_start:
        v_lshlrev_b32 v1, 7, v0
        v_lshrrev_b32 v2, 6, v0
        v_and_b32 v{LANE}, 63, v0
        buffer_load_dword v238, v1, s[56:59], 0 offen
        v_readfirstlane_b32 s{S_WAVE}, v2
        s_lshr_b32 s3, s2, 3
        s_lshr_b32 s{S_MT}, s3, 1
        s_and_b32 s3, s3, 1
        s_and_b32 s{S_GI}, s2, 7
        s_lshl_b32 s{S_GI}, s{S_GI}, 1
        s_add_u32 s{S_GI}, s{S_GI}, s3
        s_mov_b32 s{S_ONE}, 0x3f803f80
        s_cmp_eq_u32 s{S_WAVE}, 0
        s_cselect_b32 s{S_OOB}, 0, 0x40000000
        s_waitcnt lgkmcnt(0)
        s_load_dword s{S_TAG}, s[{P_WS}:{P_WS+1}], {WS_EPOCH:#x}
        """.replace(f"s_load_dword s{S_TAG}, s[{P_WS}:{P_WS+1}], {WS_EPOCH:#x}",
                    f"s_add_u32 s4, s{P_WS}, {WS_EPOCH:#x}\ns_addc_u32 s5, s{P_WS+1}, 0\ns_load_dword s28, s[4:5], 0"))
        srd(a, S_FL, P_WS, 0x20000, WS_FL)
        self.stamp(0)
        a(f"s_cmp_ge_u32 s2, {NCONV}\ns_cbranch_scc1 L_side")
        self.tagfix = True
        orig = self.signal
        first = [True]
        def sig(base, idx):
            if first[0]:
                a(f"s_waitcnt lgkmcnt(0)\ns_add_u32 s{S_TAG}, s28, 1"); first[0] = False
            orig(base, idx)
        self.signal = sig
        self.conv_path()
        a("s_branch L_common\nL_side:")
        first[0] = True
        self.side_path()
        a("L_common:")
        hops = Hops('L_fh') if kw.get('hops', True) else None
        self.row_phase(hops)
        fk = {k: v for k, v in kw.items() if k not in ('NP1', 'hops')}
        ffn_main(a, hops=hops, stamper=(lambda: self.stamp(16)), **fk)
        if hops: hops.resolve(a, 2)
        self.reduce_phase()
        a(f"""
        s_cmp_lg_u32 s2, 0
        s_cbranch_scc1 L_noep
        s_cmp_lg_u32 s{S_WAVE}, 0
        s_cbranch_scc1 L_noep
        """)
        srd(a, 20, P_WS, 4, WS_EPOCH)
        a(f"""
        v_mov_b32 v239, s{S_TAG}
        s_mov_b64 exec, 1
        buffer_store_dword v239, off, s[20:23], 0
        s_mov_b64 exec, -1
        L_noep:
        """)
        if self.diag:
            a("s_waitcnt vmcnt(0)"); self.stamp(21)
            srd(a, 20, P_WS, 1 << 20, 0x8000000)
            a(f"""
            s_lshl_b32 s3, s2, 2
            s_add_u32 s3, s3, s{S_WAVE}
            s_lshl_b32 s3, s3, 8
            v_lshlrev_b32 v1, 2, v{LANE}
            buffer_store_dword v{DIAG}, v1, s[20:23], s3 offen
            """)
        a("L_end:\ns_endpgm\nL_code_end:")
        REF = 'adaLN_cond__ssm_conv_h3__glu_gated_geglu__prompt.s.ref'
        pre = [l for l in open(REF).read().split('\n') if l.startswith(';') and '@launch' not in l]
        out = pre + [f"; @launch grid=(256,1,1) block=(256,1,1) lds={LDS_TOTAL}", '.amdgcn_target "amdgcn-amd-amdhsa--gfx950"', '.text', a.text(),
                     '.section .rodata,"a"', kernel_desc(NAME, 256 + X1A + 12, 102, 256)]
        return '\n'.join(out) + '\n'

if __name__ == '__main__':
    dst = sys.argv[1] if len(sys.argv) > 1 else 'f_base.s'
    open(dst, 'w').write(G(verbose=True).build())
    open('f_diag.s', 'w').write(G(diag=True).build())
```

```python
S, D, DF = 2048, 576, 4608
NB_SD = S*D*2
A_Q, A_K, A_V, A_SK, A_SSMK, A_SSMD, B_X, W_G, W_U, W_D, C_, W_MOD, OUT, DBG, WS = [8*i for i in range(15)]
WS_U   = 0x0000000
WS_Z   = 0x0240000
WS_H2  = 0x0480000
WS_X1  = 0x06C0000
WS_MOD = 0x0900000
WS_P   = 0x1000000
NB_P   = 16*16*4*9*4096

class Asm:
    def __init__(self):
        self.L = []
        self.hop = None
    def __call__(self, s):
        for line in s.strip('\n').split('\n'):
            line = line.strip()
            if line:
                self.L.append(line)
                h = self.hop
                if h is not None:
                    h.add(line)
                    if h.due(20) and line.startswith(('v_', 'ds_', 'buffer_')) and not line.startswith(('v_cmp', 'v_readfirst')):
                        self.L.append("s_cmp_eq_u32 0, 1")
                        self.L += h.emit().split('\n')
    def text(self):
        out = []
        for l in self.L:
            if l.endswith(':') or l.startswith('.'):
                out.append(l)
            else:
                out.append('  ' + l)
        return '\n'.join(out)

def srd(a, dst, ptr, nbytes, off=0):
    if off:
        a(f"s_add_u32 s{dst}, s{ptr}, {off:#x}\ns_addc_u32 s{dst+1}, s{ptr+1}, 0")
    else:
        a(f"s_mov_b32 s{dst}, s{ptr}\ns_mov_b32 s{dst+1}, s{ptr+1}")
    a(f"s_mov_b32 s{dst+2}, {nbytes:#x}\ns_mov_b32 s{dst+3}, 0x20000")

def lo(a, d, s):
    a(f"v_lshlrev_b32 v{d}, 16, v{s}")
def hi(a, d, s):
    a(f"v_and_b32 v{d}, 0xffff0000, v{s}")
def unpack(a, d, s, e):
    (hi if e & 1 else lo)(a, d, s + (e >> 1))

def kernel_head(name):
    return f".globl {name}\n.p2align 8\n.type {name},@function\n{name}:"

def kernel_desc(name, vgpr, sgpr, accum=None):
    if STAMP[0]: sgpr = 100
    if accum is None:
        accum = min(256, (vgpr + 3)//4*4)
    return "\n".join(['.p2align 6', f'.amdhsa_kernel {name}', f'  .amdhsa_next_free_vgpr {vgpr}',
        f'  .amdhsa_next_free_sgpr {sgpr}', f'  .amdhsa_accum_offset {accum}',
        '  .amdhsa_group_segment_fixed_size 0', '  .amdhsa_kernarg_size 120',
        '  .amdhsa_user_sgpr_count 2', '  .amdhsa_user_sgpr_kernarg_segment_ptr 1',
        '  .amdhsa_system_sgpr_workgroup_id_x 1', '  .amdhsa_float_denorm_mode_32 3', '.end_amdhsa_kernel'])

_pcn = [0]
def code_srd(a, dst, tmp, start, end, back=False):
    _pcn[0] += 1
    l = f"L_pc_{_pcn[0]}"
    a(f"""
    s_getpc_b64 s[{tmp}:{tmp+1}]
    {l}:
    {f's_sub_u32 s{dst}, s{tmp}, {l}-{start}' if back else f's_add_u32 s{dst}, s{tmp}, {start}-{l}'}
    {'s_subb_u32' if back else 's_addc_u32'} s{dst+1}, s{tmp+1}, 0
    s_mov_b32 s{dst+2}, {end}-{start}
    s_mov_b32 s{dst+3}, 0x20000
    """)

STAMP = [False]
def stamp(a, i):
    if STAMP[0]: a(f"s_memrealtime s[{72+2*i}:{73+2*i}]")
def stamp_flush(a, kern, n, vt):
    if not STAMP[0]: return
    a(f"s_waitcnt vmcnt(0)\ns_memrealtime s[{72+2*n}:{73+2*n}]\ns_load_dwordx2 s[90:91], s[0:1], {WS}\ns_mov_b64 exec, -1\ns_waitcnt lgkmcnt(0)")
    srd(a, 92, 90, 0x40000, 0x8200000 + kern*0x40000)
    a(f"v_lshrrev_b32 v{vt}, 6, v0\nv_lshlrev_b32 v{vt}, 5, v{vt}\ns_lshl_b32 s90, s2, 9\nv_add_u32 v{vt}, s90, v{vt}")
    for i in range(n+1):
        a(f"v_mov_b32 v{vt+1}, s{72+2*i}\nbuffer_store_dword v{vt+1}, v{vt}, s[92:95], 0 offen offset:{4*i}")
```

```python
from common import *
import math, struct
SLOT = 24576
NSLOT = 6
RING = NSLOT*SLOT
_c1 = 2*math.sqrt(2/math.pi)*math.log2(math.e); _c2 = _c1*0.044715
ALPHA = _c2**(1/3)
KT = _c1/ALPHA
def f2u(x): return struct.unpack('<I', struct.pack('<f', x))[0]

P_Q, P_K, P_V, P_SK, P_SSMK, P_SSMD, P_WG, P_WU, P_WD, P_C, P_WMOD, P_OUT, P_WS = 64, 66, 68, 70, 72, 74, 78, 80, 82, 84, 86, 88, 92
S_TAG, S_WAVE, S_SPIN, S_ONE = 94, 95, 96, 97
S_MT, S_GI, S_OOB = 49, 50, 51
S_FL = 60
LANE = 254
ACC, STG, HH = 0, 64, 128
TMP = 200
RBH = 204
TF, TH, TD = 208, 209, 210
VF, VH, VD = 216, 220, 224
VL16 = 225
VPC = 214
VPF, VPD = 215, 238
RBF = 226
H2 = 0
FR = 144
X1A = 208
S_W, S_D, S_H, S_P = 12, 16, 20, 24
S_M0F, S_M0D = 29, 30
S_BF, S_BH, S_DF, S_DH = 31, 32, 33, 34
S_SO, S_PO, S_KT, S_HO, S_HS, S_SS, S_PD, S_PS = 35, 36, 37, 38, 39, 48, 40, 41
PFN, PFD = 18, 41
OBUF = [ACC+32, STG, STG+32, ACC]
HBUF = [216, 240]
RB2 = [204, 205, 206, 207, 212, 213]
VD2, TD2, VTAG, VCHK = 209, 208, 252, 211
S_X = 56
S_OH, S_PF, S_PH, S_OFH, S_PFH, S_88, S_POH, S_XO, S_XP, S_XS, S_FO, S_FP = 34, 42, 43, 44, 45, 46, 47, 76, 77, 28, 100, 101
WS_X = 0x2400000
NB_X = 256*4*18432
FE = 0x20000
FD1, FD2 = 0x60000, 0x80000
VEP, VEO, VEG, VEF = 248, 249, 250, 251
S_FD = 90

def isize(ins):
    op = ins.split()[0]
    if op.endswith(':'): return 0
    if op in ('s_waitcnt', 's_barrier', 's_nop', 's_cbranch_scc1', 's_branch'): return 4
    if op in ('v_mul_f32', 'v_add_f32', 'v_rcp_f32', 'v_exp_f32', 'v_lshlrev_b32', 'v_mov_b32', 'v_fmac_f32') and '0x' not in ins and '-' not in ins: return 4
    return 8

class Hops:
    def __init__(self, prefix):
        self.prefix, self.n, self.bytes = prefix, 0, 1 << 20
    def add(self, ins): self.bytes += isize(ins)
    def due(self, margin=40): return self.bytes >= 128 - margin
    def emit(self):
        s = f"{self.prefix}_{self.n}:\ns_cbranch_scc1 @HOP@{self.prefix}@{self.n}@"
        self.n += 1; self.bytes = 4
        return s
    def resolve(self, a, ncall):
        nseg = 4*ncall
        self.start = [self.n*k//nseg for k in range(nseg+1)]
        ends = {self.start[k+1]-1 for k in range(nseg)}
        for i, l in enumerate(a.L):
            if f'@HOP@{self.prefix}@' in l:
                n = int(l.split('@')[3])
                tgt = f"{self.prefix}_ret" if n in ends else f"{self.prefix}_{n+1}"
                a.L[i] = f"s_cbranch_scc1 {tgt}"
            elif f'@CALL@{self.prefix}@' in l:
                c, w = int(l.split('@')[3]), int(l.split('@')[4])
                a.L[i] = f"s_cbranch_scc1 {self.prefix}_in{4*c+w}"
            elif l == f'@STUBS@{self.prefix}':
                a.L[i] = "\n".join(f"{self.prefix}_in{k}:\n  s_cmp_eq_u32 0, 0\n  s_branch {self.prefix}_{self.start[k]}" for k in range(nseg)) + "\n  s_nop 0"
    ncalls = 0
    def call(self, a, c):
        Hops.ncalls += 1
        x = f"{self.prefix}_c{Hops.ncalls}"
        a(f"s_getpc_b64 s[98:99]\n{x}a:\ns_add_u32 s98, s98, {x}b-{x}a\ns_addc_u32 s99, s99, 0")
        for w in range(4):
            a(f"s_cmp_eq_u32 s{S_WAVE}, {w}")
            a.L.append(f"@CALL@{self.prefix}@{c}@{w}@")
        a(f"{x}b:")
    def ret(self, a):
        a.L.append(f'@STUBS@{self.prefix}')
        a(f"{self.prefix}_ret:\ns_setpc_b64 s[98:99]")

def down_items(order=0):
    F_ = lambda b, s_, ks: [('F', b, s_, k) for k in ks]
    H_ = lambda s_, ks: [('H', (s_, k), (s_, k+1)) for k in ks]
    it = F_(0,0,range(6)) + F_(1,0,range(6)) + H_(0,(0,2,4)) + F_(2,0,range(6)) + F_(3,0,range(6))
    for b in range(4): it += F_(b,0,range(6,9))
    it += H_(0,(6,))
    if order == 0:
        it += F_(0,1,range(6)) + F_(1,1,range(6)) + F_(0,1,range(6,9)) + F_(1,1,range(6,9))
    elif order == 1:
        it += F_(0,1,range(9)) + F_(1,1,range(9))
    if order == 2:
        it += F_(0,1,range(6)) + F_(1,1,range(6)) + F_(2,1,range(6)) + F_(0,1,range(6,9)) + F_(1,1,range(6,9)) + F_(2,1,range(6,9))
    else:
        it += F_(2,1,range(9))
    it += F_(3,1,range(9)) + H_(1,(0,2,4,6)) + [('H', (0,8), (1,8))]
    if order == 3:
        it = F_(0,0,range(6)) + F_(1,0,range(6)) + H_(0,(0,2,4)) + F_(0,1,range(6)) + F_(0,0,range(6,9)) + F_(2,0,range(6)) + F_(1,0,range(6,9)) + F_(1,1,range(3))
        it += F_(0,1,range(6,9)) + F_(1,1,range(3,9)) + F_(2,0,range(6,9)) + F_(2,1,range(9)) + F_(3,0,range(9)) + F_(3,1,range(9))
        it += H_(0,(6,)) + H_(1,(0,2,4,6)) + [('H', (0,8), (1,8))]
    if order == 4:
        it = F_(0,0,range(6)) + F_(1,0,range(6)) + H_(0,(0,2,4)) + F_(0,1,range(6)) + F_(0,0,range(6,9)) + F_(1,1,range(6)) + F_(1,0,range(6,9)) + H_(0,(6,)) + H_(1,(0,2))
        it += F_(0,1,range(6,9)) + H_(1,(4,6)) + [('H', (0,8), (1,8))] + F_(1,1,range(6,9)) + F_(2,0,range(9)) + F_(2,1,range(9)) + F_(3,0,range(9)) + F_(3,1,range(9))
    assert len(it) == 81
    return it

def base_ops(dst, T, npair, ntile):
    ops = []
    for p in range(npair):
        ops.append(f"v_add_u32 v{dst+ntile*p}, {2*SLOT*p}, v{T}")
        for t in range(1, ntile):
            ops.append(f"v_xor_b32 v{dst+ntile*p+t}, {32*t}, v{dst+ntile*p}")
    return ops

def dma_ops(st, DI):
    slot = (st % NSLOT)*SLOT
    ops = []
    if st < 27:
        if st < 24:
            base, vv, rs = S_BF, VF, 8*9216
            imm0 = (st // 6)*128 + (st % 6)*96*9216
        else:
            base, vv, rs = S_BH, VH, 16*9216
            imm0 = (st - 24)*192*9216
        for j in range(6):
            sc = []
            if j % 4 == 0:
                sc = [f"s_add_u32 m0, s{S_M0F}, {slot + j*1024}", f"s_add_u32 s{S_SO}, s{base}, {imm0 + j*rs}"]
            o = f" offset:{(j%4)*1024}" if j % 4 else ""
            ops.append((sc, f"buffer_load_dwordx4 v{vv + j%4}, s[{S_W}:{S_W+3}], s{S_SO} offen{o} lds"))
    else:
        for j, it in enumerate(DI[6*(st-27):6*(st-27)+6]):
            if it[0] == 'F':
                _, b, src, k = it
                base, imm, vv = ((S_DF, S_PF)[src], 32*k*1152 + b*128, VD) if k < 8 else ((S_OH, S_PH)[src], b*128, VD)
            else:
                src, k = it[1]
                base, imm, vv = ((S_OFH, S_PFH)[src], 32*k*1152, VD2) if k < 8 else (S_88, 0, VD2)
            sc = [f"s_add_u32 m0, s{S_M0D}, {slot + j*4096}", f"s_add_u32 s{S_SO}, s{base}, {imm}"]
            ops.append((sc, f"buffer_load_dwordx4 v{vv}, s[{S_D}:{S_D+3}], s{S_SO} offen lds"))
    return ops

def ffn_prefill(a, stages):
    for st in stages:
        for sc, ins in dma_ops(st, None):
            for s_ in sc: a(s_)
            a(ins)

def ffn_setup(a, T, srds=True):
    L, T0, T1, T2, T3 = LANE, T, T+1, T+2, T+3
    RS = 8*9216 - 1024; RH = 16*9216 - 1024
    a(f"""
    s_and_b32 s4, s2, 7
    s_and_b32 s6, s{S_GI}, 1
    s_mul_i32 s7, s4, 576
    s_mul_i32 s8, s6, 320
    s_add_u32 s8, s8, s7
    s_lshl_b32 s9, s6, 5
    s_add_u32 s9, s9, s7
    s_add_u32 s9, s9, 256
    s_lshl_b32 s{S_BF}, s8, 1
    s_lshl_b32 s{S_BH}, s9, 1
    s_lshl_b32 s10, s{S_MT}, 2
    s_add_u32 s10, s10, s{S_WAVE}
    s_mul_i32 s{S_HO}, s10, 36864
    s_mul_i32 s{S_M0F}, s{S_WAVE}, 6144
    s_lshl_b32 s{S_M0D}, s{S_WAVE}, 10
    s_mov_b32 s{S_KT}, {f2u(-KT):#x}
    s_and_b32 s4, s{S_WAVE}, 1
    s_mul_i32 s5, s4, {48*9216}
    s_mul_i32 s6, s4, {96*9216}
    s_mul_i32 s7, s{S_WAVE}, {8*1152}
    v_lshlrev_b32 v{VL16}, 4, v{L}
    v_lshrrev_b32 v{T0}, 3, v{L}
    v_bfe_u32 v{T1}, v{L}, 4, 1
    v_lshlrev_b32 v{T1}, 1, v{T1}
    v_and_b32 v{T2}, 7, v{L}
    v_xor_b32 v{T1}, v{T1}, v{T2}
    v_lshlrev_b32 v{T1}, 4, v{T1}
    v_mul_u32_u24 v{T3}, 9216, v{T0}
    v_add_u32 v{T3}, s5, v{T3}
    v_add_u32 v{VF}, v{T3}, v{T1}
    v_xor_b32 v{T1}, 64, v{T1}
    v_add_u32 v{VF+1}, v{T3}, v{T1}
    v_add_u32 v{VF+2}, {2*RS}, v{VF}
    v_add_u32 v{VF+3}, {3*RS}, v{VF+1}
    v_add_u32 v{VF+1}, {RS}, v{VF+1}
    """)
    if srds:
        a(f"""
        s_cmp_ge_u32 s{S_WAVE}, 2
        s_cselect_b32 s{S_W}, s{P_WU}, s{P_WG}
        s_cselect_b32 s{S_W+1}, s{P_WU+1}, s{P_WG+1}
        s_mov_b32 s{S_W+2}, {D*DF*2:#x}
        s_mov_b32 s{S_W+3}, 0x20000
        """)
        srd(a, S_D, P_WD, D*DF*2)
    a(f"""
    v_lshrrev_b32 v{T0}, 2, v{L}
    v_mul_u32_u24 v{T3}, 9216, v{T0}
    v_add_u32 v{T3}, s6, v{T3}
    v_and_b32 v{T0}, 3, v{L}
    v_lshrrev_b32 v{T1}, 5, v{L}
    v_lshlrev_b32 v{T1}, 1, v{T1}
    v_xor_b32 v{T0}, v{T0}, v{T1}
    v_lshl_add_u32 v{VH}, v{T0}, 4, v{T3}
    v_add_u32 v{VH+1}, {RH}, v{VH}
    v_add_u32 v{VH+2}, {2*RH}, v{VH}
    v_add_u32 v{VH+3}, {3*RH}, v{VH}
    v_lshrrev_b32 v{T0}, 3, v{L}
    v_mul_u32_u24 v{T1}, 1152, v{T0}
    v_add_u32 v{T1}, s7, v{T1}
    v_and_b32 v{T0}, 6, v{T0}
    v_and_b32 v{T2}, 7, v{L}
    v_xor_b32 v{T0}, v{T0}, v{T2}
    v_lshl_add_u32 v{VD}, v{T0}, 4, v{T1}
    v_lshrrev_b32 v{T2}, 4, v{L}
    v_bfe_u32 v{T0}, v{L}, 2, 2
    v_and_b32 v{T3}, 3, v{L}
    v_lshlrev_b32 v{T3}, 3, v{T3}
    v_lshl_add_u32 v{T1}, v{T2}, 3, v{T0}
    v_lshl_add_u32 v{TF}, v{T1}, 7, v{T3}
    v_lshl_add_u32 v{TH}, v{T1}, 6, v{T3}
    v_lshl_add_u32 v{T1}, v{T2}, 2, v{T0}
    v_lshl_add_u32 v{TD}, v{T1}, 7, v{T3}
    v_bfe_u32 v{T1}, v{T1}, 1, 2
    v_lshl_add_u32 v{TD}, v{T1}, 5, v{TD}
    v_and_b32 v{T2}, 1, v{T2}
    v_lshl_add_u32 v{TH}, v{T2}, 5, v{TH}
    v_lshrrev_b32 v{T0}, 1, v{T0}
    v_lshl_add_u32 v{T0}, v{T2}, 1, v{T0}
    v_lshl_add_u32 v{TF}, v{T0}, 5, v{TF}
    """)
    for o in base_ops(RBF, TF, 3, 4) + base_ops(RBH, TH, 2, 2): a(o)
    a(f"""
    v_lshrrev_b32 v{T0}, 4, v{L}
    v_bfe_u32 v{T1}, v{L}, 2, 2
    v_lshl_add_u32 v{T1}, v{T0}, 2, v{T1}
    v_and_b32 v{T2}, 3, v{L}
    v_lshlrev_b32 v{T3}, 3, v{T2}
    v_lshl_add_u32 v{TD2}, v{T1}, 6, v{T3}
    v_and_b32 v{T0}, 1, v{T0}
    v_lshl_add_u32 v{TD2}, v{T0}, 5, v{TD2}
    v_lshlrev_b32 v{T0}, 1, v{T0}
    v_xor_b32 v{T2}, v{T2}, v{T0}
    v_lshrrev_b32 v{T1}, 2, v{L}
    s_lshl_b32 s4, s{S_WAVE}, 4
    v_add_u32 v{T1}, s4, v{T1}
    v_mul_u32_u24 v{T1}, 1152, v{T1}
    v_lshl_add_u32 v{VD2}, v{T2}, 4, v{T1}
    """)
    a(f"""
    s_mul_i32 s4, s{S_MT}, 36
    s_and_b32 s5, s{S_WAVE}, 1
    s_mul_i32 s5, s5, 18
    s_add_u32 s4, s4, s5
    v_min_u32 v{VPF}, {PFN-1}, v{L}
    v_add_u32 v{VPF}, s4, v{VPF}
    v_mul_u32_u24 v{VPF}, 9216, v{VPF}
    """)

def ffn_setup2(a, T):
    a(f"""
    s_lshl_b32 s4, s{S_MT}, 2
    s_add_u32 s4, s4, s{S_WAVE}
    s_mul_i32 s4, s4, 41
    v_min_u32 v{VPD}, {PFD-1}, v{LANE}
    v_add_u32 v{VPD}, s4, v{VPD}
    v_lshlrev_b32 v{VPD}, 7, v{VPD}
    s_mul_i32 s{S_PD}, s{S_GI}, {288*1152}
    s_lshl_b32 s4, s{S_WAVE}, 4
    v_and_b32 v{VPC}, 15, v{LANE}
    v_add_u32 v{VPC}, s4, v{VPC}
    v_lshlrev_b32 v{VPC}, 7, v{VPC}
    """)
    a(f"""
    s_and_b32 s9, s{S_GI}, 1
    s_lshr_b32 s10, s{S_GI}, 1
    s_mul_i32 s11, s10, {576*1152}
    s_mul_i32 s3, s9, 640
    s_add_u32 s3, s3, s11
    s_mul_i32 s4, s9, {320*1152}
    s_add_u32 s{S_DF}, s3, s4
    s_sub_u32 s4, {320*1152}, s4
    s_add_u32 s{S_PF}, s3, s4
    s_mul_i32 s4, s9, {32*1152}
    s_add_u32 s3, s3, {256*1152}
    s_add_u32 s{S_OH}, s3, s4
    s_sub_u32 s4, {32*1152}, s4
    s_add_u32 s{S_PH}, s3, s4
    s_mul_i32 s3, s9, 576
    s_sub_u32 s3, 512, s3
    s_add_u32 s{S_OFH}, s{S_DF}, s3
    s_add_u32 s{S_PFH}, s{S_PF}, s3
    s_sub_u32 s4, s{S_PH}, {32*1152}
    s_cmp_ge_u32 s{S_WAVE}, 2
    s_cselect_b32 s4, s4, s{S_OH}
    s_add_u32 s{S_88}, s4, s3
    s_lshl_b32 s10, s10, 6
    s_lshl_b32 s3, s{S_MT}, 2
    s_add_u32 s10, s10, s3
    s_add_u32 s10, s10, s{S_WAVE}
    s_mul_i32 s10, s10, 36864
    s_mul_i32 s3, s9, {10*2048}
    s_add_u32 s{S_PO}, s10, s3
    s_lshl_b32 s3, s9, 11
    s_add_u32 s3, s3, {8*2048}
    s_add_u32 s{S_POH}, s10, s3
    s_lshl_b32 s3, s2, 2
    s_add_u32 s3, s3, s{S_WAVE}
    s_xor_b32 s9, s3, 32
    s_mul_i32 s{S_XO}, s3, 18432
    s_mul_i32 s{S_XP}, s9, 18432
    s_lshl_b32 s3, s3, 8
    s_add_u32 s{S_FO}, s3, {FE}
    s_lshl_b32 s9, s9, 8
    s_add_u32 s{S_FP}, s9, {FE}
    """)
    srd(a, S_X, P_WS, NB_X, WS_X)
    srd(a, S_H, P_WS, NB_SD, WS_H2)
    srd(a, S_P, P_WS, NB_P, WS_P)

def default_pf(c3=(5,), h=(11,), d=(9,), c2=(0,)):
    PF = {}
    for w, xs in ((2, c2), (3, c3), (4, h), ('D', d)):
        for pc, x in enumerate(xs): PF.setdefault(x, []).append((w, pc))
    return PF

def ffn_main(a, hops=None, R=16, DBAR=16, RD_MARGIN=6, MINLEAD=5, store_flags=' sc1', order=0, FLAG_D=56, ASK_D=56, ASK1=40, ASK2=290, NPRO=2, verbose=False,
             DEBT=2.0, WM=8, GSPAN=44, HSPAN=30, stamper=None, NP2=6, BG=1, BG0=5, CPF=0, CPD=4, stagestamp=False, nobar=False, nodma=False, nogelu=False, nostore=False, PF=None, GDL=None, PPACE=10, HPACE=None):
    if PF is None: PF = default_pf()
    DI = down_items(order)
    NST = 27 + (len(DI) + 5)//6
    vm = []
    def vm_wait_n(tag):
        idx = [i for i, t in enumerate(vm) if t == tag]
        if not idx: return None
        n = len(vm) - 1 - max(idx)
        assert n <= 63
        return n
    def h2_ops(q):
        ops = []
        for mt in range(2):
            for n, ks in enumerate(range(3*q, 3*q+3)):
                sc = [f"s_add_u32 s{S_HS}, s{S_HO}, {mt*18432 + 3*q*1024}"] if n == 0 else []
                o = f" offset:{n*1024}" if n else ""
                r = H2 + 8*ks + 4*mt
                ops.append((sc, f"buffer_load_dwordx4 a[{r}:{r+3}], v{VL16}, s[{S_H}:{S_H+3}], s{S_HS} offen{o} sc1"))
        return ops
    dq = []
    for q in range(6):
        ops = h2_ops(q)
        if q >= NP2: ops = dma_ops(q, DI) + ops
        if q < NPRO:
            for sc, ins in ops:
                for s_ in sc: a(s_)
                a(ins); vm.append(('D', q))
        else:
            dq += [[q, list(sc), ins] for sc, ins in ops]

    F = []; M = []
    def tile(base, idx): return base + 4*idx
    for st in range(NST):
        if st < 27:
            full = st < 24
            nks = 3 if full else 6
            nft = 4 if full else 2
            c = st // 6 if full else 4
            k0 = 3*(st % 6) if full else 6*(st - 24)
            rowb = 128 if full else 64
            for kb in range(0, nks, 3):
                for ft in range(nft):
                    for mat in range(2):
                        f0 = len(F)
                        for x in range(3):
                            imm = mat*12288 + (kb + x)*32*rowb
                            F.append(dict(st=st, rb=ft, imm=(imm, imm + 4*rowb)))
                        for mt in range(2):
                            for x in range(3):
                                ks = k0 + kb + x
                                t = (ft*2 + mat)*2 + mt
                                last = ks == 17
                                Dd = tile(STG if (last and full) else ACC, t)
                                M.append(dict(st=st, f=f0+x, B=f"a[{H2+8*ks+4*mt}:{H2+8*ks+4*mt+3}]",
                                              C=None if ks == 0 else tile(ACC, t), D=Dd,
                                              done=('G', c, ft, mt) if (last and mat == 1) else None))
        else:
            items = DI[6*(st-27):6*(st-27)+6]
            def bop(src, k, mt):
                if src == 0: return dict(B=f"v[{HH+8*k+4*mt}:{HH+8*k+4*mt+3}]", hh=(k, mt))
                return dict(B=f"a[{8*k+4*mt}:{8*k+4*mt+3}]", vmneed=('P', k, mt))
            j = 0
            while j < len(items):
                n = 1
                if items[j][0] == 'F':
                    b = items[j][1]
                    while n < 3 and j + n < len(items) and items[j+n][:2] == ('F', b): n += 1
                    steps = [(it[2], it[3], (j+x)*4096, 2048) for x, it in enumerate(items[j:j+n])]
                    nct, kind = 4, 'F'
                    tl = lambda ct, mt: tile(OBUF[b], mt*4 + ct)
                else:
                    b = 4
                    steps = [(sk[0], sk[1], j*4096 + x*2048, 1024) for x, sk in enumerate(items[j][1:])]
                    nct, kind = 2, 'H'
                    tl = lambda ct, mt: HBUF[mt] + 4*ct
                for ct in range(nct):
                    f0 = len(F)
                    for (src, k, imm, du) in steps:
                        F.append(dict(st=st, rb=ct, imm=(imm, imm + du), kind=kind))
                    for mt in range(2):
                        for x, (src, k, imm, du) in enumerate(steps):
                            first = (src, k) == (0, 0); last = (src, k) == (1, 8)
                            M.append(dict(st=st, f=f0+x, C=None if first else tl(ct, mt), D=tl(ct, mt),
                                          done=('O', b, ct, mt) if (last and (ct & 1)) else None, **bop(src, k, mt)))
                j += n
    N = len(M)
    assert N == 1944
    for i, m in enumerate(M): F[m['f']]['last'] = i
    for i, m in reversed(list(enumerate(M))): F[m['f']]['first'] = i
    st_end = {}
    for i, m in enumerate(M): st_end[m['st']] = i + 1

    Q = []
    def add(ins, w, regs, hh=None, ready=0, vmt=None, sc=False):
        Q.append(dict(ins=ins, w=w, regs=regs, hh=hh, ready=ready, vm=vmt, sc=sc))
    def gelu_items(c, ft, mt, ready):
        base = STG if c < 4 else ACC
        G, U = tile(base, (ft*2)*2 + mt), tile(base, (ft*2+1)*2 + mt)
        k = (2*c + (ft >> 1)) if c < 4 else 8
        d = HH + 8*k + 4*mt + 2*(ft & 1)
        E = range(4)
        seq = []
        seq += [(f"v_fma_f32 v{TMP+e}, -v{G+e}, v{G+e}, s{S_KT}", 1) for e in E]
        seq += [(f"v_mul_f32 v{TMP+e}, v{G+e}, v{TMP+e}", 1) for e in E]
        seq += [(f"v_exp_f32 v{TMP+e}, v{TMP+e}", 2) for e in E]
        seq += [(f"v_mul_f32 v{U+e}, v{G+e}, v{U+e}", 1) for e in E]
        seq += [(f"v_add_f32 v{TMP+e}, 1.0, v{TMP+e}", 1) for e in E]
        seq += [(f"v_rcp_f32 v{TMP+e}, v{TMP+e}", 2) for e in E]
        seq += [(f"v_mul_f32 v{U+e}, v{U+e}, v{TMP+e}", 1) for e in E]
        seq += [(f"v_cvt_pk_bf16_f32 v{d+i}, v{U+2*i}, v{U+2*i+1}", 1) for i in range(2)]
        for n, (ins, w) in enumerate(seq):
            add(ins, w, (G, U), hh=(k, mt) if n >= len(seq)-2 else None, ready=ready)
        if ft & 1:
            x = 2*k + mt
            if x % 4 == 0: add(f"s_add_u32 s{S_XS}, s{S_XO}, {x*1024}", 0, ('x',), sc=True)
            o = f" offset:{(x%4)*1024}" if x % 4 else ""
            add(f"buffer_store_dwordx4 v[{HH+4*x}:{HH+4*x+3}], v{VL16}, s[{S_X}:{S_X+3}], s{S_XS} offen{o} sc1", 2, ('x',), vmt=('X', x))
    def out_items(b, ct, mt, ready):
        t0 = tile(OBUF[b], mt*4 + ct - 1) if b < 4 else HBUF[mt]
        regs = (t0, t0+4)
        for x in range(4):
            add(f"v_cvt_pk_bf16_f32 v{t0+x}, v{t0+2*x}, v{t0+2*x+1}", 1, regs, ready=ready)
        ip = ct >> 1
        if ct == 1 and mt == 0:
            add(f"s_add_u32 s{S_SS}, s{S_PO}, {b*4096}" if b < 4 else f"s_mov_b32 s{S_SS}, s{S_POH}", 0, regs, ready=ready, sc=True)
        o = f" offset:{(2*ip+mt)*1024}" if (2*ip+mt) else ""
        add(f"buffer_store_dwordx4 v[{t0}:{t0+3}], v{VL16}, s[{S_P}:{S_P+3}], s{S_SS} offen{o}{store_flags}", 2, regs, ready=ready, vmt=('S', b, ct, mt))

    cnt = [0]; cur = [0]; acts = []; vm_done = [-1]; slow = []
    def vm_wait(tag, extra=''):
        idx = max(i for i, t in enumerate(vm) if t == tag)
        if idx <= vm_done[0] and not extra: return False
        n = len(vm) - 1 - idx
        assert n <= 63
        E_(f"s_waitcnt vmcnt({n}){extra}")
        vm_done[0] = max(vm_done[0], idx)
        return True
    def E_(ins):
        cnt[0] += 1
        if nodma and ins.startswith('buffer_load') and 'lds' in ins: ins = 's_nop 0'
        if nostore and ins.startswith('buffer_store_dwordx4'): ins = 's_nop 0'
        if nogelu and ins.split()[0] in ('v_fma_f32', 'v_mul_f32', 'v_exp_f32', 'v_rcp_f32', 'v_add_f32'): return
        a(ins)
        if hops: hops.add(ins)
    def emit_q():
        it = Q[0]
        if cnt[0] < it['ready']:
            n = it['ready'] - cnt[0]
            while n > 0:
                k = min(n, 16); E_(f"s_nop {k-1}"); cnt[0] += k-1; n -= k
        Q.pop(0); E_(it['ins'])
        if it['vm']:
            vm.append(it['vm'])
            if it['vm'] == ('X', 11): acts.append([cur[0] + FLAG_D, 'flag', 0, it['vm']])
            if it['vm'] == ('S', 1, 3, 1): acts.append([cur[0] + FLAG_D, 'flag', 2, it['vm']])
            if it['vm'] == ('X', 17): acts.append([cur[0] + FLAG_D, 'flag', 1, it['vm']])
        return it
    def needs(m, it):
        if m.get('hh') is not None and it['hh'] == m['hh']: return True
        if m['D'] in it['regs'] and m['D'] != m['C']: return True
        return False
    def deadline(i):
        worst = 0.0; cum = 0; dl_cache = {}
        for it in Q:
            cum += it['w']
            key = (it['regs'], it['hh'])
            if key not in dl_cache:
                dl = None
                for j in range(i+1, min(N, i+400)):
                    if needs(M[j], it): dl = j; break
                dl_cache[key] = dl
            dl = dl_cache[key]
            if GDL is not None and it['vm'] == ('X', 17): dl = st_end[26] + GDL
            if GDL is not None and it['vm'] == ('X', 15): dl = st_end[26] + GDL - 80
            if dl is not None:
                worst = max(worst, cum/max(1, dl - i - 1))
        if Q and worst == 0: worst = cum/max(1, min(N - i, 60))
        return worst

    lds = []; covered = [-1]; rd_next = [0]; rd_gap = {}; enabled = [0]
    def rbreg(fr):
        sl = fr['st'] % NSLOT
        if fr.get('kind') == 'H': return RB2[2*(sl >> 1) + fr['rb']], (sl & 1)*SLOT
        if 24 <= fr['st'] < 27: return RBH + 2*(sl >> 1) + fr['rb'], (sl & 1)*SLOT
        return RBF + 4*(sl >> 1) + fr['rb'], (sl & 1)*SLOT
    def can_read(i):
        j = rd_next[0] >> 1
        if j >= len(F) or F[j]['st'] > enabled[0]: return False
        return j < R or F[j-R]['last'] <= i
    def emit_read(i):
        j, p = rd_next[0] >> 1, rd_next[0] & 1
        f = FR + 4*(j % R) + 2*p
        assert not (F[j]['st'] >= 27 and any(it['regs'] == ('rb',) for it in Q))
        assert not (F[j].get('kind') == 'H' and any(it['regs'] == ('rb2',) for it in Q))
        r_, o_ = rbreg(F[j])
        E_(f"ds_read_b64_tr_b16 a[{f}:{f+1}], v{r_} offset:{F[j]['imm'][p] + o_}")
        lds.append(j); rd_next[0] += 1
        if p: rd_gap[j] = i
    def emit_wait(i_next, i):
        fj = M[i_next]['f']
        if covered[0] >= fj: return False
        while (rd_next[0] >> 1) <= fj:
            assert can_read(i), (i, fj)
            emit_read(i)
        tgt = fj
        for k in range(fj+1, min(fj+6, len(F))):
            if k in rd_gap and rd_gap[k] <= i - WM: tgt = k
            else: break
        n = sum(1 for j in lds if j > tgt)
        E_(f"s_waitcnt lgkmcnt({min(n, 15)})")
        covered[0] = tgt
        return True

    while can_read(-1) and len(lds) < 12: emit_read(-1)
    E_(f"s_waitcnt vmcnt({vm_wait_n(('D', 0))})")
    if stamper: stamper()
    if stagestamp: E_("s_memtime s[98:99]"); E_("s_waitcnt lgkmcnt(0)"); E_("v_writelane_b32 v253, s98, 63")
    E_("s_cmp_eq_u32 0, 1")
    emit_wait(0, -1)

    stats = dict(over=0, flush=0, late=0)
    pq = []; pnext = [0]
    freed = [-1]; gspan = [HSPAN]; gn = [len(dq)]
    cred_r = 0.0; cred_v = 0.0; cred_g = 0.0
    T0 = st_end[26]
    acts += [[T0 + ASK1, 'ask', 0], [T0 + ASK2, 'ask', 1]]
    for i in range(N):
        m = M[i]; cur[0] = i
        flushed = False
        while any(needs(m, it) for it in Q):
            stats['flush'] += emit_q()['w']; flushed = True
        if flushed: E_("s_nop 1"); cnt[0] += 1
        f = FR + 4*(m['f'] % R)
        Cs = "0" if m['C'] is None else f"v[{m['C']}:{m['C']+3}]"
        E_(f"v_mfma_f32_16x16x32_bf16 v[{m['D']}:{m['D']+3}], a[{f}:{f+3}], {m['B']}, {Cs}")
        if m['done']:
            kind, x, y, mt = m['done']
            (gelu_items if kind == 'G' else out_items)(x, y, mt, cnt[0] + 9)
        st = m['st']
        used = 0; sc_used = 0
        if hops and hops.due(24):
            a(hops.emit()); cnt[0] += 1; sc_used = 1
        bar_gap = st_end[st] - DBAR - 1
        if i == bar_gap: a(f"L_st{st}:")
        if i == bar_gap and st < NST - 1 and st == enabled[0]:
            nxt_en = min(st + (BG if st >= BG0 else 1), NST - 1)
            while (rd_next[0] >> 1) < len(F) and F[rd_next[0] >> 1]['st'] <= st:
                emit_read(i); used += 1
            while any(d[0] <= nxt_en for d in dq):
                d = dq.pop(0)
                for x in d[1]: E_(x)
                E_(d[2]); vm.append(d[3] if len(d) > 3 else ('D', d[0])); used += 2; stats['late'] += 1
            tg = [('D', x) for x in range(nxt_en, st, -1) if ('D', x) in vm]
            if tg: vm_wait(max(tg, key=lambda t: max(i_ for i_, u in enumerate(vm) if u == t)), ' lgkmcnt(0)')
            else: E_("s_waitcnt lgkmcnt(0)")
            if stagestamp == 1:
                E_("s_memtime s[98:99]"); E_("s_waitcnt lgkmcnt(0)"); E_(f"v_writelane_b32 v253, s98, {st}")
            if stagestamp == 3 and st in (5, 23, 33):
                ix = {5: 24, 23: 25, 33: 26}[st]
                E_("s_memtime s[98:99]"); E_("s_waitcnt lgkmcnt(0)"); E_(f"v_writelane_b32 v253, s98, {ix}")
                E_("s_memrealtime s[98:99]"); E_("s_waitcnt lgkmcnt(0)"); E_(f"v_writelane_b32 v255, s98, {ix}")
            if not nobar: E_("s_barrier")
            sc_used = 2
            covered[0] = (rd_next[0] >> 1) - 1
            enabled[0] = nxt_en
            for x in range(freed[0] + 1, st + 1):
                if CPF and x % CPF == 0 and x + CPD < NST - 1:
                    pq.append([98, [f"s_mov_b32 s{S_PS}, L_st{x+CPD}-L_common"], f"buffer_load_dword v239, v{VPC}, s[52:55], s{S_PS} offen", ('pf', 0)])
                for w, pc in PF.get(x, ()):
                    if w == 'D': pq.append([98, [f"s_add_u32 s{S_PS}, s{S_PD}, {pc*PFD*128}"], f"buffer_load_dword v239, v{VPD}, s[{S_D}:{S_D+3}], s{S_PS} offen", ('pf', 0)])
                    else:
                        sc_ = f"s_add_u32 s{S_PS}, s{S_BF if w < 4 else S_BH}, {(128*w if w < 4 else 0) + pc*PFN*9216}"
                        pq.append([98, [sc_], f"buffer_load_dword v239, v{VPF}, s[{S_W}:{S_W+3}], s{S_PS} offen", ('pf', 0)])
                if x + NSLOT < NST:
                    dq += [[x+NSLOT, list(sc), ins] for sc, ins in dma_ops(x+NSLOT, DI)]
                if x == 23:
                    Q[0:0] = [dict(ins=o, w=1, regs=('rb',), hh=None, ready=0, vm=None, sc=False) for o in base_ops(RBF, TD, 3, 4)]
                if x == 26:
                    ops2 = []
                    for p in range(3):
                        ops2 += [f"v_add_u32 v{RB2[2*p]}, {2*SLOT*p}, v{TD2}", f"v_xor_b32 v{RB2[2*p+1]}, 32, v{RB2[2*p]}"]
                    Q[0:0] = [dict(ins=o, w=1, regs=('rb2',), hh=None, ready=0, vm=None, sc=False) for o in ops2]
            gspan[0] = GSPAN*(st - freed[0]); gn[0] = len(dq)
            freed[0] = st
        if i + 1 < N and emit_wait(i + 1, i): sc_used += 1
        if i + 1 < N and M[i+1].get('vmneed'):
            while any(d[3] == M[i+1]['vmneed'] for d in pq):
                d = pq.pop(0)
                for x in d[1]: E_(x)
                E_(d[2]); vm.append(d[3] if len(d) > 3 else ('D', d[0])); used += 2; stats['late'] += 1
            if vm_wait(M[i+1]['vmneed']): sc_used += 1
        due = [x for x in acts if x[0] <= i]
        if due and not sc_used and not used:
            act = due[0]; acts.remove(act)
            if act[1] == 'flag':
                vm_wait(act[3])
                E_(f"buffer_store_dword v{VTAG}, off, s[{S_FL}:{S_FL+3}], s{S_FO if act[2] < 2 else S_FD}" + (" offset:128" if act[2] == 1 else "") + " sc1")
                vm.append(('F', act[2])); stats[f'flag{act[2]}'] = i - T0
            elif act[1] == 'ask':
                E_(f"buffer_load_dword v{VCHK}, off, s[{S_FL}:{S_FL+3}], s{S_FP}" + (" offset:128" if act[2] else "") + " sc1")
                vm.append(('A', act[2])); acts.append([i + ASK_D, 'test', act[2]])
            else:
                vm_wait(('A', act[2]))
                E_(f"v_cmp_ne_u32 vcc, s{S_TAG}, v{VCHK}")
                E_(f"s_cbranch_vccnz L_xslow{act[2]}")
                a(f"L_xok{act[2]}:")
                new = []
                for x in (range(12) if act[2] == 0 else range(12, 18)):
                    sc_ = [f"s_add_u32 s{S_HS}, s{S_XP}, {x*1024}"] if x % 4 == 0 else []
                    o = f" offset:{(x%4)*1024}" if x % 4 else ""
                    new.append([99, sc_, f"buffer_load_dwordx4 a[{4*x}:{4*x+3}], v{VL16}, s[{S_X}:{S_X+3}], s{S_HS} offen{o} sc1", ('P', x >> 1, x & 1)])
                pq.extend(new)
            sc_used = 1; used = 2
        if not sc_used and hops and hops.due(48):
            a(hops.emit()); cnt[0] += 1; sc_used = 1
        if not sc_used and dq and dq[0][1]:
            E_(dq[0][1].pop(0)); sc_used = 1
        if not sc_used and pq and pq[0][1]:
            E_(pq[0][1].pop(0)); sc_used = 1
        if not sc_used and Q and Q[0]['sc'] and cnt[0] >= Q[0]['ready']:
            emit_q(); sc_used = 1
        jn = rd_next[0] >> 1
        lead = (F[jn]['first'] - i) if jn < len(F) else 999
        es = enabled[0]
        rem_r = sum(2 for fr in F[jn:jn+70] if fr['st'] <= es) - (rd_next[0] & 1) if jn < len(F) and F[jn]['st'] <= es else 0
        dl_r = (st_end[es] - DBAR - 1 - RD_MARGIN) if es < NST - 1 else st_end[es] - 10
        cred_r = min(cred_r + rem_r/max(1, dl_r - i), 2.5)
        cred_v += deadline(i)
        npend = len(dq)
        if npend:
            cred_g = min(cred_g + (gn[0]/gspan[0] if st >= 4 else (1/HPACE if HPACE else max(6, npend)/HSPAN)), 1.5)
        want_g = dq and not dq[0][1] and cred_g >= 1 and lead >= 2*MINLEAD
        if want_g and used == 0 and not sc_used:
            d = dq.pop(0)
            E_(d[2]); vm.append(d[3] if len(d) > 3 else ('D', d[0])); cred_g -= 1; used = 2
        if pq and not pq[0][1] and used == 0 and not sc_used and i >= pnext[0] and lead >= 2*MINLEAD:
            d = pq.pop(0)
            E_(d[2]); vm.append(d[3]); used = 2; pnext[0] = i + PPACE
        nd = 0
        if used < 2 and can_read(i):
            head2 = Q and Q[0]['w'] == 2 and cnt[0] >= Q[0]['ready']
            if lead < 2*MINLEAD or cred_r >= 2: nd = 2
            elif cred_r >= 1: nd = 2 if (head2 or want_g) else 1
            elif not Q: nd = 1
            while nd and used < 2 and can_read(i):
                emit_read(i); used += 1; nd -= 1; cred_r -= 1
        while Q and cnt[0] >= Q[0]['ready'] and not Q[0]['sc']:
            w = Q[0]['w']
            if used + w <= 2: pass
            elif cred_v >= DEBT + w and used + w <= 4 and used <= 2: stats['over'] += used + w - 2
            else: break
            emit_q(); used += w; cred_v -= w
        if not Q: cred_v = 0
    while Q: emit_q()
    if stagestamp: E_("s_memtime s[98:99]"); E_("s_waitcnt lgkmcnt(0)"); E_("v_writelane_b32 v253, s98, 62")
    assert not acts and not dq and not pq
    if verbose: print('ffn schedule:', stats, 'instr', cnt[0], 'hops', hops.n if hops else 0)

def ffn_slow_paths(a, spin_max, diag=False):
    for p in range(2):
        a(f"""
        L_xslow{p}:
        s_mov_b32 s{S_SPIN}, 0
        L_xspin{p}:
        buffer_load_dword v{VCHK}, off, s[{S_FL}:{S_FL+3}], s{S_FP}{' offset:128' if p else ''} sc1
        s_add_u32 s{S_SPIN}, s{S_SPIN}, 1
        s_waitcnt vmcnt(0)
        {f'v_writelane_b32 v255, s{S_SPIN}, {28+p}' if diag else ''}
        v_cmp_ne_u32 vcc, s{S_TAG}, v{VCHK}
        s_cbranch_vccz L_xok{p}
        s_cmp_lt_u32 s{S_SPIN}, {spin_max}
        s_cbranch_scc1 L_xspin{p}
        s_branch L_xok{p}
        """)
```

```python
import sys
from common import *
from ffn import *
NAME = 'adaLN_cond__ssm_conv_h3__glu_gated_geglu__prompt_kernel'
WS_EPOCH = 0x0A00000
WS_FL = 0x0A10000
FA, FB, FC, FD = 0, 0x8000, 0x10000, 0x18000
NB_MOD = 6*D*4
KSTR = 4160
WAVE_LDS = 4*KSTR + 4608
T_OFF = 4*WAVE_LDS
STAT_OFF = RING
MOD_OFF = RING + 1024
LDS_TOTAL = MOD_OFF + 14848
VRZ, VRM, VRH, VRP = 200, 201, 202, 203
NCONV, NMOD = 144, 54
QP, ST = 240, 252
DIAG = 255
SPIN_MAX = 200000

class G:
    def __init__(self, diag=False, **kw):
        self.a = Asm(); self.diag = diag; self.kw = kw; self.nl = 0; self.nst = 0; self.names = []
    def lab(self, p):
        self.nl += 1; return f"L_{p}{self.nl}"
    def stamp(self, idx):
        if self.diag:
            self.a(f"s_memrealtime s[98:99]\ns_waitcnt lgkmcnt(0)\nv_writelane_b32 v{DIAG}, s98, {idx}")

    def signal(self, base, idx_sgpr):
        a = self.a; l = self.lab('sig')
        a(f"""
        s_waitcnt vmcnt(0)
        s_barrier
        s_cmp_lg_u32 s{S_WAVE}, 0
        s_cbranch_scc1 {l}
        s_lshl_b32 s3, s{idx_sgpr}, 7
        s_add_u32 s3, s3, {base}
        v_mov_b32 v239, s{S_TAG}
        s_mov_b64 exec, 1
        buffer_store_dword v239, off, s[{S_FL}:{S_FL+3}], s3 sc1
        s_mov_b64 exec, -1
        {l}:
        """)
    def poll(self, vaddr, soff, sleep=1):
        a = self.a; l = self.lab('poll'); d = self.lab('pd')
        a(f"""
        s_mov_b32 s{S_SPIN}, 0
        {l}:
        buffer_load_dword v239, v{vaddr}, s[{S_FL}:{S_FL+3}], s{soff} offen sc1
        s_add_u32 s{S_SPIN}, s{S_SPIN}, 1
        s_waitcnt vmcnt(0)
        v_cmp_ne_u32 vcc, s{S_TAG}, v239
        s_cbranch_vccz {d}
        {'s_sleep ' + str(sleep) if sleep else ''}
        s_cmp_lt_u32 s{S_SPIN}, {SPIN_MAX}
        s_cbranch_scc1 {l}
        {d}:
        """)

    def row_ids(self, vr, vp, t):
        self.a(f"""
        s_lshl_b32 s3, s{S_MT}, 4
        s_add_u32 s3, s3, s{S_GI}
        s_lshl_b32 s3, s3, 3
        v_and_b32 v{vr}, 7, v{LANE}
        v_add_u32 v{vr}, s3, v{vr}
        v_bfe_u32 v{vp}, v{LANE}, 3, 1
        v_lshlrev_b32 v{vp}, 2, v{vp}
        v_bfe_u32 v{t}, v{LANE}, 5, 1
        v_lshl_add_u32 v{vp}, v{t}, 1, v{vp}
        v_bfe_u32 v{t}, v{LANE}, 4, 1
        v_add_u32 v{vp}, v{vp}, v{t}
        s_lshr_b32 s3, s{S_WAVE}, 1
        s_mul_i32 s3, s3, 3
        s_add_u32 s3, s3, s{S_WAVE}
        s_lshl_b32 s3, s3, 3
        v_add_u32 v{vp}, s3, v{vp}
        """)
    def q_loads(self, srdq, t):
        a = self.a
        self.row_ids(t, t+1, t+2)
        srd(a, srdq, P_Q, NB_SD)
        a(f"""
        v_mul_u32_u24 v{t}, 1152, v{t}
        v_lshl_add_u32 v{t}, v{t+1}, 4, v{t}
        buffer_load_dwordx4 v[{QP}:{QP+3}], v{t}, s[{srdq}:{srdq+3}], 0 offen
        buffer_load_dwordx4 v[{QP+4}:{QP+7}], v{t}, s[{srdq}:{srdq+3}], 0 offen offset:256
        buffer_load_dwordx4 v[{QP+8}:{QP+11}], v{t}, s[{srdq}:{srdq+3}], s{S_OOB} offen offset:512
        """)
    def stats(self, ldsoff, t, scale=None):
        a = self.a
        a(f"""
        v_mov_b32 v{t}, 0
        v_mov_b32 v{t+1}, 0
        v_bfe_u32 v{t+2}, v{LANE}, 5, 1
        v_and_b32 v{t+3}, 7, v{LANE}
        v_lshl_add_u32 v{t+2}, v{t+2}, 3, v{t+3}
        v_lshlrev_b32 v{t+2}, 4, v{t+2}
        s_lshl_b32 s3, s{S_WAVE}, 2
        v_add_u32 v{t+2}, {STAT_OFF + ldsoff}, v{t+2}
        v_add_u32 v{t+3}, s3, v{t+2}
        """)
        for i in range(12):
            a(f"v_dot2_f32_bf16 v{t}, v{QP+i}, s{S_ONE}, v{t}\nv_dot2_f32_bf16 v{t+1}, v{QP+i}, v{QP+i}, v{t+1}")
        a(f"""
        s_nop 2
        v_permlane32_swap_b32 v{t}, v{t+1}
        s_nop 1
        v_add_f32 v{t}, v{t}, v{t+1}
        v_mov_b32 v{t+1}, v{t}
        s_nop 1
        v_permlane16_swap_b32 v{t}, v{t+1}
        s_nop 1
        v_add_f32 v{t}, v{t}, v{t+1}
        s_nop 1
        v_add_f32_dpp v{t}, v{t}, v{t} row_ror:8 row_mask:0xf bank_mask:0xf
        ds_write_b32 v{t+3}, v{t}
        s_waitcnt lgkmcnt(0)
        s_barrier
        ds_read_b128 v[{t+4}:{t+7}], v{t+2}
        s_waitcnt lgkmcnt(0)
        v_add_f32 v{t+4}, v{t+4}, v{t+5}
        v_add_f32 v{t+6}, v{t+6}, v{t+7}
        v_add_f32 v{t}, v{t+4}, v{t+6}
        v_mul_f32 v{t}, 0x3ae38e39, v{t}
        v_mov_b32 v{t+1}, v{t}
        s_nop 1
        v_permlane32_swap_b32 v{t}, v{t+1}
        s_nop 1
        v_fma_f32 v{t+1}, -v{t}, v{t}, v{t+1}
        v_max_f32 v{t+1}, 0, v{t+1}
        v_add_f32 v{t+1}, 0x3727c5ac, v{t+1}
        v_rsq_f32 v{ST}, v{t+1}
        s_nop 0
        """)
        if scale: a(f"v_mul_f32 v{ST}, {f2u(scale):#x}, v{ST}")
        a(f"v_mul_f32 v{ST+1}, v{t}, v{ST}\nv_sub_f32 v{ST+1}, 0, v{ST+1}")

    def stats_parts(self, ldsoff, t):
        A = [f"v_bfe_u32 v{t+2}, v{LANE}, 5, 1", f"v_and_b32 v{t+3}, 7, v{LANE}", f"v_lshl_add_u32 v{t+2}, v{t+2}, 3, v{t+3}",
             f"v_lshlrev_b32 v{t+2}, 4, v{t+2}", f"v_add_u32 v{t+2}, {STAT_OFF + ldsoff}, v{t+2}",
             f"v_mov_b32 v{t+3}, s{S_WAVE}", f"v_lshl_add_u32 v{t+3}, v{t+3}, 2, v{t+2}", f"v_mov_b32 v{t}, 0", f"v_mov_b32 v{t+1}, 0"]
        for i in range(12):
            A += [f"v_lshlrev_b32 v{t+4}, 16, v{QP+i}", f"v_and_b32 v{t+5}, 0xffff0000, v{QP+i}", f"v_add_f32 v{t}, v{t}, v{t+4}",
                  f"v_fmac_f32 v{t+1}, v{t+4}, v{t+4}", f"v_add_f32 v{t}, v{t}, v{t+5}", f"v_fmac_f32 v{t+1}, v{t+5}, v{t+5}"]
        A += ['', '', f"v_permlane32_swap_b32 v{t}, v{t+1}", '', f"v_add_f32 v{t}, v{t}, v{t+1}", f"v_mov_b32 v{t+1}, v{t}", '', '',
              f"v_permlane16_swap_b32 v{t}, v{t+1}", '', f"v_add_f32 v{t}, v{t}, v{t+1}", '', '',
              f"v_add_f32_dpp v{t}, v{t}, v{t} row_ror:8 row_mask:0xf bank_mask:0xf", f"ds_write_b32 v{t+3}, v{t}"]
        B = [f"ds_read_b128 v[{t+4}:{t+7}], v{t+2}"]
        C = [f"v_add_f32 v{t+4}, v{t+4}, v{t+5}", f"v_add_f32 v{t+6}, v{t+6}, v{t+7}", f"v_add_f32 v{t}, v{t+4}, v{t+6}",
             f"v_mul_f32 v{t}, 0x3ae38e39, v{t}", f"v_mov_b32 v{t+1}, v{t}", '', '', f"v_permlane32_swap_b32 v{t}, v{t+1}", '',
             f"v_fma_f32 v{t+1}, -v{t}, v{t}, v{t+1}", f"v_max_f32 v{t+1}, 0, v{t+1}", f"v_add_f32 v{t+1}, 0x3727c5ac, v{t+1}",
             f"v_rsq_f32 v{ST}, v{t+1}", '', f"v_mul_f32 v{ST+1}, v{t}, v{ST}", f"v_sub_f32 v{ST+1}, 0, v{ST+1}"]
        return A, B, C
    def row_setup(self, t):
        a = self.a
        self.row_ids(t, t+1, t+2)
        a(f"""
        v_lshlrev_b32 v{VRZ}, 15, v{t+1}
        v_lshl_add_u32 v{VRZ}, v{t}, 3, v{VRZ}
        v_lshlrev_b32 v{VRM}, 5, v{t+1}
        v_add_u32 v{VRM}, {MOD_OFF}, v{VRM}
        v_lshrrev_b32 v{VRH}, 4, v{t}
        v_mul_u32_u24 v{VRH}, 18432, v{VRH}
        v_lshl_add_u32 v{VRH}, v{t+1}, 8, v{VRH}
        v_and_b32 v{t+2}, 15, v{t}
        v_lshl_add_u32 v{VRH}, v{t+2}, 4, v{VRH}
        s_lshl_b32 s3, s{S_WAVE}, 6
        v_add_u32 v{VRP}, s3, v{LANE}
        v_lshlrev_b32 v{VRP}, 7, v{VRP}
        """)
    def mod_dma(self, sr):
        a = self.a
        srd(a, sr, P_WS, NB_MOD, WS_MOD)
        a(f"s_mul_i32 s3, s{S_WAVE}, 3584\ns_add_u32 m0, s3, {MOD_OFF}\ns_nop 0")
        out = []
        for i in range(4):
            out.append(f"buffer_load_dwordx4 v{VL16}, s[{sr}:{sr+3}], s3 offen offset:{1024*i} sc1 lds")
        return out

    def conv_path(self):
        a = self.a; kw = self.kw
        VA, VB, VTW, VTR, VZ, VU, VPA, VHD = 192, 193, 194, 195, 211, 212, 213, 214
        DG = 196
        G4, I16 = 144, 145
        a(f"""
        s_lshr_b32 s40, s2, 4
        s_and_b32 s41, s2, 15
        v_and_b32 v1, 7, v0
        v_lshrrev_b32 v2, 3, v0
        s_lshl_b32 s42, s41, 7
        s_lshl_b32 s43, s40, 7
        v_lshl_add_u32 v3, v2, 2, s42
        v_mul_u32_u24 v3, 1152, v3
        v_lshl_add_u32 v4, v1, 4, s43
        v_add_u32 v13, v3, v4
        v_add_u32 v10, {(-3*1152) & 0xffffffff:#x}, v13
        v_add_u32 v11, {(-2*1152) & 0xffffffff:#x}, v13
        v_add_u32 v12, {(-1*1152) & 0xffffffff:#x}, v13
        v_lshlrev_b32 v5, 2, v4
        """)
        srd(a, 52, P_K, NB_SD); srd(a, 56, P_V, NB_SD); srd(a, 20, P_SK, D*8)
        for j in (3, 4, 5, 6, 0, 1, 2):
            va, o = (10+j, 0) if j < 3 else (13, (j-3)*1152)
            a(f"buffer_load_dwordx4 v[{16+4*j}:{19+4*j}], v{va}, s[52:55], 0 offen" + (f" offset:{o}" if o else ""))
        for j in range(4):
            a(f"buffer_load_dwordx4 v[{60+4*j}:{63+4*j}], v5, s[20:23], 0 offen" + (f" offset:{16*j}" if j else ""))
        for j in range(4):
            a(f"buffer_load_dwordx4 v[{44+4*j}:{47+4*j}], v13, s[56:59], 0 offen" + (f" offset:{1152*j}" if j else ""))
        a(f"""
        s_lshl_b32 s44, s2, 2
        s_add_u32 s44, s44, s{S_WAVE}
        s_mul_i32 s45, s{S_WAVE}, {WAVE_LDS}
        s_lshl_b32 s46, s44, 12
        s_add_u32 s52, s{P_SSMK}, s46
        s_addc_u32 s53, s{P_SSMK+1}, 0
        s_mov_b32 s54, 4096
        s_mov_b32 s55, 0x20000
        v_lshrrev_b32 v{G4}, 4, v{LANE}
        v_and_b32 v{I16}, 15, v{LANE}
        v_add_u32 v142, v{G4}, v{I16}
        v_add_u32 v142, -16, v142
        v_lshlrev_b32 v142, 1, v142
        s_lshl_b32 s3, s44, 1
        """)
        srd(a, 56, P_SSMD, D*2)
        a(f"""
        v_lshlrev_b32 v143, 4, v{LANE}
        buffer_load_ushort v140, v142, s[52:55], 0 offen
        buffer_load_ushort v141, off, s[56:59], s3
        """)
        KR = 152
        for i in range(4):
            a(f"buffer_load_dwordx4 v[{KR+6*i}:{KR+6*i+3}], v143, s[52:55], 0 offen offset:{1024*i}")
            a(f"buffer_load_dwordx2 v[{KR+6*i+4}:{KR+6*i+5}], v143, s[52:55], 0 offen offset:{1024*i+16}")
        srd(a, 24, P_WS, NB_SD, WS_U)
        a(f"""
        v_lshlrev_b32 v6, 9, v2
        v_lshl_add_u32 v6, v1, 4, v6
        v_add_u32 v6, {T_OFF}, v6
        v_bfe_u32 v7, v{LANE}, 1, 1
        v_lshl_add_u32 v7, v{G4}, 1, v7
        v_lshlrev_b32 v7, 3, v7
        v_bfe_u32 v8, v{LANE}, 2, 2
        v_sub_u32 v7, v7, v8
        v_add_u32 v7, 3, v7
        v_lshlrev_b32 v7, 7, v7
        v_and_b32 v8, 1, v{LANE}
        v_lshl_add_u32 v7, v8, 3, v7
        s_lshl_b32 s3, s{S_WAVE}, 5
        s_add_u32 s3, s3, {T_OFF}
        v_add_u32 v7, s3, v7
        s_lshl_b32 s3, s40, 6
        s_lshl_b32 s47, s{S_WAVE}, 4
        s_add_u32 s3, s3, s47
        v_and_b32 v8, 7, v{LANE}
        v_add_u32 v8, s3, v8
        v_lshlrev_b32 v8, 12, v8
        v_bfe_u32 v9, v{LANE}, 3, 1
        v_lshl_add_u32 v9, v{G4}, 1, v9
        v_lshl_add_u32 v8, v9, 4, v8
        s_lshl_b32 s3, s41, 8
        v_add_u32 v8, s3, v8
        v_add_u32 v9, 0x8000, v8
        v_mov_b32 v146, 0
        v_mov_b32 v147, 0
        v_lshl_add_u32 v148, v{LANE}, 3, s45
        ds_write_b64 v148, v[146:147] offset:{4*KSTR}
        v_mul_u32_u24 v{VHD}, {KSTR}, v{G4}
        v_lshl_add_u32 v{VHD}, v{I16}, 1, v{VHD}
        v_add_u32 v{VHD}, s45, v{VHD}
        v_add_u32 v14, 1, v{I16}
        v_and_b32 v{VA}, 3, v14
        v_mul_u32_u24 v{VA}, {KSTR}, v{VA}
        v_lshrrev_b32 v14, 2, v14
        v_lshl_add_u32 v{VA}, v14, 3, v{VA}
        v_lshlrev_b32 v14, 4, v{G4}
        v_sub_u32 v{VA}, v{VA}, v14
        v_add_u32 v{VA}, 48, v{VA}
        v_add_u32 v{VA}, s45, v{VA}
        v_lshlrev_b32 v{VB}, 5, v{I16}
        v_lshl_add_u32 v{VB}, v{G4}, 4, v{VB}
        s_add_u32 s3, s45, {4*KSTR + 512 - 32 - 448}
        v_add_u32 v{VB}, s3, v{VB}
        v_lshlrev_b32 v{VTW}, 4, v{I16}
        v_lshl_add_u32 v{VTW}, v{G4}, 2, v{VTW}
        s_mul_i32 s3, s{S_WAVE}, {KSTR}
        s_add_u32 s3, s3, {T_OFF}
        v_add_u32 v{VTW}, s3, v{VTW}
        v_bfe_u32 v{VTR}, v{LANE}, 2, 2
        v_mul_u32_u24 v{VTR}, {KSTR}, v{VTR}
        v_lshl_add_u32 v{VTR}, v{G4}, 5, v{VTR}
        v_and_b32 v14, 3, v{LANE}
        v_lshl_add_u32 v{VTR}, v14, 3, v{VTR}
        s_lshl_b32 s3, s{S_WAVE}, 9
        s_add_u32 s3, s3, {T_OFF}
        v_add_u32 v{VTR}, s3, v{VTR}
        s_lshl_b32 s3, s2, 14
        s_lshl_b32 s47, s{S_WAVE}, 12
        s_add_u32 s3, s3, s47
        v_lshl_add_u32 v{VZ}, v{LANE}, 4, s3
        v_lshlrev_b32 v{VU}, 4, v{LANE}
        v_lshlrev_b32 v{VPA}, 7, v{I16}
        """)
        ffn_setup(a, 100)
        self.row_setup(100)
        self.stamp(1)
        if kw.get('hopP', False): self.ahops.call(a, 0)
        a("s_waitcnt vmcnt(14)")
        self.stamp(2)
        if kw.get('hopP', False): a.hop = self.ahops
        kd = []
        for c in (0, 2):
            ops = [f"buffer_load_dwordx4 v143, s[52:55], 0 offen offset:{i*1024} lds" for i in range(4)]
            ops[0] = f"s_add_u32 m0, s45, {c*KSTR + 32}\n" + ("v_add_u32 v143, 4, v143\n" if c else "s_nop 0\n") + ops[0]
            kd += ops
        nearly = kw.get('KEARLY', 0)
        early, late = kd[:nearly], kd[nearly:]
        def kdma():
            if early: a(early.pop(0))
        P = lambda x: f"v[{x}:{x+1}]"
        for cp in range(4):
            for j in range(4):
                f = lo if j % 2 == 0 else hi
                f(a, 80+2*j, 60+4*cp+(j >> 1)); f(a, 81+2*j, 62+4*cp+(j >> 1))
            if cp: kdma()
            for i in range(7):
                lo(a, 88+2*i, 16+4*i+cp); hi(a, 89+2*i, 16+4*i+cp)
            if cp: kdma()
            for r in range(4): a(f"v_pk_mul_f32 {P(110+2*r)}, {P(88+2*r)}, {P(86)}")
            for j in (1, 2, 3):
                for r in range(4): a(f"v_pk_fma_f32 {P(110+2*r)}, {P(88+2*(r+j))}, {P(86-2*j)}, {P(110+2*r)}")
            if cp == 0:
                a("s_waitcnt vmcnt(10)")
                self.stamp(22)
            kdma()
            for r in range(4):
                lo(a, 102+2*r, 44+4*r+cp); hi(a, 103+2*r, 44+4*r+cp)
            for r in range(4): a(f"v_pk_mul_f32 {P(110+2*r)}, {P(110+2*r)}, {P(102+2*r)}")
            for r in range(4): a(f"v_cvt_pk_bf16_f32 v{120+4*r+cp}, v{110+2*r}, v{111+2*r}")
            kdma()
        for r in range(4):
            a(f"ds_write_b128 v6, v[{120+4*r}:{123+4*r}]" + (f" offset:{128*r}" if r else ""))
        while early: kdma()
        a("s_waitcnt lgkmcnt(0)\ns_barrier")
        n = 0
        for cb in range(2):
            for hq in range(2):
                o = hq*8192 + cb*16
                a(f"ds_read_b64_tr_b16 v[{16+4*n}:{17+4*n}], v7 offset:{o+512}")
                a(f"ds_read_b64_tr_b16 v[{18+4*n}:{19+4*n}], v7 offset:{o}")
                n += 1
        n = 0
        for cb in range(2):
            for hq in range(2):
                a(f"s_waitcnt lgkmcnt({6-2*n})")
                a(f"buffer_store_dwordx4 v[{16+4*n}:{19+4*n}], v{8+cb}, s[24:27], 0 offen" + (" offset:128" if hq else "") + " sc1")
                n += 1
        a.hop = None
        self.stamp(3)
        self.signal(FA, 2)
        self.stamp(4)
        for o in late: a(o)
        self.q_loads(56, 1)
        a(f"v_lshl_add_u32 v14, v{LANE}, 4, s45")
        for i in range(4):
            for c in range(2):
                for x in range(4):
                    a(f"v_alignbyte_b32 v{16+8*(i&1)+4*c+x}, v{KR+6*i+x+c+1}, v{KR+6*i+x+c}, 2")
                a(f"ds_write_b128 v14, v[{16+8*(i&1)+4*c}:{19+8*(i&1)+4*c}] offset:{(1+2*c)*KSTR + 32 + 1024*i}")
        a(f"""
        ds_write_b16 v{VHD}, v140
        v_lshrrev_b32 v10, 3, v{I16}
        v_add_u32 v10, 2, v10
        v_cmp_eq_u32 vcc, v10, v{G4}
        v_and_b32 v11, 7, v{I16}
        v_sub_u32 v11, 7, v11
        v_cndmask_b32 v9, 0, v141, vcc
        v_and_b32 v10, 1, v11
        v_lshlrev_b32 v10, 4, v10
        v_lshlrev_b32 v9, v10, v9
        v_lshrrev_b32 v11, 1, v11
        """)
        for r in range(4):
            a(f"v_cmp_eq_u32 vcc, {r}, v11\ns_nop 1\nv_cndmask_b32 v{DG+r}, 0, v9, vcc")
        if kw.get('LN1', 'B') == 'A':
            a("s_waitcnt vmcnt(0)")
            self.stats(0, 150)
        a(f"""
        v_min_u32 v{VHD}, {NMOD-1}, v{LANE}
        v_lshlrev_b32 v{VHD}, 7, v{VHD}
        s_mov_b32 s11, {FB + 128*NCONV}
        s_add_u32 s56, s{P_WS}, s46
        s_addc_u32 s57, s{P_WS+1}, 0
        s_mov_b32 s58, 4096
        s_mov_b32 s59, 0x20000
        s_lshl_b32 s4, s40, 11
        """)
        assert WS_U == 0 and FA == 0
        srd(a, 24, P_WS, NB_SD, WS_Z)
        hops = self.chops if kw.get('chops', False) else None
        if hops: hops.call(a, 0)
        self.stamp(5)
        self.poll(VPA, 4, sleep=0)
        self.stamp(6)
        a(f"s_add_u32 m0, s45, {4*KSTR + 512}\ns_nop 0")
        for i in range(4):
            a(f"buffer_load_dwordx4 v{VU}, s[56:59], 0 offen offset:{i*1024} sc1 lds")
        AC = 24; FRG = 64
        A = lambda s, m1: FRG + 64*s + 4*m1
        B = lambda s, n1: FRG + 64*s + 32 + 4*n1
        def rdA(m0):
            s = m0 & 1; R = []
            for x in range(8):
                R.append(f"ds_read_b64 v[{A(s,x)}:{A(s,x)+1}], v{VA} offset:{512*x + 64*m0}")
                R.append(f"ds_read_b64 v[{A(s,x)+2}:{A(s,x)+3}], v{VA} offset:{512*x + 64*m0+8}")
            return R
        def rdB(m0):
            s = m0 & 1
            return [f"ds_read_b128 v[{B(s,x)}:{B(s,x)+3}], v{VB} offset:{512*x + 64*(7-m0)}" for x in range(8)]
        def E(ins):
            a(ins)
            if hops: hops.add(ins)
        for r in rdA(0): a(r)
        a("s_waitcnt vmcnt(0)")
        self.stamp(7)
        for r in rdB(0): a(r)
        a("s_cmp_eq_u32 0, 1")
        for w in range(8):
            E(f"s_waitcnt lgkmcnt({7-w})")
            E(f"v_mfma_f32_16x16x32_bf16 v[{AC+4*w}:{AC+4*w+3}], v[{DG}:{DG+3}], v[{B(0,w)}:{B(0,w)+3}], 0")
        SA, SB, SC = self.stats_parts(0, 4)
        fill = []
        for m0 in range(8):
            s = m0 & 1
            nxt = []
            if kw.get('LN1', 'B') == 'loop':
                if m0 == 0: fill = SA
                if m0 == 3: assert not fill
                if m0 == 5: fill = SC
            if m0 < 7:
                ra, rb = rdA(m0+1), rdB(m0+1)
                nxt = rb[:1] + ra[:2] + rb[1:] + ra[2:]
            if m0: E("s_waitcnt lgkmcnt(0)")
            if m0 == 4 and kw.get('LN1', 'B') == 'loop':
                a("s_barrier"); nxt = SB + nxt
            if m0 == kw.get('MCHK', 2):
                a(f"buffer_load_dword v239, v{VHD}, s[{S_FL}:{S_FL+3}], s11 offen sc1")
            if m0 == kw.get('MCHK', 2) + 2:
                a(f"s_waitcnt vmcnt(0)\nv_cmp_ne_u32 vcc, s{S_TAG}, v239\ns_cbranch_vccz L_modok")
                self.poll(VHD, 11, sleep=1)
                a("L_modok:")
                nxt += self.mod_dma(52)
            for m1 in range(8):
                for n1 in range(8 - m1):
                    w = m1 + n1
                    E(f"v_mfma_f32_16x16x32_bf16 v[{AC+4*w}:{AC+4*w+3}], v[{A(s,m1)}:{A(s,m1)+3}], v[{B(s,n1)}:{B(s,n1)+3}], v[{AC+4*w}:{AC+4*w+3}]")
                    if hops and hops.due(20): a(hops.emit())
                    if nxt: E(nxt.pop(0))
                    if fill:
                        x = fill.pop(0)
                        if x: E(x)
        assert not fill
        self.stamp(8)
        a("s_nop 7")
        for w in range(8):
            a(f"v_cvt_pk_bf16_f32 v{64+2*w}, v{AC+4*w}, v{AC+4*w+2}")
            a(f"v_cvt_pk_bf16_f32 v{65+2*w}, v{AC+4*w+1}, v{AC+4*w+3}")
            a(f"ds_write2st64_b32 v{VTW}, v{64+2*w}, v{65+2*w} offset0:{w} offset1:{w+8}")
        a("s_waitcnt lgkmcnt(0)\ns_barrier")
        for i in range(4):
            a(f"ds_read_b64_tr_b16 v[{80+4*i}:{81+4*i}], v{VTR} offset:{128*i}")
            a(f"ds_read_b64_tr_b16 v[{82+4*i}:{83+4*i}], v{VTR} offset:{128*i+2048}")
        for i in range(4):
            a(f"s_waitcnt lgkmcnt({6-2*i})")
            a(f"buffer_store_dwordx4 v[{80+4*i}:{83+4*i}], v{VZ}, s[24:27], 0 offen" + (f" offset:{1024*i}" if i else "") + " sc1")
        self.stamp(9)
        self.signal(FB, 2)
        if kw.get('LN1', 'B') == 'B': self.stats(0, 150)
        self.stamp(23)

    def side_path(self):
        a = self.a; kw = self.kw
        if kw.get('touch'):
            sh = kw['touch']
            srd(a, 52, P_WS, 0x4000000); srd(a, 56, P_OUT, NB_SD)
            a(f"v_lshlrev_b32 v1, {sh}, v0\nbuffer_load_dword v238, v1, s[52:55], 0 offen\nbuffer_load_dword v238, v1, s[56:59], 0 offen")
            srd(a, 56, P_WD, D*DF*2)
            a(f"buffer_load_dword v238, v1, s[56:59], 0 offen")
        code_srd(a, 56, 4, 'L_common', 'L_code_end')
        srd(a, 52, P_SSMK, NB_SD)
        a(f"""
        s_sub_u32 s47, s2, {NCONV}
        s_lshr_b32 s47, s47, 3
        s_lshl_b32 s47, s47, 2
        s_add_u32 s47, s47, s{S_WAVE}
        v_min_u32 v2, 7, v{LANE}
        s_lshl_b32 s43, s47, 10
        v_lshlrev_b32 v2, 7, v2
        buffer_load_dword v238, v2, s[56:59], s43 offen
        s_mul_i32 s42, s47, 42
        v_min_u32 v1, 41, v{LANE}
        v_add_u32 v1, s42, v1
        v_lshrrev_b32 v2, 7, v1
        v_and_b32 v1, 127, v1
        v_lshlrev_b32 v1, 7, v1
        v_lshl_add_u32 v1, v2, 17, v1
        s_and_b32 s3, s2, 7
        s_lshl_b32 s3, s3, 14
        {'buffer_load_dword v238, v1, s[52:55], s3 offen' if kw.get('pfK', False) else ''}
        s_mul_hi_u32 s42, s47, 0x2aaaaaab
        s_mul_i32 s43, s42, 6
        s_sub_u32 s43, s47, s43
        s_mul_i32 s43, s43, 3072
        s_mul_i32 s42, s42, {128*1152}
        s_add_u32 s42, s42, s43
        s_and_b32 s3, s2, 7
        s_mul_i32 s3, s3, {16*1152}
        s_add_u32 s42, s42, s3
        v_min_u32 v1, 23, v{LANE}
        v_lshlrev_b32 v1, 7, v1
        """)
        srd(a, 52, P_Q, NB_SD)
        a("buffer_load_dword v238, v1, s[52:55], s42 offen")
        a(f"s_cmp_ge_u32 s2, {NCONV+NMOD}\ns_cbranch_scc1 L_nomod")
        a(f"""
        s_sub_u32 s40, s2, {NCONV}
        v_and_b32 v1, 7, v0
        v_lshrrev_b32 v2, 3, v0
        v_mul_u32_u24 v3, 6912, v2
        v_lshl_add_u32 v3, v1, 4, v3
        s_lshl_b32 s3, s40, 7
        v_add_u32 v3, s3, v3
        v_lshlrev_b32 v4, 1, v0
        """)
        srd(a, 12, P_C, D*2); srd(a, 16, P_WMOD, D*6912); srd(a, 20, P_WS, NB_MOD, WS_MOD)
        a("""
        buffer_load_ushort v5, v4, s[12:15], 0 offen
        buffer_load_ushort v6, v4, s[12:15], 0 offen offset:512
        buffer_load_ushort v7, v4, s[12:15], 0 offen offset:1024
        s_mov_b32 s41, 0
        """)
        a("s_waitcnt vmcnt(0)")
        for i in range(18):
            a(f"buffer_load_dwordx4 v[{32+4*i}:{35+4*i}], v3, s[16:19], s41 offen")
            if i < 17: a(f"s_add_u32 s41, s41, {32*6912}")
        for r in (5, 6, 7):
            a(f"""
            v_lshlrev_b32 v{r}, 16, v{r}
            v_mul_f32 v8, 0xbfb8aa3b, v{r}
            v_exp_f32 v8, v8
            s_nop 0
            v_add_f32 v8, 1.0, v8
            v_rcp_f32 v8, v8
            s_nop 0
            v_mul_f32 v{r}, v{r}, v8
            v_cvt_pk_bf16_f32 v{r}, v{r}, v{r}
            v_lshlrev_b32 v{r}, 16, v{r}
            """)
        a("""
        v_lshlrev_b32 v9, 2, v0
        ds_write_b32 v9, v5
        ds_write_b32 v9, v6 offset:1024
        ds_write_b32 v9, v7 offset:2048
        v_lshlrev_b32 v10, 2, v2
        s_waitcnt lgkmcnt(0)
        s_barrier
        """)
        for i in range(18):
            a(f"ds_read_b32 v{104+2*i}, v10 offset:{128*i}")
        a("s_waitcnt lgkmcnt(0)")
        for i in range(18):
            a(f"s_waitcnt vmcnt({17-i})")
            for x in range(4):
                t = 24 + 2*(x & 1)
                lo(a, t, 32+4*i+x); hi(a, t+1, 32+4*i+x)
                if i == 0: a(f"v_pk_mul_f32 v[{16+2*x}:{17+2*x}], v[{t}:{t+1}], v[{104+2*i}:{105+2*i}] op_sel_hi:[1,0]")
                else:      a(f"v_pk_fma_f32 v[{16+2*x}:{17+2*x}], v[{t}:{t+1}], v[{104+2*i}:{105+2*i}], v[{16+2*x}:{17+2*x}] op_sel_hi:[1,0,1]")
        a("""
        v_lshlrev_b32 v13, 8, v2
        v_lshl_add_u32 v13, v1, 5, v13
        ds_write_b128 v13, v[16:19] offset:4096
        ds_write_b128 v13, v[20:23] offset:4112
        s_waitcnt lgkmcnt(0)
        s_barrier
        """)
        a(f"s_cmp_lg_u32 s{S_WAVE}, 0\ns_cbranch_scc1 L_nomod")
        for i in range(32):
            a(f"ds_read_b32 v{32+i}, v9 offset:{4096 + 256*i}")
        a("s_waitcnt lgkmcnt(0)")
        for st in (16, 8, 4, 2):
            for i in range(0, st, 2):
                a(f"v_pk_add_f32 v[{32+i}:{33+i}], v[{32+i}:{33+i}], v[{32+i+st}:{33+i+st}]")
        a(f"""
        v_add_f32 v32, v32, v33
        s_mov_b32 s3, 0x1c71c71d
        v_cvt_pk_bf16_f32 v32, v32, v32
        s_mul_hi_u32 s41, s40, s3
        s_cmp_eq_u32 s41, 1
        s_cselect_b32 s42, 1.0, 0
        s_cmp_eq_u32 s41, 4
        s_cselect_b32 s42, 1.0, s42
        v_lshlrev_b32 v32, 16, v32
        v_add_f32 v32, s42, v32
        s_cmp_eq_u32 s41, 3
        s_cselect_b32 s43, {f2u(ALPHA):#x}, 1.0
        s_cmp_eq_u32 s41, 5
        s_cselect_b32 s43, {f2u(1/ALPHA**2):#x}, s43
        v_cvt_pk_bf16_f32 v32, v32, v32
        v_lshlrev_b32 v32, 16, v32
        v_mul_f32 v32, s43, v32
        s_lshl_b32 s3, s40, 8
        buffer_store_dword v32, v9, s[20:23], s3 offen sc1
        L_nomod:
        """)
        self.stamp(3)
        self.signal(FB, 2)
        self.q_loads(56, 146)
        self.stamp(4)
        if kw.get('waitA', True):
            a(f"""
            v_and_b32 v146, 15, v{LANE}
            v_lshlrev_b32 v146, 7, v146
            s_and_b32 s40, s2, 7
            s_lshl_b32 s4, s40, 11
            """)
            self.poll(146, 4, sleep=2)
        NCH = kw.get('NCH', 2); per = -(-1152*NCH//56)
        srd(a, 20, P_WG, D*DF*2); srd(a, 24, P_WU, D*DF*2)
        a(f"""
        s_and_b32 s40, s2, 7
        s_mul_i32 s43, s40, 1152
        s_sub_u32 s47, s2, {NCONV}
        s_lshr_b32 s47, s47, 3
        s_lshl_b32 s47, s47, 2
        s_add_u32 s47, s47, s{S_WAVE}
        s_mul_i32 s42, s47, {per}
        v_min_u32 v1, {per-1}, v{LANE}
        v_add_u32 v1, s42, v1
        s_mov_b32 s44, {-(-(1 << 32)//1152):#x}
        v_mul_hi_u32 v3, s44, v1
        v_mul_u32_u24 v4, 1152, v3
        v_sub_u32 v4, v1, v4
        v_lshlrev_b32 v3, 7, v3
        v_and_b32 v5, 1, v4
        v_mul_u32_u24 v5, 640, v5
        v_add_u32 v3, v3, v5
        v_lshrrev_b32 v4, 1, v4
        v_mul_u32_u24 v4, 9216, v4
        v_add_u32 v3, v3, v4
        buffer_load_dword v238, v3, s[20:23], s43 offen
        buffer_load_dword v238, v3, s[24:27], s43 offen
        """)
        self.stamp(6)
        ffn_setup(a, 100)
        self.row_setup(100)
        a("s_waitcnt vmcnt(2)")
        self.stats(0, 150)
        a(f"""
        v_min_u32 v147, {NMOD-1}, v{LANE}
        v_lshlrev_b32 v147, 7, v147
        s_mov_b32 s11, {FB + 128*NCONV}
        """)
        self.poll(147, 11, sleep=2)
        for o in self.mod_dma(52): a(o)
        if self.fhops and self.kw.get('sidehops', True):
            for c in range(self.nhc): self.fhops.call(a, c)
        self.stamp(23)

    def row_phase(self, hops):
        a = self.a; kw = self.kw
        NP1 = kw.get('NP1', 3); NP2 = kw.get('NP2', 6)
        PL = kw.get('PL', (3, 0, 0, 3)); pf = [sum(PL[:i]) for i in range(5)]
        ffn_prefill(a, range(pf[0], pf[1]))
        ffn_setup2(a, 100)
        srd(a, 52, P_WS, NB_SD, WS_Z)
        a(f"""
        s_mov_b32 s4, {FB}
        s_mov_b32 s5, 0x4000
        s_mov_b32 s6, 0x80000
        s_mov_b32 s7, 0x84000
        s_add_u32 s8, s{S_OOB}, 0x100000
        s_add_u32 s11, s{S_OOB}, 0x104000
        s_mov_b32 s9, 4096
        s_add_u32 s10, s{S_OOB}, 8192
        """)
        so = ['0', 's5', 's6', 's7', 's8', 's11']
        MV = lambda i, v: 16 + 40*i + 8*v
        for c in kw.get('hopB', ()): hops.call(a, c)
        if kw.get('hopR', False): self.rhops.call(a, 0)
        self.stamp(10)
        self.poll(VRP, 4, sleep=kw.get('sleepB', 1))
        a("s_barrier")
        self.stamp(11)
        for i in range(6):
            a(f"buffer_load_dwordx2 v[{2*i}:{2*i+1}], v{VRZ}, s[52:55], {so[i]} offen sc1")
        ffn_prefill(a, range(pf[1], pf[2]))
        for vs in ((0, 1, 2), (3, 4)):
            for i in range(3):
                for v in vs:
                    for h in range(2):
                        a(f"ds_read_b128 v[{MV(i,v)+4*h}:{MV(i,v)+4*h+3}], v{VRM} offset:{2304*v + 512*i + 16*h}")
        a("s_waitcnt lgkmcnt(12)")
        if kw.get('hopR', False): a.hop = self.rhops
        P = lambda x: f"v[{x}:{x+1}]"
        BC = "op_sel:[0,0,1] op_sel_hi:[1,0,1]"
        for i in range(3):
            a(f"s_waitcnt vmcnt({2*(2-i) + 6*PL[1]})")
            if i == 0: self.stamp(12)
            for c2 in range(0, 4, 2):
                cs = (c2, c2+1); X = {c: 144 + 6*(c & 1) for c in cs}
                for c in cs: lo(a, X[c], QP+4*i+c); hi(a, X[c]+1, QP+4*i+c)
                for c in cs: a(f"v_pk_fma_f32 {P(X[c]+2)}, {P(X[c])}, {P(ST)}, {P(ST)} {BC}")
                for c in cs: lo(a, X[c]+4, 4*i+c); hi(a, X[c]+5, 4*i+c)
                for c in cs: a(f"v_pk_fma_f32 {P(X[c]+2)}, {P(X[c]+2)}, {P(MV(i,1)+2*c)}, {P(MV(i,0)+2*c)}")
                for c in cs: a(f"v_pk_mul_f32 {P(X[c]+2)}, {P(X[c]+2)}, {P(X[c]+4)}")
                for c in cs: a(f"v_pk_fma_f32 {P(X[c]+2)}, {P(X[c]+2)}, {P(MV(i,2)+2*c)}, {P(X[c])}")
                for c in cs: a(f"v_cvt_pk_bf16_f32 v{QP+4*i+c}, v{X[c]+2}, v{X[c]+3}")
        self.stats(256, 160, scale=ALPHA)
        ffn_prefill(a, range(pf[2], pf[3]))
        sh = ['0', 's9', 's10']
        for i in range(3):
            for c2 in range(0, 4, 2):
                cs = (c2, c2+1); X = {c: 144 + 6*(c & 1) for c in cs}
                for c in cs: lo(a, X[c], QP+4*i+c); hi(a, X[c]+1, QP+4*i+c)
                for c in cs: a(f"v_pk_fma_f32 {P(X[c])}, {P(X[c])}, {P(ST)}, {P(ST)} {BC}")
                for c in cs: a(f"v_pk_fma_f32 {P(X[c])}, {P(X[c])}, {P(MV(i,4)+2*c)}, {P(MV(i,3)+2*c)}")
                for c in cs: a(f"v_cvt_pk_bf16_f32 v{4*i+c}, v{X[c]}, v{X[c]+1}")
            a(f"buffer_store_dwordx4 v[{4*i}:{4*i+3}], v{VRH}, s[{S_H}:{S_H+3}], {sh[i]} offen sc1")
        a.hop = None
        self.stamp(13)
        for i in range(12): a(f"v_accvgpr_write_b32 a{X1A+i}, v{QP+i}")
        a(f"s_lshl_b32 s4, s{S_MT}, 4\ns_add_u32 s4, s4, s{S_GI}")
        self.signal(FC, 4)
        ffn_prefill(a, range(pf[3], pf[4]))
        code_srd(a, 52, 4, 'L_common', 'L_code_end', back=True)
        a(f"v_mov_b32 v{VTAG}, s{S_TAG}")
        self.reduce_setup(100)
        a(f"""
        v_and_b32 v146, 15, v{LANE}
        v_lshlrev_b32 v146, 7, v146
        s_lshl_b32 s9, s{S_MT}, 11
        s_add_u32 s9, s9, {FC}
        """)
        for c in kw.get('hopC', ()): hops.call(a, c)
        self.stamp(14)
        self.poll(146, 9, sleep=0)
        self.stamp(15)

    def reduce_setup(self, t):
        a = self.a
        self.row_ids(t, t+1, t+2)
        a(f"""
        v_mul_u32_u24 v{VEO}, 1152, v{t}
        v_lshl_add_u32 v{VEO}, v{t+1}, 4, v{VEO}
        v_lshrrev_b32 v{VEP}, 5, v{t}
        v_mul_u32_u24 v{VEP}, 9, v{VEP}
        v_lshrrev_b32 v{t+2}, 3, v{t+1}
        v_add_u32 v{VEP}, v{t+2}, v{VEP}
        v_lshlrev_b32 v{VEP}, 12, v{VEP}
        v_bfe_u32 v{t+2}, v{t}, 4, 1
        v_lshl_add_u32 v{VEP}, v{t+2}, 10, v{VEP}
        v_bfe_u32 v{t+2}, v{LANE}, 3, 1
        v_lshl_add_u32 v{VEP}, v{t+2}, 11, v{VEP}
        v_bfe_u32 v{t+2}, v{LANE}, 4, 1
        v_lshl_add_u32 v{VEP}, v{t+2}, 9, v{VEP}
        v_bfe_u32 v{t+2}, v{LANE}, 5, 1
        v_lshl_add_u32 v{VEP}, v{t+2}, 8, v{VEP}
        v_and_b32 v{t+2}, 15, v{t}
        v_lshl_add_u32 v{VEP}, v{t+2}, 4, v{VEP}
        v_lshlrev_b32 v{VEG}, 5, v{t+1}
        v_add_u32 v{VEG}, {MOD_OFF + 5*2304}, v{VEG}
        s_lshl_b32 s3, s{S_MT}, 2
        s_lshr_b32 s4, s{S_GI}, 2
        s_add_u32 s4, s4, s3
        s_lshl_b32 s4, s4, 11
        v_and_b32 v{VEF}, 15, v{LANE}
        v_lshl_add_u32 v{VEF}, v{VEF}, 7, s4
        s_add_u32 s3, s3, s{S_WAVE}
        s_lshl_b32 s3, s3, 4
        s_add_u32 s3, s3, s{S_GI}
        s_lshl_b32 s3, s3, 7
        s_add_u32 s{S_FD}, s3, {FD1}
        """)
    def reduce_phase(self):
        a = self.a; kw = self.kw
        early = kw.get('early', True)
        self.stamp(17)
        srd(a, 12, P_OUT, NB_SD)
        a(f"""
        s_mov_b32 s4, {FD1}
        s_mov_b32 s7, {FD2}
        s_add_u32 s8, s{S_FD}, {FD2 - FD1}
        {f'buffer_load_dword v239, v{VEF}, s[{S_FL}:{S_FL+3}], s4 offen sc1' if early else ''}
        s_mov_b32 s5, 0x3f80
        s_mov_b32 s6, 0x3f800000
        v_add_u32 v222, 8192, v{VEP}
        v_add_u32 v223, 16384, v{VEP}
        v_add_u32 v223, s{S_OOB}, v223
        """)
        for i in range(3):
            for h in range(2):
                a(f"ds_read_b128 v[{192+8*i+4*h}:{195+8*i+4*h}], v{VEG} offset:{512*i + 16*h}")
        a(f"s_waitcnt vmcnt(0)\nbuffer_store_dword v{VTAG}, off, s[{S_FL}:{S_FL+3}], s8 sc1")
        self.stamp(18)
        va = [VEP, 222, 223]
        def loads(i):
            a("s_mov_b32 s9, 0")
            for sl in range(8):
                a(f"buffer_load_dwordx4 v[{64*i+4*sl}:{64*i+4*sl+3}], v{va[i]}, s[{S_P}:{S_P+3}], s9 offen sc1")
                if sl < 7: a(f"s_add_u32 s9, s9, {NB_SD}")
        if early:
            a(f"v_cmp_ne_u32 vcc, s{S_TAG}, v239\ns_cbranch_vccz L_e1ok")
            self.poll(VEF, 4, sleep=0)
            a("L_e1ok:")
            loads(0)
        self.poll(VEF, 7, sleep=0)
        self.stamp(19)
        if not early: loads(0)
        loads(1); loads(2)
        a("s_waitcnt lgkmcnt(0)")
        AC = 226
        for i in range(3):
            for e in range(8): a(f"v_mov_b32 v{AC+e}, 0")
            for sl in range(8):
                if i or not early: a(f"s_waitcnt vmcnt({23 - 8*i - sl + i})")
                for x in range(4):
                    a(f"v_dot2_f32_bf16 v{AC+2*x}, v{64*i+4*sl+x}, s5, v{AC+2*x}")
                    a(f"v_dot2_f32_bf16 v{AC+2*x+1}, v{64*i+4*sl+x}, s6, v{AC+2*x+1}")
            for x in range(4): a(f"v_accvgpr_read_b32 v{QP+x}, a{X1A+4*i+x}")
            for e in range(4): a(f"v_permlane32_swap_b32 v{AC+e}, v{AC+4+e}")
            for x in range(4):
                lo(a, 234, QP+x); hi(a, 235, QP+x)
                a(f"v_pk_fma_f32 v[234:235], v[{AC+2*x}:{AC+2*x+1}], v[{192+8*i+2*x}:{193+8*i+2*x}], v[234:235]")
                a(f"v_cvt_pk_bf16_f32 v{QP+4+x}, v234, v235")
            a(f"buffer_store_dwordx4 v[{QP+4}:{QP+7}], v{VEO}, s[12:15], {'s%d' % S_OOB if i == 2 else '0'} offen" + (f" offset:{256*i}" if i else "") + kw.get('outfl', ''))
            a("s_nop 1")
        self.stamp(20)

    def build(self):
        a = self.a; kw = self.kw
        a(kernel_head(NAME))
        if kw.get('fix0'): a("s_memrealtime s[100:101]")
        a(f"""
        s_cmp_ge_u32 s2, 256
        s_cbranch_scc1 L_end
        s_load_dwordx16 s[64:79], s[0:1], 0
        s_load_dwordx8 s[80:87], s[0:1], 64
        s_load_dwordx4 s[88:91], s[0:1], 96
        s_load_dwordx2 s[92:93], s[0:1], 112
        """)
        if self.diag: a(f"v_mov_b32 v{DIAG}, 0")
        code_srd(a, 56, 4, 'L_start', 'L_common')
        a(f"""
        L_start:
        v_lshlrev_b32 v1, 7, v0
        v_lshrrev_b32 v2, 6, v0
        v_and_b32 v{LANE}, 63, v0
        buffer_load_dword v238, v1, s[56:59], 0 offen
        v_readfirstlane_b32 s{S_WAVE}, v2
        s_lshr_b32 s3, s2, 3
        s_lshr_b32 s{S_MT}, s3, 1
        s_and_b32 s3, s3, 1
        s_and_b32 s{S_GI}, s2, 7
        s_lshl_b32 s{S_GI}, s{S_GI}, 1
        s_add_u32 s{S_GI}, s{S_GI}, s3
        s_mov_b32 s{S_ONE}, 0x3f803f80
        s_cmp_eq_u32 s{S_WAVE}, 0
        s_cselect_b32 s{S_OOB}, 0, 0x40000000
        s_waitcnt lgkmcnt(0)
        s_load_dword s{S_TAG}, s[{P_WS}:{P_WS+1}], {WS_EPOCH:#x}
        """.replace(f"s_load_dword s{S_TAG}, s[{P_WS}:{P_WS+1}], {WS_EPOCH:#x}",
                    f"s_add_u32 s4, s{P_WS}, {WS_EPOCH:#x}\ns_addc_u32 s5, s{P_WS+1}, 0\ns_load_dword s28, s[4:5], 0"))
        srd(a, S_FL, P_WS, 0xA0000, WS_FL)
        self.stamp(0)
        a(f"s_cmp_ge_u32 s2, {NCONV}\ns_cbranch_scc1 L_side")
        self.tagfix = True
        orig = self.signal
        first = [True]
        def sig(base, idx):
            if first[0]:
                a(f"s_waitcnt lgkmcnt(0)\ns_add_u32 s{S_TAG}, s28, 1"); first[0] = False
            orig(base, idx)
        self.signal = sig
        self.chops = Hops('L_ch'); self.ahops = Hops('L_ah'); self.rhops = Hops('L_rh')
        self.nhc = kw.get('nhc', 4)
        hops = self.fhops = Hops('L_fh') if kw.get('hops', False) else None
        self.conv_path()
        a("s_branch L_common")
        if kw.get('chops', False): self.chops.ret(a)
        if hops: hops.ret(a)
        if kw.get('hopP', False): self.ahops.ret(a)
        if kw.get('hopR', False): self.rhops.ret(a)
        ffn_slow_paths(a, SPIN_MAX, self.diag)
        a("L_side:")
        first[0] = True
        self.side_path()
        a("L_common:")
        self.row_phase(hops)
        kw['NP2'] = sum(kw.get('PL', (3, 0, 0, 3)))
        fk = {k: v for k, v in kw.items() if k not in ('NP1', 'hops', 'nhc', 'hopA', 'hopB', 'hopC', 'sidehops', 'sleepB', 'chops', 'KEARLY', 'waitA', 'MCHK', 'touch', 'NCH', 'dbg', 'fixdur', 'fix0', 'outfl', 'enc', 'poll1', 'sleepD', 'PL', 'hopP', 'hopR', 'LN1', 'pfK', 'early')}
        ffn_main(a, hops=hops, stamper=(lambda: self.stamp(16)), **fk)
        if hops: hops.resolve(a, self.nhc)
        if kw.get('chops', False): self.chops.resolve(a, 1)
        if kw.get('hopP', False): self.ahops.resolve(a, 1)
        if kw.get('hopR', False): self.rhops.resolve(a, 1)
        self.reduce_phase()
        a(f"""
        s_cmp_lg_u32 s2, 0
        s_cbranch_scc1 L_noep
        s_cmp_lg_u32 s{S_WAVE}, 0
        s_cbranch_scc1 L_noep
        """)
        srd(a, 20, P_WS, 4, WS_EPOCH)
        a(f"""
        v_mov_b32 v239, s{S_TAG}
        s_mov_b64 exec, 1
        buffer_store_dword v239, off, s[20:23], 0
        s_mov_b64 exec, -1
        L_noep:
        """)
        if self.diag:
            a("s_waitcnt vmcnt(0)"); self.stamp(21)
            srd(a, 20, P_WS, 1 << 20, 0x8000000)
            a(f"""
            s_lshl_b32 s3, s2, 2
            s_add_u32 s3, s3, s{S_WAVE}
            s_lshl_b32 s3, s3, 8
            v_lshlrev_b32 v1, 2, v{LANE}
            buffer_store_dword v{DIAG}, v1, s[20:23], s3 offen
            s_add_u32 s3, s3, 0x80000
            buffer_store_dword v253, v1, s[20:23], s3 offen
            """)
            if kw.get('dbg') is not None:
                srd(a, 20, 90, 256)
                a(f"""
                s_cmp_lg_u32 s2, {kw['dbg']}
                s_cbranch_scc1 L_end
                s_cmp_lg_u32 s{S_WAVE}, 0
                s_cbranch_scc1 L_end
                v_readlane_b32 s3, v{DIAG}, 0
                v_add_u32 v2, -24, v1
                s_nop 1
                v_subrev_u32 v{DIAG}, s3, v{DIAG}
                buffer_store_dword v{DIAG}, v2, s[20:23], 0 offen
                """)
                if kw.get('fixdur'):
                    if kw.get('enc') is not None:
                        a(f"s_nop 1\nv_readlane_b32 s4, v{DIAG}, {kw['enc']}\ns_nop 3\ns_add_u32 s3, s3, s4")
                    a(f"""
                    L_fix:
                    s_memrealtime s[98:99]
                    s_waitcnt lgkmcnt(0)
                    s_sub_u32 s98, s98, {'s100' if kw.get('fix0') else 's3'}
                    s_cmp_lt_u32 s98, {kw['fixdur']}
                    s_cbranch_scc1 L_fix
                    """)
        a("L_end:\ns_endpgm\nL_code_end:")
        REF = 'adaLN_cond__ssm_conv_h3__glu_gated_geglu__prompt.s.ref'
        pre = [l for l in open(REF).read().split('\n') if l.startswith(';') and '@launch' not in l]
        out = pre + [f"; @launch grid=(256,1,1) block=(256,1,1) lds={LDS_TOTAL}", '.amdgcn_target "amdgcn-amd-amdhsa--gfx950"', '.text', a.text(),
                     '.section .rodata,"a"', kernel_desc(NAME, 256 + X1A + 12, 102, 256)]
        return '\n'.join(out) + '\n'

if __name__ == '__main__':
    dst = sys.argv[1] if len(sys.argv) > 1 else 'f_base.s'
    open(dst, 'w').write(G(verbose=True).build())
    open('f_diag.s', 'w').write(G(diag=True).build())
```

```python
S, D, DF = 2048, 576, 4608
NB_SD = S*D*2
A_Q, A_K, A_V, A_SK, A_SSMK, A_SSMD, B_X, W_G, W_U, W_D, C_, W_MOD, OUT, DBG, WS = [8*i for i in range(15)]
WS_U   = 0x0000000
WS_Z   = 0x0240000
WS_H2  = 0x0480000
WS_X1  = 0x06C0000
WS_MOD = 0x0900000
WS_P   = 0x1000000
NB_P   = 16*16*4*9*4096

class Asm:
    def __init__(self):
        self.L = []
    def __call__(self, s):
        for line in s.strip('\n').split('\n'):
            line = line.strip()
            if line:
                self.L.append(line)
    def text(self):
        out = []
        for l in self.L:
            if l.endswith(':') or l.startswith('.'):
                out.append(l)
            else:
                out.append('  ' + l)
        return '\n'.join(out)

def srd(a, dst, ptr, nbytes, off=0):
    if off:
        a(f"s_add_u32 s{dst}, s{ptr}, {off:#x}\ns_addc_u32 s{dst+1}, s{ptr+1}, 0")
    else:
        a(f"s_mov_b32 s{dst}, s{ptr}\ns_mov_b32 s{dst+1}, s{ptr+1}")
    a(f"s_mov_b32 s{dst+2}, {nbytes:#x}\ns_mov_b32 s{dst+3}, 0x20000")

def lo(a, d, s):
    a(f"v_lshlrev_b32 v{d}, 16, v{s}")
def hi(a, d, s):
    a(f"v_and_b32 v{d}, 0xffff0000, v{s}")
def unpack(a, d, s, e):
    (hi if e & 1 else lo)(a, d, s + (e >> 1))

def kernel_head(name):
    return f".globl {name}\n.p2align 8\n.type {name},@function\n{name}:"

def kernel_desc(name, vgpr, sgpr, accum=None):
    if STAMP[0]: sgpr = 100
    if accum is None:
        accum = min(256, (vgpr + 3)//4*4)
    return "\n".join(['.p2align 6', f'.amdhsa_kernel {name}', f'  .amdhsa_next_free_vgpr {vgpr}',
        f'  .amdhsa_next_free_sgpr {sgpr}', f'  .amdhsa_accum_offset {accum}',
        '  .amdhsa_group_segment_fixed_size 0', '  .amdhsa_kernarg_size 120',
        '  .amdhsa_user_sgpr_count 2', '  .amdhsa_user_sgpr_kernarg_segment_ptr 1',
        '  .amdhsa_system_sgpr_workgroup_id_x 1', '  .amdhsa_float_denorm_mode_32 3', '.end_amdhsa_kernel'])

_pcn = [0]
def code_srd(a, dst, tmp, start, end, back=False):
    _pcn[0] += 1
    l = f"L_pc_{_pcn[0]}"
    a(f"""
    s_getpc_b64 s[{tmp}:{tmp+1}]
    {l}:
    {f's_sub_u32 s{dst}, s{tmp}, {l}-{start}' if back else f's_add_u32 s{dst}, s{tmp}, {start}-{l}'}
    {'s_subb_u32' if back else 's_addc_u32'} s{dst+1}, s{tmp+1}, 0
    s_mov_b32 s{dst+2}, {end}-{start}
    s_mov_b32 s{dst+3}, 0x20000
    """)

STAMP = [False]
def stamp(a, i):
    if STAMP[0]: a(f"s_memrealtime s[{72+2*i}:{73+2*i}]")
def stamp_flush(a, kern, n, vt):
    if not STAMP[0]: return
    a(f"s_waitcnt vmcnt(0)\ns_memrealtime s[{72+2*n}:{73+2*n}]\ns_load_dwordx2 s[90:91], s[0:1], {WS}\ns_mov_b64 exec, -1\ns_waitcnt lgkmcnt(0)")
    srd(a, 92, 90, 0x40000, 0x8200000 + kern*0x40000)
    a(f"v_lshrrev_b32 v{vt}, 6, v0\nv_lshlrev_b32 v{vt}, 5, v{vt}\ns_lshl_b32 s90, s2, 9\nv_add_u32 v{vt}, s90, v{vt}")
    for i in range(n+1):
        a(f"v_mov_b32 v{vt+1}, s{72+2*i}\nbuffer_store_dword v{vt+1}, v{vt}, s[92:95], 0 offen offset:{4*i}")
```

```python
from fused import *
B = dict(order=1, GDL=70, FLAG_D=48, ASK2=260, PPACE=6, HPACE=4, ASK_D=48, CPF=6, CPD=2, BG=2, GSPAN=30, NCH=3, PF=default_pf(c2=()))
V = dict(
 a=dict(),
 b=dict(early=False),
 c=dict(order=0, ASK2=300),
)
for k, kw in V.items():
    open(f'gd_{k}.s','w').write(G(diag=True, verbose=True, stagestamp=3, **{**B, **kw}).build())
    open(f'g_{k}.s','w').write(G(**{**B, **kw}).build())
```

```python
from common import *
import math, struct
SLOT = 24576
NSLOT = 6
RING = NSLOT*SLOT
_c1 = 2*math.sqrt(2/math.pi)*math.log2(math.e); _c2 = _c1*0.044715
ALPHA = _c2**(1/3)
KT = _c1/ALPHA
def f2u(x): return struct.unpack('<I', struct.pack('<f', x))[0]

P_Q, P_K, P_V, P_SK, P_SSMK, P_SSMD, P_WG, P_WU, P_WD, P_C, P_WMOD, P_OUT, P_WS = 64, 66, 68, 70, 72, 74, 78, 80, 82, 84, 86, 88, 92
S_TAG, S_WAVE, S_SPIN, S_ONE = 94, 95, 96, 97
S_MT, S_GI, S_OOB = 49, 50, 51
S_FL = 60
LANE = 254
ACC, STG, HH = 0, 64, 128
TMP = 200
RBH = 204
TF, TH, TD = 208, 209, 210
VF, VH, VD = 216, 220, 224
VL16 = 225
VPC = 214
VPF, VPD = 215, 238
RBF = 226
H2 = 0
FR = 144
X1A = 208
S_W, S_D, S_H, S_P = 12, 16, 20, 24
S_M0F, S_M0D = 29, 30
S_BF, S_BH, S_DF, S_DH = 31, 32, 33, 34
S_SO, S_PO, S_KT, S_HO, S_HS, S_SS, S_PD, S_PS = 35, 36, 37, 38, 39, 48, 40, 41
PFN, PFD = 42, 47
OBUF = [ACC+32, STG, STG+32, ACC]
HBUF = [216, 240]
RB2 = [204, 205, 206, 207, 212, 213]
VD2, TD2, VTAG, VCHK = 209, 208, 252, 211
S_X = 56
S_OH, S_PF, S_PH, S_OFH, S_PFH, S_88, S_POH, S_XO, S_XP, S_XS, S_FO, S_FP = 34, 42, 43, 44, 45, 46, 47, 76, 77, 28, 100, 101
WS_X = 0x2400000
NB_X = 256*4*18432
FE = 0x20000
FD1, FD2 = 0x60000, 0x80000
VEP, VEO, VEG, VEF = 248, 249, 250, 251
S_FD = 90

def isize(ins):
    op = ins.split()[0]
    if op.endswith(':'): return 0
    if op in ('s_waitcnt', 's_barrier', 's_nop', 's_cbranch_scc1', 's_branch'): return 4
    if op in ('v_mul_f32', 'v_add_f32', 'v_rcp_f32', 'v_exp_f32', 'v_lshlrev_b32', 'v_mov_b32', 'v_fmac_f32') and '0x' not in ins and '-' not in ins: return 4
    return 8

class Hops:
    def __init__(self, prefix):
        self.prefix, self.n, self.bytes = prefix, 0, 1 << 20
    def add(self, ins): self.bytes += isize(ins)
    def due(self, margin=40): return self.bytes >= 128 - margin
    def emit(self):
        s = f"{self.prefix}_{self.n}:\ns_cbranch_scc1 @HOP@{self.prefix}@{self.n}@"
        self.n += 1; self.bytes = 4
        return s
    def resolve(self, a, ncall):
        nseg = 4*ncall
        self.start = [self.n*k//nseg for k in range(nseg+1)]
        ends = {self.start[k+1]-1 for k in range(nseg)}
        for i, l in enumerate(a.L):
            if f'@HOP@{self.prefix}@' in l:
                n = int(l.split('@')[3])
                tgt = f"{self.prefix}_ret" if n in ends else f"{self.prefix}_{n+1}"
                a.L[i] = f"s_cbranch_scc1 {tgt}"
            elif f'@CALL@{self.prefix}@' in l:
                c, w = int(l.split('@')[3]), int(l.split('@')[4])
                a.L[i] = f"s_cbranch_scc1 {self.prefix}_in{4*c+w}"
            elif l == f'@STUBS@{self.prefix}':
                a.L[i] = "\n".join(f"{self.prefix}_in{k}:\n  s_cmp_eq_u32 0, 0\n  s_branch {self.prefix}_{self.start[k]}" for k in range(nseg)) + "\n  s_nop 0"
    ncalls = 0
    def call(self, a, c):
        Hops.ncalls += 1
        x = f"{self.prefix}_c{Hops.ncalls}"
        a(f"s_getpc_b64 s[98:99]\n{x}a:\ns_add_u32 s98, s98, {x}b-{x}a\ns_addc_u32 s99, s99, 0")
        for w in range(4):
            a(f"s_cmp_eq_u32 s{S_WAVE}, {w}")
            a.L.append(f"@CALL@{self.prefix}@{c}@{w}@")
        a(f"{x}b:")
    def ret(self, a):
        a.L.append(f'@STUBS@{self.prefix}')
        a(f"{self.prefix}_ret:\ns_setpc_b64 s[98:99]")

def down_items(order=0):
    F_ = lambda b, s_, ks: [('F', b, s_, k) for k in ks]
    H_ = lambda s_, ks: [('H', (s_, k), (s_, k+1)) for k in ks]
    it = F_(0,0,range(6)) + F_(1,0,range(6)) + H_(0,(0,2,4)) + F_(2,0,range(6)) + F_(3,0,range(6))
    for b in range(4): it += F_(b,0,range(6,9))
    it += H_(0,(6,))
    if order == 0:
        it += F_(0,1,range(6)) + F_(1,1,range(6)) + F_(0,1,range(6,9)) + F_(1,1,range(6,9))
    elif order == 1:
        it += F_(0,1,range(9)) + F_(1,1,range(9))
    if order == 2:
        it += F_(0,1,range(6)) + F_(1,1,range(6)) + F_(2,1,range(6)) + F_(0,1,range(6,9)) + F_(1,1,range(6,9)) + F_(2,1,range(6,9))
    else:
        it += F_(2,1,range(9))
    it += F_(3,1,range(9)) + H_(1,(0,2,4,6)) + [('H', (0,8), (1,8))]
    if order == 3:
        it = F_(0,0,range(6)) + F_(1,0,range(6)) + H_(0,(0,2,4)) + F_(0,1,range(6)) + F_(0,0,range(6,9)) + F_(2,0,range(6)) + F_(1,0,range(6,9)) + F_(1,1,range(3))
        it += F_(0,1,range(6,9)) + F_(1,1,range(3,9)) + F_(2,0,range(6,9)) + F_(2,1,range(9)) + F_(3,0,range(9)) + F_(3,1,range(9))
        it += H_(0,(6,)) + H_(1,(0,2,4,6)) + [('H', (0,8), (1,8))]
    if order == 4:
        it = F_(0,0,range(6)) + F_(1,0,range(6)) + H_(0,(0,2,4)) + F_(0,1,range(6)) + F_(0,0,range(6,9)) + F_(1,1,range(6)) + F_(1,0,range(6,9)) + H_(0,(6,)) + H_(1,(0,2))
        it += F_(0,1,range(6,9)) + H_(1,(4,6)) + [('H', (0,8), (1,8))] + F_(1,1,range(6,9)) + F_(2,0,range(9)) + F_(2,1,range(9)) + F_(3,0,range(9)) + F_(3,1,range(9))
    if order == 5:
        it = F_(0,0,range(6)) + F_(1,0,range(6)) + H_(0,(0,2,4)) + F_(0,1,range(6)) + F_(0,0,range(6,9)) + F_(2,0,range(6)) + F_(1,0,range(6,9)) + F_(1,1,range(6))
        it += F_(0,1,range(6,9)) + F_(1,1,range(6,9)) + F_(2,0,range(6,9)) + F_(2,1,range(9)) + F_(3,0,range(9)) + F_(3,1,range(9))
        it += H_(0,(6,)) + H_(1,(0,2,4,6)) + [('H', (0,8), (1,8))]
    if order == 6:
        it = F_(0,0,range(6)) + F_(1,0,range(6)) + H_(0,(0,2,4)) + F_(2,0,range(6)) + F_(0,0,range(6,9)) + F_(0,1,range(6)) + F_(1,0,range(6,9)) + F_(1,1,range(6)) + F_(2,0,range(6,9))
        it += F_(0,1,range(6,9)) + F_(1,1,range(6,9)) + F_(2,1,range(9)) + H_(0,(6,)) + H_(1,(0,2,4,6)) + [('H', (0,8), (1,8))] + F_(3,0,range(9)) + F_(3,1,range(9))
    assert len(it) == 81
    return it

def base_ops(dst, T, npair, ntile):
    ops = []
    for p in range(npair):
        ops.append(f"v_add_u32 v{dst+ntile*p}, {2*SLOT*p}, v{T}")
        for t in range(1, ntile):
            ops.append(f"v_xor_b32 v{dst+ntile*p+t}, {32*t}, v{dst+ntile*p}")
    return ops

def dma_ops(st, DI):
    slot = (st % NSLOT)*SLOT
    ops = []
    if st < 27:
        if st < 24:
            base, vv, rs = S_BF, VF, 8*9216
            imm0 = (st // 6)*128 + (st % 6)*96*9216
        else:
            base, vv, rs = S_BH, VH, 16*9216
            imm0 = (st - 24)*192*9216
        for j in range(6):
            sc = []
            if j % 4 == 0:
                sc = [f"s_add_u32 m0, s{S_M0F}, {slot + j*1024}", f"s_add_u32 s{S_SO}, s{base}, {imm0 + j*rs}"]
            o = f" offset:{(j%4)*1024}" if j % 4 else ""
            ops.append((sc, f"buffer_load_dwordx4 v{vv + j%4}, s[{S_W}:{S_W+3}], s{S_SO} offen{o} lds"))
    else:
        for j, it in enumerate(DI[6*(st-27):6*(st-27)+6]):
            if it[0] == 'F':
                _, b, src, k = it
                base, imm, vv = ((S_DF, S_PF)[src], 32*k*1152 + b*128, VD) if k < 8 else ((S_OH, S_PH)[src], b*128, VD)
            else:
                src, k = it[1]
                base, imm, vv = ((S_OFH, S_PFH)[src], 32*k*1152, VD2) if k < 8 else (S_88, 0, VD2)
            sc = [f"s_add_u32 m0, s{S_M0D}, {slot + j*4096}", f"s_add_u32 s{S_SO}, s{base}, {imm}"]
            ops.append((sc, f"buffer_load_dwordx4 v{vv}, s[{S_D}:{S_D+3}], s{S_SO} offen lds"))
    return ops

def ffn_prefill(a, stages):
    for st in stages:
        for sc, ins in dma_ops(st, None):
            for s_ in sc: a(s_)
            a(ins)

PFWHO = ['early']
def ffn_setup(a, T, srds=True):
    L, T0, T1, T2, T3 = LANE, T, T+1, T+2, T+3
    RS = 8*9216 - 1024; RH = 16*9216 - 1024
    a(f"""
    s_and_b32 s4, s2, 7
    s_and_b32 s6, s{S_GI}, 1
    s_mul_i32 s7, s4, 576
    s_mul_i32 s8, s6, 320
    s_add_u32 s8, s8, s7
    s_lshl_b32 s9, s6, 5
    s_add_u32 s9, s9, s7
    s_add_u32 s9, s9, 256
    s_lshl_b32 s{S_BF}, s8, 1
    s_lshl_b32 s{S_BH}, s9, 1
    s_lshl_b32 s10, s{S_MT}, 2
    s_add_u32 s10, s10, s{S_WAVE}
    s_mul_i32 s{S_HO}, s10, 36864
    s_mul_i32 s{S_M0F}, s{S_WAVE}, 6144
    s_lshl_b32 s{S_M0D}, s{S_WAVE}, 10
    s_mov_b32 s{S_KT}, {f2u(-KT):#x}
    s_and_b32 s4, s{S_WAVE}, 1
    s_mul_i32 s5, s4, {48*9216}
    s_mul_i32 s6, s4, {96*9216}
    s_mul_i32 s7, s{S_WAVE}, {8*1152}
    v_lshlrev_b32 v{VL16}, 4, v{L}
    v_lshrrev_b32 v{T0}, 3, v{L}
    v_bfe_u32 v{T1}, v{L}, 4, 1
    v_lshlrev_b32 v{T1}, 1, v{T1}
    v_and_b32 v{T2}, 7, v{L}
    v_xor_b32 v{T1}, v{T1}, v{T2}
    v_lshlrev_b32 v{T1}, 4, v{T1}
    v_mul_u32_u24 v{T3}, 9216, v{T0}
    v_add_u32 v{T3}, s5, v{T3}
    v_add_u32 v{VF}, v{T3}, v{T1}
    v_xor_b32 v{T1}, 64, v{T1}
    v_add_u32 v{VF+1}, v{T3}, v{T1}
    v_add_u32 v{VF+2}, {2*RS}, v{VF}
    v_add_u32 v{VF+3}, {3*RS}, v{VF+1}
    v_add_u32 v{VF+1}, {RS}, v{VF+1}
    """)
    if srds:
        a(f"""
        s_cmp_ge_u32 s{S_WAVE}, 2
        s_cselect_b32 s{S_W}, s{P_WU}, s{P_WG}
        s_cselect_b32 s{S_W+1}, s{P_WU+1}, s{P_WG+1}
        s_mov_b32 s{S_W+2}, {D*DF*2:#x}
        s_mov_b32 s{S_W+3}, 0x20000
        """)
        srd(a, S_D, P_WD, D*DF*2)
    a(f"""
    v_lshrrev_b32 v{T0}, 2, v{L}
    v_mul_u32_u24 v{T3}, 9216, v{T0}
    v_add_u32 v{T3}, s6, v{T3}
    v_and_b32 v{T0}, 3, v{L}
    v_lshrrev_b32 v{T1}, 5, v{L}
    v_lshlrev_b32 v{T1}, 1, v{T1}
    v_xor_b32 v{T0}, v{T0}, v{T1}
    v_lshl_add_u32 v{VH}, v{T0}, 4, v{T3}
    v_add_u32 v{VH+1}, {RH}, v{VH}
    v_add_u32 v{VH+2}, {2*RH}, v{VH}
    v_add_u32 v{VH+3}, {3*RH}, v{VH}
    v_lshrrev_b32 v{T0}, 3, v{L}
    v_mul_u32_u24 v{T1}, 1152, v{T0}
    v_add_u32 v{T1}, s7, v{T1}
    v_and_b32 v{T0}, 6, v{T0}
    v_and_b32 v{T2}, 7, v{L}
    v_xor_b32 v{T0}, v{T0}, v{T2}
    v_lshl_add_u32 v{VD}, v{T0}, 4, v{T1}
    v_lshrrev_b32 v{T2}, 4, v{L}
    v_bfe_u32 v{T0}, v{L}, 2, 2
    v_and_b32 v{T3}, 3, v{L}
    v_lshlrev_b32 v{T3}, 3, v{T3}
    v_lshl_add_u32 v{T1}, v{T2}, 3, v{T0}
    v_lshl_add_u32 v{TF}, v{T1}, 7, v{T3}
    v_lshl_add_u32 v{TH}, v{T1}, 6, v{T3}
    v_lshl_add_u32 v{T1}, v{T2}, 2, v{T0}
    v_lshl_add_u32 v{TD}, v{T1}, 7, v{T3}
    v_bfe_u32 v{T1}, v{T1}, 1, 2
    v_lshl_add_u32 v{TD}, v{T1}, 5, v{TD}
    v_and_b32 v{T2}, 1, v{T2}
    v_lshl_add_u32 v{TH}, v{T2}, 5, v{TH}
    v_lshrrev_b32 v{T0}, 1, v{T0}
    v_lshl_add_u32 v{T0}, v{T2}, 1, v{T0}
    v_lshl_add_u32 v{TF}, v{T0}, 5, v{TF}
    """)
    for o in base_ops(RBF, TF, 3, 4) + base_ops(RBH, TH, 2, 2): a(o)
    a(f"""
    v_lshrrev_b32 v{T0}, 4, v{L}
    v_bfe_u32 v{T1}, v{L}, 2, 2
    v_lshl_add_u32 v{T1}, v{T0}, 2, v{T1}
    v_and_b32 v{T2}, 3, v{L}
    v_lshlrev_b32 v{T3}, 3, v{T2}
    v_lshl_add_u32 v{TD2}, v{T1}, 6, v{T3}
    v_and_b32 v{T0}, 1, v{T0}
    v_lshl_add_u32 v{TD2}, v{T0}, 5, v{TD2}
    v_lshlrev_b32 v{T0}, 1, v{T0}
    v_xor_b32 v{T2}, v{T2}, v{T0}
    v_lshrrev_b32 v{T1}, 2, v{L}
    s_lshl_b32 s4, s{S_WAVE}, 4
    v_add_u32 v{T1}, s4, v{T1}
    v_mul_u32_u24 v{T1}, 1152, v{T1}
    v_lshl_add_u32 v{VD2}, v{T2}, 4, v{T1}
    """)
    a(f"""
    {f's_mov_b32 s4, s{S_MT}' if PFWHO[0] == 'early' else f's_add_u32 s4, s{S_MT}, 9'}
    s_and_b32 s4, s4, 15
    s_mul_i32 s4, s4, {2*PFN}
    s_and_b32 s5, s{S_WAVE}, 1
    s_mul_i32 s5, s5, {PFN}
    s_add_u32 s4, s4, s5
    v_min_u32 v{VPF}, {PFN-1}, v{L}
    v_add_u32 v{VPF}, s4, v{VPF}
    v_mul_u32_u24 v{VPF}, 9216, v{VPF}
    """)

def ffn_setup2(a, T):
    a(f"""
    {f's_mov_b32 s5, s{S_MT}' if PFWHO[0] == 'early' else f's_add_u32 s5, s{S_MT}, 9'}
    s_and_b32 s5, s5, 15
    s_lshl_b32 s4, s5, 2
    s_add_u32 s4, s4, s{S_WAVE}
    s_mul_i32 s4, s4, {2*PFD}
    s_cmp_ge_u32 s5, 7
    s_cselect_b32 s4, 0x800000, s4
    v_min_u32 v{VPD}, {PFD-1}, v{LANE}
    v_add_u32 v{VPD}, s4, v{VPD}
    v_lshlrev_b32 v{VPD}, 7, v{VPD}
    s_mul_i32 s{S_PD}, s{S_GI}, {288*1152}
    s_lshl_b32 s4, s{S_WAVE}, 4
    v_and_b32 v{VPC}, 15, v{LANE}
    v_add_u32 v{VPC}, s4, v{VPC}
    v_lshlrev_b32 v{VPC}, 7, v{VPC}
    """)
    a(f"""
    s_and_b32 s9, s{S_GI}, 1
    s_lshr_b32 s10, s{S_GI}, 1
    s_mul_i32 s11, s10, {576*1152}
    s_mul_i32 s3, s9, 640
    s_add_u32 s3, s3, s11
    s_mul_i32 s4, s9, {320*1152}
    s_add_u32 s{S_DF}, s3, s4
    s_sub_u32 s4, {320*1152}, s4
    s_add_u32 s{S_PF}, s3, s4
    s_mul_i32 s4, s9, {32*1152}
    s_add_u32 s3, s3, {256*1152}
    s_add_u32 s{S_OH}, s3, s4
    s_sub_u32 s4, {32*1152}, s4
    s_add_u32 s{S_PH}, s3, s4
    s_mul_i32 s3, s9, 576
    s_sub_u32 s3, 512, s3
    s_add_u32 s{S_OFH}, s{S_DF}, s3
    s_add_u32 s{S_PFH}, s{S_PF}, s3
    s_sub_u32 s4, s{S_PH}, {32*1152}
    s_cmp_ge_u32 s{S_WAVE}, 2
    s_cselect_b32 s4, s4, s{S_OH}
    s_add_u32 s{S_88}, s4, s3
    s_lshl_b32 s10, s10, 6
    s_lshl_b32 s3, s{S_MT}, 2
    s_add_u32 s10, s10, s3
    s_add_u32 s10, s10, s{S_WAVE}
    s_mul_i32 s10, s10, 36864
    s_mul_i32 s3, s9, {10*2048}
    s_add_u32 s{S_PO}, s10, s3
    s_lshl_b32 s3, s9, 11
    s_add_u32 s3, s3, {8*2048}
    s_add_u32 s{S_POH}, s10, s3
    s_lshl_b32 s3, s2, 2
    s_add_u32 s3, s3, s{S_WAVE}
    s_xor_b32 s9, s3, 32
    s_mul_i32 s{S_XO}, s3, 18432
    s_mul_i32 s{S_XP}, s9, 18432
    s_lshl_b32 s3, s3, 8
    s_add_u32 s{S_FO}, s3, {FE}
    s_lshl_b32 s9, s9, 8
    s_add_u32 s{S_FP}, s9, {FE}
    """)

    srd(a, S_H, P_WS, NB_SD, WS_H2)
    srd(a, S_P, P_WS, NB_P, WS_P)

def default_pf(c3=(5,), h=(11,), d=(8, 9), c2=()):
    PF = {}
    for w, xs in ((2, c2), (3, c3), (4, h), ('D', d)):
        for pc, x in enumerate(xs): PF.setdefault(x, []).append((w, pc))
    return PF

def ffn_main(a, hops=None, R=16, DBAR=16, RD_MARGIN=6, MINLEAD=5, store_flags=' sc1', order=0, ASK3=None, FLAG_D=56, ASK_D=56, ASK1=40, ASK2=290, NPRO=2, verbose=False,
             DEBT=2.0, WM=8, GSPAN=44, HSPAN=30, stamper=None, NP2=6, BG=1, BG0=5, CPF=0, CPD=4, stagestamp=False, nobar=False, nodma=False, nogelu=False, nostore=False, PF=None, GDL=None, PPACE=10, HPACE=None):
    if PF is None: PF = default_pf()
    DI = down_items(order)
    NST = 27 + (len(DI) + 5)//6
    vm = []
    def vm_wait_n(tag):
        idx = [i for i, t in enumerate(vm) if t == tag]
        if not idx: return None
        n = len(vm) - 1 - max(idx)
        assert n <= 63
        return n
    def h2_ops(q):
        ops = []
        for mt in range(2):
            for n, ks in enumerate(range(3*q, 3*q+3)):
                sc = [f"s_add_u32 s{S_HS}, s{S_HO}, {mt*18432 + 3*q*1024}"] if n == 0 else []
                o = f" offset:{n*1024}" if n else ""
                r = H2 + 8*ks + 4*mt
                ops.append((sc, f"buffer_load_dwordx4 a[{r}:{r+3}], v{VL16}, s[{S_H}:{S_H+3}], s{S_HS} offen{o} sc1"))
        return ops
    dq = []
    for q in range(6):
        ops = h2_ops(q)
        if q >= NP2: ops = dma_ops(q, DI) + ops
        if q < NPRO:
            for sc, ins in ops:
                for s_ in sc: a(s_)
                a(ins); vm.append(('D', q))
        else:
            dq += [[q, list(sc), ins] for sc, ins in ops]

    F = []; M = []
    def tile(base, idx): return base + 4*idx
    for st in range(NST):
        if st < 27:
            full = st < 24
            nks = 3 if full else 6
            nft = 4 if full else 2
            c = st // 6 if full else 4
            k0 = 3*(st % 6) if full else 6*(st - 24)
            rowb = 128 if full else 64
            for kb in range(0, nks, 3):
                for ft in range(nft):
                    for mat in range(2):
                        f0 = len(F)
                        for x in range(3):
                            imm = mat*12288 + (kb + x)*32*rowb
                            F.append(dict(st=st, rb=ft, imm=(imm, imm + 4*rowb)))
                        for mt in range(2):
                            for x in range(3):
                                ks = k0 + kb + x
                                t = (ft*2 + mat)*2 + mt
                                last = ks == 17
                                Dd = tile(STG if (last and full) else ACC, t)
                                M.append(dict(st=st, f=f0+x, B=f"a[{H2+8*ks+4*mt}:{H2+8*ks+4*mt+3}]",
                                              C=None if ks == 0 else tile(ACC, t), D=Dd,
                                              done=('G', c, ft, mt) if (last and mat == 1) else None))
        else:
            items = DI[6*(st-27):6*(st-27)+6]
            def bop(src, k, mt):
                if src == 0: return dict(B=f"v[{HH+8*k+4*mt}:{HH+8*k+4*mt+3}]", hh=(k, mt))
                return dict(B=f"a[{8*k+4*mt}:{8*k+4*mt+3}]", vmneed=('P', k, mt))
            j = 0
            while j < len(items):
                n = 1
                if items[j][0] == 'F':
                    b = items[j][1]
                    while n < 3 and j + n < len(items) and items[j+n][:2] == ('F', b): n += 1
                    steps = [(it[2], it[3], (j+x)*4096, 2048) for x, it in enumerate(items[j:j+n])]
                    nct, kind = 4, 'F'
                    tl = lambda ct, mt: tile(OBUF[b], mt*4 + ct)
                else:
                    b = 4
                    steps = [(sk[0], sk[1], j*4096 + x*2048, 1024) for x, sk in enumerate(items[j][1:])]
                    nct, kind = 2, 'H'
                    tl = lambda ct, mt: HBUF[mt] + 4*ct
                for ct in range(nct):
                    f0 = len(F)
                    for (src, k, imm, du) in steps:
                        F.append(dict(st=st, rb=ct, imm=(imm, imm + du), kind=kind))
                    for mt in range(2):
                        for x, (src, k, imm, du) in enumerate(steps):
                            first = (src, k) == (0, 0); last = (src, k) == (1, 8)
                            M.append(dict(st=st, f=f0+x, C=None if first else tl(ct, mt), D=tl(ct, mt),
                                          done=('O', b, ct, mt) if (last and (ct & 1)) else None, **bop(src, k, mt)))
                j += n
    N = len(M)
    assert N == 1944
    for i, m in enumerate(M): F[m['f']]['last'] = i
    for i, m in reversed(list(enumerate(M))): F[m['f']]['first'] = i
    st_end = {}
    for i, m in enumerate(M): st_end[m['st']] = i + 1

    Q = []
    def add(ins, w, regs, hh=None, ready=0, vmt=None, sc=False):
        Q.append(dict(ins=ins, w=w, regs=regs, hh=hh, ready=ready, vm=vmt, sc=sc))
    def gelu_items(c, ft, mt, ready):
        base = STG if c < 4 else ACC
        G, U = tile(base, (ft*2)*2 + mt), tile(base, (ft*2+1)*2 + mt)
        k = (2*c + (ft >> 1)) if c < 4 else 8
        d = HH + 8*k + 4*mt + 2*(ft & 1)
        E = range(4)
        seq = []
        seq += [(f"v_fma_f32 v{TMP+e}, -v{G+e}, v{G+e}, s{S_KT}", 1) for e in E]
        seq += [(f"v_mul_f32 v{TMP+e}, v{G+e}, v{TMP+e}", 1) for e in E]
        seq += [(f"v_exp_f32 v{TMP+e}, v{TMP+e}", 2) for e in E]
        seq += [(f"v_mul_f32 v{U+e}, v{G+e}, v{U+e}", 1) for e in E]
        seq += [(f"v_add_f32 v{TMP+e}, 1.0, v{TMP+e}", 1) for e in E]
        seq += [(f"v_rcp_f32 v{TMP+e}, v{TMP+e}", 2) for e in E]
        seq += [(f"v_mul_f32 v{U+e}, v{U+e}, v{TMP+e}", 1) for e in E]
        seq += [(f"v_cvt_pk_bf16_f32 v{d+i}, v{U+2*i}, v{U+2*i+1}", 1) for i in range(2)]
        for n, (ins, w) in enumerate(seq):
            add(ins, w, (G, U), hh=(k, mt) if n >= len(seq)-2 else None, ready=ready)
        if ft & 1:
            x = 2*k + mt
            if x % 4 == 0: add(f"s_add_u32 s{S_XS}, s{S_XO}, {x*1024}", 0, ('x',), sc=True)
            o = f" offset:{(x%4)*1024}" if x % 4 else ""
            add(f"buffer_store_dwordx4 v[{HH+4*x}:{HH+4*x+3}], v{VL16}, s[{S_X}:{S_X+3}], s{S_XS} offen{o} sc1", 2, ('x',), vmt=('X', x))
    def out_items(b, ct, mt, ready):
        t0 = tile(OBUF[b], mt*4 + ct - 1) if b < 4 else HBUF[mt]
        regs = (t0, t0+4)
        for x in range(4):
            add(f"v_cvt_pk_bf16_f32 v{t0+x}, v{t0+2*x}, v{t0+2*x+1}", 1, regs, ready=ready)
        ip = ct >> 1
        if ct == 1 and mt == 0:
            add(f"s_add_u32 s{S_SS}, s{S_PO}, {b*4096}" if b < 4 else f"s_mov_b32 s{S_SS}, s{S_POH}", 0, regs, ready=ready, sc=True)
        o = f" offset:{(2*ip+mt)*1024}" if (2*ip+mt) else ""
        add(f"buffer_store_dwordx4 v[{t0}:{t0+3}], v{VL16}, s[{S_P}:{S_P+3}], s{S_SS} offen{o}{store_flags}", 2, regs, ready=ready, vmt=('S', b, ct, mt))

    cnt = [0]; cur = [0]; acts = []; vm_done = [-1]; slow = []
    def vm_wait(tag, extra=''):
        idx = max(i for i, t in enumerate(vm) if t == tag)
        if idx <= vm_done[0] and not extra: return False
        n = len(vm) - 1 - idx
        assert n <= 63
        E_(f"s_waitcnt vmcnt({n}){extra}")
        vm_done[0] = max(vm_done[0], idx)
        return True
    def E_(ins):
        cnt[0] += 1
        if nodma and ins.startswith('buffer_load') and 'lds' in ins: ins = 's_nop 0'
        if nostore and ins.startswith('buffer_store_dwordx4'): ins = 's_nop 0'
        if nogelu and ins.split()[0] in ('v_fma_f32', 'v_mul_f32', 'v_exp_f32', 'v_rcp_f32', 'v_add_f32'): return
        a(ins)
        if hops: hops.add(ins)
    def emit_q():
        it = Q[0]
        if cnt[0] < it['ready']:
            n = it['ready'] - cnt[0]
            while n > 0:
                k = min(n, 16); E_(f"s_nop {k-1}"); cnt[0] += k-1; n -= k
        Q.pop(0); E_(it['ins'])
        if it['vm']:
            vm.append(it['vm'])
            if it['vm'] == ('X', 11): acts.append([cur[0] + FLAG_D, 'flag', 0, it['vm']])
            if it['vm'] == ('S', 1, 3, 1): acts.append([cur[0] + FLAG_D, 'flag', 2, it['vm']])
            if it['vm'] == ('X', 17): acts.append([cur[0] + FLAG_D, 'flag', 1, it['vm']])
        return it
    def needs(m, it):
        if m.get('hh') is not None and it['hh'] == m['hh']: return True
        if m['D'] in it['regs'] and m['D'] != m['C']: return True
        return False
    def deadline(i):
        worst = 0.0; cum = 0; dl_cache = {}
        for it in Q:
            cum += it['w']
            key = (it['regs'], it['hh'])
            if key not in dl_cache:
                dl = None
                for j in range(i+1, min(N, i+400)):
                    if needs(M[j], it): dl = j; break
                dl_cache[key] = dl
            dl = dl_cache[key]
            if GDL is not None and it['vm'] == ('X', 17): dl = st_end[26] + GDL
            if GDL is not None and it['vm'] == ('X', 15): dl = st_end[26] + GDL - 80
            if dl is not None:
                worst = max(worst, cum/max(1, dl - i - 1))
        if Q and worst == 0: worst = cum/max(1, min(N - i, 60))
        return worst

    lds = []; covered = [-1]; rd_next = [0]; rd_gap = {}; enabled = [0]
    def rbreg(fr):
        sl = fr['st'] % NSLOT
        if fr.get('kind') == 'H': return RB2[2*(sl >> 1) + fr['rb']], (sl & 1)*SLOT
        if 24 <= fr['st'] < 27: return RBH + 2*(sl >> 1) + fr['rb'], (sl & 1)*SLOT
        return RBF + 4*(sl >> 1) + fr['rb'], (sl & 1)*SLOT
    def can_read(i):
        j = rd_next[0] >> 1
        if j >= len(F) or F[j]['st'] > enabled[0]: return False
        return j < R or F[j-R]['last'] <= i
    def emit_read(i):
        j, p = rd_next[0] >> 1, rd_next[0] & 1
        f = FR + 4*(j % R) + 2*p
        assert not (F[j]['st'] >= 27 and any(it['regs'] == ('rb',) for it in Q))
        assert not (F[j].get('kind') == 'H' and any(it['regs'] == ('rb2',) for it in Q))
        r_, o_ = rbreg(F[j])
        E_(f"ds_read_b64_tr_b16 a[{f}:{f+1}], v{r_} offset:{F[j]['imm'][p] + o_}")
        lds.append(j); rd_next[0] += 1
        if p: rd_gap[j] = i
    def emit_wait(i_next, i):
        fj = M[i_next]['f']
        if covered[0] >= fj: return False
        while (rd_next[0] >> 1) <= fj:
            assert can_read(i), (i, fj)
            emit_read(i)
        tgt = fj
        for k in range(fj+1, min(fj+6, len(F))):
            if k in rd_gap and rd_gap[k] <= i - WM: tgt = k
            else: break
        n = sum(1 for j in lds if j > tgt)
        E_(f"s_waitcnt lgkmcnt({min(n, 15)})")
        covered[0] = tgt
        return True

    while can_read(-1) and len(lds) < 12: emit_read(-1)
    E_(f"s_waitcnt vmcnt({vm_wait_n(('D', 0))})")
    if stamper: stamper()
    if stagestamp: E_("s_memtime s[98:99]"); E_("s_waitcnt lgkmcnt(0)"); E_("v_writelane_b32 v253, s98, 63")
    E_("s_cmp_eq_u32 0, 1")
    emit_wait(0, -1)

    stats = dict(over=0, flush=0, late=0)
    pq = []; pnext = [0]
    freed = [-1]; gspan = [HSPAN]; gn = [len(dq)]
    cred_r = 0.0; cred_v = 0.0; cred_g = 0.0
    T0 = st_end[26]
    acts += [[T0 + ASK1, 'ask', 0], [T0 + ASK2, 'ask', 1]]
    if ASK3: acts.append([T0 + ASK3, 'ask3', 0])
    for i in range(N):
        m = M[i]; cur[0] = i
        flushed = False
        while any(needs(m, it) for it in Q):
            stats['flush'] += emit_q()['w']; flushed = True
        if flushed: E_("s_nop 1"); cnt[0] += 1
        f = FR + 4*(m['f'] % R)
        Cs = "0" if m['C'] is None else f"v[{m['C']}:{m['C']+3}]"
        E_(f"v_mfma_f32_16x16x32_bf16 v[{m['D']}:{m['D']+3}], a[{f}:{f+3}], {m['B']}, {Cs}")
        if m['done']:
            kind, x, y, mt = m['done']
            (gelu_items if kind == 'G' else out_items)(x, y, mt, cnt[0] + 9)
        st = m['st']
        used = 0; sc_used = 0
        if hops and hops.due(24):
            a(hops.emit()); cnt[0] += 1; sc_used = 1
        bar_gap = st_end[st] - DBAR - 1
        if i == bar_gap: a(f"L_st{st}:")
        if i == bar_gap and st < NST - 1 and st == enabled[0]:
            nxt_en = min(st + (BG if st >= BG0 else 1), NST - 1)
            while (rd_next[0] >> 1) < len(F) and F[rd_next[0] >> 1]['st'] <= st:
                emit_read(i); used += 1
            while any(d[0] <= nxt_en for d in dq):
                d = dq.pop(0)
                for x in d[1]: E_(x)
                E_(d[2]); vm.append(d[3] if len(d) > 3 else ('D', d[0])); used += 2; stats['late'] += 1
            tg = [('D', x) for x in range(nxt_en, st, -1) if ('D', x) in vm]
            if tg: vm_wait(max(tg, key=lambda t: max(i_ for i_, u in enumerate(vm) if u == t)), ' lgkmcnt(0)')
            else: E_("s_waitcnt lgkmcnt(0)")
            if stagestamp == 1:
                E_("s_memtime s[98:99]"); E_("s_waitcnt lgkmcnt(0)"); E_(f"v_writelane_b32 v253, s98, {st}")
            if stagestamp == 3 and st in (5, 23, 33):
                ix = {5: 24, 23: 25, 33: 26}[st]
                E_("s_memtime s[98:99]"); E_("s_waitcnt lgkmcnt(0)"); E_(f"v_writelane_b32 v253, s98, {ix}")
                E_("s_memrealtime s[98:99]"); E_("s_waitcnt lgkmcnt(0)"); E_(f"v_writelane_b32 v255, s98, {ix}")
            if not nobar: E_("s_barrier")
            sc_used = 2
            covered[0] = (rd_next[0] >> 1) - 1
            enabled[0] = nxt_en
            for x in range(freed[0] + 1, st + 1):
                if CPF and x % CPF == 0 and x + CPD < NST - 1:
                    pq.append([98, [f"s_mov_b32 s{S_PS}, L_st{x+CPD}-L_common"], f"buffer_load_dword v239, v{VPC}, s[52:55], s{S_PS} offen", ('pf', 0)])
                for w, pc in PF.get(x, ()):
                    if w == 'D': pq.append([98, [f"s_add_u32 s{S_PS}, s{S_PD}, {pc*PFD*128}"], f"buffer_load_dword v239, v{VPD}, s[{S_D}:{S_D+3}], s{S_PS} offen", ('pf', 0)])
                    else:
                        sc_ = f"s_add_u32 s{S_PS}, s{S_BF if w < 4 else S_BH}, {(128*w if w < 4 else 0) + pc*PFN*9216}"
                        pq.append([98, [sc_], f"buffer_load_dword v239, v{VPF}, s[{S_W}:{S_W+3}], s{S_PS} offen", ('pf', 0)])
                if x + NSLOT < NST:
                    dq += [[x+NSLOT, list(sc), ins] for sc, ins in dma_ops(x+NSLOT, DI)]
                if x == 23:
                    Q[0:0] = [dict(ins=o, w=1, regs=('rb',), hh=None, ready=0, vm=None, sc=False) for o in base_ops(RBF, TD, 3, 4)]
                if x == 26:
                    ops2 = []
                    for p in range(3):
                        ops2 += [f"v_add_u32 v{RB2[2*p]}, {2*SLOT*p}, v{TD2}", f"v_xor_b32 v{RB2[2*p+1]}, 32, v{RB2[2*p]}"]
                    Q[0:0] = [dict(ins=o, w=1, regs=('rb2',), hh=None, ready=0, vm=None, sc=False) for o in ops2]
            gspan[0] = GSPAN*(st - freed[0]); gn[0] = len(dq)
            freed[0] = st
        if i + 1 < N and emit_wait(i + 1, i): sc_used += 1
        if i + 1 < N and M[i+1].get('vmneed'):
            while any(d[3] == M[i+1]['vmneed'] for d in pq):
                d = pq.pop(0)
                for x in d[1]: E_(x)
                E_(d[2]); vm.append(d[3] if len(d) > 3 else ('D', d[0])); used += 2; stats['late'] += 1
            if vm_wait(M[i+1]['vmneed']): sc_used += 1
        due = [x for x in acts if x[0] <= i]
        if due and not sc_used and not used:
            act = due[0]; acts.remove(act)
            if act[1] == 'flag':
                vm_wait(act[3])
                E_(f"buffer_store_dword v{VTAG}, off, s[{S_FL}:{S_FL+3}], s{S_FO if act[2] < 2 else S_FD}" + (" offset:128" if act[2] == 1 else "") + " sc1")
                vm.append(('F', act[2])); stats[f'flag{act[2]}'] = i - T0
            elif act[1] == 'ask3':
                E_(f"s_mov_b32 s{S_PS}, {FD1}")
                E_(f"buffer_load_dword v239, v{VEF}, s[{S_FL}:{S_FL+3}], s{S_PS} offen sc1")
                vm.append(('A', 3))
            elif act[1] == 'ask':
                E_(f"buffer_load_dword v{VCHK}, off, s[{S_FL}:{S_FL+3}], s{S_FP}" + (" offset:128" if act[2] else "") + " sc1")
                vm.append(('A', act[2])); acts.append([i + ASK_D, 'test', act[2]])
            else:
                vm_wait(('A', act[2]))
                E_(f"v_cmp_ne_u32 vcc, s{S_TAG}, v{VCHK}")
                E_(f"s_cbranch_vccnz L_xslow{act[2]}")
                a(f"L_xok{act[2]}:")
                new = []
                for x in (range(12) if act[2] == 0 else range(12, 18)):
                    sc_ = [f"s_add_u32 s{S_HS}, s{S_XP}, {x*1024}"] if x % 4 == 0 else []
                    o = f" offset:{(x%4)*1024}" if x % 4 else ""
                    new.append([99, sc_, f"buffer_load_dwordx4 a[{4*x}:{4*x+3}], v{VL16}, s[{S_X}:{S_X+3}], s{S_HS} offen{o} sc1", ('P', x >> 1, x & 1)])
                pq.extend(new)
            sc_used = 1; used = 2
        if not sc_used and hops and hops.due(48):
            a(hops.emit()); cnt[0] += 1; sc_used = 1
        if not sc_used and dq and dq[0][1]:
            E_(dq[0][1].pop(0)); sc_used = 1
        if not sc_used and pq and pq[0][1]:
            E_(pq[0][1].pop(0)); sc_used = 1
        if not sc_used and Q and Q[0]['sc'] and cnt[0] >= Q[0]['ready']:
            emit_q(); sc_used = 1
        jn = rd_next[0] >> 1
        lead = (F[jn]['first'] - i) if jn < len(F) else 999
        es = enabled[0]
        rem_r = sum(2 for fr in F[jn:jn+70] if fr['st'] <= es) - (rd_next[0] & 1) if jn < len(F) and F[jn]['st'] <= es else 0
        dl_r = (st_end[es] - DBAR - 1 - RD_MARGIN) if es < NST - 1 else st_end[es] - 10
        cred_r = min(cred_r + rem_r/max(1, dl_r - i), 2.5)
        cred_v += deadline(i)
        npend = len(dq)
        if npend:
            cred_g = min(cred_g + (gn[0]/gspan[0] if st >= 4 else (1/HPACE if HPACE else max(6, npend)/HSPAN)), 1.5)
        want_g = dq and not dq[0][1] and cred_g >= 1 and lead >= 2*MINLEAD
        if want_g and used == 0 and not sc_used:
            d = dq.pop(0)
            E_(d[2]); vm.append(d[3] if len(d) > 3 else ('D', d[0])); cred_g -= 1; used = 2
        if pq and not pq[0][1] and used == 0 and not sc_used and i >= pnext[0] and lead >= 2*MINLEAD:
            d = pq.pop(0)
            E_(d[2]); vm.append(d[3]); used = 2; pnext[0] = i + PPACE
        nd = 0
        if used < 2 and can_read(i):
            head2 = Q and Q[0]['w'] == 2 and cnt[0] >= Q[0]['ready']
            if lead < 2*MINLEAD or cred_r >= 2: nd = 2
            elif cred_r >= 1: nd = 2 if (head2 or want_g) else 1
            elif not Q: nd = 1
            while nd and used < 2 and can_read(i):
                emit_read(i); used += 1; nd -= 1; cred_r -= 1
        while Q and cnt[0] >= Q[0]['ready'] and not Q[0]['sc']:
            w = Q[0]['w']
            if used + w <= 2: pass
            elif cred_v >= DEBT + w and used + w <= 4 and used <= 2: stats['over'] += used + w - 2
            else: break
            emit_q(); used += w; cred_v -= w
        if not Q: cred_v = 0
    while Q: emit_q()
    if stagestamp: E_("s_memtime s[98:99]"); E_("s_waitcnt lgkmcnt(0)"); E_("v_writelane_b32 v253, s98, 62")
    assert not acts and not dq and not pq
    if ASK3: vm_wait(('A', 3))
    if verbose: print('ffn schedule:', stats, 'instr', cnt[0], 'hops', hops.n if hops else 0)

def ffn_slow_paths(a, spin_max, diag=False):
    for p in range(2):
        a(f"""
        L_xslow{p}:
        s_mov_b32 s{S_SPIN}, 0
        L_xspin{p}:
        buffer_load_dword v{VCHK}, off, s[{S_FL}:{S_FL+3}], s{S_FP}{' offset:128' if p else ''} sc1
        s_add_u32 s{S_SPIN}, s{S_SPIN}, 1
        s_waitcnt vmcnt(0)
        {f'v_writelane_b32 v255, s{S_SPIN}, {30+p}' if diag else ''}
        v_cmp_ne_u32 vcc, s{S_TAG}, v{VCHK}
        s_cbranch_vccz L_xok{p}
        s_cmp_lt_u32 s{S_SPIN}, {spin_max}
        s_cbranch_scc1 L_xspin{p}
        s_branch L_xok{p}
        """)
```

```python
import sys
from common import *
from ffn import *
NAME = 'adaLN_cond__ssm_conv_h3__glu_gated_geglu__prompt_kernel'
WS_EPOCH = 0x0A00000
WS_FL = 0x0A10000
FA, FB, FC = 0, 0x8000, 0x10000
FZ = 0xA0000
NB_MOD = 6*D*4
KSTR = 4160
WAVE_LDS = 4*KSTR + 4608
T_OFF = 4*WAVE_LDS
STAT_OFF = RING
MOD_OFF = RING + 1024
LDS_TOTAL = MOD_OFF + 14848
VRZ, VRM, VRH, VRP = 200, 201, 202, 203
NCONV, NMOD = 144, 54
QP, ST = 240, 252
DIAG = 255
SPIN_MAX = 200000

class G:
    def __init__(self, diag=False, **kw):
        self.a = Asm(); self.diag = diag; self.kw = kw; self.nl = 0; self.nst = 0; self.names = []
    def lab(self, p):
        self.nl += 1; return f"L_{p}{self.nl}"
    def stamp(self, idx):
        if self.diag:
            self.a(f"s_memrealtime s[98:99]\ns_waitcnt lgkmcnt(0)\nv_writelane_b32 v{DIAG}, s98, {idx}")

    def signal(self, base, idx_sgpr):
        a = self.a; l = self.lab('sig')
        a(f"""
        s_waitcnt vmcnt(0)
        s_barrier
        s_cmp_lg_u32 s{S_WAVE}, 0
        s_cbranch_scc1 {l}
        s_lshl_b32 s3, s{idx_sgpr}, 7
        s_add_u32 s3, s3, {base}
        v_mov_b32 v239, s{S_TAG}
        s_mov_b64 exec, 1
        buffer_store_dword v239, off, s[{S_FL}:{S_FL+3}], s3 sc1
        s_mov_b64 exec, -1
        {l}:
        """)
    def poll(self, vaddr, soff, sleep=1):
        a = self.a; l = self.lab('poll'); d = self.lab('pd')
        a(f"""
        s_mov_b32 s{S_SPIN}, 0
        {l}:
        buffer_load_dword v239, v{vaddr}, s[{S_FL}:{S_FL+3}], s{soff} offen sc1
        s_add_u32 s{S_SPIN}, s{S_SPIN}, 1
        s_waitcnt vmcnt(0)
        v_cmp_ne_u32 vcc, s{S_TAG}, v239
        s_cbranch_vccz {d}
        {'s_sleep ' + str(sleep) if sleep else ''}
        s_cmp_lt_u32 s{S_SPIN}, {SPIN_MAX}
        s_cbranch_scc1 {l}
        {d}:
        """)

    def row_ids(self, vr, vp, t):
        self.a(f"""
        s_lshl_b32 s3, s{S_MT}, 4
        s_add_u32 s3, s3, s{S_GI}
        s_lshl_b32 s3, s3, 3
        v_and_b32 v{vr}, 7, v{LANE}
        v_add_u32 v{vr}, s3, v{vr}
        v_bfe_u32 v{vp}, v{LANE}, 3, 1
        v_lshlrev_b32 v{vp}, 2, v{vp}
        v_bfe_u32 v{t}, v{LANE}, 5, 1
        v_lshl_add_u32 v{vp}, v{t}, 1, v{vp}
        v_bfe_u32 v{t}, v{LANE}, 4, 1
        v_add_u32 v{vp}, v{vp}, v{t}
        s_lshr_b32 s3, s{S_WAVE}, 1
        s_mul_i32 s3, s3, 3
        s_add_u32 s3, s3, s{S_WAVE}
        s_lshl_b32 s3, s3, 3
        v_add_u32 v{vp}, s3, v{vp}
        """)
    def q_loads(self, srdq, t):
        a = self.a
        self.row_ids(t, t+1, t+2)
        srd(a, srdq, P_Q, NB_SD)
        a(f"""
        v_mul_u32_u24 v{t}, 1152, v{t}
        v_lshl_add_u32 v{t}, v{t+1}, 4, v{t}
        buffer_load_dwordx4 v[{QP}:{QP+3}], v{t}, s[{srdq}:{srdq+3}], 0 offen
        buffer_load_dwordx4 v[{QP+4}:{QP+7}], v{t}, s[{srdq}:{srdq+3}], 0 offen offset:256
        buffer_load_dwordx4 v[{QP+8}:{QP+11}], v{t}, s[{srdq}:{srdq+3}], s{S_OOB} offen offset:512
        """)
    def stats(self, ldsoff, t, scale=None):
        a = self.a
        a(f"""
        v_mov_b32 v{t}, 0
        v_mov_b32 v{t+1}, 0
        v_bfe_u32 v{t+2}, v{LANE}, 5, 1
        v_and_b32 v{t+3}, 7, v{LANE}
        v_lshl_add_u32 v{t+2}, v{t+2}, 3, v{t+3}
        v_lshlrev_b32 v{t+2}, 4, v{t+2}
        s_lshl_b32 s3, s{S_WAVE}, 2
        v_add_u32 v{t+2}, {STAT_OFF + ldsoff}, v{t+2}
        v_add_u32 v{t+3}, s3, v{t+2}
        """)
        for i in range(12):
            a(f"v_dot2_f32_bf16 v{t}, v{QP+i}, s{S_ONE}, v{t}\nv_dot2_f32_bf16 v{t+1}, v{QP+i}, v{QP+i}, v{t+1}")
        a(f"""
        s_nop 2
        v_permlane32_swap_b32 v{t}, v{t+1}
        s_nop 1
        v_add_f32 v{t}, v{t}, v{t+1}
        v_mov_b32 v{t+1}, v{t}
        s_nop 1
        v_permlane16_swap_b32 v{t}, v{t+1}
        s_nop 1
        v_add_f32 v{t}, v{t}, v{t+1}
        s_nop 1
        v_add_f32_dpp v{t}, v{t}, v{t} row_ror:8 row_mask:0xf bank_mask:0xf
        ds_write_b32 v{t+3}, v{t}
        s_waitcnt lgkmcnt(0)
        s_barrier
        ds_read_b128 v[{t+4}:{t+7}], v{t+2}
        s_waitcnt lgkmcnt(0)
        v_add_f32 v{t+4}, v{t+4}, v{t+5}
        v_add_f32 v{t+6}, v{t+6}, v{t+7}
        v_add_f32 v{t}, v{t+4}, v{t+6}
        v_mul_f32 v{t}, 0x3ae38e39, v{t}
        v_mov_b32 v{t+1}, v{t}
        s_nop 1
        v_permlane32_swap_b32 v{t}, v{t+1}
        s_nop 1
        v_fma_f32 v{t+1}, -v{t}, v{t}, v{t+1}
        v_max_f32 v{t+1}, 0, v{t+1}
        v_add_f32 v{t+1}, 0x3727c5ac, v{t+1}
        v_rsq_f32 v{ST}, v{t+1}
        s_nop 0
        """)
        if scale: a(f"v_mul_f32 v{ST}, {f2u(scale):#x}, v{ST}")
        a(f"v_mul_f32 v{ST+1}, v{t}, v{ST}\nv_sub_f32 v{ST+1}, 0, v{ST+1}")

    def stats_parts(self, ldsoff, t):
        A = [f"v_bfe_u32 v{t+2}, v{LANE}, 5, 1", f"v_and_b32 v{t+3}, 7, v{LANE}", f"v_lshl_add_u32 v{t+2}, v{t+2}, 3, v{t+3}",
             f"v_lshlrev_b32 v{t+2}, 4, v{t+2}", f"v_add_u32 v{t+2}, {STAT_OFF + ldsoff}, v{t+2}",
             f"v_mov_b32 v{t+3}, s{S_WAVE}", f"v_lshl_add_u32 v{t+3}, v{t+3}, 2, v{t+2}", f"v_mov_b32 v{t}, 0", f"v_mov_b32 v{t+1}, 0"]
        for i in range(12):
            A += [f"v_lshlrev_b32 v{t+4}, 16, v{QP+i}", f"v_and_b32 v{t+5}, 0xffff0000, v{QP+i}", f"v_add_f32 v{t}, v{t}, v{t+4}",
                  f"v_fmac_f32 v{t+1}, v{t+4}, v{t+4}", f"v_add_f32 v{t}, v{t}, v{t+5}", f"v_fmac_f32 v{t+1}, v{t+5}, v{t+5}"]
        A += ['', '', f"v_permlane32_swap_b32 v{t}, v{t+1}", '', f"v_add_f32 v{t}, v{t}, v{t+1}", f"v_mov_b32 v{t+1}, v{t}", '', '',
              f"v_permlane16_swap_b32 v{t}, v{t+1}", '', f"v_add_f32 v{t}, v{t}, v{t+1}", '', '',
              f"v_add_f32_dpp v{t}, v{t}, v{t} row_ror:8 row_mask:0xf bank_mask:0xf", f"ds_write_b32 v{t+3}, v{t}"]
        B = [f"ds_read_b128 v[{t+4}:{t+7}], v{t+2}"]
        C = [f"v_add_f32 v{t+4}, v{t+4}, v{t+5}", f"v_add_f32 v{t+6}, v{t+6}, v{t+7}", f"v_add_f32 v{t}, v{t+4}, v{t+6}",
             f"v_mul_f32 v{t}, 0x3ae38e39, v{t}", f"v_mov_b32 v{t+1}, v{t}", '', '', f"v_permlane32_swap_b32 v{t}, v{t+1}", '',
             f"v_fma_f32 v{t+1}, -v{t}, v{t}, v{t+1}", f"v_max_f32 v{t+1}, 0, v{t+1}", f"v_add_f32 v{t+1}, 0x3727c5ac, v{t+1}",
             f"v_rsq_f32 v{ST}, v{t+1}", '', f"v_mul_f32 v{ST+1}, v{t}, v{ST}", f"v_sub_f32 v{ST+1}, 0, v{ST+1}"]
        return A, B, C
    def row_setup(self, t):
        a = self.a
        self.row_ids(t, t+1, t+2)
        a(f"""
        v_lshlrev_b32 v{VRZ}, 15, v{t+1}
        v_lshl_add_u32 v{VRZ}, v{t}, 3, v{VRZ}
        v_lshlrev_b32 v{VRM}, 5, v{t+1}
        v_add_u32 v{VRM}, {MOD_OFF}, v{VRM}
        v_lshrrev_b32 v{VRH}, 4, v{t}
        v_mul_u32_u24 v{VRH}, 18432, v{VRH}
        v_lshl_add_u32 v{VRH}, v{t+1}, 8, v{VRH}
        v_and_b32 v{t+2}, 15, v{t}
        v_lshl_add_u32 v{VRH}, v{t+2}, 4, v{VRH}
        s_lshr_b32 s3, s{S_MT}, 1
        s_lshl_b32 s3, s3, 2
        s_add_u32 s3, s3, s{S_WAVE}
        s_mul_i32 s3, s3, 36
        v_min_u32 v{VRP}, 35, v{LANE}
        v_add_u32 v{VRP}, s3, v{VRP}
        v_lshlrev_b32 v{VRP}, 7, v{VRP}
        """)
    def mod_dma(self, sr):
        a = self.a
        srd(a, sr, P_WS, NB_MOD, WS_MOD)
        a(f"s_mul_i32 s91, s{S_WAVE}, 3584\ns_add_u32 m0, s91, {MOD_OFF}\ns_nop 0")
        out = []
        for i in range(4):
            out.append(f"buffer_load_dwordx4 v{VL16}, s[{sr}:{sr+3}], s91 offen offset:{1024*i} sc1 lds")
        return out

    def conv_path(self):
        a = self.a; kw = self.kw
        VA, VB, VTW, VTR, VZ, VU, VPA, VHD = 192, 193, 194, 195, 211, 212, 213, 214
        DG = 196
        G4, I16 = 144, 145
        a(f"""
        s_lshr_b32 s40, s2, 4
        s_and_b32 s41, s2, 15
        v_and_b32 v1, 7, v0
        v_lshrrev_b32 v2, 3, v0
        s_lshl_b32 s42, s41, 7
        s_lshl_b32 s43, s40, 7
        v_lshl_add_u32 v3, v2, 2, s42
        v_mul_u32_u24 v3, 1152, v3
        v_lshl_add_u32 v4, v1, 4, s43
        v_add_u32 v13, v3, v4
        v_add_u32 v10, {(-3*1152) & 0xffffffff:#x}, v13
        v_add_u32 v11, {(-2*1152) & 0xffffffff:#x}, v13
        v_add_u32 v12, {(-1*1152) & 0xffffffff:#x}, v13
        v_lshlrev_b32 v5, 2, v4
        """)
        srd(a, 52, P_K, NB_SD); srd(a, 56, P_V, NB_SD); srd(a, 20, P_SK, D*8)
        for j in (3, 4, 5, 6, 0, 1, 2):
            va, o = (10+j, 0) if j < 3 else (13, (j-3)*1152)
            a(f"buffer_load_dwordx4 v[{16+4*j}:{19+4*j}], v{va}, s[52:55], 0 offen" + (f" offset:{o}" if o else ""))
        for j in range(4):
            a(f"buffer_load_dwordx4 v[{60+4*j}:{63+4*j}], v5, s[20:23], 0 offen" + (f" offset:{16*j}" if j else ""))
        for j in range(4):
            a(f"buffer_load_dwordx4 v[{44+4*j}:{47+4*j}], v13, s[56:59], 0 offen" + (f" offset:{1152*j}" if j else ""))
        a(f"""
        s_lshl_b32 s44, s2, 2
        s_add_u32 s44, s44, s{S_WAVE}
        s_mul_i32 s45, s{S_WAVE}, {WAVE_LDS}
        s_lshl_b32 s46, s44, 12
        s_add_u32 s52, s{P_SSMK}, s46
        s_addc_u32 s53, s{P_SSMK+1}, 0
        s_mov_b32 s54, 4096
        s_mov_b32 s55, 0x20000
        v_lshrrev_b32 v{G4}, 4, v{LANE}
        v_and_b32 v{I16}, 15, v{LANE}
        v_add_u32 v142, v{G4}, v{I16}
        v_add_u32 v142, -16, v142
        v_lshlrev_b32 v142, 1, v142
        s_lshl_b32 s3, s44, 1
        """)
        srd(a, 56, P_SSMD, D*2)
        a(f"""
        v_lshlrev_b32 v143, 4, v{LANE}
        buffer_load_ushort v140, v142, s[52:55], 0 offen
        buffer_load_ushort v141, off, s[56:59], s3
        """)
        KR = 152
        for i in range(4):
            a(f"buffer_load_dwordx4 v[{KR+6*i}:{KR+6*i+3}], v143, s[52:55], 0 offen offset:{1024*i}")
            a(f"buffer_load_dwordx2 v[{KR+6*i+4}:{KR+6*i+5}], v143, s[52:55], 0 offen offset:{1024*i+16}")
        srd(a, 24, P_WS, NB_SD, WS_U)
        a(f"""
        v_lshlrev_b32 v6, 9, v2
        v_lshl_add_u32 v6, v1, 4, v6
        v_add_u32 v6, {T_OFF}, v6
        v_bfe_u32 v7, v{LANE}, 1, 1
        v_lshl_add_u32 v7, v{G4}, 1, v7
        v_lshlrev_b32 v7, 3, v7
        v_bfe_u32 v8, v{LANE}, 2, 2
        v_sub_u32 v7, v7, v8
        v_add_u32 v7, 3, v7
        v_lshlrev_b32 v7, 7, v7
        v_and_b32 v8, 1, v{LANE}
        v_lshl_add_u32 v7, v8, 3, v7
        s_lshl_b32 s3, s{S_WAVE}, 5
        s_add_u32 s3, s3, {T_OFF}
        v_add_u32 v7, s3, v7
        s_lshl_b32 s3, s40, 6
        s_lshl_b32 s47, s{S_WAVE}, 4
        s_add_u32 s3, s3, s47
        v_and_b32 v8, 7, v{LANE}
        v_add_u32 v8, s3, v8
        v_lshlrev_b32 v8, 12, v8
        v_bfe_u32 v9, v{LANE}, 3, 1
        v_lshl_add_u32 v9, v{G4}, 1, v9
        v_lshl_add_u32 v8, v9, 4, v8
        s_lshl_b32 s3, s41, 8
        v_add_u32 v8, s3, v8
        v_add_u32 v9, 0x8000, v8
        v_mov_b32 v146, 0
        v_mov_b32 v147, 0
        v_lshl_add_u32 v148, v{LANE}, 3, s45
        ds_write_b64 v148, v[146:147] offset:{4*KSTR}
        v_mul_u32_u24 v{VHD}, {KSTR}, v{G4}
        v_lshl_add_u32 v{VHD}, v{I16}, 1, v{VHD}
        v_add_u32 v{VHD}, s45, v{VHD}
        v_add_u32 v14, 1, v{I16}
        v_and_b32 v{VA}, 3, v14
        v_mul_u32_u24 v{VA}, {KSTR}, v{VA}
        v_lshrrev_b32 v14, 2, v14
        v_lshl_add_u32 v{VA}, v14, 3, v{VA}
        v_lshlrev_b32 v14, 4, v{G4}
        v_sub_u32 v{VA}, v{VA}, v14
        v_add_u32 v{VA}, 48, v{VA}
        v_add_u32 v{VA}, s45, v{VA}
        v_lshlrev_b32 v{VB}, 5, v{I16}
        v_lshl_add_u32 v{VB}, v{G4}, 4, v{VB}
        s_add_u32 s3, s45, {4*KSTR + 512 - 32 - 448}
        v_add_u32 v{VB}, s3, v{VB}
        v_lshlrev_b32 v{VTW}, 4, v{I16}
        v_lshl_add_u32 v{VTW}, v{G4}, 2, v{VTW}
        s_mul_i32 s3, s{S_WAVE}, {KSTR}
        s_add_u32 s3, s3, {T_OFF}
        v_add_u32 v{VTW}, s3, v{VTW}
        v_bfe_u32 v{VTR}, v{LANE}, 2, 2
        v_mul_u32_u24 v{VTR}, {KSTR}, v{VTR}
        v_lshl_add_u32 v{VTR}, v{G4}, 5, v{VTR}
        v_and_b32 v14, 3, v{LANE}
        v_lshl_add_u32 v{VTR}, v14, 3, v{VTR}
        s_lshl_b32 s3, s{S_WAVE}, 8
        s_add_u32 s3, s3, {T_OFF}
        v_add_u32 v{VTR}, s3, v{VTR}
        s_lshl_b32 s3, s2, 14
        s_lshl_b32 s47, s{S_WAVE}, 11
        s_add_u32 s3, s3, s47
        v_lshl_add_u32 v{VZ}, v{LANE}, 4, s3
        v_lshlrev_b32 v{VU}, 4, v{LANE}
        v_lshlrev_b32 v{VPA}, 7, v{I16}
        """)
        a(f"v_lshlrev_b32 v{VL16}, 4, v{LANE}")
        self.stamp(1)
        if kw.get('hopP', False): self.ahops.call(a, 0)
        a("s_waitcnt vmcnt(14)")
        self.stamp(2)
        if kw.get('hopP', False): a.hop = self.ahops
        kd = []
        for c in (0, 2):
            ops = [f"buffer_load_dwordx4 v143, s[52:55], 0 offen offset:{i*1024} lds" for i in range(4)]
            ops[0] = f"s_add_u32 m0, s45, {c*KSTR + 32}\n" + ("v_add_u32 v143, 4, v143\n" if c else "s_nop 0\n") + ops[0]
            kd += ops
        nearly = kw.get('KEARLY', 0)
        early, late = kd[:nearly], kd[nearly:]
        def kdma():
            if early: a(early.pop(0))
        P = lambda x: f"v[{x}:{x+1}]"
        for cp in range(4):
            for j in range(4):
                f = lo if j % 2 == 0 else hi
                f(a, 80+2*j, 60+4*cp+(j >> 1)); f(a, 81+2*j, 62+4*cp+(j >> 1))
            if cp: kdma()
            for i in range(7):
                lo(a, 88+2*i, 16+4*i+cp); hi(a, 89+2*i, 16+4*i+cp)
            if cp: kdma()
            for r in range(4): a(f"v_pk_mul_f32 {P(110+2*r)}, {P(88+2*r)}, {P(86)}")
            for j in (1, 2, 3):
                for r in range(4): a(f"v_pk_fma_f32 {P(110+2*r)}, {P(88+2*(r+j))}, {P(86-2*j)}, {P(110+2*r)}")
            if cp == 0:
                a("s_waitcnt vmcnt(10)")
                self.stamp(22)
            kdma()
            for r in range(4):
                lo(a, 102+2*r, 44+4*r+cp); hi(a, 103+2*r, 44+4*r+cp)
            for r in range(4): a(f"v_pk_mul_f32 {P(110+2*r)}, {P(110+2*r)}, {P(102+2*r)}")
            for r in range(4): a(f"v_cvt_pk_bf16_f32 v{120+4*r+cp}, v{110+2*r}, v{111+2*r}")
            kdma()
        for r in range(4):
            a(f"ds_write_b128 v6, v[{120+4*r}:{123+4*r}]" + (f" offset:{128*r}" if r else ""))
        while early: kdma()
        a("s_waitcnt lgkmcnt(0)\ns_barrier")
        n = 0
        for cb in range(2):
            for hq in range(2):
                o = hq*8192 + cb*16
                a(f"ds_read_b64_tr_b16 v[{16+4*n}:{17+4*n}], v7 offset:{o+512}")
                a(f"ds_read_b64_tr_b16 v[{18+4*n}:{19+4*n}], v7 offset:{o}")
                n += 1
        n = 0
        for cb in range(2):
            for hq in range(2):
                a(f"s_waitcnt lgkmcnt({6-2*n})")
                a(f"buffer_store_dwordx4 v[{16+4*n}:{19+4*n}], v{8+cb}, s[24:27], 0 offen" + (" offset:128" if hq else "") + " sc1")
                n += 1
        a.hop = None
        self.stamp(3)
        self.signal(FA, 2)
        self.stamp(4)
        for o in late: a(o)
        self.q_loads(56, 1)
        a(f"v_lshl_add_u32 v14, v{LANE}, 4, s45")
        for i in range(4):
            for c in range(2):
                for x in range(4):
                    a(f"v_alignbyte_b32 v{16+8*(i&1)+4*c+x}, v{KR+6*i+x+c+1}, v{KR+6*i+x+c}, 2")
                a(f"ds_write_b128 v14, v[{16+8*(i&1)+4*c}:{19+8*(i&1)+4*c}] offset:{(1+2*c)*KSTR + 32 + 1024*i}")
        a(f"""
        ds_write_b16 v{VHD}, v140
        v_lshrrev_b32 v10, 3, v{I16}
        v_add_u32 v10, 2, v10
        v_cmp_eq_u32 vcc, v10, v{G4}
        v_and_b32 v11, 7, v{I16}
        v_sub_u32 v11, 7, v11
        v_cndmask_b32 v9, 0, v141, vcc
        v_and_b32 v10, 1, v11
        v_lshlrev_b32 v10, 4, v10
        v_lshlrev_b32 v9, v10, v9
        v_lshrrev_b32 v11, 1, v11
        """)
        for r in range(4):
            a(f"v_cmp_eq_u32 vcc, {r}, v11\ns_nop 1\nv_cndmask_b32 v{DG+r}, 0, v9, vcc")
        if kw.get('LN1', 'B') == 'A':
            a("s_waitcnt vmcnt(0)")
            self.stats(0, 150)
        a(f"""
        v_min_u32 v{VHD}, 55, v{LANE}
        v_lshlrev_b32 v{VHD}, 7, v{VHD}
        s_mov_b32 s90, {FB + 128*NCONV}
        s_mov_b32 s47, {FB + 128*(NCONV+56)}
        s_mul_i32 s42, s{S_WAVE}, 144
        s_add_u32 s42, s42, s2
        s_lshl_b32 s42, s42, 7
        s_add_u32 s42, s42, {FZ}
        s_add_u32 s43, s42, {4*144*128}
        s_mov_b32 s44, 8192
        v_mov_b32 v23, s{S_TAG}
        s_add_u32 s56, s{P_WS}, s46
        s_addc_u32 s57, s{P_WS+1}, 0
        s_mov_b32 s58, 4096
        s_mov_b32 s59, 0x20000
        s_lshl_b32 s4, s40, 11
        """)
        assert WS_U == 0 and FA == 0
        srd(a, 52, P_WS, NB_SD, WS_Z)
        hops = self.chops if kw.get('chops', False) else None
        if hops: hops.call(a, 0)
        self.stamp(5)
        self.poll(VPA, 4, sleep=0)
        self.stamp(6)
        a(f"s_add_u32 m0, s45, {4*KSTR + 512}\ns_nop 0")
        for i in range(4):
            a(f"buffer_load_dwordx4 v{VU}, s[56:59], 0 offen offset:{i*1024} sc1 lds")
        AC = 24; FRG = 64
        A = lambda s, m1: FRG + 64*s + 4*m1
        B = lambda s, n1: FRG + 64*s + 32 + 4*n1
        def rdA(m0, n, s):
            R = []
            for x in range(n):
                R.append(f"ds_read_b64 v[{A(s,x)}:{A(s,x)+1}], v{VA} offset:{512*x + 64*m0}")
                R.append(f"ds_read_b64 v[{A(s,x)+2}:{A(s,x)+3}], v{VA} offset:{512*x + 64*m0+8}")
            return R
        def rdB(m0, n, s):
            return [f"ds_read_b128 v[{B(s,x)}:{B(s,x)+3}], v{VB} offset:{512*x + 64*(7-m0)}" for x in range(n)]
        def mf(w, av, bv, first=False):
            a(f"v_mfma_f32_16x16x32_bf16 v[{AC+4*w}:{AC+4*w+3}], v[{av}:{av+3}], v[{bv}:{bv+3}], " + ("0" if first else f"v[{AC+4*w}:{AC+4*w+3}]"))
        def pack(w, t):
            return [f"v_cvt_pk_bf16_f32 v{t}, v{AC+4*w}, v{AC+4*w+2}", f"v_cvt_pk_bf16_f32 v{t+1}, v{AC+4*w+1}, v{AC+4*w+3}",
                    f"ds_write2st64_b32 v{VTW}, v{t}, v{t+1} offset0:{w} offset1:{w+8}"]
        def trr(p, t):
            R = []
            for i in range(2):
                R += [f"ds_read_b64_tr_b16 v[{t+4*i}:{t+4*i+1}], v{VTR} offset:{1024*p + 128*i}", f"ds_read_b64_tr_b16 v[{t+4*i+2}:{t+4*i+3}], v{VTR} offset:{1024*p + 128*i + 2048}"]
            return R
        def zst(p, t):
            return [f"buffer_store_dwordx4 v[{t+4*i}:{t+4*i+3}], v{VZ}, s[52:55], {'s44' if p else '0'} offen" + (" offset:1024" if i else "") + " sc1" for i in range(2)]
        def rd1(m0, s):
            ra, rb = [], []
            for h in range(2):
                for x in range(4):
                    t = 4*h + x
                    ra += [f"ds_read_b64 v[{A(s,t)}:{A(s,t)+1}], v{VA} offset:{512*x + 64*(m0+h)}", f"ds_read_b64 v[{A(s,t)+2}:{A(s,t)+3}], v{VA} offset:{512*x + 64*(m0+h)+8}"]
                    rb += [f"ds_read_b128 v[{B(s,t)}:{B(s,t)+3}], v{VB} offset:{512*x + 64*(7-m0-h)}"]
            return ra, rb
        ra, rb = rd1(0, 0)
        for r in ra: a(r)
        a("s_waitcnt vmcnt(0)")
        self.stamp(7)
        for r in rb: a(r)
        steps = [(0, m0) for m0 in range(0, 8, 2)] + [(1, m0) for m0 in range(8)]
        MC = kw.get('MCHK', 5)
        for n_, (p, m0) in enumerate(steps):
            s = n_ & 1
            nxt = []
            if n_ + 1 < len(steps):
                p2, m2 = steps[n_+1]
                ra, rb = (rdA(m2, 8, 1-s), rdB(m2, 8, 1-s)) if p2 else rd1(m2, 1-s)
                nxt = rb + ra
            ext = []
            a("s_waitcnt lgkmcnt(0)")
            if p == 1:
                if m0 == 0: ext = ['', ''] + sum([pack(w, 4 + 2*w) for w in range(4)], [])
                if m0 == 1: a("s_barrier"); ext = trr(0, 4)
                if m0 == 2: ext = zst(0, 4)
                if m0 == kw.get('ZF', 4):
                    a(f"s_waitcnt vmcnt(0)\nbuffer_store_dword v23, off, s[{S_FL}:{S_FL+3}], s42 sc1")
                    self.stamp(28)
                if m0 == MC:
                    ext += [f"buffer_load_dword v239, v{VHD}, s[{S_FL}:{S_FL+3}], s90 offen sc1", f"buffer_load_dword v22, v{VHD}, s[{S_FL}:{S_FL+3}], s47 offen sc1"]
            def gap():
                k = 2 if (p == 0 or (len(nxt) > left[0] and not ext)) else 1
                while k and nxt: a(nxt.pop(0)); k -= 1
                if ext:
                    x = ext.pop(0)
                    if x: a(x)
                left[0] -= 1
            if p == 0: pairs = [(m1 + n1, 4*h + m1, 4*h + n1) for h in range(2) for m1 in range(4) for n1 in range(4 - m1)]
            else:      pairs = [(m1 + n1, m1, n1) for m1 in range(8) for n1 in range(8 - m1) if m1 + n1 >= 4]
            left = [len(pairs) + (4 if m0 == 0 else 0) - 8]
            if m0 == 0:
                for w in range(4*p, 4*p+4):
                    mf(w, DG, B(s, w), True); gap()
            for w, x, y in pairs:
                mf(w, A(s, x), B(s, y)); gap()
            while nxt: a(nxt.pop(0))
            assert not ext
        self.stamp(8)
        a("s_nop 7")
        for w in range(4, 8):
            for x in pack(w, 64 + 2*w): a(x)
        a("s_waitcnt lgkmcnt(0)\ns_barrier")
        for x in trr(1, 80): a(x)
        for i, x in enumerate(zst(1, 80)):
            a(f"s_waitcnt lgkmcnt({2-2*i})"); a(x)
        self.stamp(9)
        ffn_setup(a, 100)
        self.row_setup(100)
        a(f"s_waitcnt vmcnt(0)\nbuffer_store_dword v23, off, s[{S_FL}:{S_FL+3}], s43 sc1\ns_barrier")
        self.stamp(23)
        a(f"v_cmp_ne_u32 vcc, s{S_TAG}, v239\nv_cmp_ne_u32 s[4:5], s{S_TAG}, v22\ns_nop 1\ns_or_b64 vcc, vcc, s[4:5]\ns_cbranch_vccz L_modok")
        self.poll(VHD, 90, sleep=1)
        self.poll(VHD, 47, sleep=1)
        a("L_modok:")
        for o in self.mod_dma(56): a(o)
        self.stats(0, 150)

    def side_path(self):
        a = self.a; kw = self.kw
        if kw.get('touch'):
            sh = kw['touch']
            srd(a, 52, P_WS, 0x4000000); srd(a, 56, P_OUT, NB_SD)
            a(f"v_lshlrev_b32 v1, {sh}, v0\nbuffer_load_dword v238, v1, s[52:55], 0 offen\nbuffer_load_dword v238, v1, s[56:59], 0 offen")
            srd(a, 56, P_WD, D*DF*2)
            a(f"buffer_load_dword v238, v1, s[56:59], 0 offen")
        code_srd(a, 56, 4, 'L_common', 'L_code_end')
        srd(a, 52, P_SSMK, NB_SD)
        a(f"""
        s_sub_u32 s47, s2, {NCONV}
        s_lshr_b32 s47, s47, 3
        s_lshl_b32 s47, s47, 2
        s_add_u32 s47, s47, s{S_WAVE}
        v_min_u32 v2, 7, v{LANE}
        s_lshl_b32 s43, s47, 10
        v_lshlrev_b32 v2, 7, v2
        buffer_load_dword v238, v2, s[56:59], s43 offen
        s_mul_i32 s42, s47, 42
        v_min_u32 v1, 41, v{LANE}
        v_add_u32 v1, s42, v1
        v_lshrrev_b32 v2, 7, v1
        v_and_b32 v1, 127, v1
        v_lshlrev_b32 v1, 7, v1
        v_lshl_add_u32 v1, v2, 17, v1
        s_and_b32 s3, s2, 7
        s_lshl_b32 s3, s3, 14
        {'buffer_load_dword v238, v1, s[52:55], s3 offen' if kw.get('pfK', False) else ''}
        s_mul_hi_u32 s42, s47, 0x2aaaaaab
        s_mul_i32 s43, s42, 6
        s_sub_u32 s43, s47, s43
        s_mul_i32 s43, s43, 3072
        s_add_u32 s42, s42, 7
        s_mul_i32 s42, s42, {128*1152}
        s_add_u32 s42, s42, s43
        s_and_b32 s3, s2, 7
        s_mul_i32 s3, s3, {16*1152}
        s_add_u32 s42, s42, s3
        v_min_u32 v1, 23, v{LANE}
        v_lshlrev_b32 v1, 7, v1
        """)
        srd(a, 52, P_Q, NB_SD)
        a("buffer_load_dword v238, v1, s[52:55], s42 offen")
        a(f"s_cmp_ge_u32 s2, {NCONV+NMOD}\ns_cbranch_scc1 L_nomod")
        a(f"""
        s_sub_u32 s40, s2, {NCONV}
        v_and_b32 v1, 7, v0
        v_lshrrev_b32 v2, 3, v0
        v_mul_u32_u24 v3, 6912, v2
        v_lshl_add_u32 v3, v1, 4, v3
        s_lshl_b32 s3, s40, 7
        v_add_u32 v3, s3, v3
        v_lshlrev_b32 v4, 1, v0
        """)
        srd(a, 12, P_C, D*2); srd(a, 16, P_WMOD, D*6912); srd(a, 20, P_WS, NB_MOD, WS_MOD)
        a("""
        buffer_load_ushort v5, v4, s[12:15], 0 offen
        buffer_load_ushort v6, v4, s[12:15], 0 offen offset:512
        buffer_load_ushort v7, v4, s[12:15], 0 offen offset:1024
        s_mov_b32 s41, 0
        """)
        a("s_waitcnt vmcnt(0)")
        for i in range(18):
            a(f"buffer_load_dwordx4 v[{32+4*i}:{35+4*i}], v3, s[16:19], s41 offen")
            if i < 17: a(f"s_add_u32 s41, s41, {32*6912}")
        for r in (5, 6, 7):
            a(f"""
            v_lshlrev_b32 v{r}, 16, v{r}
            v_mul_f32 v8, 0xbfb8aa3b, v{r}
            v_exp_f32 v8, v8
            s_nop 0
            v_add_f32 v8, 1.0, v8
            v_rcp_f32 v8, v8
            s_nop 0
            v_mul_f32 v{r}, v{r}, v8
            v_cvt_pk_bf16_f32 v{r}, v{r}, v{r}
            v_lshlrev_b32 v{r}, 16, v{r}
            """)
        a("""
        v_lshlrev_b32 v9, 2, v0
        ds_write_b32 v9, v5
        ds_write_b32 v9, v6 offset:1024
        ds_write_b32 v9, v7 offset:2048
        v_lshlrev_b32 v10, 2, v2
        s_waitcnt lgkmcnt(0)
        s_barrier
        """)
        for i in range(18):
            a(f"ds_read_b32 v{104+2*i}, v10 offset:{128*i}")
        a("s_waitcnt lgkmcnt(0)")
        for i in range(18):
            a(f"s_waitcnt vmcnt({17-i})")
            for x in range(4):
                t = 24 + 2*(x & 1)
                lo(a, t, 32+4*i+x); hi(a, t+1, 32+4*i+x)
                if i == 0: a(f"v_pk_mul_f32 v[{16+2*x}:{17+2*x}], v[{t}:{t+1}], v[{104+2*i}:{105+2*i}] op_sel_hi:[1,0]")
                else:      a(f"v_pk_fma_f32 v[{16+2*x}:{17+2*x}], v[{t}:{t+1}], v[{104+2*i}:{105+2*i}], v[{16+2*x}:{17+2*x}] op_sel_hi:[1,0,1]")
        a("""
        v_lshlrev_b32 v13, 8, v2
        v_lshl_add_u32 v13, v1, 5, v13
        ds_write_b128 v13, v[16:19] offset:4096
        ds_write_b128 v13, v[20:23] offset:4112
        s_waitcnt lgkmcnt(0)
        s_barrier
        """)
        a(f"s_cmp_lg_u32 s{S_WAVE}, 0\ns_cbranch_scc1 L_nomod")
        for i in range(32):
            a(f"ds_read_b32 v{32+i}, v9 offset:{4096 + 256*i}")
        a("s_waitcnt lgkmcnt(0)")
        for st in (16, 8, 4, 2):
            for i in range(0, st, 2):
                a(f"v_pk_add_f32 v[{32+i}:{33+i}], v[{32+i}:{33+i}], v[{32+i+st}:{33+i+st}]")
        a(f"""
        v_add_f32 v32, v32, v33
        s_mov_b32 s3, 0x1c71c71d
        v_cvt_pk_bf16_f32 v32, v32, v32
        s_mul_hi_u32 s41, s40, s3
        s_cmp_eq_u32 s41, 1
        s_cselect_b32 s42, 1.0, 0
        s_cmp_eq_u32 s41, 4
        s_cselect_b32 s42, 1.0, s42
        v_lshlrev_b32 v32, 16, v32
        v_add_f32 v32, s42, v32
        s_cmp_eq_u32 s41, 3
        s_cselect_b32 s43, {f2u(ALPHA):#x}, 1.0
        s_cmp_eq_u32 s41, 5
        s_cselect_b32 s43, {f2u(1/ALPHA**2):#x}, s43
        v_cvt_pk_bf16_f32 v32, v32, v32
        v_lshlrev_b32 v32, 16, v32
        v_mul_f32 v32, s43, v32
        s_lshl_b32 s3, s40, 8
        buffer_store_dword v32, v9, s[20:23], s3 offen sc1
        L_nomod:
        """)
        self.stamp(3)
        self.signal(FB, 2)
        self.q_loads(56, 146)
        self.stamp(4)
        if kw.get('waitA', True):
            a(f"""
            v_and_b32 v146, 15, v{LANE}
            v_lshlrev_b32 v146, 7, v146
            s_and_b32 s40, s2, 7
            s_lshl_b32 s4, s40, 11
            """)
            self.poll(146, 4, sleep=2)
        NCH = kw.get('NCH', 2); per = -(-1152*NCH//56)
        srd(a, 20, P_WG, D*DF*2); srd(a, 24, P_WU, D*DF*2)
        a(f"""
        s_and_b32 s40, s2, 7
        s_mul_i32 s43, s40, 1152
        s_sub_u32 s47, s2, {NCONV}
        s_lshr_b32 s47, s47, 3
        s_lshl_b32 s47, s47, 2
        s_add_u32 s47, s47, s{S_WAVE}
        s_mul_i32 s42, s47, {per}
        v_min_u32 v1, {per-1}, v{LANE}
        v_add_u32 v1, s42, v1
        s_mov_b32 s44, {-(-(1 << 32)//1152):#x}
        v_mul_hi_u32 v3, s44, v1
        v_mul_u32_u24 v4, 1152, v3
        v_sub_u32 v4, v1, v4
        v_lshlrev_b32 v3, 7, v3
        v_and_b32 v5, 1, v4
        v_mul_u32_u24 v5, 640, v5
        v_add_u32 v3, v3, v5
        v_lshrrev_b32 v4, 1, v4
        v_mul_u32_u24 v4, 9216, v4
        v_add_u32 v3, v3, v4
        buffer_load_dword v238, v3, s[20:23], s43 offen
        buffer_load_dword v238, v3, s[24:27], s43 offen
        """)
        self.stamp(6)
        ffn_setup(a, 100)
        self.row_setup(100)
        a("s_waitcnt vmcnt(2)")
        self.stats(0, 150)
        a(f"""
        v_min_u32 v147, {NMOD-1}, v{LANE}
        v_lshlrev_b32 v147, 7, v147
        s_mov_b32 s11, {FB + 128*NCONV}
        """)
        self.poll(147, 11, sleep=2)
        for o in self.mod_dma(52): a(o)
        if False: ffn_setup2(a, 100)
        if self.fhops and self.kw.get('sidehops', True):
            for c in range(self.nhc): self.fhops.call(a, c)
        self.stamp(23)

    def row_phase(self, hops):
        a = self.a; kw = self.kw
        NP1 = kw.get('NP1', 3); NP2 = kw.get('NP2', 6)
        PL = kw.get('PL', (3, 0, 0, 3)); pf = [sum(PL[:i]) for i in range(5)]
        ffn_prefill(a, range(pf[0], pf[1]))
        if not False: ffn_setup2(a, 100)
        srd(a, S_X, P_WS, NB_X, WS_X)
        srd(a, 52, P_WS, NB_SD, WS_Z)
        a(f"""
        s_mov_b32 s4, {FZ}
        s_mov_b32 s5, 0x4000
        s_mov_b32 s6, 0x80000
        s_mov_b32 s7, 0x84000
        s_add_u32 s8, s{S_OOB}, 0x100000
        s_add_u32 s11, s{S_OOB}, 0x104000
        s_mov_b32 s9, 4096
        s_add_u32 s10, s{S_OOB}, 8192
        """)
        so = ['0', 's5', 's6', 's7', 's8', 's11']
        MV = lambda i, v: 16 + 40*i + 8*v
        for c in kw.get('hopB', ()): hops.call(a, c)
        if kw.get('hopR', False): self.rhops.call(a, 0)
        self.stamp(10)
        self.poll(VRP, 4, sleep=kw.get('sleepB', 1))
        a("s_barrier")
        self.stamp(11)
        for i in range(6):
            a(f"buffer_load_dwordx2 v[{2*i}:{2*i+1}], v{VRZ}, s[52:55], {so[i]} offen sc1")
        ffn_prefill(a, range(pf[1], pf[2]))
        for vs in ((0, 1, 2), (3, 4)):
            for i in range(3):
                for v in vs:
                    for h in range(2):
                        a(f"ds_read_b128 v[{MV(i,v)+4*h}:{MV(i,v)+4*h+3}], v{VRM} offset:{2304*v + 512*i + 16*h}")
        a("s_waitcnt lgkmcnt(12)")
        if kw.get('hopR', False): a.hop = self.rhops
        P = lambda x: f"v[{x}:{x+1}]"
        BC = "op_sel:[0,0,1] op_sel_hi:[1,0,1]"
        for i in range(3):
            a(f"s_waitcnt vmcnt({2*(2-i) + 6*PL[1]})")
            if i == 0: self.stamp(12)
            for c2 in range(0, 4, 2):
                cs = (c2, c2+1); X = {c: 144 + 6*(c & 1) for c in cs}
                for c in cs: lo(a, X[c], QP+4*i+c); hi(a, X[c]+1, QP+4*i+c)
                for c in cs: a(f"v_pk_fma_f32 {P(X[c]+2)}, {P(X[c])}, {P(ST)}, {P(ST)} {BC}")
                for c in cs: lo(a, X[c]+4, 4*i+c); hi(a, X[c]+5, 4*i+c)
                for c in cs: a(f"v_pk_fma_f32 {P(X[c]+2)}, {P(X[c]+2)}, {P(MV(i,1)+2*c)}, {P(MV(i,0)+2*c)}")
                for c in cs: a(f"v_pk_mul_f32 {P(X[c]+2)}, {P(X[c]+2)}, {P(X[c]+4)}")
                for c in cs: a(f"v_pk_fma_f32 {P(X[c]+2)}, {P(X[c]+2)}, {P(MV(i,2)+2*c)}, {P(X[c])}")
                for c in cs: a(f"v_cvt_pk_bf16_f32 v{QP+4*i+c}, v{X[c]+2}, v{X[c]+3}")
        self.stats(256, 160, scale=ALPHA)
        ffn_prefill(a, range(pf[2], pf[3]))
        sh = ['0', 's9', 's10']
        for i in range(3):
            for c2 in range(0, 4, 2):
                cs = (c2, c2+1); X = {c: 144 + 6*(c & 1) for c in cs}
                for c in cs: lo(a, X[c], QP+4*i+c); hi(a, X[c]+1, QP+4*i+c)
                for c in cs: a(f"v_pk_fma_f32 {P(X[c])}, {P(X[c])}, {P(ST)}, {P(ST)} {BC}")
                for c in cs: a(f"v_pk_fma_f32 {P(X[c])}, {P(X[c])}, {P(MV(i,4)+2*c)}, {P(MV(i,3)+2*c)}")
                for c in cs: a(f"v_cvt_pk_bf16_f32 v{4*i+c}, v{X[c]}, v{X[c]+1}")
            a(f"buffer_store_dwordx4 v[{4*i}:{4*i+3}], v{VRH}, s[{S_H}:{S_H+3}], {sh[i]} offen sc1")
        a.hop = None
        self.stamp(13)
        for i in range(12): a(f"v_accvgpr_write_b32 a{X1A+i}, v{QP+i}")
        a(f"s_lshl_b32 s4, s{S_MT}, 4\ns_add_u32 s4, s4, s{S_GI}")
        self.signal(FC, 4)
        ffn_prefill(a, range(pf[3], pf[4]))
        code_srd(a, 52, 4, 'L_common', 'L_code_end', back=True)
        a(f"v_mov_b32 v{VTAG}, s{S_TAG}")
        self.reduce_setup(100)
        a(f"""
        v_and_b32 v146, 15, v{LANE}
        v_lshlrev_b32 v146, 7, v146
        s_lshl_b32 s9, s{S_MT}, 11
        s_add_u32 s9, s9, {FC}
        """)
        for c in kw.get('hopC', ()): hops.call(a, c)
        self.stamp(14)
        self.poll(146, 9, sleep=0)
        self.stamp(15)

    def reduce_setup(self, t):
        a = self.a
        self.row_ids(t, t+1, t+2)
        a(f"""
        v_mul_u32_u24 v{VEO}, 1152, v{t}
        v_lshl_add_u32 v{VEO}, v{t+1}, 4, v{VEO}
        v_lshrrev_b32 v{VEP}, 5, v{t}
        v_mul_u32_u24 v{VEP}, 9, v{VEP}
        v_lshrrev_b32 v{t+2}, 3, v{t+1}
        v_add_u32 v{VEP}, v{t+2}, v{VEP}
        v_lshlrev_b32 v{VEP}, 12, v{VEP}
        v_bfe_u32 v{t+2}, v{t}, 4, 1
        v_lshl_add_u32 v{VEP}, v{t+2}, 10, v{VEP}
        v_bfe_u32 v{t+2}, v{LANE}, 3, 1
        v_lshl_add_u32 v{VEP}, v{t+2}, 11, v{VEP}
        v_bfe_u32 v{t+2}, v{LANE}, 4, 1
        v_lshl_add_u32 v{VEP}, v{t+2}, 9, v{VEP}
        v_bfe_u32 v{t+2}, v{LANE}, 5, 1
        v_lshl_add_u32 v{VEP}, v{t+2}, 8, v{VEP}
        v_and_b32 v{t+2}, 15, v{t}
        v_lshl_add_u32 v{VEP}, v{t+2}, 4, v{VEP}
        v_lshlrev_b32 v{VEG}, 5, v{t+1}
        v_add_u32 v{VEG}, {MOD_OFF + 5*2304}, v{VEG}
        s_lshl_b32 s3, s{S_MT}, 2
        s_lshr_b32 s4, s{S_GI}, 2
        s_add_u32 s4, s4, s3
        s_lshl_b32 s4, s4, 11
        v_and_b32 v{VEF}, 15, v{LANE}
        v_lshl_add_u32 v{VEF}, v{VEF}, 7, s4
        s_add_u32 s3, s3, s{S_WAVE}
        s_lshl_b32 s3, s3, 4
        s_add_u32 s3, s3, s{S_GI}
        s_lshl_b32 s3, s3, 7
        s_add_u32 s{S_FD}, s3, {FD1}
        """)
    def reduce_phase(self):
        a = self.a; kw = self.kw
        early = kw.get('early', True)
        self.stamp(17)
        srd(a, 12, P_OUT, NB_SD)
        a(f"""
        s_mov_b32 s4, {FD1}
        s_mov_b32 s7, {FD2}
        s_add_u32 s8, s{S_FD}, {FD2 - FD1}
        {f'buffer_load_dword v239, v{VEF}, s[{S_FL}:{S_FL+3}], s4 offen sc1' if early and not kw.get('ASK3') else ''}
        s_mov_b32 s5, 0x3f80
        s_mov_b32 s6, 0x3f800000
        v_add_u32 v222, 8192, v{VEP}
        v_add_u32 v223, 16384, v{VEP}
        v_add_u32 v223, s{S_OOB}, v223
        """)
        for i in range(3):
            for h in range(2):
                a(f"ds_read_b128 v[{192+8*i+4*h}:{195+8*i+4*h}], v{VEG} offset:{512*i + 16*h}")
        va = [VEP, 222, 223]; RD = [32, 64, 128]
        def loads(i):
            a("s_mov_b32 s9, 0")
            for sl in range(8):
                a(f"buffer_load_dwordx4 v[{RD[i]+4*sl}:{RD[i]+4*sl+3}], v{va[i]}, s[{S_P}:{S_P+3}], s9 offen sc1")
                if sl < 7: a(f"s_add_u32 s9, s9, {NB_SD}")
        pub = f"buffer_store_dword v{VTAG}, off, s[{S_FL}:{S_FL+3}], s8 sc1"
        if kw.get('ASK3'):
            a(f"v_cmp_ne_u32 vcc, s{S_TAG}, v239\ns_cbranch_vccnz L_e1late")
            loads(0)
            a(f"s_waitcnt vmcnt(8)\n{pub}\ns_branch L_e1done\nL_e1late:\ns_waitcnt vmcnt(0)\n{pub}")
            self.poll(VEF, 4, sleep=0)
            loads(0)
            a("L_e1done:")
            self.stamp(18)
        else:
            a(f"s_waitcnt vmcnt(0)\n{pub}")
            self.stamp(18)
            if early:
                a(f"v_cmp_ne_u32 vcc, s{S_TAG}, v239\ns_cbranch_vccz L_e1ok")
                self.poll(VEF, 4, sleep=0)
                a("L_e1ok:")
                loads(0)
        self.poll(VEF, 7, sleep=0)
        self.stamp(19)
        if not early: loads(0)
        loads(1); loads(2)
        a("s_waitcnt lgkmcnt(0)")
        AC = 226
        for i in range(3):
            for e in range(8): a(f"v_mov_b32 v{AC+e}, 0")
            for sl in range(8):
                if i or not early: a(f"s_waitcnt vmcnt({23 - 8*i - sl + i})")
                for x in range(4):
                    a(f"v_dot2_f32_bf16 v{AC+2*x}, v{RD[i]+4*sl+x}, s5, v{AC+2*x}")
                    a(f"v_dot2_f32_bf16 v{AC+2*x+1}, v{RD[i]+4*sl+x}, s6, v{AC+2*x+1}")
            for x in range(4): a(f"v_accvgpr_read_b32 v{QP+x}, a{X1A+4*i+x}")
            for e in range(4): a(f"v_permlane32_swap_b32 v{AC+e}, v{AC+4+e}")
            for x in range(4):
                lo(a, 234, QP+x); hi(a, 235, QP+x)
                a(f"v_pk_fma_f32 v[234:235], v[{AC+2*x}:{AC+2*x+1}], v[{192+8*i+2*x}:{193+8*i+2*x}], v[234:235]")
                a(f"v_cvt_pk_bf16_f32 v{QP+4+x}, v234, v235")
            a(f"buffer_store_dwordx4 v[{QP+4}:{QP+7}], v{VEO}, s[12:15], {'s%d' % S_OOB if i == 2 else '0'} offen" + (f" offset:{256*i}" if i else "") + kw.get('outfl', ''))
            a("s_nop 1")
        self.stamp(20)

    def build(self):
        a = self.a; kw = self.kw
        a(kernel_head(NAME))
        if kw.get('fix0'): a("s_memrealtime s[100:101]")
        a(f"""
        s_cmp_ge_u32 s2, 256
        s_cbranch_scc1 L_end
        s_load_dwordx16 s[64:79], s[0:1], 0
        s_load_dwordx8 s[80:87], s[0:1], 64
        s_load_dwordx4 s[88:91], s[0:1], 96
        s_load_dwordx2 s[92:93], s[0:1], 112
        """)
        if self.diag: a(f"v_mov_b32 v{DIAG}, 0")
        code_srd(a, 56, 4, 'L_start', 'L_common')
        a(f"""
        L_start:
        v_lshlrev_b32 v1, 7, v0
        v_lshrrev_b32 v2, 6, v0
        v_and_b32 v{LANE}, 63, v0
        buffer_load_dword v238, v1, s[56:59], 0 offen
        v_readfirstlane_b32 s{S_WAVE}, v2
        s_lshr_b32 s3, s2, 3
        s_lshr_b32 s{S_MT}, s3, 1
        s_add_u32 s{S_MT}, s{S_MT}, 7
        s_and_b32 s{S_MT}, s{S_MT}, 15
        s_and_b32 s3, s3, 1
        s_and_b32 s{S_GI}, s2, 7
        s_lshl_b32 s{S_GI}, s{S_GI}, 1
        s_add_u32 s{S_GI}, s{S_GI}, s3
        s_mov_b32 s{S_ONE}, 0x3f803f80
        s_cmp_eq_u32 s{S_WAVE}, 0
        s_cselect_b32 s{S_OOB}, 0, 0x40000000
        s_waitcnt lgkmcnt(0)
        s_load_dword s{S_TAG}, s[{P_WS}:{P_WS+1}], {WS_EPOCH:#x}
        """.replace(f"s_load_dword s{S_TAG}, s[{P_WS}:{P_WS+1}], {WS_EPOCH:#x}",
                    f"s_add_u32 s4, s{P_WS}, {WS_EPOCH:#x}\ns_addc_u32 s5, s{P_WS+1}, 0\ns_load_dword s28, s[4:5], 0"))
        srd(a, S_FL, P_WS, 0xC4000, WS_FL)
        self.stamp(0)
        a(f"s_cmp_ge_u32 s2, {NCONV}\ns_cbranch_scc1 L_side")
        self.tagfix = True
        orig = self.signal
        first = [True]
        def sig(base, idx):
            if first[0]:
                a(f"s_waitcnt lgkmcnt(0)\ns_add_u32 s{S_TAG}, s28, 1"); first[0] = False
            orig(base, idx)
        self.signal = sig
        self.chops = Hops('L_ch'); self.ahops = Hops('L_ah'); self.rhops = Hops('L_rh')
        self.nhc = kw.get('nhc', 4)
        hops = self.fhops = Hops('L_fh') if kw.get('hops', False) else None
        self.conv_path()
        a("s_branch L_common")
        if kw.get('chops', False): self.chops.ret(a)
        if hops: hops.ret(a)
        if kw.get('hopP', False): self.ahops.ret(a)
        if kw.get('hopR', False): self.rhops.ret(a)
        ffn_slow_paths(a, SPIN_MAX, self.diag)
        a("L_side:")
        first[0] = True
        self.side_path()
        a("L_common:")
        self.row_phase(hops)
        kw['NP2'] = sum(kw.get('PL', (3, 0, 0, 3)))
        fk = {k: v for k, v in kw.items() if k not in ('NP1', 'hops', 'nhc', 'hopA', 'hopB', 'hopC', 'sidehops', 'sleepB', 'chops', 'KEARLY', 'waitA', 'MCHK', 'touch', 'NCH', 'dbg', 'fixdur', 'fix0', 'outfl', 'enc', 'poll1', 'sleepD', 'PL', 'hopP', 'hopR', 'LN1', 'pfK', 'early', 'INLOOP', 'ZF')}
        ffn_main(a, hops=hops, stamper=(lambda: self.stamp(16)), **fk)
        if hops: hops.resolve(a, self.nhc)
        if kw.get('chops', False): self.chops.resolve(a, 1)
        if kw.get('hopP', False): self.ahops.resolve(a, 1)
        if kw.get('hopR', False): self.rhops.resolve(a, 1)
        self.reduce_phase()
        a(f"""
        s_cmp_lg_u32 s2, 0
        s_cbranch_scc1 L_noep
        s_cmp_lg_u32 s{S_WAVE}, 0
        s_cbranch_scc1 L_noep
        """)
        srd(a, 20, P_WS, 4, WS_EPOCH)
        a(f"""
        v_mov_b32 v239, s{S_TAG}
        s_mov_b64 exec, 1
        buffer_store_dword v239, off, s[20:23], 0
        s_mov_b64 exec, -1
        L_noep:
        """)
        if self.diag:
            a("s_waitcnt vmcnt(0)"); self.stamp(21)
            srd(a, 20, P_WS, 1 << 20, 0x8000000)
            a(f"""
            s_lshl_b32 s3, s2, 2
            s_add_u32 s3, s3, s{S_WAVE}
            s_lshl_b32 s3, s3, 8
            v_lshlrev_b32 v1, 2, v{LANE}
            buffer_store_dword v{DIAG}, v1, s[20:23], s3 offen
            s_add_u32 s3, s3, 0x80000
            buffer_store_dword v253, v1, s[20:23], s3 offen
            """)
            if kw.get('dbg') is not None:
                srd(a, 20, 90, 256)
                a(f"""
                s_cmp_lg_u32 s2, {kw['dbg']}
                s_cbranch_scc1 L_end
                s_cmp_lg_u32 s{S_WAVE}, 0
                s_cbranch_scc1 L_end
                v_readlane_b32 s3, v{DIAG}, 0
                v_add_u32 v2, -24, v1
                s_nop 1
                v_subrev_u32 v{DIAG}, s3, v{DIAG}
                buffer_store_dword v{DIAG}, v2, s[20:23], 0 offen
                """)
                if kw.get('fixdur'):
                    if kw.get('enc') is not None:
                        a(f"s_nop 1\nv_readlane_b32 s4, v{DIAG}, {kw['enc']}\ns_nop 3\ns_add_u32 s3, s3, s4")
                    a(f"""
                    L_fix:
                    s_memrealtime s[98:99]
                    s_waitcnt lgkmcnt(0)
                    s_sub_u32 s98, s98, {'s100' if kw.get('fix0') else 's3'}
                    s_cmp_lt_u32 s98, {kw['fixdur']}
                    s_cbranch_scc1 L_fix
                    """)
        a("L_end:\ns_endpgm\nL_code_end:")
        REF = 'adaLN_cond__ssm_conv_h3__glu_gated_geglu__prompt.s.ref'
        pre = [l for l in open(REF).read().split('\n') if l.startswith(';') and '@launch' not in l]
        out = pre + [f"; @launch grid=(256,1,1) block=(256,1,1) lds={LDS_TOTAL}", '.amdgcn_target "amdgcn-amd-amdhsa--gfx950"', '.text', a.text(),
                     '.section .rodata,"a"', kernel_desc(NAME, 256 + X1A + 12, 102, 256)]
        return '\n'.join(out) + '\n'

if __name__ == '__main__':
    dst = sys.argv[1] if len(sys.argv) > 1 else 'f_base.s'
    open(dst, 'w').write(G(verbose=True).build())
    open('f_diag.s', 'w').write(G(diag=True).build())
```

```python
from common import *
import math, struct
SLOT = 24576
NSLOT = 6
RING = NSLOT*SLOT
_c1 = 2*math.sqrt(2/math.pi)*math.log2(math.e); _c2 = _c1*0.044715
ALPHA = _c2**(1/3)
KT = _c1/ALPHA
def f2u(x): return struct.unpack('<I', struct.pack('<f', x))[0]

P_Q, P_K, P_V, P_SK, P_SSMK, P_SSMD, P_WG, P_WU, P_WD, P_C, P_WMOD, P_OUT, P_WS = 64, 66, 68, 70, 72, 74, 78, 80, 82, 84, 86, 88, 92
S_TAG, S_WAVE, S_SPIN, S_ONE = 94, 95, 96, 97
S_MT, S_GI, S_OOB = 49, 50, 51
S_FL = 60
LANE = 254
ACC, STG, HH = 0, 64, 128
TMP = 200
RBH = 204
TF, TH, TD = 208, 209, 210
VF, VH, VD = 216, 220, 224
VL16 = 225
VPC = 214
VPF, VPD = 215, 238
RBF = 226
H2 = 0
FR = 144
X1A = 208
S_W, S_D, S_H, S_P = 12, 16, 20, 24
S_M0F, S_M0D = 29, 30
S_BF, S_BH, S_DF, S_DH = 31, 32, 33, 34
S_SO, S_PO, S_KT, S_HO, S_HS, S_SS, S_PD, S_PS = 35, 36, 37, 38, 39, 48, 40, 41
PFN, PFD = 18, 41
OBUF = [ACC+32, STG, STG+32, ACC]
HBUF = [216, 240]
RB2 = [204, 205, 206, 207, 212, 213]
VD2, TD2, VTAG, VCHK = 209, 208, 252, 211
S_X = 56
S_OH, S_PF, S_PH, S_OFH, S_PFH, S_88, S_POH, S_XO, S_XP, S_XS, S_FO, S_FP = 34, 42, 43, 44, 45, 46, 47, 76, 77, 28, 100, 101
WS_X = 0x2400000
NB_X = 256*4*18432
FE = 0x20000
FD1, FD2 = 0x60000, 0x80000
VEP, VEO, VEG, VEF = 248, 249, 250, 251
S_FD = 90

def isize(ins):
    op = ins.split()[0]
    if op.endswith(':'): return 0
    if op in ('s_waitcnt', 's_barrier', 's_nop', 's_cbranch_scc1', 's_branch'): return 4
    if op in ('v_mul_f32', 'v_add_f32', 'v_rcp_f32', 'v_exp_f32', 'v_lshlrev_b32', 'v_mov_b32', 'v_fmac_f32') and '0x' not in ins and '-' not in ins: return 4
    return 8

class Hops:
    def __init__(self, prefix):
        self.prefix, self.n, self.bytes = prefix, 0, 1 << 20
    def add(self, ins): self.bytes += isize(ins)
    def due(self, margin=40): return self.bytes >= 128 - margin
    def emit(self):
        s = f"{self.prefix}_{self.n}:\ns_cbranch_scc1 @HOP@{self.prefix}@{self.n}@"
        self.n += 1; self.bytes = 4
        return s
    def resolve(self, a, ncall):
        nseg = 4*ncall
        self.start = [self.n*k//nseg for k in range(nseg+1)]
        ends = {self.start[k+1]-1 for k in range(nseg)}
        for i, l in enumerate(a.L):
            if f'@HOP@{self.prefix}@' in l:
                n = int(l.split('@')[3])
                tgt = f"{self.prefix}_ret" if n in ends else f"{self.prefix}_{n+1}"
                a.L[i] = f"s_cbranch_scc1 {tgt}"
            elif f'@CALL@{self.prefix}@' in l:
                c, w = int(l.split('@')[3]), int(l.split('@')[4])
                a.L[i] = f"s_cbranch_scc1 {self.prefix}_in{4*c+w}"
            elif l == f'@STUBS@{self.prefix}':
                a.L[i] = "\n".join(f"{self.prefix}_in{k}:\n  s_cmp_eq_u32 0, 0\n  s_branch {self.prefix}_{self.start[k]}" for k in range(nseg)) + "\n  s_nop 0"
    ncalls = 0
    def call(self, a, c):
        Hops.ncalls += 1
        x = f"{self.prefix}_c{Hops.ncalls}"
        a(f"s_getpc_b64 s[98:99]\n{x}a:\ns_add_u32 s98, s98, {x}b-{x}a\ns_addc_u32 s99, s99, 0")
        for w in range(4):
            a(f"s_cmp_eq_u32 s{S_WAVE}, {w}")
            a.L.append(f"@CALL@{self.prefix}@{c}@{w}@")
        a(f"{x}b:")
    def ret(self, a):
        a.L.append(f'@STUBS@{self.prefix}')
        a(f"{self.prefix}_ret:\ns_setpc_b64 s[98:99]")

def down_items(order=0):
    F_ = lambda b, s_, ks: [('F', b, s_, k) for k in ks]
    H_ = lambda s_, ks: [('H', (s_, k), (s_, k+1)) for k in ks]
    it = F_(0,0,range(6)) + F_(1,0,range(6)) + H_(0,(0,2,4)) + F_(2,0,range(6)) + F_(3,0,range(6))
    for b in range(4): it += F_(b,0,range(6,9))
    it += H_(0,(6,))
    if order == 0:
        it += F_(0,1,range(6)) + F_(1,1,range(6)) + F_(0,1,range(6,9)) + F_(1,1,range(6,9))
    elif order == 1:
        it += F_(0,1,range(9)) + F_(1,1,range(9))
    if order == 2:
        it += F_(0,1,range(6)) + F_(1,1,range(6)) + F_(2,1,range(6)) + F_(0,1,range(6,9)) + F_(1,1,range(6,9)) + F_(2,1,range(6,9))
    else:
        it += F_(2,1,range(9))
    it += F_(3,1,range(9)) + H_(1,(0,2,4,6)) + [('H', (0,8), (1,8))]
    if order == 3:
        it = F_(0,0,range(6)) + F_(1,0,range(6)) + H_(0,(0,2,4)) + F_(0,1,range(6)) + F_(0,0,range(6,9)) + F_(2,0,range(6)) + F_(1,0,range(6,9)) + F_(1,1,range(3))
        it += F_(0,1,range(6,9)) + F_(1,1,range(3,9)) + F_(2,0,range(6,9)) + F_(2,1,range(9)) + F_(3,0,range(9)) + F_(3,1,range(9))
        it += H_(0,(6,)) + H_(1,(0,2,4,6)) + [('H', (0,8), (1,8))]
    if order == 4:
        it = F_(0,0,range(6)) + F_(1,0,range(6)) + H_(0,(0,2,4)) + F_(0,1,range(6)) + F_(0,0,range(6,9)) + F_(1,1,range(6)) + F_(1,0,range(6,9)) + H_(0,(6,)) + H_(1,(0,2))
        it += F_(0,1,range(6,9)) + H_(1,(4,6)) + [('H', (0,8), (1,8))] + F_(1,1,range(6,9)) + F_(2,0,range(9)) + F_(2,1,range(9)) + F_(3,0,range(9)) + F_(3,1,range(9))
    assert len(it) == 81
    return it

def base_ops(dst, T, npair, ntile):
    ops = []
    for p in range(npair):
        ops.append(f"v_add_u32 v{dst+ntile*p}, {2*SLOT*p}, v{T}")
        for t in range(1, ntile):
            ops.append(f"v_xor_b32 v{dst+ntile*p+t}, {32*t}, v{dst+ntile*p}")
    return ops

def dma_ops(st, DI):
    slot = (st % NSLOT)*SLOT
    ops = []
    if st < 27:
        if st < 24:
            base, vv, rs = S_BF, VF, 8*9216
            imm0 = (st // 6)*128 + (st % 6)*96*9216
        else:
            base, vv, rs = S_BH, VH, 16*9216
            imm0 = (st - 24)*192*9216
        for j in range(6):
            sc = []
            if j % 4 == 0:
                sc = [f"s_add_u32 m0, s{S_M0F}, {slot + j*1024}", f"s_add_u32 s{S_SO}, s{base}, {imm0 + j*rs}"]
            o = f" offset:{(j%4)*1024}" if j % 4 else ""
            ops.append((sc, f"buffer_load_dwordx4 v{vv + j%4}, s[{S_W}:{S_W+3}], s{S_SO} offen{o} lds"))
    else:
        for j, it in enumerate(DI[6*(st-27):6*(st-27)+6]):
            if it[0] == 'F':
                _, b, src, k = it
                base, imm, vv = ((S_DF, S_PF)[src], 32*k*1152 + b*128, VD) if k < 8 else ((S_OH, S_PH)[src], b*128, VD)
            else:
                src, k = it[1]
                base, imm, vv = ((S_OFH, S_PFH)[src], 32*k*1152, VD2) if k < 8 else (S_88, 0, VD2)
            sc = [f"s_add_u32 m0, s{S_M0D}, {slot + j*4096}", f"s_add_u32 s{S_SO}, s{base}, {imm}"]
            ops.append((sc, f"buffer_load_dwordx4 v{vv}, s[{S_D}:{S_D+3}], s{S_SO} offen lds"))
    return ops

def ffn_prefill(a, stages):
    for st in stages:
        for sc, ins in dma_ops(st, None):
            for s_ in sc: a(s_)
            a(ins)

def ffn_setup(a, T, srds=True):
    L, T0, T1, T2, T3 = LANE, T, T+1, T+2, T+3
    RS = 8*9216 - 1024; RH = 16*9216 - 1024
    a(f"""
    s_and_b32 s4, s2, 7
    s_and_b32 s6, s{S_GI}, 1
    s_mul_i32 s7, s4, 576
    s_mul_i32 s8, s6, 320
    s_add_u32 s8, s8, s7
    s_lshl_b32 s9, s6, 5
    s_add_u32 s9, s9, s7
    s_add_u32 s9, s9, 256
    s_lshl_b32 s{S_BF}, s8, 1
    s_lshl_b32 s{S_BH}, s9, 1
    s_lshl_b32 s10, s{S_MT}, 2
    s_add_u32 s10, s10, s{S_WAVE}
    s_mul_i32 s{S_HO}, s10, 36864
    s_mul_i32 s{S_M0F}, s{S_WAVE}, 6144
    s_lshl_b32 s{S_M0D}, s{S_WAVE}, 10
    s_mov_b32 s{S_KT}, {f2u(-KT):#x}
    s_and_b32 s4, s{S_WAVE}, 1
    s_mul_i32 s5, s4, {48*9216}
    s_mul_i32 s6, s4, {96*9216}
    s_mul_i32 s7, s{S_WAVE}, {8*1152}
    v_lshlrev_b32 v{VL16}, 4, v{L}
    v_lshrrev_b32 v{T0}, 3, v{L}
    v_bfe_u32 v{T1}, v{L}, 4, 1
    v_lshlrev_b32 v{T1}, 1, v{T1}
    v_and_b32 v{T2}, 7, v{L}
    v_xor_b32 v{T1}, v{T1}, v{T2}
    v_lshlrev_b32 v{T1}, 4, v{T1}
    v_mul_u32_u24 v{T3}, 9216, v{T0}
    v_add_u32 v{T3}, s5, v{T3}
    v_add_u32 v{VF}, v{T3}, v{T1}
    v_xor_b32 v{T1}, 64, v{T1}
    v_add_u32 v{VF+1}, v{T3}, v{T1}
    v_add_u32 v{VF+2}, {2*RS}, v{VF}
    v_add_u32 v{VF+3}, {3*RS}, v{VF+1}
    v_add_u32 v{VF+1}, {RS}, v{VF+1}
    """)
    if srds:
        a(f"""
        s_cmp_ge_u32 s{S_WAVE}, 2
        s_cselect_b32 s{S_W}, s{P_WU}, s{P_WG}
        s_cselect_b32 s{S_W+1}, s{P_WU+1}, s{P_WG+1}
        s_mov_b32 s{S_W+2}, {D*DF*2:#x}
        s_mov_b32 s{S_W+3}, 0x20000
        """)
        srd(a, S_D, P_WD, D*DF*2)
    a(f"""
    v_lshrrev_b32 v{T0}, 2, v{L}
    v_mul_u32_u24 v{T3}, 9216, v{T0}
    v_add_u32 v{T3}, s6, v{T3}
    v_and_b32 v{T0}, 3, v{L}
    v_lshrrev_b32 v{T1}, 5, v{L}
    v_lshlrev_b32 v{T1}, 1, v{T1}
    v_xor_b32 v{T0}, v{T0}, v{T1}
    v_lshl_add_u32 v{VH}, v{T0}, 4, v{T3}
    v_add_u32 v{VH+1}, {RH}, v{VH}
    v_add_u32 v{VH+2}, {2*RH}, v{VH}
    v_add_u32 v{VH+3}, {3*RH}, v{VH}
    v_lshrrev_b32 v{T0}, 3, v{L}
    v_mul_u32_u24 v{T1}, 1152, v{T0}
    v_add_u32 v{T1}, s7, v{T1}
    v_and_b32 v{T0}, 6, v{T0}
    v_and_b32 v{T2}, 7, v{L}
    v_xor_b32 v{T0}, v{T0}, v{T2}
    v_lshl_add_u32 v{VD}, v{T0}, 4, v{T1}
    v_lshrrev_b32 v{T2}, 4, v{L}
    v_bfe_u32 v{T0}, v{L}, 2, 2
    v_and_b32 v{T3}, 3, v{L}
    v_lshlrev_b32 v{T3}, 3, v{T3}
    v_lshl_add_u32 v{T1}, v{T2}, 3, v{T0}
    v_lshl_add_u32 v{TF}, v{T1}, 7, v{T3}
    v_lshl_add_u32 v{TH}, v{T1}, 6, v{T3}
    v_lshl_add_u32 v{T1}, v{T2}, 2, v{T0}
    v_lshl_add_u32 v{TD}, v{T1}, 7, v{T3}
    v_bfe_u32 v{T1}, v{T1}, 1, 2
    v_lshl_add_u32 v{TD}, v{T1}, 5, v{TD}
    v_and_b32 v{T2}, 1, v{T2}
    v_lshl_add_u32 v{TH}, v{T2}, 5, v{TH}
    v_lshrrev_b32 v{T0}, 1, v{T0}
    v_lshl_add_u32 v{T0}, v{T2}, 1, v{T0}
    v_lshl_add_u32 v{TF}, v{T0}, 5, v{TF}
    """)
    for o in base_ops(RBF, TF, 3, 4) + base_ops(RBH, TH, 2, 2): a(o)
    a(f"""
    v_lshrrev_b32 v{T0}, 4, v{L}
    v_bfe_u32 v{T1}, v{L}, 2, 2
    v_lshl_add_u32 v{T1}, v{T0}, 2, v{T1}
    v_and_b32 v{T2}, 3, v{L}
    v_lshlrev_b32 v{T3}, 3, v{T2}
    v_lshl_add_u32 v{TD2}, v{T1}, 6, v{T3}
    v_and_b32 v{T0}, 1, v{T0}
    v_lshl_add_u32 v{TD2}, v{T0}, 5, v{TD2}
    v_lshlrev_b32 v{T0}, 1, v{T0}
    v_xor_b32 v{T2}, v{T2}, v{T0}
    v_lshrrev_b32 v{T1}, 2, v{L}
    s_lshl_b32 s4, s{S_WAVE}, 4
    v_add_u32 v{T1}, s4, v{T1}
    v_mul_u32_u24 v{T1}, 1152, v{T1}
    v_lshl_add_u32 v{VD2}, v{T2}, 4, v{T1}
    """)
    a(f"""
    s_mul_i32 s4, s{S_MT}, 36
    s_and_b32 s5, s{S_WAVE}, 1
    s_mul_i32 s5, s5, 18
    s_add_u32 s4, s4, s5
    v_min_u32 v{VPF}, {PFN-1}, v{L}
    v_add_u32 v{VPF}, s4, v{VPF}
    v_mul_u32_u24 v{VPF}, 9216, v{VPF}
    """)

def ffn_setup2(a, T):
    a(f"""
    s_lshl_b32 s4, s{S_MT}, 2
    s_add_u32 s4, s4, s{S_WAVE}
    s_mul_i32 s4, s4, 41
    v_min_u32 v{VPD}, {PFD-1}, v{LANE}
    v_add_u32 v{VPD}, s4, v{VPD}
    v_lshlrev_b32 v{VPD}, 7, v{VPD}
    s_mul_i32 s{S_PD}, s{S_GI}, {288*1152}
    s_lshl_b32 s4, s{S_WAVE}, 4
    v_and_b32 v{VPC}, 15, v{LANE}
    v_add_u32 v{VPC}, s4, v{VPC}
    v_lshlrev_b32 v{VPC}, 7, v{VPC}
    """)
    a(f"""
    s_and_b32 s9, s{S_GI}, 1
    s_lshr_b32 s10, s{S_GI}, 1
    s_mul_i32 s11, s10, {576*1152}
    s_mul_i32 s3, s9, 640
    s_add_u32 s3, s3, s11
    s_mul_i32 s4, s9, {320*1152}
    s_add_u32 s{S_DF}, s3, s4
    s_sub_u32 s4, {320*1152}, s4
    s_add_u32 s{S_PF}, s3, s4
    s_mul_i32 s4, s9, {32*1152}
    s_add_u32 s3, s3, {256*1152}
    s_add_u32 s{S_OH}, s3, s4
    s_sub_u32 s4, {32*1152}, s4
    s_add_u32 s{S_PH}, s3, s4
    s_mul_i32 s3, s9, 576
    s_sub_u32 s3, 512, s3
    s_add_u32 s{S_OFH}, s{S_DF}, s3
    s_add_u32 s{S_PFH}, s{S_PF}, s3
    s_sub_u32 s4, s{S_PH}, {32*1152}
    s_cmp_ge_u32 s{S_WAVE}, 2
    s_cselect_b32 s4, s4, s{S_OH}
    s_add_u32 s{S_88}, s4, s3
    s_lshl_b32 s10, s10, 6
    s_lshl_b32 s3, s{S_MT}, 2
    s_add_u32 s10, s10, s3
    s_add_u32 s10, s10, s{S_WAVE}
    s_mul_i32 s10, s10, 36864
    s_mul_i32 s3, s9, {10*2048}
    s_add_u32 s{S_PO}, s10, s3
    s_lshl_b32 s3, s9, 11
    s_add_u32 s3, s3, {8*2048}
    s_add_u32 s{S_POH}, s10, s3
    s_lshl_b32 s3, s2, 2
    s_add_u32 s3, s3, s{S_WAVE}
    s_xor_b32 s9, s3, 32
    s_mul_i32 s{S_XO}, s3, 18432
    s_mul_i32 s{S_XP}, s9, 18432
    s_lshl_b32 s3, s3, 8
    s_add_u32 s{S_FO}, s3, {FE}
    s_lshl_b32 s9, s9, 8
    s_add_u32 s{S_FP}, s9, {FE}
    """)

    srd(a, S_H, P_WS, NB_SD, WS_H2)
    srd(a, S_P, P_WS, NB_P, WS_P)

def default_pf(c3=(5,), h=(11,), d=(9,), c2=(0,)):
    PF = {}
    for w, xs in ((2, c2), (3, c3), (4, h), ('D', d)):
        for pc, x in enumerate(xs): PF.setdefault(x, []).append((w, pc))
    return PF

def ffn_main(a, hops=None, R=16, DBAR=16, RD_MARGIN=6, MINLEAD=5, store_flags=' sc1', order=0, ASK3=None, FLAG_D=56, ASK_D=56, ASK1=40, ASK2=290, NPRO=2, verbose=False,
             DEBT=2.0, WM=8, GSPAN=44, HSPAN=30, stamper=None, NP2=6, BG=1, BG0=5, CPF=0, CPD=4, stagestamp=False, nobar=False, nodma=False, nogelu=False, nostore=False, PF=None, GDL=None, PPACE=10, HPACE=None):
    if PF is None: PF = default_pf()
    DI = down_items(order)
    NST = 27 + (len(DI) + 5)//6
    vm = []
    def vm_wait_n(tag):
        idx = [i for i, t in enumerate(vm) if t == tag]
        if not idx: return None
        n = len(vm) - 1 - max(idx)
        assert n <= 63
        return n
    def h2_ops(q):
        ops = []
        for mt in range(2):
            for n, ks in enumerate(range(3*q, 3*q+3)):
                sc = [f"s_add_u32 s{S_HS}, s{S_HO}, {mt*18432 + 3*q*1024}"] if n == 0 else []
                o = f" offset:{n*1024}" if n else ""
                r = H2 + 8*ks + 4*mt
                ops.append((sc, f"buffer_load_dwordx4 a[{r}:{r+3}], v{VL16}, s[{S_H}:{S_H+3}], s{S_HS} offen{o} sc1"))
        return ops
    dq = []
    for q in range(6):
        ops = h2_ops(q)
        if q >= NP2: ops = dma_ops(q, DI) + ops
        if q < NPRO:
            for sc, ins in ops:
                for s_ in sc: a(s_)
                a(ins); vm.append(('D', q))
        else:
            dq += [[q, list(sc), ins] for sc, ins in ops]

    F = []; M = []
    def tile(base, idx): return base + 4*idx
    for st in range(NST):
        if st < 27:
            full = st < 24
            nks = 3 if full else 6
            nft = 4 if full else 2
            c = st // 6 if full else 4
            k0 = 3*(st % 6) if full else 6*(st - 24)
            rowb = 128 if full else 64
            for kb in range(0, nks, 3):
                for ft in range(nft):
                    for mat in range(2):
                        f0 = len(F)
                        for x in range(3):
                            imm = mat*12288 + (kb + x)*32*rowb
                            F.append(dict(st=st, rb=ft, imm=(imm, imm + 4*rowb)))
                        for mt in range(2):
                            for x in range(3):
                                ks = k0 + kb + x
                                t = (ft*2 + mat)*2 + mt
                                last = ks == 17
                                Dd = tile(STG if (last and full) else ACC, t)
                                M.append(dict(st=st, f=f0+x, B=f"a[{H2+8*ks+4*mt}:{H2+8*ks+4*mt+3}]",
                                              C=None if ks == 0 else tile(ACC, t), D=Dd,
                                              done=('G', c, ft, mt) if (last and mat == 1) else None))
        else:
            items = DI[6*(st-27):6*(st-27)+6]
            def bop(src, k, mt):
                if src == 0: return dict(B=f"v[{HH+8*k+4*mt}:{HH+8*k+4*mt+3}]", hh=(k, mt))
                return dict(B=f"a[{8*k+4*mt}:{8*k+4*mt+3}]", vmneed=('P', k, mt))
            j = 0
            while j < len(items):
                n = 1
                if items[j][0] == 'F':
                    b = items[j][1]
                    while n < 3 and j + n < len(items) and items[j+n][:2] == ('F', b): n += 1
                    steps = [(it[2], it[3], (j+x)*4096, 2048) for x, it in enumerate(items[j:j+n])]
                    nct, kind = 4, 'F'
                    tl = lambda ct, mt: tile(OBUF[b], mt*4 + ct)
                else:
                    b = 4
                    steps = [(sk[0], sk[1], j*4096 + x*2048, 1024) for x, sk in enumerate(items[j][1:])]
                    nct, kind = 2, 'H'
                    tl = lambda ct, mt: HBUF[mt] + 4*ct
                for ct in range(nct):
                    f0 = len(F)
                    for (src, k, imm, du) in steps:
                        F.append(dict(st=st, rb=ct, imm=(imm, imm + du), kind=kind))
                    for mt in range(2):
                        for x, (src, k, imm, du) in enumerate(steps):
                            first = (src, k) == (0, 0); last = (src, k) == (1, 8)
                            M.append(dict(st=st, f=f0+x, C=None if first else tl(ct, mt), D=tl(ct, mt),
                                          done=('O', b, ct, mt) if (last and (ct & 1)) else None, **bop(src, k, mt)))
                j += n
    N = len(M)
    assert N == 1944
    for i, m in enumerate(M): F[m['f']]['last'] = i
    for i, m in reversed(list(enumerate(M))): F[m['f']]['first'] = i
    st_end = {}
    for i, m in enumerate(M): st_end[m['st']] = i + 1

    Q = []
    def add(ins, w, regs, hh=None, ready=0, vmt=None, sc=False):
        Q.append(dict(ins=ins, w=w, regs=regs, hh=hh, ready=ready, vm=vmt, sc=sc))
    def gelu_items(c, ft, mt, ready):
        base = STG if c < 4 else ACC
        G, U = tile(base, (ft*2)*2 + mt), tile(base, (ft*2+1)*2 + mt)
        k = (2*c + (ft >> 1)) if c < 4 else 8
        d = HH + 8*k + 4*mt + 2*(ft & 1)
        E = range(4)
        seq = []
        seq += [(f"v_fma_f32 v{TMP+e}, -v{G+e}, v{G+e}, s{S_KT}", 1) for e in E]
        seq += [(f"v_mul_f32 v{TMP+e}, v{G+e}, v{TMP+e}", 1) for e in E]
        seq += [(f"v_exp_f32 v{TMP+e}, v{TMP+e}", 2) for e in E]
        seq += [(f"v_mul_f32 v{U+e}, v{G+e}, v{U+e}", 1) for e in E]
        seq += [(f"v_add_f32 v{TMP+e}, 1.0, v{TMP+e}", 1) for e in E]
        seq += [(f"v_rcp_f32 v{TMP+e}, v{TMP+e}", 2) for e in E]
        seq += [(f"v_mul_f32 v{U+e}, v{U+e}, v{TMP+e}", 1) for e in E]
        seq += [(f"v_cvt_pk_bf16_f32 v{d+i}, v{U+2*i}, v{U+2*i+1}", 1) for i in range(2)]
        for n, (ins, w) in enumerate(seq):
            add(ins, w, (G, U), hh=(k, mt) if n >= len(seq)-2 else None, ready=ready)
        if ft & 1:
            x = 2*k + mt
            if x % 4 == 0: add(f"s_add_u32 s{S_XS}, s{S_XO}, {x*1024}", 0, ('x',), sc=True)
            o = f" offset:{(x%4)*1024}" if x % 4 else ""
            add(f"buffer_store_dwordx4 v[{HH+4*x}:{HH+4*x+3}], v{VL16}, s[{S_X}:{S_X+3}], s{S_XS} offen{o} sc1", 2, ('x',), vmt=('X', x))
    def out_items(b, ct, mt, ready):
        t0 = tile(OBUF[b], mt*4 + ct - 1) if b < 4 else HBUF[mt]
        regs = (t0, t0+4)
        for x in range(4):
            add(f"v_cvt_pk_bf16_f32 v{t0+x}, v{t0+2*x}, v{t0+2*x+1}", 1, regs, ready=ready)
        ip = ct >> 1
        if ct == 1 and mt == 0:
            add(f"s_add_u32 s{S_SS}, s{S_PO}, {b*4096}" if b < 4 else f"s_mov_b32 s{S_SS}, s{S_POH}", 0, regs, ready=ready, sc=True)
        o = f" offset:{(2*ip+mt)*1024}" if (2*ip+mt) else ""
        add(f"buffer_store_dwordx4 v[{t0}:{t0+3}], v{VL16}, s[{S_P}:{S_P+3}], s{S_SS} offen{o}{store_flags}", 2, regs, ready=ready, vmt=('S', b, ct, mt))

    cnt = [0]; cur = [0]; acts = []; vm_done = [-1]; slow = []
    def vm_wait(tag, extra=''):
        idx = max(i for i, t in enumerate(vm) if t == tag)
        if idx <= vm_done[0] and not extra: return False
        n = len(vm) - 1 - idx
        assert n <= 63
        E_(f"s_waitcnt vmcnt({n}){extra}")
        vm_done[0] = max(vm_done[0], idx)
        return True
    def E_(ins):
        cnt[0] += 1
        if nodma and ins.startswith('buffer_load') and 'lds' in ins: ins = 's_nop 0'
        if nostore and ins.startswith('buffer_store_dwordx4'): ins = 's_nop 0'
        if nogelu and ins.split()[0] in ('v_fma_f32', 'v_mul_f32', 'v_exp_f32', 'v_rcp_f32', 'v_add_f32'): return
        a(ins)
        if hops: hops.add(ins)
    def emit_q():
        it = Q[0]
        if cnt[0] < it['ready']:
            n = it['ready'] - cnt[0]
            while n > 0:
                k = min(n, 16); E_(f"s_nop {k-1}"); cnt[0] += k-1; n -= k
        Q.pop(0); E_(it['ins'])
        if it['vm']:
            vm.append(it['vm'])
            if it['vm'] == ('X', 11): acts.append([cur[0] + FLAG_D, 'flag', 0, it['vm']])
            if it['vm'] == ('S', 1, 3, 1): acts.append([cur[0] + FLAG_D, 'flag', 2, it['vm']])
            if it['vm'] == ('X', 17): acts.append([cur[0] + FLAG_D, 'flag', 1, it['vm']])
        return it
    def needs(m, it):
        if m.get('hh') is not None and it['hh'] == m['hh']: return True
        if m['D'] in it['regs'] and m['D'] != m['C']: return True
        return False
    def deadline(i):
        worst = 0.0; cum = 0; dl_cache = {}
        for it in Q:
            cum += it['w']
            key = (it['regs'], it['hh'])
            if key not in dl_cache:
                dl = None
                for j in range(i+1, min(N, i+400)):
                    if needs(M[j], it): dl = j; break
                dl_cache[key] = dl
            dl = dl_cache[key]
            if GDL is not None and it['vm'] == ('X', 17): dl = st_end[26] + GDL
            if GDL is not None and it['vm'] == ('X', 15): dl = st_end[26] + GDL - 80
            if dl is not None:
                worst = max(worst, cum/max(1, dl - i - 1))
        if Q and worst == 0: worst = cum/max(1, min(N - i, 60))
        return worst

    lds = []; covered = [-1]; rd_next = [0]; rd_gap = {}; enabled = [0]
    def rbreg(fr):
        sl = fr['st'] % NSLOT
        if fr.get('kind') == 'H': return RB2[2*(sl >> 1) + fr['rb']], (sl & 1)*SLOT
        if 24 <= fr['st'] < 27: return RBH + 2*(sl >> 1) + fr['rb'], (sl & 1)*SLOT
        return RBF + 4*(sl >> 1) + fr['rb'], (sl & 1)*SLOT
    def can_read(i):
        j = rd_next[0] >> 1
        if j >= len(F) or F[j]['st'] > enabled[0]: return False
        return j < R or F[j-R]['last'] <= i
    def emit_read(i):
        j, p = rd_next[0] >> 1, rd_next[0] & 1
        f = FR + 4*(j % R) + 2*p
        assert not (F[j]['st'] >= 27 and any(it['regs'] == ('rb',) for it in Q))
        assert not (F[j].get('kind') == 'H' and any(it['regs'] == ('rb2',) for it in Q))
        r_, o_ = rbreg(F[j])
        E_(f"ds_read_b64_tr_b16 a[{f}:{f+1}], v{r_} offset:{F[j]['imm'][p] + o_}")
        lds.append(j); rd_next[0] += 1
        if p: rd_gap[j] = i
    def emit_wait(i_next, i):
        fj = M[i_next]['f']
        if covered[0] >= fj: return False
        while (rd_next[0] >> 1) <= fj:
            assert can_read(i), (i, fj)
            emit_read(i)
        tgt = fj
        for k in range(fj+1, min(fj+6, len(F))):
            if k in rd_gap and rd_gap[k] <= i - WM: tgt = k
            else: break
        n = sum(1 for j in lds if j > tgt)
        E_(f"s_waitcnt lgkmcnt({min(n, 15)})")
        covered[0] = tgt
        return True

    while can_read(-1) and len(lds) < 12: emit_read(-1)
    E_(f"s_waitcnt vmcnt({vm_wait_n(('D', 0))})")
    if stamper: stamper()
    if stagestamp: E_("s_memtime s[98:99]"); E_("s_waitcnt lgkmcnt(0)"); E_("v_writelane_b32 v253, s98, 63")
    E_("s_cmp_eq_u32 0, 1")
    emit_wait(0, -1)

    stats = dict(over=0, flush=0, late=0)
    pq = []; pnext = [0]
    freed = [-1]; gspan = [HSPAN]; gn = [len(dq)]
    cred_r = 0.0; cred_v = 0.0; cred_g = 0.0
    T0 = st_end[26]
    acts += [[T0 + ASK1, 'ask', 0], [T0 + ASK2, 'ask', 1]]
    if ASK3: acts.append([T0 + ASK3, 'ask3', 0])
    for i in range(N):
        m = M[i]; cur[0] = i
        flushed = False
        while any(needs(m, it) for it in Q):
            stats['flush'] += emit_q()['w']; flushed = True
        if flushed: E_("s_nop 1"); cnt[0] += 1
        f = FR + 4*(m['f'] % R)
        Cs = "0" if m['C'] is None else f"v[{m['C']}:{m['C']+3}]"
        E_(f"v_mfma_f32_16x16x32_bf16 v[{m['D']}:{m['D']+3}], a[{f}:{f+3}], {m['B']}, {Cs}")
        if m['done']:
            kind, x, y, mt = m['done']
            (gelu_items if kind == 'G' else out_items)(x, y, mt, cnt[0] + 9)
        st = m['st']
        used = 0; sc_used = 0
        if hops and hops.due(24):
            a(hops.emit()); cnt[0] += 1; sc_used = 1
        bar_gap = st_end[st] - DBAR - 1
        if i == bar_gap: a(f"L_st{st}:")
        if i == bar_gap and st < NST - 1 and st == enabled[0]:
            nxt_en = min(st + (BG if st >= BG0 else 1), NST - 1)
            while (rd_next[0] >> 1) < len(F) and F[rd_next[0] >> 1]['st'] <= st:
                emit_read(i); used += 1
            while any(d[0] <= nxt_en for d in dq):
                d = dq.pop(0)
                for x in d[1]: E_(x)
                E_(d[2]); vm.append(d[3] if len(d) > 3 else ('D', d[0])); used += 2; stats['late'] += 1
            tg = [('D', x) for x in range(nxt_en, st, -1) if ('D', x) in vm]
            if tg: vm_wait(max(tg, key=lambda t: max(i_ for i_, u in enumerate(vm) if u == t)), ' lgkmcnt(0)')
            else: E_("s_waitcnt lgkmcnt(0)")
            if stagestamp == 1:
                E_("s_memtime s[98:99]"); E_("s_waitcnt lgkmcnt(0)"); E_(f"v_writelane_b32 v253, s98, {st}")
            if stagestamp == 3 and st in (5, 23, 33):
                ix = {5: 24, 23: 25, 33: 26}[st]
                E_("s_memtime s[98:99]"); E_("s_waitcnt lgkmcnt(0)"); E_(f"v_writelane_b32 v253, s98, {ix}")
                E_("s_memrealtime s[98:99]"); E_("s_waitcnt lgkmcnt(0)"); E_(f"v_writelane_b32 v255, s98, {ix}")
            if not nobar: E_("s_barrier")
            sc_used = 2
            covered[0] = (rd_next[0] >> 1) - 1
            enabled[0] = nxt_en
            for x in range(freed[0] + 1, st + 1):
                if CPF and x % CPF == 0 and x + CPD < NST - 1:
                    pq.append([98, [f"s_mov_b32 s{S_PS}, L_st{x+CPD}-L_common"], f"buffer_load_dword v239, v{VPC}, s[52:55], s{S_PS} offen", ('pf', 0)])
                for w, pc in PF.get(x, ()):
                    if w == 'D': pq.append([98, [f"s_add_u32 s{S_PS}, s{S_PD}, {pc*PFD*128}"], f"buffer_load_dword v239, v{VPD}, s[{S_D}:{S_D+3}], s{S_PS} offen", ('pf', 0)])
                    else:
                        sc_ = f"s_add_u32 s{S_PS}, s{S_BF if w < 4 else S_BH}, {(128*w if w < 4 else 0) + pc*PFN*9216}"
                        pq.append([98, [sc_], f"buffer_load_dword v239, v{VPF}, s[{S_W}:{S_W+3}], s{S_PS} offen", ('pf', 0)])
                if x + NSLOT < NST:
                    dq += [[x+NSLOT, list(sc), ins] for sc, ins in dma_ops(x+NSLOT, DI)]
                if x == 23:
                    Q[0:0] = [dict(ins=o, w=1, regs=('rb',), hh=None, ready=0, vm=None, sc=False) for o in base_ops(RBF, TD, 3, 4)]
                if x == 26:
                    ops2 = []
                    for p in range(3):
                        ops2 += [f"v_add_u32 v{RB2[2*p]}, {2*SLOT*p}, v{TD2}", f"v_xor_b32 v{RB2[2*p+1]}, 32, v{RB2[2*p]}"]
                    Q[0:0] = [dict(ins=o, w=1, regs=('rb2',), hh=None, ready=0, vm=None, sc=False) for o in ops2]
            gspan[0] = GSPAN*(st - freed[0]); gn[0] = len(dq)
            freed[0] = st
        if i + 1 < N and emit_wait(i + 1, i): sc_used += 1
        if i + 1 < N and M[i+1].get('vmneed'):
            while any(d[3] == M[i+1]['vmneed'] for d in pq):
                d = pq.pop(0)
                for x in d[1]: E_(x)
                E_(d[2]); vm.append(d[3] if len(d) > 3 else ('D', d[0])); used += 2; stats['late'] += 1
            if vm_wait(M[i+1]['vmneed']): sc_used += 1
        due = [x for x in acts if x[0] <= i]
        if due and not sc_used and not used:
            act = due[0]; acts.remove(act)
            if act[1] == 'flag':
                vm_wait(act[3])
                E_(f"buffer_store_dword v{VTAG}, off, s[{S_FL}:{S_FL+3}], s{S_FO if act[2] < 2 else S_FD}" + (" offset:128" if act[2] == 1 else "") + " sc1")
                vm.append(('F', act[2])); stats[f'flag{act[2]}'] = i - T0
            elif act[1] == 'ask3':
                E_(f"s_mov_b32 s{S_PS}, {FD1}")
                E_(f"buffer_load_dword v239, v{VEF}, s[{S_FL}:{S_FL+3}], s{S_PS} offen sc1")
                vm.append(('A', 3))
            elif act[1] == 'ask':
                E_(f"buffer_load_dword v{VCHK}, off, s[{S_FL}:{S_FL+3}], s{S_FP}" + (" offset:128" if act[2] else "") + " sc1")
                vm.append(('A', act[2])); acts.append([i + ASK_D, 'test', act[2]])
            else:
                vm_wait(('A', act[2]))
                E_(f"v_cmp_ne_u32 vcc, s{S_TAG}, v{VCHK}")
                E_(f"s_cbranch_vccnz L_xslow{act[2]}")
                a(f"L_xok{act[2]}:")
                new = []
                for x in (range(12) if act[2] == 0 else range(12, 18)):
                    sc_ = [f"s_add_u32 s{S_HS}, s{S_XP}, {x*1024}"] if x % 4 == 0 else []
                    o = f" offset:{(x%4)*1024}" if x % 4 else ""
                    new.append([99, sc_, f"buffer_load_dwordx4 a[{4*x}:{4*x+3}], v{VL16}, s[{S_X}:{S_X+3}], s{S_HS} offen{o} sc1", ('P', x >> 1, x & 1)])
                pq.extend(new)
            sc_used = 1; used = 2
        if not sc_used and hops and hops.due(48):
            a(hops.emit()); cnt[0] += 1; sc_used = 1
        if not sc_used and dq and dq[0][1]:
            E_(dq[0][1].pop(0)); sc_used = 1
        if not sc_used and pq and pq[0][1]:
            E_(pq[0][1].pop(0)); sc_used = 1
        if not sc_used and Q and Q[0]['sc'] and cnt[0] >= Q[0]['ready']:
            emit_q(); sc_used = 1
        jn = rd_next[0] >> 1
        lead = (F[jn]['first'] - i) if jn < len(F) else 999
        es = enabled[0]
        rem_r = sum(2 for fr in F[jn:jn+70] if fr['st'] <= es) - (rd_next[0] & 1) if jn < len(F) and F[jn]['st'] <= es else 0
        dl_r = (st_end[es] - DBAR - 1 - RD_MARGIN) if es < NST - 1 else st_end[es] - 10
        cred_r = min(cred_r + rem_r/max(1, dl_r - i), 2.5)
        cred_v += deadline(i)
        npend = len(dq)
        if npend:
            cred_g = min(cred_g + (gn[0]/gspan[0] if st >= 4 else (1/HPACE if HPACE else max(6, npend)/HSPAN)), 1.5)
        want_g = dq and not dq[0][1] and cred_g >= 1 and lead >= 2*MINLEAD
        if want_g and used == 0 and not sc_used:
            d = dq.pop(0)
            E_(d[2]); vm.append(d[3] if len(d) > 3 else ('D', d[0])); cred_g -= 1; used = 2
        if pq and not pq[0][1] and used == 0 and not sc_used and i >= pnext[0] and lead >= 2*MINLEAD:
            d = pq.pop(0)
            E_(d[2]); vm.append(d[3]); used = 2; pnext[0] = i + PPACE
        nd = 0
        if used < 2 and can_read(i):
            head2 = Q and Q[0]['w'] == 2 and cnt[0] >= Q[0]['ready']
            if lead < 2*MINLEAD or cred_r >= 2: nd = 2
            elif cred_r >= 1: nd = 2 if (head2 or want_g) else 1
            elif not Q: nd = 1
            while nd and used < 2 and can_read(i):
                emit_read(i); used += 1; nd -= 1; cred_r -= 1
        while Q and cnt[0] >= Q[0]['ready'] and not Q[0]['sc']:
            w = Q[0]['w']
            if used + w <= 2: pass
            elif cred_v >= DEBT + w and used + w <= 4 and used <= 2: stats['over'] += used + w - 2
            else: break
            emit_q(); used += w; cred_v -= w
        if not Q: cred_v = 0
    while Q: emit_q()
    if stagestamp: E_("s_memtime s[98:99]"); E_("s_waitcnt lgkmcnt(0)"); E_("v_writelane_b32 v253, s98, 62")
    assert not acts and not dq and not pq
    if ASK3: vm_wait(('A', 3))
    if verbose: print('ffn schedule:', stats, 'instr', cnt[0], 'hops', hops.n if hops else 0)

def ffn_slow_paths(a, spin_max, diag=False):
    for p in range(2):
        a(f"""
        L_xslow{p}:
        s_mov_b32 s{S_SPIN}, 0
        L_xspin{p}:
        buffer_load_dword v{VCHK}, off, s[{S_FL}:{S_FL+3}], s{S_FP}{' offset:128' if p else ''} sc1
        s_add_u32 s{S_SPIN}, s{S_SPIN}, 1
        s_waitcnt vmcnt(0)
        {f'v_writelane_b32 v255, s{S_SPIN}, {28+p}' if diag else ''}
        v_cmp_ne_u32 vcc, s{S_TAG}, v{VCHK}
        s_cbranch_vccz L_xok{p}
        s_cmp_lt_u32 s{S_SPIN}, {spin_max}
        s_cbranch_scc1 L_xspin{p}
        s_branch L_xok{p}
        """)
```

```python
from fused import *
import ffn
B = dict(order=1, GDL=70, FLAG_D=48, ASK2=260, PPACE=6, HPACE=4, ASK_D=48, CPF=6, CPD=2, BG=2, GSPAN=30, NCH=3, PL=(2,0,0,3), waitA=False)
V = dict(
 a=dict(),
 b=dict(order=5, GDL=40, FLAG_D=40, ASK1=-50, ASK2=190, ASK_D=40, PPACE=4),
 c=dict(order=5, GDL=40, FLAG_D=40, ASK1=-50, ASK2=215, ASK_D=40, PPACE=4),
 d=dict(order=6, GDL=40, FLAG_D=40, ASK1=-20, ASK2=230, ASK_D=40, PPACE=5),
 e=dict(order=6, GDL=70, FLAG_D=48, ASK1=-20, ASK2=240, ASK_D=40, PPACE=5),
)
for k, kw in V.items():
    open(f'gd_{k}.s','w').write(G(diag=True, verbose=True, stagestamp=3, **{**B, **kw}).build())
    open(f'g_{k}.s','w').write(G(**{**B, **kw}).build())
```

```python
from common import *
import math, struct
SLOT = 24576
NSLOT = 6
RING = NSLOT*SLOT
_c1 = 2*math.sqrt(2/math.pi)*math.log2(math.e); _c2 = _c1*0.044715
ALPHA = _c2**(1/3)
KT = _c1/ALPHA
def f2u(x): return struct.unpack('<I', struct.pack('<f', x))[0]

P_Q, P_K, P_V, P_SK, P_SSMK, P_SSMD, P_WG, P_WU, P_WD, P_C, P_WMOD, P_OUT, P_WS = 64, 66, 68, 70, 72, 74, 78, 80, 82, 84, 86, 88, 92
S_TAG, S_WAVE, S_SPIN, S_ONE = 94, 95, 96, 97
S_MT, S_GI, S_OOB = 49, 50, 51
S_FL = 60
LANE = 254
ACC, STG, HH = 0, 64, 128
TMP = 200
RBH = 204
TF, TH, TD = 208, 209, 210
VF, VH, VD = 216, 220, 224
VL16 = 225
VPC = 214
VPF, VPD = 215, 238
RBF = 226
H2 = 0
FR = 144
X1A = 208
S_W, S_D, S_H, S_P = 12, 16, 20, 24
S_M0F, S_M0D = 29, 30
S_BF, S_BH, S_DF, S_DH = 31, 32, 33, 34
S_SO, S_PO, S_KT, S_HO, S_HS, S_SS, S_PD, S_PS = 35, 36, 37, 38, 39, 48, 40, 41
PFN, PFD = 42, 47
OBUF = [ACC+32, STG, STG+32, ACC]
HBUF = [216, 240]
RB2 = [204, 205, 206, 207, 212, 213]
VD2, TD2, VTAG, VCHK = 209, 208, 252, 211
S_X = 56
S_OH, S_PF, S_PH, S_OFH, S_PFH, S_88, S_POH, S_XO, S_XP, S_XS, S_FO, S_FP = 34, 42, 43, 44, 45, 46, 47, 76, 77, 28, 100, 101
WS_X = 0x2400000
NB_X = 256*4*18432
FE = 0x20000
FD1, FD2, FD3 = 0x60000, 0x80000, 0x100000
VEP, VEO, VEG, VEF = 248, 249, 250, 251
S_FD = 90

def isize(ins):
    op = ins.split()[0]
    if op.endswith(':'): return 0
    if op in ('s_waitcnt', 's_barrier', 's_nop', 's_cbranch_scc1', 's_branch'): return 4
    if op in ('v_mul_f32', 'v_add_f32', 'v_rcp_f32', 'v_exp_f32', 'v_lshlrev_b32', 'v_mov_b32', 'v_fmac_f32') and '0x' not in ins and '-' not in ins: return 4
    return 8

class Hops:
    def __init__(self, prefix):
        self.prefix, self.n, self.bytes = prefix, 0, 1 << 20
    def add(self, ins): self.bytes += isize(ins)
    def due(self, margin=40): return self.bytes >= 128 - margin
    def emit(self):
        s = f"{self.prefix}_{self.n}:\ns_cbranch_scc1 @HOP@{self.prefix}@{self.n}@"
        self.n += 1; self.bytes = 4
        return s
    def resolve(self, a, ncall):
        nseg = 4*ncall
        self.start = [self.n*k//nseg for k in range(nseg+1)]
        ends = {self.start[k+1]-1 for k in range(nseg)}
        for i, l in enumerate(a.L):
            if f'@HOP@{self.prefix}@' in l:
                n = int(l.split('@')[3])
                tgt = f"{self.prefix}_ret" if n in ends else f"{self.prefix}_{n+1}"
                a.L[i] = f"s_cbranch_scc1 {tgt}"
            elif f'@CALL@{self.prefix}@' in l:
                c, w = int(l.split('@')[3]), int(l.split('@')[4])
                a.L[i] = f"s_cbranch_scc1 {self.prefix}_in{4*c+w}"
            elif l == f'@STUBS@{self.prefix}':
                a.L[i] = "\n".join(f"{self.prefix}_in{k}:\n  s_cmp_eq_u32 0, 0\n  s_branch {self.prefix}_{self.start[k]}" for k in range(nseg)) + "\n  s_nop 0"
    ncalls = 0
    def call(self, a, c):
        Hops.ncalls += 1
        x = f"{self.prefix}_c{Hops.ncalls}"
        a(f"s_getpc_b64 s[98:99]\n{x}a:\ns_add_u32 s98, s98, {x}b-{x}a\ns_addc_u32 s99, s99, 0")
        for w in range(4):
            a(f"s_cmp_eq_u32 s{S_WAVE}, {w}")
            a.L.append(f"@CALL@{self.prefix}@{c}@{w}@")
        a(f"{x}b:")
    def ret(self, a):
        a.L.append(f'@STUBS@{self.prefix}')
        a(f"{self.prefix}_ret:\ns_setpc_b64 s[98:99]")

def down_items(order=0):
    F_ = lambda b, s_, ks: [('F', b, s_, k) for k in ks]
    H_ = lambda s_, ks: [('H', (s_, k), (s_, k+1)) for k in ks]
    it = F_(0,0,range(6)) + F_(1,0,range(6)) + H_(0,(0,2,4)) + F_(2,0,range(6)) + F_(3,0,range(6))
    for b in range(4): it += F_(b,0,range(6,9))
    it += H_(0,(6,))
    if order == 0:
        it += F_(0,1,range(6)) + F_(1,1,range(6)) + F_(0,1,range(6,9)) + F_(1,1,range(6,9))
    elif order == 1:
        it += F_(0,1,range(9)) + F_(1,1,range(9))
    if order == 2:
        it += F_(0,1,range(6)) + F_(1,1,range(6)) + F_(2,1,range(6)) + F_(0,1,range(6,9)) + F_(1,1,range(6,9)) + F_(2,1,range(6,9))
    else:
        it += F_(2,1,range(9))
    it += F_(3,1,range(9)) + H_(1,(0,2,4,6)) + [('H', (0,8), (1,8))]
    if order == 3:
        it = F_(0,0,range(6)) + F_(1,0,range(6)) + H_(0,(0,2,4)) + F_(0,1,range(6)) + F_(0,0,range(6,9)) + F_(2,0,range(6)) + F_(1,0,range(6,9)) + F_(1,1,range(3))
        it += F_(0,1,range(6,9)) + F_(1,1,range(3,9)) + F_(2,0,range(6,9)) + F_(2,1,range(9)) + F_(3,0,range(9)) + F_(3,1,range(9))
        it += H_(0,(6,)) + H_(1,(0,2,4,6)) + [('H', (0,8), (1,8))]
    if order == 4:
        it = F_(0,0,range(6)) + F_(1,0,range(6)) + H_(0,(0,2,4)) + F_(0,1,range(6)) + F_(0,0,range(6,9)) + F_(1,1,range(6)) + F_(1,0,range(6,9)) + H_(0,(6,)) + H_(1,(0,2))
        it += F_(0,1,range(6,9)) + H_(1,(4,6)) + [('H', (0,8), (1,8))] + F_(1,1,range(6,9)) + F_(2,0,range(9)) + F_(2,1,range(9)) + F_(3,0,range(9)) + F_(3,1,range(9))
    if order == 5:
        it = F_(0,0,range(6)) + F_(1,0,range(6)) + H_(0,(0,2,4)) + F_(0,1,range(6)) + F_(0,0,range(6,9)) + F_(2,0,range(6)) + F_(1,0,range(6,9)) + F_(1,1,range(6))
        it += F_(0,1,range(6,9)) + F_(1,1,range(6,9)) + F_(2,0,range(6,9)) + F_(2,1,range(9)) + F_(3,0,range(9)) + F_(3,1,range(9))
        it += H_(0,(6,)) + H_(1,(0,2,4,6)) + [('H', (0,8), (1,8))]
    if order == 6:
        it = F_(0,0,range(6)) + F_(1,0,range(6)) + H_(0,(0,2,4)) + F_(2,0,range(6)) + F_(0,0,range(6,9)) + F_(0,1,range(6)) + F_(1,0,range(6,9)) + F_(1,1,range(6)) + F_(2,0,range(6,9))
        it += F_(0,1,range(6,9)) + F_(1,1,range(6,9)) + F_(2,1,range(9)) + H_(0,(6,)) + H_(1,(0,2,4,6)) + [('H', (0,8), (1,8))] + F_(3,0,range(9)) + F_(3,1,range(9))
    assert len(it) == 81
    return it

def base_ops(dst, T, npair, ntile):
    ops = []
    for p in range(npair):
        ops.append(f"v_add_u32 v{dst+ntile*p}, {2*SLOT*p}, v{T}")
        for t in range(1, ntile):
            ops.append(f"v_xor_b32 v{dst+ntile*p+t}, {32*t}, v{dst+ntile*p}")
    return ops

def dma_ops(st, DI):
    slot = (st % NSLOT)*SLOT
    ops = []
    if st < 27:
        if st < 24:
            base, vv, rs = S_BF, VF, 8*9216
            imm0 = (st // 6)*128 + (st % 6)*96*9216
        else:
            base, vv, rs = S_BH, VH, 16*9216
            imm0 = (st - 24)*192*9216
        for j in range(6):
            sc = []
            if j % 4 == 0:
                sc = [f"s_add_u32 m0, s{S_M0F}, {slot + j*1024}", f"s_add_u32 s{S_SO}, s{base}, {imm0 + j*rs}"]
            o = f" offset:{(j%4)*1024}" if j % 4 else ""
            ops.append((sc, f"buffer_load_dwordx4 v{vv + j%4}, s[{S_W}:{S_W+3}], s{S_SO} offen{o} lds"))
    else:
        for j, it in enumerate(DI[6*(st-27):6*(st-27)+6]):
            if it[0] == 'F':
                _, b, src, k = it
                base, imm, vv = ((S_DF, S_PF)[src], 32*k*1152 + b*128, VD) if k < 8 else ((S_OH, S_PH)[src], b*128, VD)
            else:
                src, k = it[1]
                base, imm, vv = ((S_OFH, S_PFH)[src], 32*k*1152, VD2) if k < 8 else (S_88, 0, VD2)
            sc = [f"s_add_u32 m0, s{S_M0D}, {slot + j*4096}", f"s_add_u32 s{S_SO}, s{base}, {imm}"]
            ops.append((sc, f"buffer_load_dwordx4 v{vv}, s[{S_D}:{S_D+3}], s{S_SO} offen lds"))
    return ops

def ffn_prefill(a, stages):
    for st in stages:
        for sc, ins in dma_ops(st, None):
            for s_ in sc: a(s_)
            a(ins)

PFWHO = ['early']
def ffn_setup(a, T, srds=True):
    L, T0, T1, T2, T3 = LANE, T, T+1, T+2, T+3
    RS = 8*9216 - 1024; RH = 16*9216 - 1024
    a(f"""
    s_and_b32 s4, s2, 7
    s_and_b32 s6, s{S_GI}, 1
    s_mul_i32 s7, s4, 576
    s_mul_i32 s8, s6, 320
    s_add_u32 s8, s8, s7
    s_lshl_b32 s9, s6, 5
    s_add_u32 s9, s9, s7
    s_add_u32 s9, s9, 256
    s_lshl_b32 s{S_BF}, s8, 1
    s_lshl_b32 s{S_BH}, s9, 1
    s_lshl_b32 s10, s{S_MT}, 2
    s_add_u32 s10, s10, s{S_WAVE}
    s_mul_i32 s{S_HO}, s10, 36864
    s_mul_i32 s{S_M0F}, s{S_WAVE}, 6144
    s_lshl_b32 s{S_M0D}, s{S_WAVE}, 10
    s_mov_b32 s{S_KT}, {f2u(-KT):#x}
    s_and_b32 s4, s{S_WAVE}, 1
    s_mul_i32 s5, s4, {48*9216}
    s_mul_i32 s6, s4, {96*9216}
    s_mul_i32 s7, s{S_WAVE}, {8*1152}
    v_lshlrev_b32 v{VL16}, 4, v{L}
    v_lshrrev_b32 v{T0}, 3, v{L}
    v_bfe_u32 v{T1}, v{L}, 4, 1
    v_lshlrev_b32 v{T1}, 1, v{T1}
    v_and_b32 v{T2}, 7, v{L}
    v_xor_b32 v{T1}, v{T1}, v{T2}
    v_lshlrev_b32 v{T1}, 4, v{T1}
    v_mul_u32_u24 v{T3}, 9216, v{T0}
    v_add_u32 v{T3}, s5, v{T3}
    v_add_u32 v{VF}, v{T3}, v{T1}
    v_xor_b32 v{T1}, 64, v{T1}
    v_add_u32 v{VF+1}, v{T3}, v{T1}
    v_add_u32 v{VF+2}, {2*RS}, v{VF}
    v_add_u32 v{VF+3}, {3*RS}, v{VF+1}
    v_add_u32 v{VF+1}, {RS}, v{VF+1}
    """)
    if srds:
        a(f"""
        s_cmp_ge_u32 s{S_WAVE}, 2
        s_cselect_b32 s{S_W}, s{P_WU}, s{P_WG}
        s_cselect_b32 s{S_W+1}, s{P_WU+1}, s{P_WG+1}
        s_mov_b32 s{S_W+2}, {D*DF*2:#x}
        s_mov_b32 s{S_W+3}, 0x20000
        """)
        srd(a, S_D, P_WD, D*DF*2)
    a(f"""
    v_lshrrev_b32 v{T0}, 2, v{L}
    v_mul_u32_u24 v{T3}, 9216, v{T0}
    v_add_u32 v{T3}, s6, v{T3}
    v_and_b32 v{T0}, 3, v{L}
    v_lshrrev_b32 v{T1}, 5, v{L}
    v_lshlrev_b32 v{T1}, 1, v{T1}
    v_xor_b32 v{T0}, v{T0}, v{T1}
    v_lshl_add_u32 v{VH}, v{T0}, 4, v{T3}
    v_add_u32 v{VH+1}, {RH}, v{VH}
    v_add_u32 v{VH+2}, {2*RH}, v{VH}
    v_add_u32 v{VH+3}, {3*RH}, v{VH}
    v_lshrrev_b32 v{T0}, 3, v{L}
    v_mul_u32_u24 v{T1}, 1152, v{T0}
    v_add_u32 v{T1}, s7, v{T1}
    v_and_b32 v{T0}, 6, v{T0}
    v_and_b32 v{T2}, 7, v{L}
    v_xor_b32 v{T0}, v{T0}, v{T2}
    v_lshl_add_u32 v{VD}, v{T0}, 4, v{T1}
    v_lshrrev_b32 v{T2}, 4, v{L}
    v_bfe_u32 v{T0}, v{L}, 2, 2
    v_and_b32 v{T3}, 3, v{L}
    v_lshlrev_b32 v{T3}, 3, v{T3}
    v_lshl_add_u32 v{T1}, v{T2}, 3, v{T0}
    v_lshl_add_u32 v{TF}, v{T1}, 7, v{T3}
    v_lshl_add_u32 v{TH}, v{T1}, 6, v{T3}
    v_lshl_add_u32 v{T1}, v{T2}, 2, v{T0}
    v_lshl_add_u32 v{TD}, v{T1}, 7, v{T3}
    v_bfe_u32 v{T1}, v{T1}, 1, 2
    v_lshl_add_u32 v{TD}, v{T1}, 5, v{TD}
    v_and_b32 v{T2}, 1, v{T2}
    v_lshl_add_u32 v{TH}, v{T2}, 5, v{TH}
    v_lshrrev_b32 v{T0}, 1, v{T0}
    v_lshl_add_u32 v{T0}, v{T2}, 1, v{T0}
    v_lshl_add_u32 v{TF}, v{T0}, 5, v{TF}
    """)
    for o in base_ops(RBF, TF, 3, 4) + base_ops(RBH, TH, 2, 2): a(o)
    a(f"""
    v_lshrrev_b32 v{T0}, 4, v{L}
    v_bfe_u32 v{T1}, v{L}, 2, 2
    v_lshl_add_u32 v{T1}, v{T0}, 2, v{T1}
    v_and_b32 v{T2}, 3, v{L}
    v_lshlrev_b32 v{T3}, 3, v{T2}
    v_lshl_add_u32 v{TD2}, v{T1}, 6, v{T3}
    v_and_b32 v{T0}, 1, v{T0}
    v_lshl_add_u32 v{TD2}, v{T0}, 5, v{TD2}
    v_lshlrev_b32 v{T0}, 1, v{T0}
    v_xor_b32 v{T2}, v{T2}, v{T0}
    v_lshrrev_b32 v{T1}, 2, v{L}
    s_lshl_b32 s4, s{S_WAVE}, 4
    v_add_u32 v{T1}, s4, v{T1}
    v_mul_u32_u24 v{T1}, 1152, v{T1}
    v_lshl_add_u32 v{VD2}, v{T2}, 4, v{T1}
    """)
    a(f"""
    {f's_mov_b32 s4, s{S_MT}' if PFWHO[0] == 'early' else f's_add_u32 s4, s{S_MT}, 9'}
    s_and_b32 s4, s4, 15
    s_mul_i32 s4, s4, {2*PFN}
    s_and_b32 s5, s{S_WAVE}, 1
    s_mul_i32 s5, s5, {PFN}
    s_add_u32 s4, s4, s5
    v_min_u32 v{VPF}, {PFN-1}, v{L}
    v_add_u32 v{VPF}, s4, v{VPF}
    v_mul_u32_u24 v{VPF}, 9216, v{VPF}
    """)

def ffn_setup2(a, T):
    a(f"""
    {f's_mov_b32 s5, s{S_MT}' if PFWHO[0] == 'early' else f's_add_u32 s5, s{S_MT}, 9'}
    s_and_b32 s5, s5, 15
    s_lshl_b32 s4, s5, 2
    s_add_u32 s4, s4, s{S_WAVE}
    s_mul_i32 s4, s4, {2*PFD}
    s_cmp_ge_u32 s5, 7
    s_cselect_b32 s4, 0x800000, s4
    v_min_u32 v{VPD}, {PFD-1}, v{LANE}
    v_add_u32 v{VPD}, s4, v{VPD}
    v_lshlrev_b32 v{VPD}, 7, v{VPD}
    s_mul_i32 s{S_PD}, s{S_GI}, {288*1152}
    """)
    a(f"""
    s_and_b32 s9, s{S_GI}, 1
    s_lshr_b32 s10, s{S_GI}, 1
    s_mul_i32 s11, s10, {576*1152}
    s_mul_i32 s3, s9, 640
    s_add_u32 s3, s3, s11
    s_mul_i32 s4, s9, {320*1152}
    s_add_u32 s{S_DF}, s3, s4
    s_sub_u32 s4, {320*1152}, s4
    s_add_u32 s{S_PF}, s3, s4
    s_mul_i32 s4, s9, {32*1152}
    s_add_u32 s3, s3, {256*1152}
    s_add_u32 s{S_OH}, s3, s4
    s_sub_u32 s4, {32*1152}, s4
    s_add_u32 s{S_PH}, s3, s4
    s_mul_i32 s3, s9, 576
    s_sub_u32 s3, 512, s3
    s_add_u32 s{S_OFH}, s{S_DF}, s3
    s_add_u32 s{S_PFH}, s{S_PF}, s3
    s_sub_u32 s4, s{S_PH}, {32*1152}
    s_cmp_ge_u32 s{S_WAVE}, 2
    s_cselect_b32 s4, s4, s{S_OH}
    s_add_u32 s{S_88}, s4, s3
    s_lshl_b32 s10, s10, 6
    s_lshl_b32 s3, s{S_MT}, 2
    s_add_u32 s10, s10, s3
    s_add_u32 s10, s10, s{S_WAVE}
    s_mul_i32 s10, s10, 36864
    s_mul_i32 s3, s9, {10*2048}
    s_add_u32 s{S_PO}, s10, s3
    s_lshl_b32 s3, s9, 11
    s_add_u32 s3, s3, {8*2048}
    s_add_u32 s{S_POH}, s10, s3
    s_lshl_b32 s3, s2, 2
    s_add_u32 s3, s3, s{S_WAVE}
    s_xor_b32 s9, s3, 32
    s_mul_i32 s{S_XO}, s3, 18432
    s_mul_i32 s{S_XP}, s9, 18432
    s_lshl_b32 s3, s3, 8
    s_add_u32 s{S_FO}, s3, {FE}
    s_lshl_b32 s9, s9, 8
    s_add_u32 s{S_FP}, s9, {FE}
    """)

    srd(a, S_H, P_WS, NB_SD, WS_H2)
    srd(a, S_P, P_WS, NB_P, WS_P)

def default_pf(c3=(5,), h=(11,), d=(8, 9), c2=()):
    PF = {}
    for w, xs in ((2, c2), (3, c3), (4, h), ('D', d)):
        for pc, x in enumerate(xs): PF.setdefault(x, []).append((w, pc))
    return PF

def ffn_main(a, hops=None, R=16, DBAR=16, RD_MARGIN=6, MINLEAD=5, store_flags=' sc1', order=0, MID=False, CH6=False, dmafl='', ASK3=None, FLAG_D=56, ASK_D=56, ASK1=40, ASK2=290, NPRO=2, verbose=False,
             DEBT=2.0, WM=8, GSPAN=44, HSPAN=30, stamper=None, NP2=6, BG=1, BG0=5, CPF=0, CPD=4, stagestamp=False, nobar=False, nodma=False, nogelu=False, nostore=False, PF=None, GDL=None, PPACE=10, HPACE=None):
    if PF is None: PF = default_pf()
    DI = down_items(order)
    NST = 27 + (len(DI) + 5)//6
    vm = []
    def vm_wait_n(tag):
        idx = [i for i, t in enumerate(vm) if t == tag]
        if not idx: return None
        n = len(vm) - 1 - max(idx)
        assert n <= 63
        return n
    def h2_ops(q):
        ops = []
        for mt in range(2):
            for n, ks in enumerate(range(3*q, 3*q+3)):
                sc = [f"s_add_u32 s{S_HS}, s{S_HO}, {mt*18432 + 3*q*1024}"] if n == 0 else []
                o = f" offset:{n*1024}" if n else ""
                r = H2 + 8*ks + 4*mt
                ops.append((sc, f"buffer_load_dwordx4 a[{r}:{r+3}], v{VL16}, s[{S_H}:{S_H+3}], s{S_HS} offen{o} sc1"))
        return ops
    dq = []
    for q in range(6):
        ops = h2_ops(q)
        if q >= NP2: ops = dma_ops(q, DI) + ops
        if q < NPRO:
            for sc, ins in ops:
                for s_ in sc: a(s_)
                a(ins); vm.append(('D', q))
        else:
            dq += [[q, list(sc), ins] for sc, ins in ops]

    F = []; M = []
    def tile(base, idx): return base + 4*idx
    for st in range(NST):
        if CH6 and 6 <= st < 24:
            if st % 2 == 0: continue
            c = st // 6
            for ft in range(4):
                for mat in range(2):
                    f0 = len(F)
                    for x in range(6):
                        imm = mat*12288 + (x % 3)*4096
                        F.append(dict(st=st - 1 + x//3, rb=ft, imm=(imm, imm + 512)))
                    for mt in range(2):
                        for x in range(6):
                            ks = 3*((st - 1) % 6) + x
                            t = (ft*2 + mat)*2 + mt
                            last = ks == 17
                            M.append(dict(st=st, f=f0+x, B=f"a[{H2+8*ks+4*mt}:{H2+8*ks+4*mt+3}]",
                                          C=None if ks == 0 else tile(ACC, t), D=tile(STG if last else ACC, t),
                                          done=('G', c, ft, mt) if (last and mat == 1) else None))
        elif st < 27:
            full = st < 24
            nks = 3 if full else 6
            nft = 4 if full else 2
            c = st // 6 if full else 4
            k0 = 3*(st % 6) if full else 6*(st - 24)
            rowb = 128 if full else 64
            for kb in range(0, nks, 3):
                for ft in range(nft):
                    for mat in range(2):
                        f0 = len(F)
                        for x in range(3):
                            imm = mat*12288 + (kb + x)*32*rowb
                            F.append(dict(st=st, rb=ft, imm=(imm, imm + 4*rowb)))
                        for mt in range(2):
                            for x in range(3):
                                ks = k0 + kb + x
                                t = (ft*2 + mat)*2 + mt
                                last = ks == 17
                                Dd = tile(STG if (last and full) else ACC, t)
                                M.append(dict(st=st, f=f0+x, B=f"a[{H2+8*ks+4*mt}:{H2+8*ks+4*mt+3}]",
                                              C=None if ks == 0 else tile(ACC, t), D=Dd,
                                              done=('G', c, ft, mt) if (last and mat == 1) else None))
        else:
            items = DI[6*(st-27):6*(st-27)+6]
            def bop(src, k, mt):
                if src == 0: return dict(B=f"v[{HH+8*k+4*mt}:{HH+8*k+4*mt+3}]", hh=(k, mt))
                return dict(B=f"a[{8*k+4*mt}:{8*k+4*mt+3}]", vmneed=('P', k, mt))
            j = 0
            while j < len(items):
                n = 1
                if items[j][0] == 'F':
                    b = items[j][1]
                    while n < 3 and j + n < len(items) and items[j+n][:2] == ('F', b): n += 1
                    steps = [(it[2], it[3], (j+x)*4096, 2048) for x, it in enumerate(items[j:j+n])]
                    nct, kind = 4, 'F'
                    tl = lambda ct, mt: tile(OBUF[b], mt*4 + ct)
                else:
                    b = 4
                    steps = [(sk[0], sk[1], j*4096 + x*2048, 1024) for x, sk in enumerate(items[j][1:])]
                    nct, kind = 2, 'H'
                    tl = lambda ct, mt: HBUF[mt] + 4*ct
                for ct in range(nct):
                    f0 = len(F)
                    for (src, k, imm, du) in steps:
                        F.append(dict(st=st, rb=ct, imm=(imm, imm + du), kind=kind))
                    for mt in range(2):
                        for x, (src, k, imm, du) in enumerate(steps):
                            first = (src, k) == (0, 0); last = (src, k) == (1, 8)
                            M.append(dict(st=st, f=f0+x, C=None if first else tl(ct, mt), D=tl(ct, mt),
                                          done=('O', b, ct, mt) if (last and (ct & 1)) else None, **bop(src, k, mt)))
                j += n
    N = len(M)
    assert N == 1944
    for i, m in enumerate(M): F[m['f']]['last'] = i
    for i, m in reversed(list(enumerate(M))): F[m['f']]['first'] = i
    st_end = {}
    for i, m in enumerate(M): st_end[m['st']] = i + 1

    Q = []
    def add(ins, w, regs, hh=None, ready=0, vmt=None, sc=False):
        Q.append(dict(ins=ins, w=w, regs=regs, hh=hh, ready=ready, vm=vmt, sc=sc))
    def gelu_items(c, ft, mt, ready):
        base = STG if c < 4 else ACC
        G, U = tile(base, (ft*2)*2 + mt), tile(base, (ft*2+1)*2 + mt)
        k = (2*c + (ft >> 1)) if c < 4 else 8
        d = HH + 8*k + 4*mt + 2*(ft & 1)
        E = range(4)
        seq = []
        seq += [(f"v_fma_f32 v{TMP+e}, -v{G+e}, v{G+e}, s{S_KT}", 1) for e in E]
        seq += [(f"v_mul_f32 v{TMP+e}, v{G+e}, v{TMP+e}", 1) for e in E]
        seq += [(f"v_exp_f32 v{TMP+e}, v{TMP+e}", 2) for e in E]
        seq += [(f"v_mul_f32 v{U+e}, v{G+e}, v{U+e}", 1) for e in E]
        seq += [(f"v_add_f32 v{TMP+e}, 1.0, v{TMP+e}", 1) for e in E]
        seq += [(f"v_rcp_f32 v{TMP+e}, v{TMP+e}", 2) for e in E]
        seq += [(f"v_mul_f32 v{U+e}, v{U+e}, v{TMP+e}", 1) for e in E]
        seq += [(f"v_cvt_pk_bf16_f32 v{d+i}, v{U+2*i}, v{U+2*i+1}", 1) for i in range(2)]
        for n, (ins, w) in enumerate(seq):
            add(ins, w, (G, U), hh=(k, mt) if n >= len(seq)-2 else None, ready=ready)
        if ft & 1:
            x = 2*k + mt
            if x % 4 == 0: add(f"s_add_u32 s{S_XS}, s{S_XO}, {x*1024}", 0, ('x',), sc=True)
            o = f" offset:{(x%4)*1024}" if x % 4 else ""
            add(f"buffer_store_dwordx4 v[{HH+4*x}:{HH+4*x+3}], v{VL16}, s[{S_X}:{S_X+3}], s{S_XS} offen{o} sc1", 2, ('x',), vmt=('X', x))
    def out_items(b, ct, mt, ready):
        t0 = tile(OBUF[b], mt*4 + ct - 1) if b < 4 else HBUF[mt]
        regs = (t0, t0+4)
        for x in range(4):
            add(f"v_cvt_pk_bf16_f32 v{t0+x}, v{t0+2*x}, v{t0+2*x+1}", 1, regs, ready=ready)
        ip = ct >> 1
        if ct == 1 and mt == 0:
            add(f"s_add_u32 s{S_SS}, s{S_PO}, {b*4096}" if b < 4 else f"s_mov_b32 s{S_SS}, s{S_POH}", 0, regs, ready=ready, sc=True)
        o = f" offset:{(2*ip+mt)*1024}" if (2*ip+mt) else ""
        add(f"buffer_store_dwordx4 v[{t0}:{t0+3}], v{VL16}, s[{S_P}:{S_P+3}], s{S_SS} offen{o}{store_flags}", 2, regs, ready=ready, vmt=('S', b, ct, mt))

    cnt = [0]; cur = [0]; acts = []; vm_done = [-1]; slow = []
    def vm_wait(tag, extra=''):
        idx = max(i for i, t in enumerate(vm) if t == tag)
        if idx <= vm_done[0] and not extra: return False
        n = len(vm) - 1 - idx
        assert n <= 63
        E_(f"s_waitcnt vmcnt({n}){extra}")
        vm_done[0] = max(vm_done[0], idx)
        return True
    def E_(ins):
        cnt[0] += 1
        if dmafl and ins.startswith('buffer_load') and ins.endswith(' lds'): ins = ins[:-4] + dmafl + ' lds'
        if nodma and ins.startswith('buffer_load') and 'lds' in ins: ins = 's_nop 0'
        if nostore and ins.startswith('buffer_store_dwordx4'): ins = 's_nop 0'
        if nogelu and ins.split()[0] in ('v_fma_f32', 'v_mul_f32', 'v_exp_f32', 'v_rcp_f32', 'v_add_f32'): return
        a(ins)
        if hops: hops.add(ins)
    def emit_q():
        it = Q[0]
        if cnt[0] < it['ready']:
            n = it['ready'] - cnt[0]
            while n > 0:
                k = min(n, 16); E_(f"s_nop {k-1}"); cnt[0] += k-1; n -= k
        Q.pop(0); E_(it['ins'])
        if it['vm']:
            vm.append(it['vm'])
            if it['vm'] == ('X', 11): acts.append([cur[0] + FLAG_D, 'flag', 0, it['vm']])
            if it['vm'] == ('S', 1, 3, 1): acts.append([cur[0] + FLAG_D, 'flag', 2, it['vm']])
            if it['vm'] == ('S', 2, 3, 1) and MID: acts.append([cur[0] + FLAG_D, 'flag', 3, it['vm']])
            if it['vm'] == ('X', 17): acts.append([cur[0] + FLAG_D, 'flag', 1, it['vm']])
        return it
    def needs(m, it):
        if m.get('hh') is not None and it['hh'] == m['hh']: return True
        if m['D'] in it['regs'] and m['D'] != m['C']: return True
        return False
    def deadline(i):
        worst = 0.0; cum = 0; dl_cache = {}
        for it in Q:
            cum += it['w']
            key = (it['regs'], it['hh'])
            if key not in dl_cache:
                dl = None
                for j in range(i+1, min(N, i+400)):
                    if needs(M[j], it): dl = j; break
                dl_cache[key] = dl
            dl = dl_cache[key]
            if GDL is not None and it['vm'] == ('X', 17): dl = st_end[26] + GDL
            if GDL is not None and it['vm'] == ('X', 15): dl = st_end[26] + GDL - 80
            if dl is not None:
                worst = max(worst, cum/max(1, dl - i - 1))
        if Q and worst == 0: worst = cum/max(1, min(N - i, 60))
        return worst

    lds = []; covered = [-1]; rd_next = [0]; rd_gap = {}; enabled = [0]
    def rbreg(fr):
        sl = fr['st'] % NSLOT
        if fr.get('kind') == 'H': return RB2[2*(sl >> 1) + fr['rb']], (sl & 1)*SLOT
        if 24 <= fr['st'] < 27: return RBH + 2*(sl >> 1) + fr['rb'], (sl & 1)*SLOT
        return RBF + 4*(sl >> 1) + fr['rb'], (sl & 1)*SLOT
    def can_read(i):
        j = rd_next[0] >> 1
        if j >= len(F) or F[j]['st'] > enabled[0]: return False
        return j < R or F[j-R]['last'] <= i
    def emit_read(i):
        j, p = rd_next[0] >> 1, rd_next[0] & 1
        f = FR + 4*(j % R) + 2*p
        assert not (F[j]['st'] >= 27 and any(it['regs'] == ('rb',) for it in Q))
        assert not (F[j].get('kind') == 'H' and any(it['regs'] == ('rb2',) for it in Q))
        r_, o_ = rbreg(F[j])
        E_(f"ds_read_b64_tr_b16 a[{f}:{f+1}], v{r_} offset:{F[j]['imm'][p] + o_}")
        lds.append(j); rd_next[0] += 1
        if p: rd_gap[j] = i
    def emit_wait(i_next, i):
        fj = M[i_next]['f']
        if covered[0] >= fj: return False
        while (rd_next[0] >> 1) <= fj:
            assert can_read(i), (i, fj)
            emit_read(i)
        tgt = fj
        for k in range(fj+1, min(fj+6, len(F))):
            if k in rd_gap and rd_gap[k] <= i - WM: tgt = k
            else: break
        n = sum(1 for j in lds if j > tgt)
        E_(f"s_waitcnt lgkmcnt({min(n, 15)})")
        covered[0] = tgt
        return True

    while can_read(-1) and len(lds) < 12: emit_read(-1)
    E_(f"s_waitcnt vmcnt({vm_wait_n(('D', 0))})")
    if stamper: stamper()
    if stagestamp: E_("s_memtime s[98:99]"); E_("s_waitcnt lgkmcnt(0)"); E_("v_writelane_b32 v253, s98, 63")
    E_("s_cmp_eq_u32 0, 1")
    emit_wait(0, -1)

    stats = dict(over=0, flush=0, late=0)
    pq = []; pnext = [0]
    freed = [-1]; gspan = [HSPAN]; gn = [len(dq)]
    cred_r = 0.0; cred_v = 0.0; cred_g = 0.0
    T0 = st_end[26]
    acts += [[T0 + ASK1, 'ask', 0], [T0 + ASK2, 'ask', 1]]
    if ASK3: acts.append([T0 + ASK3, 'ask3', 0])
    for i in range(N):
        m = M[i]; cur[0] = i
        flushed = False
        while any(needs(m, it) for it in Q):
            stats['flush'] += emit_q()['w']; flushed = True
        if flushed: E_("s_nop 1"); cnt[0] += 1
        f = FR + 4*(m['f'] % R)
        Cs = "0" if m['C'] is None else f"v[{m['C']}:{m['C']+3}]"
        E_(f"v_mfma_f32_16x16x32_bf16 v[{m['D']}:{m['D']+3}], a[{f}:{f+3}], {m['B']}, {Cs}")
        if m['done']:
            kind, x, y, mt = m['done']
            (gelu_items if kind == 'G' else out_items)(x, y, mt, cnt[0] + 9)
        st = m['st']
        used = 0; sc_used = 0
        if hops and hops.due(24):
            a(hops.emit()); cnt[0] += 1; sc_used = 1
        bar_gap = st_end[st] - DBAR - 1
        if i == bar_gap: a(f"L_st{st}:")
        if i == bar_gap and st < NST - 1 and st == enabled[0]:
            nxt_en = min(st + (BG if st >= BG0 else 1), NST - 1)
            while (rd_next[0] >> 1) < len(F) and F[rd_next[0] >> 1]['st'] <= st:
                emit_read(i); used += 1
            while any(d[0] <= nxt_en for d in dq):
                d = dq.pop(0)
                for x in d[1]: E_(x)
                E_(d[2]); vm.append(d[3] if len(d) > 3 else ('D', d[0])); used += 2; stats['late'] += 1
            tg = [('D', x) for x in range(nxt_en, st, -1) if ('D', x) in vm]
            if tg: vm_wait(max(tg, key=lambda t: max(i_ for i_, u in enumerate(vm) if u == t)), ' lgkmcnt(0)')
            else: E_("s_waitcnt lgkmcnt(0)")
            if stagestamp == 1:
                E_("s_memtime s[98:99]"); E_("s_waitcnt lgkmcnt(0)"); E_(f"v_writelane_b32 v253, s98, {st}")
            if stagestamp == 3 and st in (5, 23, 33):
                ix = {5: 24, 23: 25, 33: 26}[st]
                E_("s_memtime s[98:99]"); E_("s_waitcnt lgkmcnt(0)"); E_(f"v_writelane_b32 v253, s98, {ix}")
                E_("s_memrealtime s[98:99]"); E_("s_waitcnt lgkmcnt(0)"); E_(f"v_writelane_b32 v255, s98, {ix}")
            if not nobar: E_("s_barrier")
            sc_used = 2
            covered[0] = (rd_next[0] >> 1) - 1
            enabled[0] = nxt_en
            for x in range(freed[0] + 1, st + 1):
                if CPF and x % CPF == 0 and x + CPD < NST - 1:
                    pq.append([98, [f"s_mov_b32 s{S_PS}, L_st{min(y for y in st_end if y >= x+CPD)}-L_common"], f"buffer_load_dword v239, v{VPC}, s[52:55], s{S_PS} offen", ('pf', 0)])
                for w, pc in PF.get(x, ()):
                    if w == 'D': pq.append([98, [f"s_add_u32 s{S_PS}, s{S_PD}, {pc*PFD*128}"], f"buffer_load_dword v239, v{VPD}, s[{S_D}:{S_D+3}], s{S_PS} offen", ('pf', 0)])
                    else:
                        sc_ = f"s_add_u32 s{S_PS}, s{S_BF if w < 4 else S_BH}, {(128*w if w < 4 else 0) + pc*PFN*9216}"
                        pq.append([98, [sc_], f"buffer_load_dword v239, v{VPF}, s[{S_W}:{S_W+3}], s{S_PS} offen", ('pf', 0)])
                if x + NSLOT < NST:
                    dq += [[x+NSLOT, list(sc), ins] for sc, ins in dma_ops(x+NSLOT, DI)]
                if x == 23:
                    Q[0:0] = [dict(ins=o, w=1, regs=('rb',), hh=None, ready=0, vm=None, sc=False) for o in base_ops(RBF, TD, 3, 4)]
                if x == 26:
                    ops2 = []
                    for p in range(3):
                        ops2 += [f"v_add_u32 v{RB2[2*p]}, {2*SLOT*p}, v{TD2}", f"v_xor_b32 v{RB2[2*p+1]}, 32, v{RB2[2*p]}"]
                    Q[0:0] = [dict(ins=o, w=1, regs=('rb2',), hh=None, ready=0, vm=None, sc=False) for o in ops2]
            gspan[0] = GSPAN*(st - freed[0]); gn[0] = len(dq)
            freed[0] = st
        if i + 1 < N and emit_wait(i + 1, i): sc_used += 1
        if i + 1 < N and M[i+1].get('vmneed'):
            while any(d[3] == M[i+1]['vmneed'] for d in pq):
                d = pq.pop(0)
                for x in d[1]: E_(x)
                E_(d[2]); vm.append(d[3] if len(d) > 3 else ('D', d[0])); used += 2; stats['late'] += 1
            if vm_wait(M[i+1]['vmneed']): sc_used += 1
        due = [x for x in acts if x[0] <= i]
        if due and not sc_used and not used:
            act = due[0]; acts.remove(act)
            if act[1] == 'flag':
                vm_wait(act[3])
                if act[2] == 3: E_(f"s_add_u32 s{S_PS}, s{S_FD}, {FD3 - FD1}")
                E_(f"buffer_store_dword v{VTAG}, off, s[{S_FL}:{S_FL+3}], s{(S_FO, S_FO, S_FD, S_PS)[act[2]]}" + (" offset:128" if act[2] == 1 else "") + " sc1")
                vm.append(('F', act[2])); stats[f'flag{act[2]}'] = i - T0
            elif act[1] == 'ask3':
                E_(f"s_mov_b32 s{S_PS}, {FD1}")
                E_(f"buffer_load_dword v239, v{VEF}, s[{S_FL}:{S_FL+3}], s{S_PS} offen sc1")
                vm.append(('A', 3))
            elif act[1] == 'ask':
                E_(f"buffer_load_dword v{VCHK}, off, s[{S_FL}:{S_FL+3}], s{S_FP}" + (" offset:128" if act[2] else "") + " sc1")
                vm.append(('A', act[2])); acts.append([i + ASK_D, 'test', act[2]])
            else:
                vm_wait(('A', act[2]))
                E_(f"v_cmp_ne_u32 vcc, s{S_TAG}, v{VCHK}")
                E_(f"s_cbranch_vccnz L_xslow{act[2]}")
                a(f"L_xok{act[2]}:")
                new = []
                for x in (range(12) if act[2] == 0 else range(12, 18)):
                    sc_ = [f"s_add_u32 s{S_HS}, s{S_XP}, {x*1024}"] if x % 4 == 0 else []
                    o = f" offset:{(x%4)*1024}" if x % 4 else ""
                    new.append([99, sc_, f"buffer_load_dwordx4 a[{4*x}:{4*x+3}], v{VL16}, s[{S_X}:{S_X+3}], s{S_HS} offen{o} sc1", ('P', x >> 1, x & 1)])
                pq.extend(new)
            sc_used = 1; used = 2
        if not sc_used and hops and hops.due(48):
            a(hops.emit()); cnt[0] += 1; sc_used = 1
        if not sc_used and dq and dq[0][1]:
            E_(dq[0][1].pop(0)); sc_used = 1
        if not sc_used and pq and pq[0][1]:
            E_(pq[0][1].pop(0)); sc_used = 1
        if not sc_used and Q and Q[0]['sc'] and cnt[0] >= Q[0]['ready']:
            emit_q(); sc_used = 1
        jn = rd_next[0] >> 1
        lead = (F[jn]['first'] - i) if jn < len(F) else 999
        es = enabled[0]
        rem_r = sum(2 for fr in F[jn:jn+70] if fr['st'] <= es) - (rd_next[0] & 1) if jn < len(F) and F[jn]['st'] <= es else 0
        dl_r = (st_end[es] - DBAR - 1 - RD_MARGIN) if es < NST - 1 else st_end[es] - 10
        cred_r = min(cred_r + rem_r/max(1, dl_r - i), 2.5)
        cred_v += deadline(i)
        npend = len(dq)
        if npend:
            cred_g = min(cred_g + (gn[0]/gspan[0] if st >= 4 else (1/HPACE if HPACE else max(6, npend)/HSPAN)), 1.5)
        want_g = dq and not dq[0][1] and cred_g >= 1 and lead >= 2*MINLEAD
        if want_g and used == 0 and not sc_used:
            d = dq.pop(0)
            E_(d[2]); vm.append(d[3] if len(d) > 3 else ('D', d[0])); cred_g -= 1; used = 2
        if pq and not pq[0][1] and used == 0 and not sc_used and i >= pnext[0] and lead >= 2*MINLEAD:
            d = pq.pop(0)
            E_(d[2]); vm.append(d[3]); used = 2; pnext[0] = i + PPACE
        nd = 0
        if used < 2 and can_read(i):
            head2 = Q and Q[0]['w'] == 2 and cnt[0] >= Q[0]['ready']
            if lead < 2*MINLEAD or cred_r >= 2: nd = 2
            elif cred_r >= 1: nd = 2 if (head2 or want_g) else 1
            elif not Q: nd = 1
            while nd and used < 2 and can_read(i):
                emit_read(i); used += 1; nd -= 1; cred_r -= 1
        while Q and cnt[0] >= Q[0]['ready'] and not Q[0]['sc']:
            w = Q[0]['w']
            if used + w <= 2: pass
            elif cred_v >= DEBT + w and used + w <= 4 and used <= 2: stats['over'] += used + w - 2
            else: break
            emit_q(); used += w; cred_v -= w
        if not Q: cred_v = 0
    while Q: emit_q()
    if stagestamp: E_("s_memtime s[98:99]"); E_("s_waitcnt lgkmcnt(0)"); E_("v_writelane_b32 v253, s98, 62")
    assert not acts and not dq and not pq
    if ASK3: vm_wait(('A', 3))
    if verbose: print('ffn schedule:', stats, 'instr', cnt[0], 'hops', hops.n if hops else 0)

def ffn_slow_paths(a, spin_max, diag=False):
    for p in range(2):
        a(f"""
        L_xslow{p}:
        s_mov_b32 s{S_SPIN}, 0
        L_xspin{p}:
        buffer_load_dword v{VCHK}, off, s[{S_FL}:{S_FL+3}], s{S_FP}{' offset:128' if p else ''} sc1
        s_add_u32 s{S_SPIN}, s{S_SPIN}, 1
        s_waitcnt vmcnt(0)
        {f'v_writelane_b32 v255, s{S_SPIN}, {30+p}' if diag else ''}
        v_cmp_ne_u32 vcc, s{S_TAG}, v{VCHK}
        s_cbranch_vccz L_xok{p}
        s_cmp_lt_u32 s{S_SPIN}, {spin_max}
        s_cbranch_scc1 L_xspin{p}
        s_branch L_xok{p}
        """)

def ffn_setup3(a):
    a(f"""
    s_lshl_b32 s4, s{S_WAVE}, 4
    v_and_b32 v{VPC}, 15, v{LANE}
    v_add_u32 v{VPC}, s4, v{VPC}
    v_lshlrev_b32 v{VPC}, 7, v{VPC}
    """)
```

```python
import sys
from common import *
from ffn import *
NAME = 'adaLN_cond__ssm_conv_h3__glu_gated_geglu__prompt_kernel'
WS_EPOCH = 0x0A00000
WS_FL = 0x0A10000
FB = 0x8000
FC = 0x10000
FA = 0xE8000
FZ = 0xA0000
NB_MOD = 6*D*4
KSTR = 4160
WAVE_LDS = 4*KSTR + 4608
T_OFF = 4*WAVE_LDS
STAT_OFF = RING
MOD_OFF = RING + 1024
LDS_TOTAL = MOD_OFF + 14848
VRZ, VRM, VRH, VRP = 200, 201, 202, 203
NCONV, NMOD = 144, 54
QP, ST = 240, 252
DIAG = 255
SPIN_MAX = 200000

class G:
    def __init__(self, diag=False, **kw):
        self.a = Asm(); self.diag = diag; self.kw = kw; self.nl = 0; self.nst = 0; self.names = []
    def lab(self, p):
        self.nl += 1; return f"L_{p}{self.nl}"
    def stamp(self, idx):
        if self.diag:
            self.a(f"s_memrealtime s[98:99]\ns_waitcnt lgkmcnt(0)\nv_writelane_b32 v{DIAG}, s98, {idx}")

    def signal(self, base, idx_sgpr):
        a = self.a; l = self.lab('sig')
        a(f"""
        s_waitcnt vmcnt(0)
        s_barrier
        s_cmp_lg_u32 s{S_WAVE}, 0
        s_cbranch_scc1 {l}
        s_lshl_b32 s3, s{idx_sgpr}, 7
        s_add_u32 s3, s3, {base}
        v_mov_b32 v239, s{S_TAG}
        s_mov_b64 exec, 1
        buffer_store_dword v239, off, s[{S_FL}:{S_FL+3}], s3 sc1
        s_mov_b64 exec, -1
        {l}:
        """)
    def signal_wave(self, soff):
        self.a(f"v_mov_b32 v239, s{S_TAG}\ns_waitcnt vmcnt(0)\nbuffer_store_dword v239, off, s[{S_FL}:{S_FL+3}], s{soff} sc1")
    def poll(self, vaddr, soff, sleep=1):
        a = self.a; l = self.lab('poll'); d = self.lab('pd')
        a(f"""
        s_mov_b32 s{S_SPIN}, 0
        {l}:
        buffer_load_dword v239, v{vaddr}, s[{S_FL}:{S_FL+3}], s{soff} offen sc1
        s_add_u32 s{S_SPIN}, s{S_SPIN}, 1
        s_waitcnt vmcnt(0)
        v_cmp_ne_u32 vcc, s{S_TAG}, v239
        s_cbranch_vccz {d}
        {'s_sleep ' + str(sleep) if sleep else ''}
        s_cmp_lt_u32 s{S_SPIN}, {SPIN_MAX}
        s_cbranch_scc1 {l}
        {d}:
        """)

    def row_ids(self, vr, vp, t):
        self.a(f"""
        s_lshl_b32 s3, s{S_MT}, 4
        s_add_u32 s3, s3, s{S_GI}
        s_lshl_b32 s3, s3, 3
        v_and_b32 v{vr}, 7, v{LANE}
        v_add_u32 v{vr}, s3, v{vr}
        v_bfe_u32 v{vp}, v{LANE}, 3, 1
        v_lshlrev_b32 v{vp}, 2, v{vp}
        v_bfe_u32 v{t}, v{LANE}, 5, 1
        v_lshl_add_u32 v{vp}, v{t}, 1, v{vp}
        v_bfe_u32 v{t}, v{LANE}, 4, 1
        v_add_u32 v{vp}, v{vp}, v{t}
        s_lshr_b32 s3, s{S_WAVE}, 1
        s_mul_i32 s3, s3, 3
        s_add_u32 s3, s3, s{S_WAVE}
        s_lshl_b32 s3, s3, 3
        v_add_u32 v{vp}, s3, v{vp}
        """)
    def q_loads(self, srdq, t):
        a = self.a
        self.row_ids(t, t+1, t+2)
        srd(a, srdq, P_Q, NB_SD)
        a(f"""
        v_mul_u32_u24 v{t}, 1152, v{t}
        v_lshl_add_u32 v{t}, v{t+1}, 4, v{t}
        buffer_load_dwordx4 v[{QP}:{QP+3}], v{t}, s[{srdq}:{srdq+3}], 0 offen
        buffer_load_dwordx4 v[{QP+4}:{QP+7}], v{t}, s[{srdq}:{srdq+3}], 0 offen offset:256
        buffer_load_dwordx4 v[{QP+8}:{QP+11}], v{t}, s[{srdq}:{srdq+3}], s{S_OOB} offen offset:512
        """)
    def stats(self, ldsoff, t, scale=None, part=3):
        real = a = self.a
        if not part & 1: a = Asm()
        a(f"""
        v_mov_b32 v{t}, 0
        v_mov_b32 v{t+1}, 0
        v_bfe_u32 v{t+2}, v{LANE}, 5, 1
        v_and_b32 v{t+3}, 7, v{LANE}
        v_lshl_add_u32 v{t+2}, v{t+2}, 3, v{t+3}
        v_lshlrev_b32 v{t+2}, 4, v{t+2}
        s_lshl_b32 s3, s{S_WAVE}, 2
        v_add_u32 v{t+2}, {STAT_OFF + ldsoff}, v{t+2}
        v_add_u32 v{t+3}, s3, v{t+2}
        """)
        for i in range(12):
            a(f"v_dot2_f32_bf16 v{t}, v{QP+i}, s{S_ONE}, v{t}\nv_dot2_f32_bf16 v{t+1}, v{QP+i}, v{QP+i}, v{t+1}")
        a(f"""
        s_nop 2
        v_permlane32_swap_b32 v{t}, v{t+1}
        s_nop 1
        v_add_f32 v{t}, v{t}, v{t+1}
        v_mov_b32 v{t+1}, v{t}
        s_nop 1
        v_permlane16_swap_b32 v{t}, v{t+1}
        s_nop 1
        v_add_f32 v{t}, v{t}, v{t+1}
        s_nop 1
        v_add_f32_dpp v{t}, v{t}, v{t} row_ror:8 row_mask:0xf bank_mask:0xf
        ds_write_b32 v{t+3}, v{t}
        """)
        a = real
        if part == 3: a("s_waitcnt lgkmcnt(0)\ns_barrier")
        if not part & 2: return
        a(f"""
        ds_read_b128 v[{t+4}:{t+7}], v{t+2}
        s_waitcnt lgkmcnt(0)
        v_add_f32 v{t+4}, v{t+4}, v{t+5}
        v_add_f32 v{t+6}, v{t+6}, v{t+7}
        v_add_f32 v{t}, v{t+4}, v{t+6}
        v_mul_f32 v{t}, 0x3ae38e39, v{t}
        v_mov_b32 v{t+1}, v{t}
        s_nop 1
        v_permlane32_swap_b32 v{t}, v{t+1}
        s_nop 1
        v_fma_f32 v{t+1}, -v{t}, v{t}, v{t+1}
        v_max_f32 v{t+1}, 0, v{t+1}
        v_add_f32 v{t+1}, 0x3727c5ac, v{t+1}
        v_rsq_f32 v{ST}, v{t+1}
        s_nop 0
        """)
        if scale: a(f"v_mul_f32 v{ST}, {f2u(scale):#x}, v{ST}")
        a(f"v_mul_f32 v{ST+1}, v{t}, v{ST}\nv_sub_f32 v{ST+1}, 0, v{ST+1}")

    def stats_parts(self, ldsoff, t):
        A = [f"v_bfe_u32 v{t+2}, v{LANE}, 5, 1", f"v_and_b32 v{t+3}, 7, v{LANE}", f"v_lshl_add_u32 v{t+2}, v{t+2}, 3, v{t+3}",
             f"v_lshlrev_b32 v{t+2}, 4, v{t+2}", f"v_add_u32 v{t+2}, {STAT_OFF + ldsoff}, v{t+2}",
             f"v_mov_b32 v{t+3}, s{S_WAVE}", f"v_lshl_add_u32 v{t+3}, v{t+3}, 2, v{t+2}", f"v_mov_b32 v{t}, 0", f"v_mov_b32 v{t+1}, 0"]
        for i in range(12):
            A += [f"v_lshlrev_b32 v{t+4}, 16, v{QP+i}", f"v_and_b32 v{t+5}, 0xffff0000, v{QP+i}", f"v_add_f32 v{t}, v{t}, v{t+4}",
                  f"v_fmac_f32 v{t+1}, v{t+4}, v{t+4}", f"v_add_f32 v{t}, v{t}, v{t+5}", f"v_fmac_f32 v{t+1}, v{t+5}, v{t+5}"]
        A += ['', '', f"v_permlane32_swap_b32 v{t}, v{t+1}", '', f"v_add_f32 v{t}, v{t}, v{t+1}", f"v_mov_b32 v{t+1}, v{t}", '', '',
              f"v_permlane16_swap_b32 v{t}, v{t+1}", '', f"v_add_f32 v{t}, v{t}, v{t+1}", '', '',
              f"v_add_f32_dpp v{t}, v{t}, v{t} row_ror:8 row_mask:0xf bank_mask:0xf", f"ds_write_b32 v{t+3}, v{t}"]
        B = [f"ds_read_b128 v[{t+4}:{t+7}], v{t+2}"]
        C = [f"v_add_f32 v{t+4}, v{t+4}, v{t+5}", f"v_add_f32 v{t+6}, v{t+6}, v{t+7}", f"v_add_f32 v{t}, v{t+4}, v{t+6}",
             f"v_mul_f32 v{t}, 0x3ae38e39, v{t}", f"v_mov_b32 v{t+1}, v{t}", '', '', f"v_permlane32_swap_b32 v{t}, v{t+1}", '',
             f"v_fma_f32 v{t+1}, -v{t}, v{t}, v{t+1}", f"v_max_f32 v{t+1}, 0, v{t+1}", f"v_add_f32 v{t+1}, 0x3727c5ac, v{t+1}",
             f"v_rsq_f32 v{ST}, v{t+1}", '', f"v_mul_f32 v{ST+1}, v{t}, v{ST}", f"v_sub_f32 v{ST+1}, 0, v{ST+1}"]
        return A, B, C
    def row_setup(self, t):
        a = self.a
        self.row_ids(t, t+1, t+2)
        a(f"""
        v_lshlrev_b32 v{VRZ}, 15, v{t+1}
        v_lshl_add_u32 v{VRZ}, v{t}, 3, v{VRZ}
        v_lshlrev_b32 v{VRM}, 5, v{t+1}
        v_add_u32 v{VRM}, {MOD_OFF}, v{VRM}
        v_lshrrev_b32 v{VRH}, 4, v{t}
        v_mul_u32_u24 v{VRH}, 18432, v{VRH}
        v_lshl_add_u32 v{VRH}, v{t+1}, 8, v{VRH}
        v_and_b32 v{t+2}, 15, v{t}
        v_lshl_add_u32 v{VRH}, v{t+2}, 4, v{VRH}
        s_lshl_b32 s3, s{S_MT}, 2
        s_add_u32 s3, s3, s{S_WAVE}
        s_mul_i32 s3, s3, 36
        v_min_u32 v{VRP}, 35, v{LANE}
        v_add_u32 v{VRP}, s3, v{VRP}
        v_lshlrev_b32 v{VRP}, 7, v{VRP}
        """)
    def mod_dma(self, sr):
        a = self.a
        srd(a, sr, P_WS, NB_MOD, WS_MOD)
        a(f"s_mul_i32 s91, s{S_WAVE}, 3584\ns_add_u32 m0, s91, {MOD_OFF}\ns_nop 0")
        out = []
        for i in range(4):
            out.append(f"buffer_load_dwordx4 v{VL16}, s[{sr}:{sr+3}], s91 offen offset:{1024*i} sc1 lds")
        return out

    def conv_path(self):
        a = self.a; kw = self.kw
        VA, VB, VTW, VTR, VZ, VU, VPA, VHD = 192, 193, 194, 195, 211, 212, 213, 214
        DG = 196
        G4, I16 = 144, 145
        a(f"""
        s_lshr_b32 s40, s2, 4
        s_and_b32 s41, s2, 15
        v_and_b32 v1, 7, v0
        v_lshrrev_b32 v2, 3, v0
        s_lshl_b32 s42, s41, 7
        s_lshl_b32 s43, s40, 7
        v_lshl_add_u32 v3, v2, 2, s42
        v_mul_u32_u24 v3, 1152, v3
        v_lshl_add_u32 v4, v1, 4, s43
        v_add_u32 v13, v3, v4
        v_add_u32 v10, {(-3*1152) & 0xffffffff:#x}, v13
        v_add_u32 v11, {(-2*1152) & 0xffffffff:#x}, v13
        v_add_u32 v12, {(-1*1152) & 0xffffffff:#x}, v13
        v_lshlrev_b32 v5, 2, v4
        """)
        srd(a, 52, P_K, NB_SD); srd(a, 56, P_V, NB_SD); srd(a, 20, P_SK, D*8)
        for j in (3, 4, 5, 6, 0, 1, 2):
            va, o = (10+j, 0) if j < 3 else (13, (j-3)*1152)
            a(f"buffer_load_dwordx4 v[{16+4*j}:{19+4*j}], v{va}, s[52:55], 0 offen" + (f" offset:{o}" if o else ""))
        for j in range(4):
            a(f"buffer_load_dwordx4 v[{60+4*j}:{63+4*j}], v5, s[20:23], 0 offen" + (f" offset:{16*j}" if j else ""))
        for j in range(4):
            a(f"buffer_load_dwordx4 v[{44+4*j}:{47+4*j}], v13, s[56:59], 0 offen" + (f" offset:{1152*j}" if j else ""))
        a(f"""
        s_lshl_b32 s44, s2, 2
        s_add_u32 s44, s44, s{S_WAVE}
        s_mul_i32 s45, s{S_WAVE}, {WAVE_LDS}
        s_lshl_b32 s46, s44, 12
        s_add_u32 s52, s{P_SSMK}, s46
        s_addc_u32 s53, s{P_SSMK+1}, 0
        s_mov_b32 s54, 4096
        s_mov_b32 s55, 0x20000
        v_lshrrev_b32 v{G4}, 4, v{LANE}
        v_and_b32 v{I16}, 15, v{LANE}
        v_add_u32 v142, v{G4}, v{I16}
        v_add_u32 v142, -16, v142
        v_lshlrev_b32 v142, 1, v142
        s_lshl_b32 s3, s44, 1
        """)
        srd(a, 56, P_SSMD, D*2)
        a(f"""
        v_lshlrev_b32 v143, 4, v{LANE}
        buffer_load_ushort v140, v142, s[52:55], 0 offen
        buffer_load_ushort v141, off, s[56:59], s3
        """)
        KR = 152
        for i in range(4):
            a(f"buffer_load_dwordx4 v[{KR+6*i}:{KR+6*i+3}], v143, s[52:55], 0 offen offset:{1024*i}")
            a(f"buffer_load_dwordx2 v[{KR+6*i+4}:{KR+6*i+5}], v143, s[52:55], 0 offen offset:{1024*i+16}")
        srd(a, 24, P_WS, NB_SD, WS_U)
        a(f"""
        v_lshlrev_b32 v6, 9, v2
        v_lshl_add_u32 v6, v1, 4, v6
        v_add_u32 v6, {T_OFF}, v6
        v_bfe_u32 v7, v{LANE}, 1, 1
        v_lshl_add_u32 v7, v{G4}, 1, v7
        v_lshlrev_b32 v7, 3, v7
        v_bfe_u32 v8, v{LANE}, 2, 2
        v_sub_u32 v7, v7, v8
        v_add_u32 v7, 3, v7
        v_lshlrev_b32 v7, 7, v7
        v_and_b32 v8, 1, v{LANE}
        v_lshl_add_u32 v7, v8, 3, v7
        s_lshl_b32 s3, s{S_WAVE}, 5
        s_add_u32 s3, s3, {T_OFF}
        v_add_u32 v7, s3, v7
        s_lshl_b32 s3, s40, 6
        s_lshl_b32 s47, s{S_WAVE}, 4
        s_add_u32 s3, s3, s47
        v_and_b32 v8, 7, v{LANE}
        v_add_u32 v8, s3, v8
        v_lshlrev_b32 v8, 12, v8
        v_bfe_u32 v9, v{LANE}, 3, 1
        v_lshl_add_u32 v9, v{G4}, 1, v9
        v_lshl_add_u32 v8, v9, 4, v8
        s_lshl_b32 s3, s41, 8
        v_add_u32 v8, s3, v8
        v_add_u32 v9, 0x8000, v8
        v_mov_b32 v146, 0
        v_mov_b32 v147, 0
        v_lshl_add_u32 v148, v{LANE}, 3, s45
        ds_write_b64 v148, v[146:147] offset:{4*KSTR}
        v_mul_u32_u24 v{VHD}, {KSTR}, v{G4}
        v_lshl_add_u32 v{VHD}, v{I16}, 1, v{VHD}
        v_add_u32 v{VHD}, s45, v{VHD}
        v_add_u32 v14, 1, v{I16}
        v_and_b32 v{VA}, 3, v14
        v_mul_u32_u24 v{VA}, {KSTR}, v{VA}
        v_lshrrev_b32 v14, 2, v14
        v_lshl_add_u32 v{VA}, v14, 3, v{VA}
        v_lshlrev_b32 v14, 4, v{G4}
        v_sub_u32 v{VA}, v{VA}, v14
        v_add_u32 v{VA}, 48, v{VA}
        v_add_u32 v{VA}, s45, v{VA}
        v_lshlrev_b32 v{VB}, 5, v{I16}
        v_lshl_add_u32 v{VB}, v{G4}, 4, v{VB}
        s_add_u32 s3, s45, {4*KSTR + 512 - 32 - 448}
        v_add_u32 v{VB}, s3, v{VB}
        v_lshlrev_b32 v{VTW}, 4, v{I16}
        v_lshl_add_u32 v{VTW}, v{G4}, 2, v{VTW}
        s_mul_i32 s3, s{S_WAVE}, {KSTR}
        s_add_u32 s3, s3, {T_OFF}
        v_add_u32 v{VTW}, s3, v{VTW}
        v_bfe_u32 v{VTR}, v{LANE}, 2, 2
        v_mul_u32_u24 v{VTR}, {KSTR}, v{VTR}
        v_lshl_add_u32 v{VTR}, v{G4}, 5, v{VTR}
        v_and_b32 v14, 3, v{LANE}
        v_lshl_add_u32 v{VTR}, v14, 3, v{VTR}
        s_lshl_b32 s3, s{S_WAVE}, 7
        s_add_u32 s3, s3, {T_OFF}
        v_add_u32 v{VTR}, s3, v{VTR}
        s_lshl_b32 s3, s2, 14
        s_lshl_b32 s47, s{S_WAVE}, 10
        s_add_u32 s3, s3, s47
        v_lshl_add_u32 v{VZ}, v{LANE}, 4, s3
        v_lshlrev_b32 v{VU}, 4, v{LANE}
        v_lshlrev_b32 v{VPA}, 7, v{I16}
        """)
        if kw.get('ARR', 1):
            ffn_setup(a, 100)
            self.row_setup(100)
        self.stamp(1)
        if kw.get('hopP', False): self.ahops.call(a, 0)
        a("s_waitcnt vmcnt(14)")
        self.stamp(2)
        if kw.get('hopP', False): a.hop = self.ahops
        kd = []
        for c in (0, 2):
            ops = [f"buffer_load_dwordx4 v143, s[52:55], 0 offen offset:{i*1024} lds" for i in range(4)]
            ops[0] = f"s_add_u32 m0, s45, {c*KSTR + 32}\n" + ("v_add_u32 v143, 4, v143\n" if c else "s_nop 0\n") + ops[0]
            kd += ops
        nearly = kw.get('KEARLY', 0)
        early, late = kd[:nearly], kd[nearly:]
        def kdma():
            if early: a(early.pop(0))
        P = lambda x: f"v[{x}:{x+1}]"
        for cp in range(4):
            for j in range(4):
                f = lo if j % 2 == 0 else hi
                f(a, 80+2*j, 60+4*cp+(j >> 1)); f(a, 81+2*j, 62+4*cp+(j >> 1))
            if cp: kdma()
            for i in range(7):
                lo(a, 88+2*i, 16+4*i+cp); hi(a, 89+2*i, 16+4*i+cp)
            if cp: kdma()
            for r in range(4): a(f"v_pk_mul_f32 {P(110+2*r)}, {P(88+2*r)}, {P(86)}")
            for j in (1, 2, 3):
                for r in range(4): a(f"v_pk_fma_f32 {P(110+2*r)}, {P(88+2*(r+j))}, {P(86-2*j)}, {P(110+2*r)}")
            if cp == 0:
                a("s_waitcnt vmcnt(10)")
                self.stamp(22)
            kdma()
            for r in range(4):
                lo(a, 102+2*r, 44+4*r+cp); hi(a, 103+2*r, 44+4*r+cp)
            for r in range(4): a(f"v_pk_mul_f32 {P(110+2*r)}, {P(110+2*r)}, {P(102+2*r)}")
            for r in range(4): a(f"v_cvt_pk_bf16_f32 v{120+4*r+cp}, v{110+2*r}, v{111+2*r}")
            kdma()
        for r in range(4):
            a(f"ds_write_b128 v6, v[{120+4*r}:{123+4*r}]" + (f" offset:{128*r}" if r else ""))
        while early: kdma()
        a("s_waitcnt lgkmcnt(0)\ns_barrier")
        n = 0
        for cb in range(2):
            for hq in range(2):
                o = hq*8192 + cb*16
                a(f"ds_read_b64_tr_b16 v[{16+4*n}:{17+4*n}], v7 offset:{o+512}")
                a(f"ds_read_b64_tr_b16 v[{18+4*n}:{19+4*n}], v7 offset:{o}")
                n += 1
        n = 0
        for cb in range(2):
            for hq in range(2):
                a(f"s_waitcnt lgkmcnt({6-2*n})")
                a(f"buffer_store_dwordx4 v[{16+4*n}:{19+4*n}], v{8+cb}, s[24:27], 0 offen" + (" offset:128" if hq else "") + " sc1")
                n += 1
        a.hop = None
        def kcopy():
            a(f"v_lshl_add_u32 v14, v{LANE}, 4, s45")
            for i in range(4):
                for c in range(2):
                    for x in range(4):
                        a(f"v_alignbyte_b32 v{40+8*(i&1)+4*c+x}, v{KR+6*i+x+c+1}, v{KR+6*i+x+c}, 2")
                    a(f"ds_write_b128 v14, v[{40+8*(i&1)+4*c}:{43+8*(i&1)+4*c}] offset:{(1+2*c)*KSTR + 32 + 1024*i}")
            a(f"""
            ds_write_b16 v{VHD}, v140
            v_lshrrev_b32 v10, 3, v{I16}
            v_add_u32 v10, 2, v10
            v_cmp_eq_u32 vcc, v10, v{G4}
            v_and_b32 v11, 7, v{I16}
            v_sub_u32 v11, 7, v11
            v_cndmask_b32 v9, 0, v141, vcc
            v_and_b32 v10, 1, v11
            v_lshlrev_b32 v10, 4, v10
            v_lshlrev_b32 v9, v10, v9
            v_lshrrev_b32 v11, 1, v11
            """)
            for r in range(4):
                a(f"v_cmp_eq_u32 vcc, {r}, v11\ns_nop 1\nv_cndmask_b32 v{DG+r}, 0, v9, vcc")
        self.stamp(3)
        if kw.get('ARR', 1):
            a(f"s_waitcnt vmcnt(4)")
            kcopy()
        else:
            ffn_setup(a, 100)
            self.row_setup(100)
        a(f"""
        s_waitcnt lgkmcnt(0)
        s_add_u32 s{S_TAG}, s28, 1
        s_mul_i32 s3, s{S_WAVE}, 144
        s_add_u32 s3, s3, s2
        s_lshl_b32 s3, s3, 7
        s_add_u32 s3, s3, {FA}
        """)
        self.signal_wave(3)
        a("s_barrier")
        self.stamp(4)
        for o in late: a(o)
        self.q_loads(56, 1)
        if not kw.get('ARR', 1): kcopy()
        if kw.get('LN1', 'B') == 'A':
            a("s_waitcnt vmcnt(0)")
            self.stats(0, 150)
        a(f"""
        v_min_u32 v{VHD}, 55, v{LANE}
        v_lshlrev_b32 v{VHD}, 7, v{VHD}
        s_mov_b32 s90, {FB + 128*NCONV}
        s_mov_b32 s8, {FB + 128*(NCONV+56)}
        s_mul_i32 s6, s{S_WAVE}, 144
        s_add_u32 s6, s6, s2
        s_lshl_b32 s6, s6, 7
        s_add_u32 s6, s6, {FZ}
        s_cmp_ge_u32 s{S_WAVE}, 2
        s_cselect_b32 s7, 0x40000000, 0
        v_mov_b32 v23, s{S_TAG}
        s_add_u32 s56, s{P_WS}, s46
        s_addc_u32 s57, s{P_WS+1}, 0
        s_mov_b32 s58, 4096
        s_mov_b32 s59, 0x20000
        s_bfe_u32 s4, s2, 0x20002
        s_mul_i32 s4, s4, 9
        s_add_u32 s4, s4, s40
        s_lshl_b32 s4, s4, 11
        s_add_u32 s4, s4, {FA}
        """)
        assert WS_U == 0
        srd(a, 52, P_WS, NB_SD, WS_Z)
        hops = self.chops if kw.get('chops', False) else None
        if hops: hops.call(a, 0)
        self.stamp(5)
        self.poll(VPA, 4, sleep=0)
        self.stamp(6)
        a(f"s_add_u32 m0, s45, {4*KSTR + 512}\ns_nop 0")
        for i in range(4):
            a(f"buffer_load_dwordx4 v{VU}, s[56:59], 0 offen offset:{i*1024} sc1 lds")
        AC = 24; FRG = 64
        A = lambda s, m1: FRG + 64*s + 4*m1
        B = lambda s, n1: FRG + 64*s + 32 + 4*n1
        def rdA(m0, n, s):
            R = []
            for x in range(n):
                R.append(f"ds_read_b64 v[{A(s,x)}:{A(s,x)+1}], v{VA} offset:{512*x + 64*m0}")
                R.append(f"ds_read_b64 v[{A(s,x)+2}:{A(s,x)+3}], v{VA} offset:{512*x + 64*m0+8}")
            return R
        def rdB(m0, n, s):
            return [f"ds_read_b128 v[{B(s,x)}:{B(s,x)+3}], v{VB} offset:{512*x + 64*(7-m0)}" for x in range(n)]
        def mf(w, av, bv, first=False):
            a(f"v_mfma_f32_16x16x32_bf16 v[{AC+4*w}:{AC+4*w+3}], v[{av}:{av+3}], v[{bv}:{bv+3}], " + ("0" if first else f"v[{AC+4*w}:{AC+4*w+3}]"))
        def pack(w, t):
            return [f"v_cvt_pk_bf16_f32 v{t}, v{AC+4*w}, v{AC+4*w+2}", f"v_cvt_pk_bf16_f32 v{t+1}, v{AC+4*w+1}, v{AC+4*w+3}",
                    f"ds_write2st64_b32 v{VTW}, v{t}, v{t+1} offset0:{w} offset1:{w+8}"]
        PASS = kw.get('PASS', (0, 4, 8))
        def units(p):
            u0, u1 = 2*PASS[p], 2*PASS[p+1]
            return [(u, u + 4 > u1) for u in range(u0, u1, 4)]
        def trr(p, t):
            R = []
            for i, (u, h) in enumerate(units(p)):
                R += [f"ds_read_b64_tr_b16 v[{t+4*i}:{t+4*i+1}], v{VTR} offset:{128*u}", f"ds_read_b64_tr_b16 v[{t+4*i+2}:{t+4*i+3}], v{VTR} offset:{128*u + 2048}"]
            return R
        def zst(p, t):
            return [(f"s_add_u32 s96, s7, {1024*u}" if h else f"s_mov_b32 s96, {1024*u}") + f"\nbuffer_store_dwordx4 v[{t+4*i}:{t+4*i+3}], v{VZ}, s[52:55], s96 offen sc1" for i, (u, h) in enumerate(units(p))]
        def zfl(p):
            R = ["s_waitcnt vmcnt(0)"]
            for u, h in units(p):
                R.append(f"s_add_u32 s96, s6, {u*144*128}")
                if h: R.append("s_add_u32 s96, s96, s7")
                R.append(f"buffer_store_dword v23, off, s[{S_FL}:{S_FL+3}], s96 sc1")
            return "\n".join(R)
        steps = []
        for p in range(len(PASS) - 1):
            two = PASS[p+1] <= 4
            steps += [(p, m0, two) for m0 in range(0, 8, 2 if two else 1)]
        def rds(p, m0, two, s):
            n = PASS[p+1]; ra, rb = [], []
            for h in range(2 if two else 1):
                for x in range(n):
                    t = 4*h + x
                    ra += [f"ds_read_b64 v[{A(s,t)}:{A(s,t)+1}], v{VA} offset:{512*x + 64*(m0+h)}", f"ds_read_b64 v[{A(s,t)+2}:{A(s,t)+3}], v{VA} offset:{512*x + 64*(m0+h)+8}"]
                    rb += [f"ds_read_b128 v[{B(s,t)}:{B(s,t)+3}], v{VB} offset:{512*x + 64*(7-m0-h)}"]
            return ra, rb
        ra, rb = rds(*steps[0], 0)
        for r in ra: a(r)
        ffn_setup2(a, 12)
        a("s_waitcnt vmcnt(0)")
        self.stamp(7)
        for r in rb: a(r)
        cp_ = kw.get('convpf', '')
        if cp_:
            a(f"""
            s_and_b32 s3, s2, 7
            s_lshr_b32 s5, s2, 3
            s_lshl_b32 s5, s5, 2
            s_add_u32 s5, s5, s{S_WAVE}
            """)
        if 'g' in cp_:
            srd(a, 12, P_WG, D*DF*2); srd(a, 16, P_WU, D*DF*2)
            a(f"""
            s_mul_i32 s6, s3, 1152
            s_mul_i32 s7, s5, {8*9216}
            s_add_u32 s6, s6, s7
            v_and_b32 v1, 7, v{LANE}
            v_mul_u32_u24 v1, 9216, v1
            v_bfe_u32 v2, v{LANE}, 3, 2
            v_min_u32 v2, 2, v2
            v_lshrrev_b32 v3, 1, v2
            v_mul_u32_u24 v3, 3, v3
            v_add3_u32 v2, v2, v3, 3
            v_lshl_add_u32 v1, v2, 7, v1
            buffer_load_dword v238, v1, s[12:15], s6 offen
            buffer_load_dword v238, v1, s[16:19], s6 offen
            """)
        if 'd' in cp_:
            srd(a, 56, P_WD, D*DF*2)
            a(f"""
            s_mul_i32 s6, s3, {576*1152}
            s_mul_i32 s7, s5, 9216
            s_add_u32 s6, s6, s7
            v_lshlrev_b32 v1, 7, v{LANE}
            v_and_b32 v2, 7, v{LANE}
            v_lshlrev_b32 v2, 7, v2
            v_add_u32 v2, 8192, v2
            buffer_load_dword v238, v1, s[56:59], s6 offen
            buffer_load_dword v238, v2, s[56:59], s6 offen
            """)
        NP_ = len(PASS) - 1
        for n_, (p, m0, two) in enumerate(steps):
            s = n_ & 1
            nxt = []
            if n_ + 1 < len(steps):
                ra, rb = rds(*steps[n_+1], 1-s)
                nxt = rb + ra
            ext = []
            a("s_waitcnt lgkmcnt(0)")
            if p:
                if m0 == 0: ext = ['', ''] + sum([pack(w, 4 + 2*(w - PASS[p-1])) for w in range(PASS[p-1], PASS[p])], [])
                if m0 == 1: a("s_barrier"); ext = trr(p-1, 4)
                if m0 == 2: ext = zst(p-1, 4)
                if m0 == kw.get('ZF', 4):
                    a(zfl(p-1))
                    if p == 1: self.stamp(28)
                if p == NP_ - 1 and m0 == kw.get('MCHK', 5):
                    ext += [f"buffer_load_dword v239, v{VHD}, s[{S_FL}:{S_FL+3}], s90 offen sc1", f"buffer_load_dword v22, v{VHD}, s[{S_FL}:{S_FL+3}], s8 offen sc1"]
            def gap():
                k = 2 if (len(nxt) > left[0] and not ext) else 1
                while k and nxt: a(nxt.pop(0)); k -= 1
                if ext:
                    x = ext.pop(0)
                    if x: a(x)
                left[0] -= 1
            pairs = [(m1 + n1, 4*h + m1, 4*h + n1) for h in range(2 if two else 1) for m1 in range(8) for n1 in range(8 - m1) if PASS[p] <= m1 + n1 < PASS[p+1]]
            nd = PASS[p+1] - PASS[p] if m0 == 0 else 0
            left = [len(pairs) + nd - 8]
            for w in range(PASS[p], PASS[p] + nd):
                mf(w, DG, B(s, w), True); gap()
            for w, x, y in pairs:
                mf(w, A(s, x), B(s, y)); gap()
            for x in nxt + ext:
                if x: a(x)
        self.stamp(8)
        a("s_nop 7")
        for w in range(PASS[-2], 8):
            for x in pack(w, 64 + 2*w): a(x)
        a("s_waitcnt lgkmcnt(0)\ns_barrier")
        for x in trr(NP_-1, 80): a(x)
        zs = zst(NP_-1, 80)
        for i, x in enumerate(zs):
            a(f"s_waitcnt lgkmcnt({2*(len(zs)-1-i)})"); a(x)
        self.stamp(9)
        self.stats(0, 150, part=1)
        a(zfl(NP_-1)); a("s_waitcnt lgkmcnt(0)\ns_barrier")
        self.stamp(23)
        a(f"v_cmp_ne_u32 vcc, s{S_TAG}, v239\nv_cmp_ne_u32 s[4:5], s{S_TAG}, v22\ns_nop 1\ns_or_b64 vcc, vcc, s[4:5]\ns_cbranch_vccz L_modok")
        self.poll(VHD, 90, sleep=1)
        self.poll(VHD, 8, sleep=1)
        a("L_modok:")
        for o in self.mod_dma(56): a(o)
        self.stats(0, 150, part=2)

    def side_path(self):
        a = self.a; kw = self.kw
        if kw.get('touch'):
            sh = kw['touch']
            srd(a, 52, P_WS, 0x4000000); srd(a, 56, P_OUT, NB_SD)
            a(f"v_lshlrev_b32 v1, {sh}, v0\nbuffer_load_dword v238, v1, s[52:55], 0 offen\nbuffer_load_dword v238, v1, s[56:59], 0 offen")
            srd(a, 56, P_WD, D*DF*2)
            a(f"buffer_load_dword v238, v1, s[56:59], 0 offen")
        code_srd(a, 56, 4, 'L_common', 'L_code_end')
        srd(a, 52, P_SSMK, NB_SD)
        a(f"""
        s_sub_u32 s47, s2, {NCONV}
        s_lshr_b32 s47, s47, 3
        s_lshl_b32 s47, s47, 2
        s_add_u32 s47, s47, s{S_WAVE}
        v_min_u32 v2, 7, v{LANE}
        s_lshl_b32 s43, s47, 10
        v_lshlrev_b32 v2, 7, v2
        buffer_load_dword v238, v2, s[56:59], s43 offen
        s_mul_i32 s42, s47, 42
        v_min_u32 v1, 41, v{LANE}
        v_add_u32 v1, s42, v1
        v_lshrrev_b32 v2, 7, v1
        v_and_b32 v1, 127, v1
        v_lshlrev_b32 v1, 7, v1
        v_lshl_add_u32 v1, v2, 17, v1
        s_and_b32 s3, s2, 7
        s_lshl_b32 s3, s3, 14
        {'buffer_load_dword v238, v1, s[52:55], s3 offen' if kw.get('pfK', False) else ''}
        s_mul_hi_u32 s42, s47, 0x2aaaaaab
        s_mul_i32 s43, s42, 6
        s_sub_u32 s43, s47, s43
        s_mul_i32 s43, s43, 3072
        s_add_u32 s42, s42, {kw.get('CA', 7)}
        s_mul_i32 s42, s42, {128*1152}
        s_add_u32 s42, s42, s43
        s_and_b32 s3, s2, 7
        s_mul_i32 s3, s3, {16*1152}
        s_add_u32 s42, s42, s3
        v_min_u32 v1, 23, v{LANE}
        v_lshlrev_b32 v1, 7, v1
        """)
        srd(a, 52, P_Q, NB_SD)
        a("buffer_load_dword v238, v1, s[52:55], s42 offen")
        a(f"s_cmp_ge_u32 s2, {NCONV+NMOD}\ns_cbranch_scc1 L_nomod")
        a(f"""
        s_sub_u32 s40, s2, {NCONV}
        v_and_b32 v1, 7, v0
        v_lshrrev_b32 v2, 3, v0
        v_mul_u32_u24 v3, 6912, v2
        v_lshl_add_u32 v3, v1, 4, v3
        s_lshl_b32 s3, s40, 7
        v_add_u32 v3, s3, v3
        v_lshlrev_b32 v4, 1, v0
        """)
        srd(a, 12, P_C, D*2); srd(a, 16, P_WMOD, D*6912); srd(a, 20, P_WS, NB_MOD, WS_MOD)
        a("""
        buffer_load_ushort v5, v4, s[12:15], 0 offen
        buffer_load_ushort v6, v4, s[12:15], 0 offen offset:512
        buffer_load_ushort v7, v4, s[12:15], 0 offen offset:1024
        s_mov_b32 s41, 0
        """)
        a("s_waitcnt vmcnt(0)")
        for i in range(18):
            a(f"buffer_load_dwordx4 v[{32+4*i}:{35+4*i}], v3, s[16:19], s41 offen")
            if i < 17: a(f"s_add_u32 s41, s41, {32*6912}")
        for r in (5, 6, 7):
            a(f"""
            v_lshlrev_b32 v{r}, 16, v{r}
            v_mul_f32 v8, 0xbfb8aa3b, v{r}
            v_exp_f32 v8, v8
            s_nop 0
            v_add_f32 v8, 1.0, v8
            v_rcp_f32 v8, v8
            s_nop 0
            v_mul_f32 v{r}, v{r}, v8
            v_cvt_pk_bf16_f32 v{r}, v{r}, v{r}
            v_lshlrev_b32 v{r}, 16, v{r}
            """)
        a("""
        v_lshlrev_b32 v9, 2, v0
        ds_write_b32 v9, v5
        ds_write_b32 v9, v6 offset:1024
        ds_write_b32 v9, v7 offset:2048
        v_lshlrev_b32 v10, 2, v2
        s_waitcnt lgkmcnt(0)
        s_barrier
        """)
        for i in range(18):
            a(f"ds_read_b32 v{104+2*i}, v10 offset:{128*i}")
        a("s_waitcnt lgkmcnt(0)")
        for i in range(18):
            a(f"s_waitcnt vmcnt({17-i})")
            for x in range(4):
                t = 24 + 2*(x & 1)
                lo(a, t, 32+4*i+x); hi(a, t+1, 32+4*i+x)
                if i == 0: a(f"v_pk_mul_f32 v[{16+2*x}:{17+2*x}], v[{t}:{t+1}], v[{104+2*i}:{105+2*i}] op_sel_hi:[1,0]")
                else:      a(f"v_pk_fma_f32 v[{16+2*x}:{17+2*x}], v[{t}:{t+1}], v[{104+2*i}:{105+2*i}], v[{16+2*x}:{17+2*x}] op_sel_hi:[1,0,1]")
        a("""
        v_lshlrev_b32 v13, 8, v2
        v_lshl_add_u32 v13, v1, 5, v13
        ds_write_b128 v13, v[16:19] offset:4096
        ds_write_b128 v13, v[20:23] offset:4112
        s_waitcnt lgkmcnt(0)
        s_barrier
        """)
        a(f"s_cmp_lg_u32 s{S_WAVE}, 0\ns_cbranch_scc1 L_nomod")
        for i in range(32):
            a(f"ds_read_b32 v{32+i}, v9 offset:{4096 + 256*i}")
        a("s_waitcnt lgkmcnt(0)")
        for st in (16, 8, 4, 2):
            for i in range(0, st, 2):
                a(f"v_pk_add_f32 v[{32+i}:{33+i}], v[{32+i}:{33+i}], v[{32+i+st}:{33+i+st}]")
        a(f"""
        v_add_f32 v32, v32, v33
        s_mov_b32 s3, 0x1c71c71d
        v_cvt_pk_bf16_f32 v32, v32, v32
        s_mul_hi_u32 s41, s40, s3
        s_cmp_eq_u32 s41, 1
        s_cselect_b32 s42, 1.0, 0
        s_cmp_eq_u32 s41, 4
        s_cselect_b32 s42, 1.0, s42
        v_lshlrev_b32 v32, 16, v32
        v_add_f32 v32, s42, v32
        s_cmp_eq_u32 s41, 3
        s_cselect_b32 s43, {f2u(ALPHA):#x}, 1.0
        s_cmp_eq_u32 s41, 5
        s_cselect_b32 s43, {f2u(1/ALPHA**2):#x}, s43
        v_cvt_pk_bf16_f32 v32, v32, v32
        v_lshlrev_b32 v32, 16, v32
        v_mul_f32 v32, s43, v32
        s_lshl_b32 s3, s40, 8
        buffer_store_dword v32, v9, s[20:23], s3 offen sc1
        L_nomod:
        """)
        self.stamp(3)
        self.signal(FB, 2)
        self.q_loads(56, 146)
        self.stamp(4)
        if kw.get('waitA', True):
            a(f"""
            v_and_b32 v146, 15, v{LANE}
            v_lshlrev_b32 v146, 7, v146
            s_and_b32 s40, s2, 7
            s_lshl_b32 s4, s40, 11
            s_add_u32 s4, s4, {FA}
            """)
            self.poll(146, 4, sleep=2)
        NCH = kw.get('NCH', 2); per = -(-1152*NCH//56)
        srd(a, 20, P_WG, D*DF*2); srd(a, 24, P_WU, D*DF*2)
        a(f"""
        s_and_b32 s40, s2, 7
        s_mul_i32 s43, s40, 1152
        s_sub_u32 s47, s2, {NCONV}
        s_lshr_b32 s47, s47, 3
        s_lshl_b32 s47, s47, 2
        s_add_u32 s47, s47, s{S_WAVE}
        s_mul_i32 s42, s47, {per}
        v_min_u32 v1, {per-1}, v{LANE}
        v_add_u32 v1, s42, v1
        s_mov_b32 s44, {-(-(1 << 32)//1152):#x}
        v_mul_hi_u32 v3, s44, v1
        v_mul_u32_u24 v4, 1152, v3
        v_sub_u32 v4, v1, v4
        v_lshlrev_b32 v3, 7, v3
        v_and_b32 v5, 1, v4
        v_mul_u32_u24 v5, 640, v5
        v_add_u32 v3, v3, v5
        v_lshrrev_b32 v4, 1, v4
        v_mul_u32_u24 v4, 9216, v4
        v_add_u32 v3, v3, v4
        buffer_load_dword v238, v3, s[20:23], s43 offen
        buffer_load_dword v238, v3, s[24:27], s43 offen
        """)
        self.stamp(6)
        ffn_setup(a, 100)
        self.row_setup(100)
        a("s_waitcnt vmcnt(2)")
        self.stats(0, 150)
        a(f"""
        v_min_u32 v147, {NMOD-1}, v{LANE}
        v_lshlrev_b32 v147, 7, v147
        s_mov_b32 s11, {FB + 128*NCONV}
        """)
        self.poll(147, 11, sleep=2)
        for o in self.mod_dma(52): a(o)
        ffn_setup2(a, 100)
        if self.fhops and self.kw.get('sidehops', True):
            for c in range(self.nhc): self.fhops.call(a, c)
        self.stamp(23)

    def row_phase(self, hops):
        a = self.a; kw = self.kw
        NP1 = kw.get('NP1', 3); NP2 = kw.get('NP2', 6)
        PL = kw.get('PL', (3, 0, 0, 3)); pf = [sum(PL[:i]) for i in range(5)]
        ffn_prefill(a, range(pf[0], pf[1]))
        if kw.get('sidefill', False):
            a(f"s_cmp_lt_u32 s2, {NCONV}\ns_cbranch_scc1 L_nofill1")
            ffn_prefill(a, range(pf[3], pf[4]))
            a("L_nofill1:")
        srd(a, S_X, P_WS, NB_X, WS_X)
        srd(a, 52, P_WS, NB_SD, WS_Z)
        a(f"""
        s_mov_b32 s4, {FZ}
        s_mov_b32 s5, 0x4000
        s_mov_b32 s6, 0x80000
        s_mov_b32 s7, 0x84000
        s_add_u32 s8, s{S_OOB}, 0x100000
        s_add_u32 s11, s{S_OOB}, 0x104000
        s_mov_b32 s9, 4096
        s_add_u32 s10, s{S_OOB}, 8192
        """)
        so = ['0', 's5', 's6', 's7', 's8', 's11']
        MV = lambda i, v: 16 + 40*i + 8*v
        for c in kw.get('hopB', ()): hops.call(a, c)
        if kw.get('hopR', False): self.rhops.call(a, 0)
        self.stamp(10)
        self.poll(VRP, 4, sleep=kw.get('sleepB', 1))
        a("s_barrier")
        self.stamp(11)
        for i in range(6):
            a(f"buffer_load_dwordx2 v[{2*i}:{2*i+1}], v{VRZ}, s[52:55], {so[i]} offen sc1")
        ffn_prefill(a, range(pf[1], pf[2]))
        for vs in ((0, 1, 2), (3, 4)):
            for i in range(3):
                for v in vs:
                    for h in range(2):
                        a(f"ds_read_b128 v[{MV(i,v)+4*h}:{MV(i,v)+4*h+3}], v{VRM} offset:{2304*v + 512*i + 16*h}")
        a("s_waitcnt lgkmcnt(12)")
        if kw.get('hopR', False): a.hop = self.rhops
        P = lambda x: f"v[{x}:{x+1}]"
        BC = "op_sel:[0,0,1] op_sel_hi:[1,0,1]"
        for i in range(3):
            a(f"s_waitcnt vmcnt({2*(2-i) + 6*PL[1]})")
            if i == 0: self.stamp(12)
            for c2 in range(0, 4, 2):
                cs = (c2, c2+1); X = {c: 144 + 6*(c & 1) for c in cs}
                for c in cs: lo(a, X[c], QP+4*i+c); hi(a, X[c]+1, QP+4*i+c)
                for c in cs: a(f"v_pk_fma_f32 {P(X[c]+2)}, {P(X[c])}, {P(ST)}, {P(ST)} {BC}")
                for c in cs: lo(a, X[c]+4, 4*i+c); hi(a, X[c]+5, 4*i+c)
                for c in cs: a(f"v_pk_fma_f32 {P(X[c]+2)}, {P(X[c]+2)}, {P(MV(i,1)+2*c)}, {P(MV(i,0)+2*c)}")
                for c in cs: a(f"v_pk_mul_f32 {P(X[c]+2)}, {P(X[c]+2)}, {P(X[c]+4)}")
                for c in cs: a(f"v_pk_fma_f32 {P(X[c]+2)}, {P(X[c]+2)}, {P(MV(i,2)+2*c)}, {P(X[c])}")
                for c in cs: a(f"v_cvt_pk_bf16_f32 v{QP+4*i+c}, v{X[c]+2}, v{X[c]+3}")
        self.stats(256, 160, scale=ALPHA)
        ffn_prefill(a, range(pf[2], pf[3]))
        sh = ['0', 's9', 's10']
        for i in range(3):
            for c2 in range(0, 4, 2):
                cs = (c2, c2+1); X = {c: 144 + 6*(c & 1) for c in cs}
                for c in cs: lo(a, X[c], QP+4*i+c); hi(a, X[c]+1, QP+4*i+c)
                for c in cs: a(f"v_pk_fma_f32 {P(X[c])}, {P(X[c])}, {P(ST)}, {P(ST)} {BC}")
                for c in cs: a(f"v_pk_fma_f32 {P(X[c])}, {P(X[c])}, {P(MV(i,4)+2*c)}, {P(MV(i,3)+2*c)}")
                for c in cs: a(f"v_cvt_pk_bf16_f32 v{4*i+c}, v{X[c]}, v{X[c]+1}")
            a(f"buffer_store_dwordx4 v[{4*i}:{4*i+3}], v{VRH}, s[{S_H}:{S_H+3}], {sh[i]} offen sc1")
        a.hop = None
        self.stamp(13)
        for i in range(12): a(f"v_accvgpr_write_b32 a{X1A+i}, v{QP+i}")
        a(f"s_lshl_b32 s4, s{S_MT}, 4\ns_add_u32 s4, s4, s{S_GI}")
        self.signal(FC, 4)
        if kw.get('sidefill', False): a(f"s_cmp_ge_u32 s2, {NCONV}\ns_cbranch_scc1 L_nofill2")
        ffn_prefill(a, range(pf[3], pf[4]))
        if kw.get('sidefill', False): a("L_nofill2:")
        code_srd(a, 52, 4, 'L_common', 'L_code_end', back=True)
        a(f"v_mov_b32 v{VTAG}, s{S_TAG}")
        ffn_setup3(a)
        self.reduce_setup(100)
        a(f"""
        v_and_b32 v146, 15, v{LANE}
        v_lshlrev_b32 v146, 7, v146
        s_lshl_b32 s9, s{S_MT}, 11
        s_add_u32 s9, s9, {FC}
        """)
        for c in kw.get('hopC', ()): hops.call(a, c)
        self.stamp(14)
        self.poll(146, 9, sleep=0)
        self.stamp(15)

    def reduce_setup(self, t):
        a = self.a
        self.row_ids(t, t+1, t+2)
        a(f"""
        v_mul_u32_u24 v{VEO}, 1152, v{t}
        v_lshl_add_u32 v{VEO}, v{t+1}, 4, v{VEO}
        v_lshrrev_b32 v{VEP}, 5, v{t}
        v_mul_u32_u24 v{VEP}, 9, v{VEP}
        v_lshrrev_b32 v{t+2}, 3, v{t+1}
        v_add_u32 v{VEP}, v{t+2}, v{VEP}
        v_lshlrev_b32 v{VEP}, 12, v{VEP}
        v_bfe_u32 v{t+2}, v{t}, 4, 1
        v_lshl_add_u32 v{VEP}, v{t+2}, 10, v{VEP}
        v_bfe_u32 v{t+2}, v{LANE}, 3, 1
        v_lshl_add_u32 v{VEP}, v{t+2}, 11, v{VEP}
        v_bfe_u32 v{t+2}, v{LANE}, 4, 1
        v_lshl_add_u32 v{VEP}, v{t+2}, 9, v{VEP}
        v_bfe_u32 v{t+2}, v{LANE}, 5, 1
        v_lshl_add_u32 v{VEP}, v{t+2}, 8, v{VEP}
        v_and_b32 v{t+2}, 15, v{t}
        v_lshl_add_u32 v{VEP}, v{t+2}, 4, v{VEP}
        v_lshlrev_b32 v{VEG}, 5, v{t+1}
        v_add_u32 v{VEG}, {MOD_OFF + 5*2304}, v{VEG}
        s_lshl_b32 s3, s{S_MT}, 2
        s_lshr_b32 s4, s{S_GI}, 2
        s_add_u32 s4, s4, s3
        s_lshl_b32 s4, s4, 11
        v_and_b32 v{VEF}, 15, v{LANE}
        v_lshl_add_u32 v{VEF}, v{VEF}, 7, s4
        s_add_u32 s3, s3, s{S_WAVE}
        s_lshl_b32 s3, s3, 4
        s_add_u32 s3, s3, s{S_GI}
        s_lshl_b32 s3, s3, 7
        s_add_u32 s{S_FD}, s3, {FD1}
        """)
    def reduce_phase(self):
        a = self.a; kw = self.kw
        early = kw.get('early', True)
        self.stamp(17)
        srd(a, 12, P_OUT, NB_SD)
        a(f"""
        s_mov_b32 s4, {FD1}
        s_mov_b32 s7, {FD2}
        s_add_u32 s8, s{S_FD}, {FD2 - FD1}
        {f'buffer_load_dword v239, v{VEF}, s[{S_FL}:{S_FL+3}], s4 offen sc1' if early and not kw.get('ASK3') else ''}
        s_mov_b32 s5, 0x3f80
        s_mov_b32 s6, 0x3f800000
        v_add_u32 v222, 8192, v{VEP}
        v_add_u32 v223, 16384, v{VEP}
        v_add_u32 v223, s{S_OOB}, v223
        """)
        for i in range(3):
            for h in range(2):
                a(f"ds_read_b128 v[{192+8*i+4*h}:{195+8*i+4*h}], v{VEG} offset:{512*i + 16*h}")
        va = [VEP, 222, 223]; RD = [32, 64, 128]
        def loads(i):
            a("s_mov_b32 s9, 0")
            for sl in range(8):
                a(f"buffer_load_dwordx4 v[{RD[i]+4*sl}:{RD[i]+4*sl+3}], v{va[i]}, s[{S_P}:{S_P+3}], s9 offen sc1")
                if sl < 7: a(f"s_add_u32 s9, s9, {NB_SD}")
        pub = f"buffer_store_dword v{VTAG}, off, s[{S_FL}:{S_FL+3}], s8 sc1"
        if kw.get('ASK3'):
            a(f"v_cmp_ne_u32 vcc, s{S_TAG}, v239\ns_cbranch_vccnz L_e1late")
            loads(0)
            a(f"s_waitcnt vmcnt(8)\n{pub}\ns_branch L_e1done\nL_e1late:\ns_waitcnt vmcnt(0)\n{pub}")
            self.poll(VEF, 4, sleep=0)
            loads(0)
            a("L_e1done:")
            self.stamp(18)
        else:
            a(f"s_waitcnt vmcnt(0)\n{pub}")
            self.stamp(18)
            if early:
                a(f"v_cmp_ne_u32 vcc, s{S_TAG}, v239\ns_cbranch_vccz L_e1ok")
                self.poll(VEF, 4, sleep=0)
                a("L_e1ok:")
                loads(0)
        AC = 226
        def finish(i, waits):
            for e in range(8): a(f"v_mov_b32 v{AC+e}, 0")
            for sl in range(8):
                if waits is not None: a(f"s_waitcnt vmcnt({waits - sl})")
                for x in range(4):
                    a(f"v_dot2_f32_bf16 v{AC+2*x}, v{RD[i]+4*sl+x}, s5, v{AC+2*x}")
                    a(f"v_dot2_f32_bf16 v{AC+2*x+1}, v{RD[i]+4*sl+x}, s6, v{AC+2*x+1}")
            for x in range(4): a(f"v_accvgpr_read_b32 v{QP+x}, a{X1A+4*i+x}")
            for e in range(4): a(f"v_permlane32_swap_b32 v{AC+e}, v{AC+4+e}")
            for x in range(4):
                lo(a, 234, QP+x); hi(a, 235, QP+x)
                a(f"v_pk_fma_f32 v[234:235], v[{AC+2*x}:{AC+2*x+1}], v[{192+8*i+2*x}:{193+8*i+2*x}], v[234:235]")
                a(f"v_cvt_pk_bf16_f32 v{QP+4+x}, v234, v235")
            a(f"buffer_store_dwordx4 v[{QP+4}:{QP+7}], v{VEO}, s[12:15], {'s%d' % S_OOB if i == 2 else '0'} offen" + (f" offset:{256*i}" if i else "") + kw.get('outfl', ''))
            a("s_nop 1")
        if kw.get('MID'):
            a(f"s_bitcmp1_b32 s{S_WAVE}, 0\ns_cselect_b32 s10, s7, {FD3}")
            self.poll(VEF, 10, sleep=0)
            self.stamp(19)
            loads(1)
            a("s_waitcnt lgkmcnt(0)")
            finish(0, None)
            a(f"s_cmp_lg_u32 s{S_WAVE}, 0\ns_cbranch_scc1 L_e2only")
            self.poll(VEF, 7, sleep=0)
            loads(2)
            finish(1, None)
            finish(2, 8)
            a("s_branch L_edone\nL_e2only:")
            finish(1, 8)
            a("L_edone:")
        else:
            self.poll(VEF, 7, sleep=0)
            self.stamp(19)
            if not early: loads(0)
            loads(1); loads(2)
            a("s_waitcnt lgkmcnt(0)")
            for i in range(3): finish(i, None if (early and i == 0) else 23 - 7*i)
        self.stamp(20)

    def build(self):
        a = self.a; kw = self.kw
        a(kernel_head(NAME))
        if kw.get('fix0'): a("s_memrealtime s[100:101]")
        a(f"""
        s_cmp_ge_u32 s2, 256
        s_cbranch_scc1 L_end
        s_load_dwordx16 s[64:79], s[0:1], 0
        s_load_dwordx8 s[80:87], s[0:1], 64
        s_load_dwordx4 s[88:91], s[0:1], 96
        s_load_dwordx2 s[92:93], s[0:1], 112
        """)
        if self.diag: a(f"v_mov_b32 v{DIAG}, 0")
        code_srd(a, 56, 4, 'L_start', 'L_common')
        a(f"""
        L_start:
        v_lshlrev_b32 v1, 7, v0
        v_lshrrev_b32 v2, 6, v0
        v_and_b32 v{LANE}, 63, v0
        buffer_load_dword v238, v1, s[56:59], 0 offen
        v_readfirstlane_b32 s{S_WAVE}, v2
        s_lshr_b32 s3, s2, 3
        s_lshr_b32 s{S_MT}, s3, 1
        s_add_u32 s6, s{S_MT}, {kw.get('CA', 7)}
        s_sub_u32 s7, s{S_MT}, 9
        s_cmp_lt_u32 s7, {kw.get('CA', 7)}
        s_cselect_b32 s7, s7, s{S_MT}
        s_cmp_lt_u32 s{S_MT}, 9
        s_cselect_b32 s{S_MT}, s6, s7
        s_and_b32 s3, s3, 1
        s_and_b32 s{S_GI}, s2, 7
        s_lshl_b32 s{S_GI}, s{S_GI}, 1
        s_add_u32 s{S_GI}, s{S_GI}, s3
        s_mov_b32 s{S_ONE}, 0x3f803f80
        s_cmp_eq_u32 s{S_WAVE}, 0
        s_cselect_b32 s{S_OOB}, 0, 0x40000000
        s_waitcnt lgkmcnt(0)
        s_load_dword s{S_TAG}, s[{P_WS}:{P_WS+1}], {WS_EPOCH:#x}
        """.replace(f"s_load_dword s{S_TAG}, s[{P_WS}:{P_WS+1}], {WS_EPOCH:#x}",
                    f"s_add_u32 s4, s{P_WS}, {WS_EPOCH:#x}\ns_addc_u32 s5, s{P_WS+1}, 0\ns_load_dword s28, s[4:5], 0"))
        srd(a, S_FL, P_WS, 0x120000, WS_FL)
        self.stamp(0)
        a(f"s_cmp_ge_u32 s2, {NCONV}\ns_cbranch_scc1 L_side")
        self.tagfix = True
        orig = self.signal
        first = [True]
        def sig(base, idx):
            if first[0]:
                a(f"s_waitcnt lgkmcnt(0)\ns_add_u32 s{S_TAG}, s28, 1"); first[0] = False
            orig(base, idx)
        self.signal = sig
        self.chops = Hops('L_ch'); self.ahops = Hops('L_ah'); self.rhops = Hops('L_rh')
        self.nhc = kw.get('nhc', 4)
        hops = self.fhops = Hops('L_fh') if kw.get('hops', False) else None
        self.conv_path()
        a("s_branch L_common")
        if kw.get('chops', False): self.chops.ret(a)
        if hops: hops.ret(a)
        if kw.get('hopP', False): self.ahops.ret(a)
        if kw.get('hopR', False): self.rhops.ret(a)
        ffn_slow_paths(a, SPIN_MAX, self.diag)
        a("L_side:")
        first[0] = True
        self.side_path()
        a("L_common:")
        self.row_phase(hops)
        kw['NP2'] = sum(kw.get('PL', (3, 0, 0, 3)))
        fk = {k: v for k, v in kw.items() if k not in ('NP1', 'hops', 'nhc', 'hopA', 'hopB', 'hopC', 'sidehops', 'sleepB', 'chops', 'KEARLY', 'waitA', 'MCHK', 'touch', 'NCH', 'dbg', 'fixdur', 'fix0', 'outfl', 'enc', 'poll1', 'sleepD', 'PL', 'hopP', 'hopR', 'LN1', 'pfK', 'early', 'INLOOP', 'ZF', 'convpf', 'PASS', 'CA', 'sidefill', 'ARR')}
        ffn_main(a, hops=hops, stamper=(lambda: self.stamp(16)), **fk)
        if hops: hops.resolve(a, self.nhc)
        if kw.get('chops', False): self.chops.resolve(a, 1)
        if kw.get('hopP', False): self.ahops.resolve(a, 1)
        if kw.get('hopR', False): self.rhops.resolve(a, 1)
        self.reduce_phase()
        a(f"""
        s_cmp_lg_u32 s2, 0
        s_cbranch_scc1 L_noep
        s_cmp_lg_u32 s{S_WAVE}, 0
        s_cbranch_scc1 L_noep
        """)
        srd(a, 20, P_WS, 4, WS_EPOCH)
        a(f"""
        v_mov_b32 v239, s{S_TAG}
        s_mov_b64 exec, 1
        buffer_store_dword v239, off, s[20:23], 0
        s_mov_b64 exec, -1
        L_noep:
        """)
        if self.diag:
            a("s_waitcnt vmcnt(0)"); self.stamp(21)
            srd(a, 20, P_WS, 1 << 20, 0x8000000)
            a(f"""
            s_lshl_b32 s3, s2, 2
            s_add_u32 s3, s3, s{S_WAVE}
            s_lshl_b32 s3, s3, 8
            v_lshlrev_b32 v1, 2, v{LANE}
            buffer_store_dword v{DIAG}, v1, s[20:23], s3 offen
            s_add_u32 s3, s3, 0x80000
            buffer_store_dword v253, v1, s[20:23], s3 offen
            """)
            if kw.get('dbg') is not None:
                srd(a, 20, 90, 256)
                a(f"""
                s_cmp_lg_u32 s2, {kw['dbg']}
                s_cbranch_scc1 L_end
                s_cmp_lg_u32 s{S_WAVE}, 0
                s_cbranch_scc1 L_end
                v_readlane_b32 s3, v{DIAG}, 0
                v_add_u32 v2, -24, v1
                s_nop 1
                v_subrev_u32 v{DIAG}, s3, v{DIAG}
                buffer_store_dword v{DIAG}, v2, s[20:23], 0 offen
                """)
                if kw.get('fixdur'):
                    if kw.get('enc') is not None:
                        a(f"s_nop 1\nv_readlane_b32 s4, v{DIAG}, {kw['enc']}\ns_nop 3\ns_add_u32 s3, s3, s4")
                    a(f"""
                    L_fix:
                    s_memrealtime s[98:99]
                    s_waitcnt lgkmcnt(0)
                    s_sub_u32 s98, s98, {'s100' if kw.get('fix0') else 's3'}
                    s_cmp_lt_u32 s98, {kw['fixdur']}
                    s_cbranch_scc1 L_fix
                    """)
        a("L_end:\ns_endpgm\nL_code_end:")
        REF = 'adaLN_cond__ssm_conv_h3__glu_gated_geglu__prompt.s.ref'
        pre = [l for l in open(REF).read().split('\n') if l.startswith(';') and '@launch' not in l]
        out = pre + [f"; @launch grid=(256,1,1) block=(256,1,1) lds={LDS_TOTAL}", '.amdgcn_target "amdgcn-amd-amdhsa--gfx950"', '.text', a.text(),
                     '.section .rodata,"a"', kernel_desc(NAME, 256 + X1A + 12, 102, 256)]
        return '\n'.join(out) + '\n'

BEST = dict(order=1, GDL=70, FLAG_D=48, ASK2=260, PPACE=6, HPACE=4, ASK_D=48, CPF=6, CPD=2, BG=2, GSPAN=40, NCH=3, PL=(2,0,0,3), waitA=False)
if __name__ == '__main__':
    dst = sys.argv[1] if len(sys.argv) > 1 else 'best.s'
    open(dst, 'w').write(G(verbose=True, **BEST).build())
    open('best_d.s', 'w').write(G(diag=True, stagestamp=3, **BEST).build())
```

```python
from fused import *
V = dict(a=dict(), b=dict(MID=True), c=dict(MID=True, order=6, ASK1=-20, ASK2=240, ASK_D=40, PPACE=5))
for k, kw in V.items():
    open(f'gd_{k}.s','w').write(G(diag=True, verbose=True, stagestamp=3, **{**BEST, **kw}).build())
    open(f'g_{k}.s','w').write(G(**{**BEST, **kw}).build())
```

```python
import sys
from common import *
from ffn import *
NAME = 'adaLN_cond__ssm_conv_h3__glu_gated_geglu__prompt_kernel'
WS_EPOCH = 0x0A00000
WS_FL = 0x0A10000
FB = 0x8000
FC = 0x10000
FA = 0xE8000
FZ = 0xA0000
NB_MOD = 6*D*4
KSTR = 4160
WAVE_LDS = 4*KSTR + 4608
T_OFF = 4*WAVE_LDS
STAT_OFF = RING
MOD_OFF = RING + 1024
LDS_TOTAL = MOD_OFF + 14848
VRZ, VRM, VRH, VRP = 200, 201, 202, 203
NCONV, NMOD = 144, 54
QP, ST = 240, 252
DIAG = 255
SPIN_MAX = 200000

class G:
    def __init__(self, diag=False, **kw):
        self.a = Asm(); self.diag = diag; self.kw = kw; self.nl = 0; self.nst = 0; self.names = []
    def lab(self, p):
        self.nl += 1; return f"L_{p}{self.nl}"
    def stamp(self, idx):
        if self.diag:
            self.a(f"s_memrealtime s[98:99]\ns_waitcnt lgkmcnt(0)\nv_writelane_b32 v{DIAG}, s98, {idx}")

    def signal(self, base, idx_sgpr):
        a = self.a; l = self.lab('sig')
        a(f"""
        s_waitcnt vmcnt(0)
        s_barrier
        s_cmp_lg_u32 s{S_WAVE}, 0
        s_cbranch_scc1 {l}
        s_lshl_b32 s3, s{idx_sgpr}, 7
        s_add_u32 s3, s3, {base}
        v_mov_b32 v239, s{S_TAG}
        s_mov_b64 exec, 1
        buffer_store_dword v239, off, s[{S_FL}:{S_FL+3}], s3 sc1
        s_mov_b64 exec, -1
        {l}:
        """)
    def signal_wave(self, soff):
        self.a(f"v_mov_b32 v239, s{S_TAG}\ns_waitcnt vmcnt(0)\nbuffer_store_dword v239, off, s[{S_FL}:{S_FL+3}], s{soff} sc1")
    def poll(self, vaddr, soff, sleep=1):
        a = self.a; l = self.lab('poll'); d = self.lab('pd')
        a(f"""
        s_mov_b32 s{S_SPIN}, 0
        {l}:
        buffer_load_dword v239, v{vaddr}, s[{S_FL}:{S_FL+3}], s{soff} offen sc1
        s_add_u32 s{S_SPIN}, s{S_SPIN}, 1
        s_waitcnt vmcnt(0)
        v_cmp_ne_u32 vcc, s{S_TAG}, v239
        s_cbranch_vccz {d}
        {'s_sleep ' + str(sleep) if sleep else ''}
        s_cmp_lt_u32 s{S_SPIN}, {SPIN_MAX}
        s_cbranch_scc1 {l}
        {d}:
        """)

    def row_ids(self, vr, vp, t):
        self.a(f"""
        s_lshl_b32 s3, s{S_MT}, 4
        s_add_u32 s3, s3, s{S_GI}
        s_lshl_b32 s3, s3, 3
        v_and_b32 v{vr}, 7, v{LANE}
        v_add_u32 v{vr}, s3, v{vr}
        v_bfe_u32 v{vp}, v{LANE}, 3, 1
        v_lshlrev_b32 v{vp}, 2, v{vp}
        v_bfe_u32 v{t}, v{LANE}, 5, 1
        v_lshl_add_u32 v{vp}, v{t}, 1, v{vp}
        v_bfe_u32 v{t}, v{LANE}, 4, 1
        v_add_u32 v{vp}, v{vp}, v{t}
        s_lshr_b32 s3, s{S_WAVE}, 1
        s_mul_i32 s3, s3, 3
        s_add_u32 s3, s3, s{S_WAVE}
        s_lshl_b32 s3, s3, 3
        v_add_u32 v{vp}, s3, v{vp}
        """)
    def q_loads(self, srdq, t):
        a = self.a
        self.row_ids(t, t+1, t+2)
        srd(a, srdq, P_Q, NB_SD)
        a(f"""
        v_mul_u32_u24 v{t}, 1152, v{t}
        v_lshl_add_u32 v{t}, v{t+1}, 4, v{t}
        buffer_load_dwordx4 v[{QP}:{QP+3}], v{t}, s[{srdq}:{srdq+3}], 0 offen
        buffer_load_dwordx4 v[{QP+4}:{QP+7}], v{t}, s[{srdq}:{srdq+3}], 0 offen offset:256
        buffer_load_dwordx4 v[{QP+8}:{QP+11}], v{t}, s[{srdq}:{srdq+3}], s{S_OOB} offen offset:512
        """)
    def stats(self, ldsoff, t, scale=None, part=3):
        real = a = self.a
        if not part & 1: a = Asm()
        a(f"""
        v_mov_b32 v{t}, 0
        v_mov_b32 v{t+1}, 0
        v_bfe_u32 v{t+2}, v{LANE}, 5, 1
        v_and_b32 v{t+3}, 7, v{LANE}
        v_lshl_add_u32 v{t+2}, v{t+2}, 3, v{t+3}
        v_lshlrev_b32 v{t+2}, 4, v{t+2}
        s_lshl_b32 s3, s{S_WAVE}, 2
        v_add_u32 v{t+2}, {STAT_OFF + ldsoff}, v{t+2}
        v_add_u32 v{t+3}, s3, v{t+2}
        """)
        for i in range(12):
            a(f"v_dot2_f32_bf16 v{t}, v{QP+i}, s{S_ONE}, v{t}\nv_dot2_f32_bf16 v{t+1}, v{QP+i}, v{QP+i}, v{t+1}")
        a(f"""
        s_nop 2
        v_permlane32_swap_b32 v{t}, v{t+1}
        s_nop 1
        v_add_f32 v{t}, v{t}, v{t+1}
        v_mov_b32 v{t+1}, v{t}
        s_nop 1
        v_permlane16_swap_b32 v{t}, v{t+1}
        s_nop 1
        v_add_f32 v{t}, v{t}, v{t+1}
        s_nop 1
        v_add_f32_dpp v{t}, v{t}, v{t} row_ror:8 row_mask:0xf bank_mask:0xf
        ds_write_b32 v{t+3}, v{t}
        """)
        a = real
        if part == 3: a("s_waitcnt lgkmcnt(0)\ns_barrier")
        if not part & 2: return
        a(f"""
        ds_read_b128 v[{t+4}:{t+7}], v{t+2}
        s_waitcnt lgkmcnt(0)
        v_add_f32 v{t+4}, v{t+4}, v{t+5}
        v_add_f32 v{t+6}, v{t+6}, v{t+7}
        v_add_f32 v{t}, v{t+4}, v{t+6}
        v_mul_f32 v{t}, 0x3ae38e39, v{t}
        v_mov_b32 v{t+1}, v{t}
        s_nop 1
        v_permlane32_swap_b32 v{t}, v{t+1}
        s_nop 1
        v_fma_f32 v{t+1}, -v{t}, v{t}, v{t+1}
        v_max_f32 v{t+1}, 0, v{t+1}
        v_add_f32 v{t+1}, 0x3727c5ac, v{t+1}
        v_rsq_f32 v{ST}, v{t+1}
        s_nop 0
        """)
        if scale: a(f"v_mul_f32 v{ST}, {f2u(scale):#x}, v{ST}")
        a(f"v_mul_f32 v{ST+1}, v{t}, v{ST}\nv_sub_f32 v{ST+1}, 0, v{ST+1}")

    def stats_parts(self, ldsoff, t):
        A = [f"v_bfe_u32 v{t+2}, v{LANE}, 5, 1", f"v_and_b32 v{t+3}, 7, v{LANE}", f"v_lshl_add_u32 v{t+2}, v{t+2}, 3, v{t+3}",
             f"v_lshlrev_b32 v{t+2}, 4, v{t+2}", f"v_add_u32 v{t+2}, {STAT_OFF + ldsoff}, v{t+2}",
             f"v_mov_b32 v{t+3}, s{S_WAVE}", f"v_lshl_add_u32 v{t+3}, v{t+3}, 2, v{t+2}", f"v_mov_b32 v{t}, 0", f"v_mov_b32 v{t+1}, 0"]
        for i in range(12):
            A += [f"v_lshlrev_b32 v{t+4}, 16, v{QP+i}", f"v_and_b32 v{t+5}, 0xffff0000, v{QP+i}", f"v_add_f32 v{t}, v{t}, v{t+4}",
                  f"v_fmac_f32 v{t+1}, v{t+4}, v{t+4}", f"v_add_f32 v{t}, v{t}, v{t+5}", f"v_fmac_f32 v{t+1}, v{t+5}, v{t+5}"]
        A += ['', '', f"v_permlane32_swap_b32 v{t}, v{t+1}", '', f"v_add_f32 v{t}, v{t}, v{t+1}", f"v_mov_b32 v{t+1}, v{t}", '', '',
              f"v_permlane16_swap_b32 v{t}, v{t+1}", '', f"v_add_f32 v{t}, v{t}, v{t+1}", '', '',
              f"v_add_f32_dpp v{t}, v{t}, v{t} row_ror:8 row_mask:0xf bank_mask:0xf", f"ds_write_b32 v{t+3}, v{t}"]
        B = [f"ds_read_b128 v[{t+4}:{t+7}], v{t+2}"]
        C = [f"v_add_f32 v{t+4}, v{t+4}, v{t+5}", f"v_add_f32 v{t+6}, v{t+6}, v{t+7}", f"v_add_f32 v{t}, v{t+4}, v{t+6}",
             f"v_mul_f32 v{t}, 0x3ae38e39, v{t}", f"v_mov_b32 v{t+1}, v{t}", '', '', f"v_permlane32_swap_b32 v{t}, v{t+1}", '',
             f"v_fma_f32 v{t+1}, -v{t}, v{t}, v{t+1}", f"v_max_f32 v{t+1}, 0, v{t+1}", f"v_add_f32 v{t+1}, 0x3727c5ac, v{t+1}",
             f"v_rsq_f32 v{ST}, v{t+1}", '', f"v_mul_f32 v{ST+1}, v{t}, v{ST}", f"v_sub_f32 v{ST+1}, 0, v{ST+1}"]
        return A, B, C
    def row_setup(self, t):
        a = self.a
        self.row_ids(t, t+1, t+2)
        a(f"""
        v_lshlrev_b32 v{VRZ}, 15, v{t+1}
        v_lshl_add_u32 v{VRZ}, v{t}, 3, v{VRZ}
        v_lshlrev_b32 v{VRM}, 5, v{t+1}
        v_add_u32 v{VRM}, {MOD_OFF}, v{VRM}
        v_lshrrev_b32 v{VRH}, 4, v{t}
        v_mul_u32_u24 v{VRH}, 18432, v{VRH}
        v_lshl_add_u32 v{VRH}, v{t+1}, 8, v{VRH}
        v_and_b32 v{t+2}, 15, v{t}
        v_lshl_add_u32 v{VRH}, v{t+2}, 4, v{VRH}
        s_lshl_b32 s3, s{S_MT}, 2
        s_add_u32 s3, s3, s{S_WAVE}
        s_mul_i32 s3, s3, 36
        v_min_u32 v{VRP}, 35, v{LANE}
        v_add_u32 v{VRP}, s3, v{VRP}
        v_lshlrev_b32 v{VRP}, 7, v{VRP}
        """)
    def mod_dma(self, sr):
        a = self.a
        srd(a, sr, P_WS, NB_MOD, WS_MOD)
        a(f"s_mul_i32 s91, s{S_WAVE}, 3584\ns_add_u32 m0, s91, {MOD_OFF}\ns_nop 0")
        out = []
        for i in range(4):
            out.append(f"buffer_load_dwordx4 v{VL16}, s[{sr}:{sr+3}], s91 offen offset:{1024*i} sc1 lds")
        return out

    def conv_path(self):
        a = self.a; kw = self.kw
        VA, VB, VTW, VTR, VZ, VU, VPA, VHD = 192, 193, 194, 195, 211, 212, 213, 214
        DG = 196
        G4, I16 = 144, 145
        a(f"""
        s_lshr_b32 s40, s2, 4
        s_and_b32 s41, s2, 15
        v_and_b32 v1, 7, v0
        v_lshrrev_b32 v2, 3, v0
        s_lshl_b32 s42, s41, 7
        s_lshl_b32 s43, s40, 7
        v_lshl_add_u32 v3, v2, 2, s42
        v_mul_u32_u24 v3, 1152, v3
        v_lshl_add_u32 v4, v1, 4, s43
        v_add_u32 v13, v3, v4
        v_add_u32 v10, {(-3*1152) & 0xffffffff:#x}, v13
        v_add_u32 v11, {(-2*1152) & 0xffffffff:#x}, v13
        v_add_u32 v12, {(-1*1152) & 0xffffffff:#x}, v13
        v_lshlrev_b32 v5, 2, v4
        """)
        srd(a, 52, P_K, NB_SD); srd(a, 56, P_V, NB_SD); srd(a, 20, P_SK, D*8)
        for j in (3, 4, 5, 6, 0, 1, 2):
            va, o = (10+j, 0) if j < 3 else (13, (j-3)*1152)
            a(f"buffer_load_dwordx4 v[{16+4*j}:{19+4*j}], v{va}, s[52:55], 0 offen" + (f" offset:{o}" if o else ""))
        for j in range(4):
            a(f"buffer_load_dwordx4 v[{60+4*j}:{63+4*j}], v5, s[20:23], 0 offen" + (f" offset:{16*j}" if j else ""))
        for j in range(4):
            a(f"buffer_load_dwordx4 v[{44+4*j}:{47+4*j}], v13, s[56:59], 0 offen" + (f" offset:{1152*j}" if j else ""))
        a(f"""
        s_lshl_b32 s44, s2, 2
        s_add_u32 s44, s44, s{S_WAVE}
        s_mul_i32 s45, s{S_WAVE}, {WAVE_LDS}
        s_lshl_b32 s46, s44, 12
        s_add_u32 s52, s{P_SSMK}, s46
        s_addc_u32 s53, s{P_SSMK+1}, 0
        s_mov_b32 s54, 4096
        s_mov_b32 s55, 0x20000
        v_lshrrev_b32 v{G4}, 4, v{LANE}
        v_and_b32 v{I16}, 15, v{LANE}
        v_add_u32 v142, v{G4}, v{I16}
        v_add_u32 v142, -16, v142
        v_lshlrev_b32 v142, 1, v142
        s_lshl_b32 s3, s44, 1
        """)
        srd(a, 56, P_SSMD, D*2)
        a(f"""
        v_lshlrev_b32 v143, 4, v{LANE}
        s_mov_b32 s91, s3
        """)
        KR = 152
        def kloads():
            a("buffer_load_ushort v140, v142, s[52:55], 0 offen\nbuffer_load_ushort v141, off, s[56:59], s91")
            for i in range(4):
                a(f"buffer_load_dwordx4 v[{KR+6*i}:{KR+6*i+3}], v143, s[52:55], 0 offen offset:{1024*i}")
                a(f"buffer_load_dwordx2 v[{KR+6*i+4}:{KR+6*i+5}], v143, s[52:55], 0 offen offset:{1024*i+16}")
        KL = kw.get('KLATE', 0)
        if KL == 0: kloads()
        srd(a, 24, P_WS, NB_SD, WS_U)
        a(f"""
        v_lshlrev_b32 v6, 9, v2
        v_lshl_add_u32 v6, v1, 4, v6
        v_add_u32 v6, {T_OFF}, v6
        v_bfe_u32 v7, v{LANE}, 1, 1
        v_lshl_add_u32 v7, v{G4}, 1, v7
        v_lshlrev_b32 v7, 3, v7
        v_bfe_u32 v8, v{LANE}, 2, 2
        v_sub_u32 v7, v7, v8
        v_add_u32 v7, 3, v7
        v_lshlrev_b32 v7, 7, v7
        v_and_b32 v8, 1, v{LANE}
        v_lshl_add_u32 v7, v8, 3, v7
        s_lshl_b32 s3, s{S_WAVE}, 5
        s_add_u32 s3, s3, {T_OFF}
        v_add_u32 v7, s3, v7
        s_lshl_b32 s3, s40, 6
        s_lshl_b32 s47, s{S_WAVE}, 4
        s_add_u32 s3, s3, s47
        v_and_b32 v8, 7, v{LANE}
        v_add_u32 v8, s3, v8
        v_lshlrev_b32 v8, 12, v8
        v_bfe_u32 v9, v{LANE}, 3, 1
        v_lshl_add_u32 v9, v{G4}, 1, v9
        v_lshl_add_u32 v8, v9, 4, v8
        s_lshl_b32 s3, s41, 8
        v_add_u32 v8, s3, v8
        v_add_u32 v9, 0x8000, v8
        v_mov_b32 v146, 0
        v_mov_b32 v147, 0
        v_lshl_add_u32 v148, v{LANE}, 3, s45
        ds_write_b64 v148, v[146:147] offset:{4*KSTR}
        v_mul_u32_u24 v{VHD}, {KSTR}, v{G4}
        v_lshl_add_u32 v{VHD}, v{I16}, 1, v{VHD}
        v_add_u32 v{VHD}, s45, v{VHD}
        v_add_u32 v14, 1, v{I16}
        v_and_b32 v{VA}, 3, v14
        v_mul_u32_u24 v{VA}, {KSTR}, v{VA}
        v_lshrrev_b32 v14, 2, v14
        v_lshl_add_u32 v{VA}, v14, 3, v{VA}
        v_lshlrev_b32 v14, 4, v{G4}
        v_sub_u32 v{VA}, v{VA}, v14
        v_add_u32 v{VA}, 48, v{VA}
        v_add_u32 v{VA}, s45, v{VA}
        v_lshlrev_b32 v{VB}, 5, v{I16}
        v_lshl_add_u32 v{VB}, v{G4}, 4, v{VB}
        s_add_u32 s3, s45, {4*KSTR + 512 - 32 - 448}
        v_add_u32 v{VB}, s3, v{VB}
        v_lshlrev_b32 v{VTW}, 4, v{I16}
        v_lshl_add_u32 v{VTW}, v{G4}, 2, v{VTW}
        s_mul_i32 s3, s{S_WAVE}, {KSTR}
        s_add_u32 s3, s3, {T_OFF}
        v_add_u32 v{VTW}, s3, v{VTW}
        v_bfe_u32 v{VTR}, v{LANE}, 2, 2
        v_mul_u32_u24 v{VTR}, {KSTR}, v{VTR}
        v_lshl_add_u32 v{VTR}, v{G4}, 5, v{VTR}
        v_and_b32 v14, 3, v{LANE}
        v_lshl_add_u32 v{VTR}, v14, 3, v{VTR}
        s_lshl_b32 s3, s{S_WAVE}, 7
        s_add_u32 s3, s3, {T_OFF}
        v_add_u32 v{VTR}, s3, v{VTR}
        s_lshl_b32 s3, s2, 14
        s_lshl_b32 s47, s{S_WAVE}, 10
        s_add_u32 s3, s3, s47
        v_lshl_add_u32 v{VZ}, v{LANE}, 4, s3
        v_lshlrev_b32 v{VU}, 4, v{LANE}
        v_lshlrev_b32 v{VPA}, 7, v{I16}
        """)
        if kw.get('ARR', 1):
            ffn_setup(a, 100)
            self.row_setup(100)
        if KL == 1: kloads()
        self.stamp(1)
        if kw.get('hopP', False): self.ahops.call(a, 0)
        a(f"s_waitcnt vmcnt({14 if KL < 2 else 4})")
        self.stamp(2)
        if kw.get('hopP', False): a.hop = self.ahops
        kd = []
        for c in (0, 2):
            ops = [f"buffer_load_dwordx4 v143, s[52:55], 0 offen offset:{i*1024} lds" for i in range(4)]
            ops[0] = f"s_add_u32 m0, s45, {c*KSTR + 32}\n" + ("v_add_u32 v143, 4, v143\n" if c else "s_nop 0\n") + ops[0]
            kd += ops
        nearly = kw.get('KEARLY', 0)
        early, late = kd[:nearly], kd[nearly:]
        def kdma():
            if early: a(early.pop(0))
        P = lambda x: f"v[{x}:{x+1}]"
        for cp in range(4):
            for j in range(4):
                f = lo if j % 2 == 0 else hi
                f(a, 80+2*j, 60+4*cp+(j >> 1)); f(a, 81+2*j, 62+4*cp+(j >> 1))
            if cp: kdma()
            for i in range(7):
                lo(a, 88+2*i, 16+4*i+cp); hi(a, 89+2*i, 16+4*i+cp)
            if cp: kdma()
            for r in range(4): a(f"v_pk_mul_f32 {P(110+2*r)}, {P(88+2*r)}, {P(86)}")
            for j in (1, 2, 3):
                for r in range(4): a(f"v_pk_fma_f32 {P(110+2*r)}, {P(88+2*(r+j))}, {P(86-2*j)}, {P(110+2*r)}")
            if cp == 0:
                a(f"s_waitcnt vmcnt({10 if KL < 2 else 0})")
                self.stamp(22)
                if KL == 2: kloads()
            kdma()
            for r in range(4):
                lo(a, 102+2*r, 44+4*r+cp); hi(a, 103+2*r, 44+4*r+cp)
            for r in range(4): a(f"v_pk_mul_f32 {P(110+2*r)}, {P(110+2*r)}, {P(102+2*r)}")
            for r in range(4): a(f"v_cvt_pk_bf16_f32 v{120+4*r+cp}, v{110+2*r}, v{111+2*r}")
            kdma()
        for r in range(4):
            a(f"ds_write_b128 v6, v[{120+4*r}:{123+4*r}]" + (f" offset:{128*r}" if r else ""))
        while early: kdma()
        a("s_waitcnt lgkmcnt(0)\ns_barrier")
        n = 0
        for cb in range(2):
            for hq in range(2):
                o = hq*8192 + cb*16
                a(f"ds_read_b64_tr_b16 v[{16+4*n}:{17+4*n}], v7 offset:{o+512}")
                a(f"ds_read_b64_tr_b16 v[{18+4*n}:{19+4*n}], v7 offset:{o}")
                n += 1
        n = 0
        for cb in range(2):
            for hq in range(2):
                a(f"s_waitcnt lgkmcnt({6-2*n})")
                a(f"buffer_store_dwordx4 v[{16+4*n}:{19+4*n}], v{8+cb}, s[24:27], 0 offen" + (" offset:128" if hq else "") + " sc1")
                n += 1
        a.hop = None
        def kcopy():
            a(f"v_lshl_add_u32 v14, v{LANE}, 4, s45")
            for i in range(4):
                for c in range(2):
                    for x in range(4):
                        a(f"v_alignbyte_b32 v{40+8*(i&1)+4*c+x}, v{KR+6*i+x+c+1}, v{KR+6*i+x+c}, 2")
                    a(f"ds_write_b128 v14, v[{40+8*(i&1)+4*c}:{43+8*(i&1)+4*c}] offset:{(1+2*c)*KSTR + 32 + 1024*i}")
            a(f"""
            ds_write_b16 v{VHD}, v140
            v_lshrrev_b32 v10, 3, v{I16}
            v_add_u32 v10, 2, v10
            v_cmp_eq_u32 vcc, v10, v{G4}
            v_and_b32 v11, 7, v{I16}
            v_sub_u32 v11, 7, v11
            v_cndmask_b32 v9, 0, v141, vcc
            v_and_b32 v10, 1, v11
            v_lshlrev_b32 v10, 4, v10
            v_lshlrev_b32 v9, v10, v9
            v_lshrrev_b32 v11, 1, v11
            """)
            for r in range(4):
                a(f"v_cmp_eq_u32 vcc, {r}, v11\ns_nop 1\nv_cndmask_b32 v{DG+r}, 0, v9, vcc")
        self.stamp(3)
        if kw.get('ARR', 1):
            a(f"s_waitcnt vmcnt(4)")
            kcopy()
        else:
            ffn_setup(a, 100)
            self.row_setup(100)
        a(f"""
        s_waitcnt lgkmcnt(0)
        s_add_u32 s{S_TAG}, s28, 1
        s_mul_i32 s3, s{S_WAVE}, 144
        s_add_u32 s3, s3, s2
        s_lshl_b32 s3, s3, 7
        s_add_u32 s3, s3, {FA}
        """)
        self.signal_wave(3)
        a("s_barrier")
        self.stamp(4)
        for o in late: a(o)
        if not kw.get('QLATE'): self.q_loads(56, 1)
        if not kw.get('ARR', 1): kcopy()
        if kw.get('LN1', 'B') == 'A':
            a("s_waitcnt vmcnt(0)")
            self.stats(0, 150)
        a(f"""
        v_min_u32 v{VHD}, 55, v{LANE}
        v_lshlrev_b32 v{VHD}, 7, v{VHD}
        s_mov_b32 s90, {FB + 128*NCONV}
        s_mov_b32 s8, {FB + 128*(NCONV+56)}
        s_mul_i32 s6, s{S_WAVE}, 144
        s_add_u32 s6, s6, s2
        s_lshl_b32 s6, s6, 7
        s_add_u32 s6, s6, {FZ}
        s_cmp_ge_u32 s{S_WAVE}, 2
        s_cselect_b32 s7, 0x40000000, 0
        v_mov_b32 v23, s{S_TAG}
        s_add_u32 s56, s{P_WS}, s46
        s_addc_u32 s57, s{P_WS+1}, 0
        s_mov_b32 s58, 4096
        s_mov_b32 s59, 0x20000
        s_bfe_u32 s4, s2, 0x20002
        s_mul_i32 s4, s4, 9
        s_add_u32 s4, s4, s40
        s_lshl_b32 s4, s4, 11
        s_add_u32 s4, s4, {FA}
        """)
        assert WS_U == 0
        srd(a, 52, P_WS, NB_SD, WS_Z)
        hops = self.chops if kw.get('chops', False) else None
        if hops: hops.call(a, 0)
        self.stamp(5)
        self.poll(VPA, 4, sleep=0)
        self.stamp(6)
        a(f"s_add_u32 m0, s45, {4*KSTR + 512}\ns_nop 0")
        for i in range(4):
            a(f"buffer_load_dwordx4 v{VU}, s[56:59], 0 offen offset:{i*1024} sc1 lds")
        AC = 24; FRG = 64
        A = lambda s, m1: FRG + 64*s + 4*m1
        B = lambda s, n1: FRG + 64*s + 32 + 4*n1
        def rdA(m0, n, s):
            R = []
            for x in range(n):
                R.append(f"ds_read_b64 v[{A(s,x)}:{A(s,x)+1}], v{VA} offset:{512*x + 64*m0}")
                R.append(f"ds_read_b64 v[{A(s,x)+2}:{A(s,x)+3}], v{VA} offset:{512*x + 64*m0+8}")
            return R
        def rdB(m0, n, s):
            return [f"ds_read_b128 v[{B(s,x)}:{B(s,x)+3}], v{VB} offset:{512*x + 64*(7-m0)}" for x in range(n)]
        def mf(w, av, bv, first=False):
            a(f"v_mfma_f32_16x16x32_bf16 v[{AC+4*w}:{AC+4*w+3}], v[{av}:{av+3}], v[{bv}:{bv+3}], " + ("0" if first else f"v[{AC+4*w}:{AC+4*w+3}]"))
        def pack(w, t):
            return [f"v_cvt_pk_bf16_f32 v{t}, v{AC+4*w}, v{AC+4*w+2}", f"v_cvt_pk_bf16_f32 v{t+1}, v{AC+4*w+1}, v{AC+4*w+3}",
                    f"ds_write2st64_b32 v{VTW}, v{t}, v{t+1} offset0:{w} offset1:{w+8}"]
        PASS = kw.get('PASS', (0, 4, 8))
        def units(p):
            u0, u1 = 2*PASS[p], 2*PASS[p+1]
            return [(u, u + 4 > u1) for u in range(u0, u1, 4)]
        def trr(p, t):
            R = []
            for i, (u, h) in enumerate(units(p)):
                R += [f"ds_read_b64_tr_b16 v[{t+4*i}:{t+4*i+1}], v{VTR} offset:{128*u}", f"ds_read_b64_tr_b16 v[{t+4*i+2}:{t+4*i+3}], v{VTR} offset:{128*u + 2048}"]
            return R
        def zst(p, t):
            return [(f"s_add_u32 s96, s7, {1024*u}" if h else f"s_mov_b32 s96, {1024*u}") + f"\nbuffer_store_dwordx4 v[{t+4*i}:{t+4*i+3}], v{VZ}, s[52:55], s96 offen sc1" for i, (u, h) in enumerate(units(p))]
        def zfl(p):
            R = ["s_waitcnt vmcnt(0)"]
            for u, h in units(p):
                R.append(f"s_add_u32 s96, s6, {u*144*128}")
                if h: R.append("s_add_u32 s96, s96, s7")
                R.append(f"buffer_store_dword v23, off, s[{S_FL}:{S_FL+3}], s96 sc1")
            return "\n".join(R)
        steps = []
        for p in range(len(PASS) - 1):
            two = PASS[p+1] <= 4
            steps += [(p, m0, two) for m0 in range(0, 8, 2 if two else 1)]
        def rds(p, m0, two, s):
            n = PASS[p+1]; ra, rb = [], []
            for h in range(2 if two else 1):
                for x in range(n):
                    t = 4*h + x
                    ra += [f"ds_read_b64 v[{A(s,t)}:{A(s,t)+1}], v{VA} offset:{512*x + 64*(m0+h)}", f"ds_read_b64 v[{A(s,t)+2}:{A(s,t)+3}], v{VA} offset:{512*x + 64*(m0+h)+8}"]
                    rb += [f"ds_read_b128 v[{B(s,t)}:{B(s,t)+3}], v{VB} offset:{512*x + 64*(7-m0-h)}"]
            return ra, rb
        ra, rb = rds(*steps[0], 0)
        for r in ra: a(r)
        ffn_setup2(a, 12)
        a("s_waitcnt vmcnt(0)")
        self.stamp(7)
        for r in rb: a(r)
        if kw.get('QLATE'): self.q_loads(56, 1)
        cp_ = kw.get('convpf', '')
        if cp_:
            a(f"""
            s_and_b32 s3, s2, 7
            s_lshr_b32 s5, s2, 3
            s_lshl_b32 s5, s5, 2
            s_add_u32 s5, s5, s{S_WAVE}
            """)
        if 'g' in cp_:
            a(f"""
            s_mul_i32 s9, s3, 1152
            s_lshr_b32 s10, s2, 3
            s_lshl_b32 s10, s10, 1
            s_and_b32 s11, s{S_WAVE}, 1
            s_add_u32 s10, s10, s11
            s_mul_i32 s10, s10, {16*9216}
            s_add_u32 s9, s9, s10
            v_and_b32 v1, 15, v{LANE}
            v_mul_u32_u24 v1, 9216, v1
            v_lshrrev_b32 v2, 4, v{LANE}
            v_min_u32 v2, 2, v2
            v_lshrrev_b32 v3, 1, v2
            v_mul_u32_u24 v3, 3, v3
            v_add3_u32 v2, v2, v3, 3
            v_lshl_add_u32 v1, v2, 7, v1
            buffer_load_dword v22, v1, s[{S_W}:{S_W+3}], s9 offen
            """)
        if 'd' in cp_:
            srd(a, 56, P_WD, D*DF*2)
            a(f"""
            s_mul_i32 s9, s3, {576*1152}
            s_mul_i32 s10, s5, 9216
            s_add_u32 s9, s9, s10
            v_lshlrev_b32 v1, 7, v{LANE}
            v_and_b32 v2, 7, v{LANE}
            v_lshlrev_b32 v2, 7, v2
            v_add_u32 v2, 8192, v2
            buffer_load_dword v22, v1, s[56:59], s9 offen
            buffer_load_dword v22, v2, s[56:59], s9 offen
            """)
        NP_ = len(PASS) - 1
        for n_, (p, m0, two) in enumerate(steps):
            s = n_ & 1
            nxt = []
            if n_ + 1 < len(steps):
                ra, rb = rds(*steps[n_+1], 1-s)
                nxt = rb + ra
            ext = []
            a("s_waitcnt lgkmcnt(0)")
            if p:
                if m0 == 0: ext = ['', ''] + sum([pack(w, 4 + 2*(w - PASS[p-1])) for w in range(PASS[p-1], PASS[p])], [])
                if m0 == 1: a("s_barrier"); ext = trr(p-1, 4)
                if m0 == 2: ext = zst(p-1, 4)
                if m0 == kw.get('ZF', 4):
                    a(zfl(p-1))
                    if p == 1: self.stamp(28)
                if p == NP_ - 1 and m0 == kw.get('MCHK', 5):
                    ext += [f"buffer_load_dword v239, v{VHD}, s[{S_FL}:{S_FL+3}], s90 offen sc1", f"buffer_load_dword v22, v{VHD}, s[{S_FL}:{S_FL+3}], s8 offen sc1"]
            def gap():
                k = 2 if (len(nxt) > left[0] and not ext) else 1
                while k and nxt: a(nxt.pop(0)); k -= 1
                if ext:
                    x = ext.pop(0)
                    if x: a(x)
                left[0] -= 1
            pairs = [(m1 + n1, 4*h + m1, 4*h + n1) for h in range(2 if two else 1) for m1 in range(8) for n1 in range(8 - m1) if PASS[p] <= m1 + n1 < PASS[p+1]]
            nd = PASS[p+1] - PASS[p] if m0 == 0 else 0
            left = [len(pairs) + nd - 8]
            for w in range(PASS[p], PASS[p] + nd):
                mf(w, DG, B(s, w), True); gap()
            for w, x, y in pairs:
                mf(w, A(s, x), B(s, y)); gap()
            for x in nxt + ext:
                if x: a(x)
        self.stamp(8)
        a("s_nop 7")
        for w in range(PASS[-2], 8):
            for x in pack(w, 64 + 2*w): a(x)
        a("s_waitcnt lgkmcnt(0)\ns_barrier")
        for x in trr(NP_-1, 80): a(x)
        zs = zst(NP_-1, 80)
        for i, x in enumerate(zs):
            a(f"s_waitcnt lgkmcnt({2*(len(zs)-1-i)})"); a(x)
        self.stamp(9)
        self.stats(0, 150, part=1)
        a(zfl(NP_-1)); a("s_waitcnt lgkmcnt(0)\ns_barrier")
        self.stamp(23)
        a(f"v_cmp_ne_u32 vcc, s{S_TAG}, v239\nv_cmp_ne_u32 s[4:5], s{S_TAG}, v22\ns_nop 1\ns_or_b64 vcc, vcc, s[4:5]\ns_cbranch_vccz L_modok")
        self.poll(VHD, 90, sleep=1)
        self.poll(VHD, 8, sleep=1)
        a("L_modok:")
        for o in self.mod_dma(56): a(o)
        self.stats(0, 150, part=2)

    def side_path(self):
        a = self.a; kw = self.kw
        if kw.get('touch'):
            sh = kw['touch']
            srd(a, 52, P_WS, 0x4000000); srd(a, 56, P_OUT, NB_SD)
            a(f"v_lshlrev_b32 v1, {sh}, v0\nbuffer_load_dword v238, v1, s[52:55], 0 offen\nbuffer_load_dword v238, v1, s[56:59], 0 offen")
            srd(a, 56, P_WD, D*DF*2)
            a(f"buffer_load_dword v238, v1, s[56:59], 0 offen")
        code_srd(a, 56, 4, 'L_common', 'L_code_end')
        srd(a, 52, P_SSMK, NB_SD)
        a(f"""
        s_sub_u32 s47, s2, {NCONV}
        s_lshr_b32 s47, s47, 3
        s_lshl_b32 s47, s47, 2
        s_add_u32 s47, s47, s{S_WAVE}
        v_min_u32 v2, 7, v{LANE}
        s_lshl_b32 s43, s47, 10
        v_lshlrev_b32 v2, 7, v2
        buffer_load_dword v238, v2, s[56:59], s43 offen
        s_mul_i32 s42, s47, 42
        v_min_u32 v1, 41, v{LANE}
        v_add_u32 v1, s42, v1
        v_lshrrev_b32 v2, 7, v1
        v_and_b32 v1, 127, v1
        v_lshlrev_b32 v1, 7, v1
        v_lshl_add_u32 v1, v2, 17, v1
        s_and_b32 s3, s2, 7
        s_lshl_b32 s3, s3, 14
        {'buffer_load_dword v238, v1, s[52:55], s3 offen' if kw.get('pfK', False) else ''}
        s_mul_hi_u32 s42, s47, 0x2aaaaaab
        s_mul_i32 s43, s42, 6
        s_sub_u32 s43, s47, s43
        s_mul_i32 s43, s43, 3072
        s_add_u32 s42, s42, {kw.get('CA', 7)}
        s_mul_i32 s42, s42, {128*1152}
        s_add_u32 s42, s42, s43
        s_and_b32 s3, s2, 7
        s_mul_i32 s3, s3, {16*1152}
        s_add_u32 s42, s42, s3
        v_min_u32 v1, 23, v{LANE}
        v_lshlrev_b32 v1, 7, v1
        """)
        srd(a, 52, P_Q, NB_SD)
        if not kw.get('QLATE'): a("buffer_load_dword v238, v1, s[52:55], s42 offen")
        if kw.get('MODLATE'):
            self.q_loads(56, 146)
            ffn_setup(a, 100)
            self.row_setup(100)
            a("s_waitcnt vmcnt(0)")
            self.stats(0, 150)
        a(f"s_cmp_ge_u32 s2, {NCONV+NMOD}\ns_cbranch_scc1 L_nomod")
        a(f"""
        s_sub_u32 s40, s2, {NCONV}
        v_and_b32 v1, 7, v0
        v_lshrrev_b32 v2, 3, v0
        v_mul_u32_u24 v3, 6912, v2
        v_lshl_add_u32 v3, v1, 4, v3
        s_lshl_b32 s3, s40, 7
        v_add_u32 v3, s3, v3
        v_lshlrev_b32 v4, 1, v0
        """)
        srd(a, 24, P_C, D*2); srd(a, 52, P_WMOD, D*6912); srd(a, 20, P_WS, NB_MOD, WS_MOD)
        a("""
        buffer_load_ushort v5, v4, s[24:27], 0 offen
        buffer_load_ushort v6, v4, s[24:27], 0 offen offset:512
        buffer_load_ushort v7, v4, s[24:27], 0 offen offset:1024
        s_mov_b32 s41, 0
        """)
        a("s_waitcnt vmcnt(0)")
        for i in range(18):
            a(f"buffer_load_dwordx4 v[{32+4*i}:{35+4*i}], v3, s[52:55], s41 offen")
            if i < 17: a(f"s_add_u32 s41, s41, {32*6912}")
        for r in (5, 6, 7):
            a(f"""
            v_lshlrev_b32 v{r}, 16, v{r}
            v_mul_f32 v8, 0xbfb8aa3b, v{r}
            v_exp_f32 v8, v8
            s_nop 0
            v_add_f32 v8, 1.0, v8
            v_rcp_f32 v8, v8
            s_nop 0
            v_mul_f32 v{r}, v{r}, v8
            v_cvt_pk_bf16_f32 v{r}, v{r}, v{r}
            v_lshlrev_b32 v{r}, 16, v{r}
            """)
        a("""
        v_lshlrev_b32 v9, 2, v0
        ds_write_b32 v9, v5
        ds_write_b32 v9, v6 offset:1024
        ds_write_b32 v9, v7 offset:2048
        v_lshlrev_b32 v10, 2, v2
        s_waitcnt lgkmcnt(0)
        s_barrier
        """)
        for i in range(18):
            a(f"ds_read_b32 v{104+2*i}, v10 offset:{128*i}")
        a("s_waitcnt lgkmcnt(0)")
        for i in range(18):
            a(f"s_waitcnt vmcnt({17-i})")
            for x in range(4):
                t = 24 + 2*(x & 1)
                lo(a, t, 32+4*i+x); hi(a, t+1, 32+4*i+x)
                if i == 0: a(f"v_pk_mul_f32 v[{16+2*x}:{17+2*x}], v[{t}:{t+1}], v[{104+2*i}:{105+2*i}] op_sel_hi:[1,0]")
                else:      a(f"v_pk_fma_f32 v[{16+2*x}:{17+2*x}], v[{t}:{t+1}], v[{104+2*i}:{105+2*i}], v[{16+2*x}:{17+2*x}] op_sel_hi:[1,0,1]")
        a("""
        v_lshlrev_b32 v13, 8, v2
        v_lshl_add_u32 v13, v1, 5, v13
        ds_write_b128 v13, v[16:19] offset:4096
        ds_write_b128 v13, v[20:23] offset:4112
        s_waitcnt lgkmcnt(0)
        s_barrier
        """)
        a(f"s_cmp_lg_u32 s{S_WAVE}, 0\ns_cbranch_scc1 L_nomod")
        for i in range(32):
            a(f"ds_read_b32 v{32+i}, v9 offset:{4096 + 256*i}")
        a("s_waitcnt lgkmcnt(0)")
        for st in (16, 8, 4, 2):
            for i in range(0, st, 2):
                a(f"v_pk_add_f32 v[{32+i}:{33+i}], v[{32+i}:{33+i}], v[{32+i+st}:{33+i+st}]")
        a(f"""
        v_add_f32 v32, v32, v33
        s_mov_b32 s3, 0x1c71c71d
        v_cvt_pk_bf16_f32 v32, v32, v32
        s_mul_hi_u32 s41, s40, s3
        s_cmp_eq_u32 s41, 1
        s_cselect_b32 s42, 1.0, 0
        s_cmp_eq_u32 s41, 4
        s_cselect_b32 s42, 1.0, s42
        v_lshlrev_b32 v32, 16, v32
        v_add_f32 v32, s42, v32
        s_cmp_eq_u32 s41, 3
        s_cselect_b32 s43, {f2u(ALPHA):#x}, 1.0
        s_cmp_eq_u32 s41, 5
        s_cselect_b32 s43, {f2u(1/ALPHA**2):#x}, s43
        v_cvt_pk_bf16_f32 v32, v32, v32
        v_lshlrev_b32 v32, 16, v32
        v_mul_f32 v32, s43, v32
        s_lshl_b32 s3, s40, 8
        buffer_store_dword v32, v9, s[20:23], s3 offen sc1
        L_nomod:
        """)
        self.stamp(3)
        self.signal(FB, 2)
        if not kw.get('MODLATE') and kw.get('QLATE') != 2: self.q_loads(56, 146)
        self.stamp(4)
        if kw.get('waitA', True):
            a(f"""
            v_and_b32 v146, 15, v{LANE}
            v_lshlrev_b32 v146, 7, v146
            s_and_b32 s40, s2, 7
            s_lshl_b32 s4, s40, 11
            s_add_u32 s4, s4, {FA}
            """)
            self.poll(146, 4, sleep=2)
        if kw.get('QLATE') == 2: self.q_loads(56, 146)
        NCH = kw.get('NCH', 2); per = -(-1152*NCH//56)
        srd(a, 20, P_WG, D*DF*2); srd(a, 24, P_WU, D*DF*2)
        a(f"""
        s_and_b32 s40, s2, 7
        s_mul_i32 s43, s40, 1152
        s_sub_u32 s47, s2, {NCONV}
        s_lshr_b32 s47, s47, 3
        s_lshl_b32 s47, s47, 2
        s_add_u32 s47, s47, s{S_WAVE}
        s_mul_i32 s42, s47, {per}
        v_min_u32 v1, {per-1}, v{LANE}
        v_add_u32 v1, s42, v1
        s_mov_b32 s44, {-(-(1 << 32)//1152):#x}
        v_mul_hi_u32 v3, s44, v1
        v_mul_u32_u24 v4, 1152, v3
        v_sub_u32 v4, v1, v4
        v_lshlrev_b32 v3, 7, v3
        v_and_b32 v5, 1, v4
        v_mul_u32_u24 v5, 640, v5
        v_add_u32 v3, v3, v5
        v_lshrrev_b32 v4, 1, v4
        v_mul_u32_u24 v4, 9216, v4
        v_add_u32 v3, v3, v4
        buffer_load_dword v238, v3, s[20:23], s43 offen
        buffer_load_dword v238, v3, s[24:27], s43 offen
        """)
        npf = 2
        if kw.get('PRE2'):
            npf = 4
            a(f"""
            s_mul_i32 s42, s47, 31
            v_min_u32 v1, 30, v{LANE}
            v_add_u32 v1, s42, v1
            s_mov_b32 s44, 0x55555556
            v_mul_hi_u32 v3, s44, v1
            v_mul_u32_u24 v4, 3, v3
            v_sub_u32 v4, v1, v4
            v_mul_u32_u24 v3, 9216, v3
            v_lshrrev_b32 v5, 1, v4
            v_mul_u32_u24 v5, 3, v5
            v_add3_u32 v4, v4, v5, 3
            v_lshl_add_u32 v3, v4, 7, v3
            buffer_load_dword v238, v3, s[20:23], s43 offen
            buffer_load_dword v238, v3, s[24:27], s43 offen
            """)
        self.stamp(6)
        if not kw.get('MODLATE'):
            ffn_setup(a, 100)
            self.row_setup(100)
            a(f"s_waitcnt vmcnt({npf})")
            self.stats(0, 150)
        a(f"""
        v_min_u32 v147, {NMOD-1}, v{LANE}
        v_lshlrev_b32 v147, 7, v147
        s_mov_b32 s11, {FB + 128*NCONV}
        """)
        self.poll(147, 11, sleep=2)
        for o in self.mod_dma(52): a(o)
        ffn_setup2(a, 100)
        if self.fhops and self.kw.get('sidehops', True):
            for c in range(self.nhc): self.fhops.call(a, c)
        self.stamp(23)

    def row_phase(self, hops):
        a = self.a; kw = self.kw
        NP1 = kw.get('NP1', 3); NP2 = kw.get('NP2', 6)
        PL = kw.get('PL', (3, 0, 0, 3)); pf = [sum(PL[:i]) for i in range(5)]
        ffn_prefill(a, range(pf[0], pf[1]))
        if kw.get('sidefill', False):
            a(f"s_cmp_lt_u32 s2, {NCONV}\ns_cbranch_scc1 L_nofill1")
            ffn_prefill(a, range(pf[3], pf[4]))
            a("L_nofill1:")
        srd(a, S_X, P_WS, NB_X, WS_X)
        srd(a, 52, P_WS, NB_SD, WS_Z)
        a(f"""
        s_mov_b32 s4, {FZ}
        s_mov_b32 s5, 0x4000
        s_mov_b32 s6, 0x80000
        s_mov_b32 s7, 0x84000
        s_add_u32 s8, s{S_OOB}, 0x100000
        s_add_u32 s11, s{S_OOB}, 0x104000
        s_mov_b32 s9, 4096
        s_add_u32 s10, s{S_OOB}, 8192
        """)
        so = ['0', 's5', 's6', 's7', 's8', 's11']
        MV = lambda i, v: 16 + 40*i + 8*v
        for c in kw.get('hopB', ()): hops.call(a, c)
        if kw.get('hopR', False): self.rhops.call(a, 0)
        self.stamp(10)
        self.poll(VRP, 4, sleep=kw.get('sleepB', 1))
        a("s_barrier")
        self.stamp(11)
        for i in range(6):
            a(f"buffer_load_dwordx2 v[{2*i}:{2*i+1}], v{VRZ}, s[52:55], {so[i]} offen sc1")
        ffn_prefill(a, range(pf[1], pf[2]))
        for vs in ((0, 1, 2), (3, 4)):
            for i in range(3):
                for v in vs:
                    for h in range(2):
                        a(f"ds_read_b128 v[{MV(i,v)+4*h}:{MV(i,v)+4*h+3}], v{VRM} offset:{2304*v + 512*i + 16*h}")
        a("s_waitcnt lgkmcnt(12)")
        if kw.get('hopR', False): a.hop = self.rhops
        P = lambda x: f"v[{x}:{x+1}]"
        BC = "op_sel:[0,0,1] op_sel_hi:[1,0,1]"
        for i in range(3):
            a(f"s_waitcnt vmcnt({2*(2-i) + 6*PL[1]})")
            if i == 0: self.stamp(12)
            for c2 in range(0, 4, 2):
                cs = (c2, c2+1); X = {c: 144 + 6*(c & 1) for c in cs}
                for c in cs: lo(a, X[c], QP+4*i+c); hi(a, X[c]+1, QP+4*i+c)
                for c in cs: a(f"v_pk_fma_f32 {P(X[c]+2)}, {P(X[c])}, {P(ST)}, {P(ST)} {BC}")
                for c in cs: lo(a, X[c]+4, 4*i+c); hi(a, X[c]+5, 4*i+c)
                for c in cs: a(f"v_pk_fma_f32 {P(X[c]+2)}, {P(X[c]+2)}, {P(MV(i,1)+2*c)}, {P(MV(i,0)+2*c)}")
                for c in cs: a(f"v_pk_mul_f32 {P(X[c]+2)}, {P(X[c]+2)}, {P(X[c]+4)}")
                for c in cs: a(f"v_pk_fma_f32 {P(X[c]+2)}, {P(X[c]+2)}, {P(MV(i,2)+2*c)}, {P(X[c])}")
                for c in cs: a(f"v_cvt_pk_bf16_f32 v{QP+4*i+c}, v{X[c]+2}, v{X[c]+3}")
        self.stats(256, 160, scale=ALPHA)
        ffn_prefill(a, range(pf[2], pf[3]))
        sh = ['0', 's9', 's10']
        for i in range(3):
            for c2 in range(0, 4, 2):
                cs = (c2, c2+1); X = {c: 144 + 6*(c & 1) for c in cs}
                for c in cs: lo(a, X[c], QP+4*i+c); hi(a, X[c]+1, QP+4*i+c)
                for c in cs: a(f"v_pk_fma_f32 {P(X[c])}, {P(X[c])}, {P(ST)}, {P(ST)} {BC}")
                for c in cs: a(f"v_pk_fma_f32 {P(X[c])}, {P(X[c])}, {P(MV(i,4)+2*c)}, {P(MV(i,3)+2*c)}")
                for c in cs: a(f"v_cvt_pk_bf16_f32 v{4*i+c}, v{X[c]}, v{X[c]+1}")
            a(f"buffer_store_dwordx4 v[{4*i}:{4*i+3}], v{VRH}, s[{S_H}:{S_H+3}], {sh[i]} offen sc1")
        a.hop = None
        self.stamp(13)
        for i in range(12): a(f"v_accvgpr_write_b32 a{X1A+i}, v{QP+i}")
        a(f"s_lshl_b32 s4, s{S_MT}, 4\ns_add_u32 s4, s4, s{S_GI}")
        self.signal(FC, 4)
        if kw.get('sidefill', False): a(f"s_cmp_ge_u32 s2, {NCONV}\ns_cbranch_scc1 L_nofill2")
        ffn_prefill(a, range(pf[3], pf[4]))
        if kw.get('sidefill', False): a("L_nofill2:")
        code_srd(a, 52, 4, 'L_common', 'L_code_end', back=True)
        a(f"v_mov_b32 v{VTAG}, s{S_TAG}")
        ffn_setup3(a)
        self.reduce_setup(100)
        a(f"""
        v_and_b32 v146, 15, v{LANE}
        v_lshlrev_b32 v146, 7, v146
        s_lshl_b32 s9, s{S_MT}, 11
        s_add_u32 s9, s9, {FC}
        """)
        for c in kw.get('hopC', ()): hops.call(a, c)
        self.stamp(14)
        self.poll(146, 9, sleep=0)
        self.stamp(15)

    def reduce_setup(self, t):
        a = self.a
        self.row_ids(t, t+1, t+2)
        a(f"""
        v_mul_u32_u24 v{VEO}, 1152, v{t}
        v_lshl_add_u32 v{VEO}, v{t+1}, 4, v{VEO}
        v_lshrrev_b32 v{VEP}, 5, v{t}
        v_mul_u32_u24 v{VEP}, 9, v{VEP}
        v_lshrrev_b32 v{t+2}, 3, v{t+1}
        v_add_u32 v{VEP}, v{t+2}, v{VEP}
        v_lshlrev_b32 v{VEP}, 12, v{VEP}
        v_bfe_u32 v{t+2}, v{t}, 4, 1
        v_lshl_add_u32 v{VEP}, v{t+2}, 10, v{VEP}
        v_bfe_u32 v{t+2}, v{LANE}, 3, 1
        v_lshl_add_u32 v{VEP}, v{t+2}, 11, v{VEP}
        v_bfe_u32 v{t+2}, v{LANE}, 4, 1
        v_lshl_add_u32 v{VEP}, v{t+2}, 9, v{VEP}
        v_bfe_u32 v{t+2}, v{LANE}, 5, 1
        v_lshl_add_u32 v{VEP}, v{t+2}, 8, v{VEP}
        v_and_b32 v{t+2}, 15, v{t}
        v_lshl_add_u32 v{VEP}, v{t+2}, 4, v{VEP}
        v_lshlrev_b32 v{VEG}, 5, v{t+1}
        v_add_u32 v{VEG}, {MOD_OFF + 5*2304}, v{VEG}
        s_lshl_b32 s3, s{S_MT}, 2
        s_lshr_b32 s4, s{S_GI}, 2
        s_add_u32 s4, s4, s3
        s_lshl_b32 s4, s4, 11
        v_and_b32 v{VEF}, 15, v{LANE}
        v_lshl_add_u32 v{VEF}, v{VEF}, 7, s4
        s_add_u32 s3, s3, s{S_WAVE}
        s_lshl_b32 s3, s3, 4
        s_add_u32 s3, s3, s{S_GI}
        s_lshl_b32 s3, s3, 7
        s_add_u32 s{S_FD}, s3, {FD1}
        """)
    def reduce_phase(self):
        a = self.a; kw = self.kw
        early = kw.get('early', True)
        self.stamp(17)
        srd(a, 12, P_OUT, NB_SD)
        a(f"""
        s_mov_b32 s4, {FD1}
        s_mov_b32 s7, {FD2}
        s_add_u32 s8, s{S_FD}, {FD2 - FD1}
        {f'buffer_load_dword v239, v{VEF}, s[{S_FL}:{S_FL+3}], s4 offen sc1' if early and not kw.get('ASK3') else ''}
        s_mov_b32 s5, 0x3f80
        s_mov_b32 s6, 0x3f800000
        v_add_u32 v222, 8192, v{VEP}
        v_add_u32 v223, 16384, v{VEP}
        v_add_u32 v223, s{S_OOB}, v223
        """)
        for i in range(3):
            for h in range(2):
                a(f"ds_read_b128 v[{192+8*i+4*h}:{195+8*i+4*h}], v{VEG} offset:{512*i + 16*h}")
        va = [VEP, 222, 223]; RD = [32, 64, 128]
        def loads(i):
            a("s_mov_b32 s9, 0")
            for sl in range(8):
                a(f"buffer_load_dwordx4 v[{RD[i]+4*sl}:{RD[i]+4*sl+3}], v{va[i]}, s[{S_P}:{S_P+3}], s9 offen sc1")
                if sl < 7: a(f"s_add_u32 s9, s9, {NB_SD}")
        pub = f"buffer_store_dword v{VTAG}, off, s[{S_FL}:{S_FL+3}], s8 sc1"
        if kw.get('ASK3'):
            a(f"v_cmp_ne_u32 vcc, s{S_TAG}, v239\ns_cbranch_vccnz L_e1late")
            loads(0)
            a(f"s_waitcnt vmcnt(8)\n{pub}\ns_branch L_e1done\nL_e1late:\ns_waitcnt vmcnt(0)\n{pub}")
            self.poll(VEF, 4, sleep=0)
            loads(0)
            a("L_e1done:")
            self.stamp(18)
        else:
            a(f"s_waitcnt vmcnt(0)\n{pub}")
            self.stamp(18)
            if early:
                a(f"v_cmp_ne_u32 vcc, s{S_TAG}, v239\ns_cbranch_vccz L_e1ok")
                self.poll(VEF, 4, sleep=0)
                a("L_e1ok:")
                loads(0)
        AC = 226
        def finish(i, waits):
            for e in range(8): a(f"v_mov_b32 v{AC+e}, 0")
            for sl in range(8):
                if waits is not None: a(f"s_waitcnt vmcnt({waits - sl})")
                for x in range(4):
                    a(f"v_dot2_f32_bf16 v{AC+2*x}, v{RD[i]+4*sl+x}, s5, v{AC+2*x}")
                    a(f"v_dot2_f32_bf16 v{AC+2*x+1}, v{RD[i]+4*sl+x}, s6, v{AC+2*x+1}")
            for x in range(4): a(f"v_accvgpr_read_b32 v{QP+x}, a{X1A+4*i+x}")
            for e in range(4): a(f"v_permlane32_swap_b32 v{AC+e}, v{AC+4+e}")
            for x in range(4):
                lo(a, 234, QP+x); hi(a, 235, QP+x)
                a(f"v_pk_fma_f32 v[234:235], v[{AC+2*x}:{AC+2*x+1}], v[{192+8*i+2*x}:{193+8*i+2*x}], v[234:235]")
                a(f"v_cvt_pk_bf16_f32 v{QP+4+x}, v234, v235")
            a(f"buffer_store_dwordx4 v[{QP+4}:{QP+7}], v{VEO}, s[12:15], {'s%d' % S_OOB if i == 2 else '0'} offen" + (f" offset:{256*i}" if i else "") + kw.get('outfl', ''))
            a("s_nop 1")
        if kw.get('MID'):
            a(f"s_bitcmp1_b32 s{S_WAVE}, 0\ns_cselect_b32 s10, s7, {FD3}")
            self.poll(VEF, 10, sleep=0)
            self.stamp(19)
            loads(1)
            a("s_waitcnt lgkmcnt(0)")
            finish(0, None)
            a(f"s_cmp_lg_u32 s{S_WAVE}, 0\ns_cbranch_scc1 L_e2only")
            self.poll(VEF, 7, sleep=0)
            loads(2)
            finish(1, None)
            finish(2, 8)
            a("s_branch L_edone\nL_e2only:")
            finish(1, 8)
            a("L_edone:")
        else:
            self.poll(VEF, 7, sleep=0)
            self.stamp(19)
            if not early: loads(0)
            loads(1); loads(2)
            a("s_waitcnt lgkmcnt(0)")
            for i in range(3): finish(i, None if (early and i == 0) else 23 - 7*i)
        self.stamp(20)

    def build(self):
        a = self.a; kw = self.kw
        a(kernel_head(NAME))
        if kw.get('fix0'): a("s_memrealtime s[100:101]")
        a(f"""
        s_cmp_ge_u32 s2, 256
        s_cbranch_scc1 L_end
        s_load_dwordx16 s[64:79], s[0:1], 0
        s_load_dwordx8 s[80:87], s[0:1], 64
        s_load_dwordx4 s[88:91], s[0:1], 96
        s_load_dwordx2 s[92:93], s[0:1], 112
        """)
        if self.diag: a(f"v_mov_b32 v{DIAG}, 0")
        code_srd(a, 56, 4, 'L_start', 'L_common')
        a(f"""
        L_start:
        v_lshlrev_b32 v1, 7, v0
        v_lshrrev_b32 v2, 6, v0
        v_and_b32 v{LANE}, 63, v0
        buffer_load_dword v238, v1, s[56:59], 0 offen
        v_readfirstlane_b32 s{S_WAVE}, v2
        s_lshr_b32 s3, s2, 3
        s_lshr_b32 s{S_MT}, s3, 1
        s_add_u32 s6, s{S_MT}, {kw.get('CA', 7)}
        s_sub_u32 s7, s{S_MT}, 9
        s_cmp_lt_u32 s7, {kw.get('CA', 7)}
        s_cselect_b32 s7, s7, s{S_MT}
        s_cmp_lt_u32 s{S_MT}, 9
        s_cselect_b32 s{S_MT}, s6, s7
        s_and_b32 s3, s3, 1
        s_and_b32 s{S_GI}, s2, 7
        s_lshl_b32 s{S_GI}, s{S_GI}, 1
        s_add_u32 s{S_GI}, s{S_GI}, s3
        s_mov_b32 s{S_ONE}, 0x3f803f80
        s_cmp_eq_u32 s{S_WAVE}, 0
        s_cselect_b32 s{S_OOB}, 0, 0x40000000
        s_waitcnt lgkmcnt(0)
        s_load_dword s{S_TAG}, s[{P_WS}:{P_WS+1}], {WS_EPOCH:#x}
        """.replace(f"s_load_dword s{S_TAG}, s[{P_WS}:{P_WS+1}], {WS_EPOCH:#x}",
                    f"s_add_u32 s4, s{P_WS}, {WS_EPOCH:#x}\ns_addc_u32 s5, s{P_WS+1}, 0\ns_load_dword s28, s[4:5], 0"))
        srd(a, S_FL, P_WS, 0x120000, WS_FL)
        self.stamp(0)
        a(f"s_cmp_ge_u32 s2, {NCONV}\ns_cbranch_scc1 L_side")
        self.tagfix = True
        orig = self.signal
        first = [True]
        def sig(base, idx):
            if first[0]:
                a(f"s_waitcnt lgkmcnt(0)\ns_add_u32 s{S_TAG}, s28, 1"); first[0] = False
            orig(base, idx)
        self.signal = sig
        self.chops = Hops('L_ch'); self.ahops = Hops('L_ah'); self.rhops = Hops('L_rh')
        self.nhc = kw.get('nhc', 4)
        hops = self.fhops = Hops('L_fh') if kw.get('hops', False) else None
        self.conv_path()
        a("s_branch L_common")
        if kw.get('chops', False): self.chops.ret(a)
        if hops: hops.ret(a)
        if kw.get('hopP', False): self.ahops.ret(a)
        if kw.get('hopR', False): self.rhops.ret(a)
        ffn_slow_paths(a, SPIN_MAX, self.diag)
        a("L_side:")
        first[0] = True
        self.side_path()
        a("L_common:")
        self.row_phase(hops)
        kw['NP2'] = sum(kw.get('PL', (3, 0, 0, 3)))
        fk = {k: v for k, v in kw.items() if k not in ('NP1', 'hops', 'nhc', 'hopA', 'hopB', 'hopC', 'sidehops', 'sleepB', 'chops', 'KEARLY', 'waitA', 'MCHK', 'touch', 'NCH', 'dbg', 'fixdur', 'fix0', 'outfl', 'enc', 'poll1', 'sleepD', 'PL', 'hopP', 'hopR', 'LN1', 'pfK', 'early', 'INLOOP', 'ZF', 'convpf', 'PASS', 'CA', 'sidefill', 'ARR', 'KLATE', 'MODLATE', 'QLATE', 'PRE2')}
        ffn_main(a, hops=hops, stamper=(lambda: self.stamp(16)), **fk)
        if hops: hops.resolve(a, self.nhc)
        if kw.get('chops', False): self.chops.resolve(a, 1)
        if kw.get('hopP', False): self.ahops.resolve(a, 1)
        if kw.get('hopR', False): self.rhops.resolve(a, 1)
        self.reduce_phase()
        a(f"""
        s_cmp_lg_u32 s2, 0
        s_cbranch_scc1 L_noep
        s_cmp_lg_u32 s{S_WAVE}, 0
        s_cbranch_scc1 L_noep
        """)
        srd(a, 20, P_WS, 4, WS_EPOCH)
        a(f"""
        v_mov_b32 v239, s{S_TAG}
        s_mov_b64 exec, 1
        buffer_store_dword v239, off, s[20:23], 0 sc1
        s_mov_b64 exec, -1
        L_noep:
        """)
        if self.diag:
            a("s_waitcnt vmcnt(0)"); self.stamp(21)
            srd(a, 20, P_WS, 1 << 20, 0x8000000)
            a(f"""
            s_lshl_b32 s3, s2, 2
            s_add_u32 s3, s3, s{S_WAVE}
            s_lshl_b32 s3, s3, 8
            v_lshlrev_b32 v1, 2, v{LANE}
            buffer_store_dword v{DIAG}, v1, s[20:23], s3 offen
            s_add_u32 s3, s3, 0x80000
            buffer_store_dword v253, v1, s[20:23], s3 offen
            """)
            if kw.get('dbg') is not None:
                a(f's_load_dwordx2 s[90:91], s[0:1], {DBG}\ns_waitcnt lgkmcnt(0)')
                srd(a, 20, 90, 256)
                a(f"""
                s_cmp_lg_u32 s2, {kw['dbg']}
                s_cbranch_scc1 L_end
                s_cmp_lg_u32 s{S_WAVE}, 0
                s_cbranch_scc1 L_end
                v_readlane_b32 s3, v{DIAG}, 0
                v_add_u32 v2, -24, v1
                s_nop 1
                v_subrev_u32 v{DIAG}, s3, v{DIAG}
                buffer_store_dword v{DIAG}, v2, s[20:23], 0 offen
                """)
                if kw.get('fixdur'):
                    if kw.get('enc') is not None:
                        a(f"s_nop 1\nv_readlane_b32 s4, v{DIAG}, {kw['enc']}\ns_nop 3\ns_add_u32 s3, s3, s4")
                    a(f"""
                    L_fix:
                    s_memrealtime s[98:99]
                    s_waitcnt lgkmcnt(0)
                    s_sub_u32 s98, s98, {'s100' if kw.get('fix0') else 's3'}
                    s_cmp_lt_u32 s98, {kw['fixdur']}
                    s_cbranch_scc1 L_fix
                    """)
        a("L_end:\ns_endpgm\nL_code_end:")
        REF = 'adaLN_cond__ssm_conv_h3__glu_gated_geglu__prompt.s.ref'
        pre = [l for l in open(REF).read().split('\n') if l.startswith(';') and '@launch' not in l]
        out = pre + [f"; @launch grid=(256,1,1) block=(256,1,1) lds={LDS_TOTAL}", '.amdgcn_target "amdgcn-amd-amdhsa--gfx950"', '.text', a.text(),
                     '.section .rodata,"a"', kernel_desc(NAME, 256 + X1A + 12, 102, 256)]
        return '\n'.join(out) + '\n'

BEST = dict(order=1, GDL=70, FLAG_D=48, ASK2=260, PPACE=6, HPACE=4, ASK_D=48, CPF=6, CPD=2, BG=2, GSPAN=40, NCH=3, PL=(2,0,0,3), waitA=True, outfl=' sc1', KLATE=2, QLATE=2, ZF=5, MCHK=6, PF=default_pf(d=(13, 15)))
if __name__ == '__main__':
    dst = sys.argv[1] if len(sys.argv) > 1 else 'best.s'
    open(dst, 'w').write(G(verbose=True, **BEST).build())
    open('best_d.s', 'w').write(G(diag=True, stagestamp=3, **BEST).build())
```

```python
import sys
from common import *
from ffn import *
NAME = 'adaLN_cond__ssm_conv_h3__glu_gated_geglu__prompt_kernel'
WS_EPOCH = 0x0A00000
WS_FL = 0x0A10000
FB = 0x8000
FC = 0x10000
FA = 0xE8000
FZ = 0xA0000
NB_MOD = 6*D*4
KSTR = 4160
WAVE_LDS = 4*KSTR + 4608
T_OFF = 4*WAVE_LDS
STAT_OFF = RING
MOD_OFF = RING + 1024
LDS_TOTAL = MOD_OFF + 14848
VRZ, VRM, VRH, VRP = 200, 201, 202, 203
NCONV, NMOD = 144, 54
QP, ST = 240, 252
DIAG = 255
SPIN_MAX = 200000

class G:
    def __init__(self, diag=False, **kw):
        self.a = Asm(); self.diag = diag; self.kw = kw; self.nl = 0; self.nst = 0; self.names = []
    def lab(self, p):
        self.nl += 1; return f"L_{p}{self.nl}"
    def nt(self, c):
        return ' nt' if c in self.kw.get('NT', '') else ''
    def stamp(self, idx):
        if self.diag:
            self.a(f"s_memrealtime s[98:99]\ns_waitcnt lgkmcnt(0)\nv_writelane_b32 v{DIAG}, s98, {idx}")

    def signal(self, base, idx_sgpr):
        a = self.a; l = self.lab('sig')
        a(f"""
        s_waitcnt vmcnt(0)
        s_barrier
        s_cmp_lg_u32 s{S_WAVE}, 0
        s_cbranch_scc1 {l}
        s_lshl_b32 s3, s{idx_sgpr}, 7
        s_add_u32 s3, s3, {base}
        v_mov_b32 v239, s{S_TAG}
        s_mov_b64 exec, 1
        buffer_store_dword v239, off, s[{S_FL}:{S_FL+3}], s3 sc1
        s_mov_b64 exec, -1
        {l}:
        """)
    def signal_wave(self, soff, n=0):
        self.a(f"v_mov_b32 v239, s{S_TAG}\ns_waitcnt vmcnt({n})\nbuffer_store_dword v239, off, s[{S_FL}:{S_FL+3}], s{soff} sc1")
    def poll(self, vaddr, soff, sleep=1):
        a = self.a; l = self.lab('poll'); d = self.lab('pd')
        a(f"""
        s_mov_b32 s{S_SPIN}, 0
        {l}:
        buffer_load_dword v239, v{vaddr}, s[{S_FL}:{S_FL+3}], s{soff} offen sc1
        s_add_u32 s{S_SPIN}, s{S_SPIN}, 1
        s_waitcnt vmcnt(0)
        v_cmp_ne_u32 vcc, s{S_TAG}, v239
        s_cbranch_vccz {d}
        {'s_sleep ' + str(sleep) if sleep else ''}
        s_cmp_lt_u32 s{S_SPIN}, {SPIN_MAX}
        s_cbranch_scc1 {l}
        {d}:
        """)

    def row_ids(self, vr, vp, t):
        self.a(f"""
        s_lshl_b32 s3, s{S_MT}, 4
        s_add_u32 s3, s3, s{S_GI}
        s_lshl_b32 s3, s3, 3
        v_and_b32 v{vr}, 7, v{LANE}
        v_add_u32 v{vr}, s3, v{vr}
        v_bfe_u32 v{vp}, v{LANE}, 3, 1
        v_lshlrev_b32 v{vp}, 2, v{vp}
        v_bfe_u32 v{t}, v{LANE}, 5, 1
        v_lshl_add_u32 v{vp}, v{t}, 1, v{vp}
        v_bfe_u32 v{t}, v{LANE}, 4, 1
        v_add_u32 v{vp}, v{vp}, v{t}
        s_lshr_b32 s3, s{S_WAVE}, 1
        s_mul_i32 s3, s3, 3
        s_add_u32 s3, s3, s{S_WAVE}
        s_lshl_b32 s3, s3, 3
        v_add_u32 v{vp}, s3, v{vp}
        """)
    def q_loads(self, srdq, t):
        a = self.a
        self.row_ids(t, t+1, t+2)
        srd(a, srdq, P_Q, NB_SD)
        a(f"""
        v_mul_u32_u24 v{t}, 1152, v{t}
        v_lshl_add_u32 v{t}, v{t+1}, 4, v{t}
        buffer_load_dwordx4 v[{QP}:{QP+3}], v{t}, s[{srdq}:{srdq+3}], 0 offen{self.nt('q')}
        buffer_load_dwordx4 v[{QP+4}:{QP+7}], v{t}, s[{srdq}:{srdq+3}], 0 offen offset:256{self.nt('q')}
        buffer_load_dwordx4 v[{QP+8}:{QP+11}], v{t}, s[{srdq}:{srdq+3}], s{S_OOB} offen offset:512{self.nt('q')}
        """)
    def stats(self, ldsoff, t, scale=None, part=3):
        real = a = self.a
        if not part & 1: a = Asm()
        a(f"""
        v_mov_b32 v{t}, 0
        v_mov_b32 v{t+1}, 0
        v_bfe_u32 v{t+2}, v{LANE}, 5, 1
        v_and_b32 v{t+3}, 7, v{LANE}
        v_lshl_add_u32 v{t+2}, v{t+2}, 3, v{t+3}
        v_lshlrev_b32 v{t+2}, 4, v{t+2}
        s_lshl_b32 s3, s{S_WAVE}, 2
        v_add_u32 v{t+2}, {STAT_OFF + ldsoff}, v{t+2}
        v_add_u32 v{t+3}, s3, v{t+2}
        """)
        for i in range(12):
            a(f"v_dot2_f32_bf16 v{t}, v{QP+i}, s{S_ONE}, v{t}\nv_dot2_f32_bf16 v{t+1}, v{QP+i}, v{QP+i}, v{t+1}")
        a(f"""
        s_nop 2
        v_permlane32_swap_b32 v{t}, v{t+1}
        s_nop 1
        v_add_f32 v{t}, v{t}, v{t+1}
        v_mov_b32 v{t+1}, v{t}
        s_nop 1
        v_permlane16_swap_b32 v{t}, v{t+1}
        s_nop 1
        v_add_f32 v{t}, v{t}, v{t+1}
        s_nop 1
        v_add_f32_dpp v{t}, v{t}, v{t} row_ror:8 row_mask:0xf bank_mask:0xf
        ds_write_b32 v{t+3}, v{t}
        """)
        a = real
        if part == 3: a("s_waitcnt lgkmcnt(0)\ns_barrier")
        if not part & 2: return
        a(f"""
        ds_read_b128 v[{t+4}:{t+7}], v{t+2}
        s_waitcnt lgkmcnt(0)
        v_add_f32 v{t+4}, v{t+4}, v{t+5}
        v_add_f32 v{t+6}, v{t+6}, v{t+7}
        v_add_f32 v{t}, v{t+4}, v{t+6}
        v_mul_f32 v{t}, 0x3ae38e39, v{t}
        v_mov_b32 v{t+1}, v{t}
        s_nop 1
        v_permlane32_swap_b32 v{t}, v{t+1}
        s_nop 1
        v_fma_f32 v{t+1}, -v{t}, v{t}, v{t+1}
        v_max_f32 v{t+1}, 0, v{t+1}
        v_add_f32 v{t+1}, 0x3727c5ac, v{t+1}
        v_rsq_f32 v{ST}, v{t+1}
        s_nop 0
        """)
        if scale: a(f"v_mul_f32 v{ST}, {f2u(scale):#x}, v{ST}")
        a(f"v_mul_f32 v{ST+1}, v{t}, v{ST}\nv_sub_f32 v{ST+1}, 0, v{ST+1}")

    def stats_parts(self, ldsoff, t):
        A = [f"v_bfe_u32 v{t+2}, v{LANE}, 5, 1", f"v_and_b32 v{t+3}, 7, v{LANE}", f"v_lshl_add_u32 v{t+2}, v{t+2}, 3, v{t+3}",
             f"v_lshlrev_b32 v{t+2}, 4, v{t+2}", f"v_add_u32 v{t+2}, {STAT_OFF + ldsoff}, v{t+2}",
             f"v_mov_b32 v{t+3}, s{S_WAVE}", f"v_lshl_add_u32 v{t+3}, v{t+3}, 2, v{t+2}", f"v_mov_b32 v{t}, 0", f"v_mov_b32 v{t+1}, 0"]
        for i in range(12):
            A += [f"v_lshlrev_b32 v{t+4}, 16, v{QP+i}", f"v_and_b32 v{t+5}, 0xffff0000, v{QP+i}", f"v_add_f32 v{t}, v{t}, v{t+4}",
                  f"v_fmac_f32 v{t+1}, v{t+4}, v{t+4}", f"v_add_f32 v{t}, v{t}, v{t+5}", f"v_fmac_f32 v{t+1}, v{t+5}, v{t+5}"]
        A += ['', '', f"v_permlane32_swap_b32 v{t}, v{t+1}", '', f"v_add_f32 v{t}, v{t}, v{t+1}", f"v_mov_b32 v{t+1}, v{t}", '', '',
              f"v_permlane16_swap_b32 v{t}, v{t+1}", '', f"v_add_f32 v{t}, v{t}, v{t+1}", '', '',
              f"v_add_f32_dpp v{t}, v{t}, v{t} row_ror:8 row_mask:0xf bank_mask:0xf", f"ds_write_b32 v{t+3}, v{t}"]
        B = [f"ds_read_b128 v[{t+4}:{t+7}], v{t+2}"]
        C = [f"v_add_f32 v{t+4}, v{t+4}, v{t+5}", f"v_add_f32 v{t+6}, v{t+6}, v{t+7}", f"v_add_f32 v{t}, v{t+4}, v{t+6}",
             f"v_mul_f32 v{t}, 0x3ae38e39, v{t}", f"v_mov_b32 v{t+1}, v{t}", '', '', f"v_permlane32_swap_b32 v{t}, v{t+1}", '',
             f"v_fma_f32 v{t+1}, -v{t}, v{t}, v{t+1}", f"v_max_f32 v{t+1}, 0, v{t+1}", f"v_add_f32 v{t+1}, 0x3727c5ac, v{t+1}",
             f"v_rsq_f32 v{ST}, v{t+1}", '', f"v_mul_f32 v{ST+1}, v{t}, v{ST}", f"v_sub_f32 v{ST+1}, 0, v{ST+1}"]
        return A, B, C
    def row_setup(self, t):
        a = self.a
        self.row_ids(t, t+1, t+2)
        a(f"""
        v_lshlrev_b32 v{VRZ}, 15, v{t+1}
        v_lshl_add_u32 v{VRZ}, v{t}, 3, v{VRZ}
        v_lshlrev_b32 v{VRM}, 5, v{t+1}
        v_add_u32 v{VRM}, {MOD_OFF}, v{VRM}
        v_lshrrev_b32 v{VRH}, 4, v{t}
        v_mul_u32_u24 v{VRH}, 18432, v{VRH}
        v_lshl_add_u32 v{VRH}, v{t+1}, 8, v{VRH}
        v_and_b32 v{t+2}, 15, v{t}
        v_lshl_add_u32 v{VRH}, v{t+2}, 4, v{VRH}
        s_lshl_b32 s3, s{S_MT}, 2
        s_add_u32 s3, s3, s{S_WAVE}
        s_mul_i32 s3, s3, 36
        v_min_u32 v{VRP}, 35, v{LANE}
        v_add_u32 v{VRP}, s3, v{VRP}
        v_lshlrev_b32 v{VRP}, 7, v{VRP}
        """)
    def mod_dma(self, sr):
        a = self.a
        srd(a, sr, P_WS, NB_MOD, WS_MOD)
        a(f"s_mul_i32 s91, s{S_WAVE}, 3584\ns_add_u32 m0, s91, {MOD_OFF}\ns_nop 0")
        out = []
        for i in range(4):
            out.append(f"buffer_load_dwordx4 v{VL16}, s[{sr}:{sr+3}], s91 offen offset:{1024*i} sc1 lds")
        return out

    def conv_path(self):
        a = self.a; kw = self.kw
        VA, VB, VTW, VTR, VZ, VU, VPA, VHD = 192, 193, 194, 195, 211, 212, 213, 214
        DG = 196
        G4, I16 = 144, 145
        a(f"""
        s_lshr_b32 s40, s2, 4
        s_and_b32 s41, s2, 15
        v_and_b32 v1, 7, v0
        v_lshrrev_b32 v2, 3, v0
        s_lshl_b32 s42, s41, 7
        s_lshl_b32 s43, s40, 7
        v_lshl_add_u32 v3, v2, 2, s42
        v_mul_u32_u24 v3, 1152, v3
        v_lshl_add_u32 v4, v1, 4, s43
        v_add_u32 v13, v3, v4
        v_add_u32 v10, {(-3*1152) & 0xffffffff:#x}, v13
        v_add_u32 v11, {(-2*1152) & 0xffffffff:#x}, v13
        v_add_u32 v12, {(-1*1152) & 0xffffffff:#x}, v13
        v_lshlrev_b32 v5, 2, v4
        """)
        srd(a, 52, P_K, NB_SD); srd(a, 56, P_V, NB_SD); srd(a, 20, P_SK, D*8)
        for j in (3, 4, 5, 6, 0, 1, 2):
            va, o = (10+j, 0) if j < 3 else (13, (j-3)*1152)
            a(f"buffer_load_dwordx4 v[{16+4*j}:{19+4*j}], v{va}, s[52:55], 0 offen" + (f" offset:{o}" if o else "") + self.nt('k'))
        for j in range(4):
            a(f"buffer_load_dwordx4 v[{60+4*j}:{63+4*j}], v5, s[20:23], 0 offen" + (f" offset:{16*j}" if j else ""))
        for j in range(4):
            a(f"buffer_load_dwordx4 v[{44+4*j}:{47+4*j}], v13, s[56:59], 0 offen" + (f" offset:{1152*j}" if j else "") + self.nt('v'))
        a(f"""
        s_lshl_b32 s44, s2, 2
        s_add_u32 s44, s44, s{S_WAVE}
        s_mul_i32 s45, s{S_WAVE}, {WAVE_LDS}
        s_lshl_b32 s46, s44, 12
        s_add_u32 s52, s{P_SSMK}, s46
        s_addc_u32 s53, s{P_SSMK+1}, 0
        s_mov_b32 s54, 4096
        s_mov_b32 s55, 0x20000
        v_lshrrev_b32 v{G4}, 4, v{LANE}
        v_and_b32 v{I16}, 15, v{LANE}
        v_add_u32 v142, v{G4}, v{I16}
        v_add_u32 v142, -16, v142
        v_lshlrev_b32 v142, 1, v142
        s_lshl_b32 s3, s44, 1
        """)
        srd(a, 56, P_SSMD, D*2)
        a(f"""
        v_lshlrev_b32 v143, 4, v{LANE}
        s_mov_b32 s91, s3
        """)
        KR = 152
        def kloads():
            a("buffer_load_ushort v140, v142, s[52:55], 0 offen\nbuffer_load_ushort v141, off, s[56:59], s91")
            for i in range(4):
                a(f"buffer_load_dwordx4 v[{KR+6*i}:{KR+6*i+3}], v143, s[52:55], 0 offen offset:{1024*i}" + self.nt('s'))
                a(f"buffer_load_dwordx2 v[{KR+6*i+4}:{KR+6*i+5}], v143, s[52:55], 0 offen offset:{1024*i+16}" + self.nt('s'))
        KL = kw.get('KLATE', 0)
        if KL == 0: kloads()
        srd(a, 24, P_WS, NB_SD, WS_U)
        a(f"""
        v_lshlrev_b32 v6, 9, v2
        v_lshl_add_u32 v6, v1, 4, v6
        v_add_u32 v6, {T_OFF}, v6
        v_bfe_u32 v7, v{LANE}, 1, 1
        v_lshl_add_u32 v7, v{G4}, 1, v7
        v_lshlrev_b32 v7, 3, v7
        v_bfe_u32 v8, v{LANE}, 2, 2
        v_sub_u32 v7, v7, v8
        v_add_u32 v7, 3, v7
        v_lshlrev_b32 v7, 7, v7
        v_and_b32 v8, 1, v{LANE}
        v_lshl_add_u32 v7, v8, 3, v7
        s_lshl_b32 s3, s{S_WAVE}, 5
        s_add_u32 s3, s3, {T_OFF}
        v_add_u32 v7, s3, v7
        s_lshl_b32 s3, s40, 6
        s_lshl_b32 s47, s{S_WAVE}, 4
        s_add_u32 s3, s3, s47
        v_and_b32 v8, 7, v{LANE}
        v_add_u32 v8, s3, v8
        v_lshlrev_b32 v8, 12, v8
        v_bfe_u32 v9, v{LANE}, 3, 1
        v_lshl_add_u32 v9, v{G4}, 1, v9
        v_lshl_add_u32 v8, v9, 4, v8
        s_lshl_b32 s3, s41, 8
        v_add_u32 v8, s3, v8
        v_add_u32 v9, 0x8000, v8
        v_mov_b32 v146, 0
        v_mov_b32 v147, 0
        v_lshl_add_u32 v148, v{LANE}, 3, s45
        ds_write_b64 v148, v[146:147] offset:{4*KSTR}
        v_mul_u32_u24 v{VHD}, {KSTR}, v{G4}
        v_lshl_add_u32 v{VHD}, v{I16}, 1, v{VHD}
        v_add_u32 v{VHD}, s45, v{VHD}
        v_add_u32 v14, 1, v{I16}
        v_and_b32 v{VA}, 3, v14
        v_mul_u32_u24 v{VA}, {KSTR}, v{VA}
        v_lshrrev_b32 v14, 2, v14
        v_lshl_add_u32 v{VA}, v14, 3, v{VA}
        v_lshlrev_b32 v14, 4, v{G4}
        v_sub_u32 v{VA}, v{VA}, v14
        v_add_u32 v{VA}, 48, v{VA}
        v_add_u32 v{VA}, s45, v{VA}
        v_lshlrev_b32 v{VB}, 5, v{I16}
        v_lshl_add_u32 v{VB}, v{G4}, 4, v{VB}
        s_add_u32 s3, s45, {4*KSTR + 512 - 32 - 448}
        v_add_u32 v{VB}, s3, v{VB}
        v_lshlrev_b32 v{VTW}, 4, v{I16}
        v_lshl_add_u32 v{VTW}, v{G4}, 2, v{VTW}
        s_mul_i32 s3, s{S_WAVE}, {KSTR}
        s_add_u32 s3, s3, {T_OFF}
        v_add_u32 v{VTW}, s3, v{VTW}
        v_bfe_u32 v{VTR}, v{LANE}, 2, 2
        v_mul_u32_u24 v{VTR}, {KSTR}, v{VTR}
        v_lshl_add_u32 v{VTR}, v{G4}, 5, v{VTR}
        v_and_b32 v14, 3, v{LANE}
        v_lshl_add_u32 v{VTR}, v14, 3, v{VTR}
        s_lshl_b32 s3, s{S_WAVE}, 7
        s_add_u32 s3, s3, {T_OFF}
        v_add_u32 v{VTR}, s3, v{VTR}
        s_lshl_b32 s3, s2, 14
        s_lshl_b32 s47, s{S_WAVE}, 10
        s_add_u32 s3, s3, s47
        v_lshl_add_u32 v{VZ}, v{LANE}, 4, s3
        v_lshlrev_b32 v{VU}, 4, v{LANE}
        v_lshlrev_b32 v{VPA}, 7, v{I16}
        """)
        if kw.get('ARR', 1):
            ffn_setup(a, 100)
            self.row_setup(100)
        if KL == 1: kloads()
        self.stamp(1)
        if kw.get('hopP', False): self.ahops.call(a, 0)
        a(f"s_waitcnt vmcnt({14 if KL < 2 else 4})")
        self.stamp(2)
        if kw.get('hopP', False): a.hop = self.ahops
        kd = []
        for c in (0, 2):
            ops = [f"buffer_load_dwordx4 v143, s[52:55], 0 offen offset:{i*1024} lds" for i in range(4)]
            ops[0] = f"s_add_u32 m0, s45, {c*KSTR + 32}\n" + ("v_add_u32 v143, 4, v143\n" if c else "s_nop 0\n") + ops[0]
            kd += ops
        nearly = kw.get('KEARLY', 0)
        early, late = kd[:nearly], kd[nearly:]
        def kdma():
            if early: a(early.pop(0))
        P = lambda x: f"v[{x}:{x+1}]"
        for cp in range(4):
            for j in range(4):
                f = lo if j % 2 == 0 else hi
                f(a, 80+2*j, 60+4*cp+(j >> 1)); f(a, 81+2*j, 62+4*cp+(j >> 1))
            if cp: kdma()
            for i in range(7):
                lo(a, 88+2*i, 16+4*i+cp); hi(a, 89+2*i, 16+4*i+cp)
            if cp: kdma()
            for r in range(4): a(f"v_pk_mul_f32 {P(110+2*r)}, {P(88+2*r)}, {P(86)}")
            for j in (1, 2, 3):
                for r in range(4): a(f"v_pk_fma_f32 {P(110+2*r)}, {P(88+2*(r+j))}, {P(86-2*j)}, {P(110+2*r)}")
            if cp == 0:
                a(f"s_waitcnt vmcnt({10 if KL < 2 else 0})")
                self.stamp(22)
                if KL == 2: kloads()
            kdma()
            for r in range(4):
                lo(a, 102+2*r, 44+4*r+cp); hi(a, 103+2*r, 44+4*r+cp)
            for r in range(4): a(f"v_pk_mul_f32 {P(110+2*r)}, {P(110+2*r)}, {P(102+2*r)}")
            for r in range(4): a(f"v_cvt_pk_bf16_f32 v{120+4*r+cp}, v{110+2*r}, v{111+2*r}")
            kdma()
        for r in range(4):
            a(f"ds_write_b128 v6, v[{120+4*r}:{123+4*r}]" + (f" offset:{128*r}" if r else ""))
        while early: kdma()
        a("s_waitcnt lgkmcnt(0)\ns_barrier")
        n = 0
        for cb in range(2):
            for hq in range(2):
                o = hq*8192 + cb*16
                a(f"ds_read_b64_tr_b16 v[{16+4*n}:{17+4*n}], v7 offset:{o+512}")
                a(f"ds_read_b64_tr_b16 v[{18+4*n}:{19+4*n}], v7 offset:{o}")
                n += 1
        n = 0
        for cb in range(2):
            for hq in range(2):
                a(f"s_waitcnt lgkmcnt({6-2*n})")
                a(f"buffer_store_dwordx4 v[{16+4*n}:{19+4*n}], v{8+cb}, s[24:27], 0 offen" + (" offset:128" if hq else "") + " sc1")
                n += 1
        a.hop = None
        def kcopy():
            a(f"v_lshl_add_u32 v14, v{LANE}, 4, s45")
            for i in range(4):
                for c in range(2):
                    for x in range(4):
                        a(f"v_alignbyte_b32 v{40+8*(i&1)+4*c+x}, v{KR+6*i+x+c+1}, v{KR+6*i+x+c}, 2")
                    a(f"ds_write_b128 v14, v[{40+8*(i&1)+4*c}:{43+8*(i&1)+4*c}] offset:{(1+2*c)*KSTR + 32 + 1024*i}")
            a(f"""
            ds_write_b16 v{VHD}, v140
            v_lshrrev_b32 v10, 3, v{I16}
            v_add_u32 v10, 2, v10
            v_cmp_eq_u32 vcc, v10, v{G4}
            v_and_b32 v11, 7, v{I16}
            v_sub_u32 v11, 7, v11
            v_cndmask_b32 v9, 0, v141, vcc
            v_and_b32 v10, 1, v11
            v_lshlrev_b32 v10, 4, v10
            v_lshlrev_b32 v9, v10, v9
            v_lshrrev_b32 v11, 1, v11
            """)
            for r in range(4):
                a(f"v_cmp_eq_u32 vcc, {r}, v11\ns_nop 1\nv_cndmask_b32 v{DG+r}, 0, v9, vcc")
        self.stamp(3)
        if KL == 3: kloads()
        elif kw.get('ARR', 1):
            a(f"s_waitcnt vmcnt(4)")
            kcopy()
        else:
            ffn_setup(a, 100)
            self.row_setup(100)
        a(f"""
        s_waitcnt lgkmcnt(0)
        s_add_u32 s{S_TAG}, s28, 1
        s_mul_i32 s3, s{S_WAVE}, 144
        s_add_u32 s3, s3, s2
        s_lshl_b32 s3, s3, 7
        s_add_u32 s3, s3, {FA}
        """)
        self.signal_wave(3, 10 if KL == 3 else 0)
        a("s_barrier")
        self.stamp(4)
        if KL == 3: a("s_waitcnt vmcnt(1)")
        for o in late: a(o)
        if KL == 3: kcopy()
        if not kw.get('QLATE'): self.q_loads(56, 1)
        if not kw.get('ARR', 1): kcopy()
        if kw.get('LN1', 'B') == 'A':
            a("s_waitcnt vmcnt(0)")
            self.stats(0, 150)
        a(f"""
        v_min_u32 v{VHD}, 55, v{LANE}
        v_lshlrev_b32 v{VHD}, 7, v{VHD}
        s_mov_b32 s90, {FB + 128*NCONV}
        s_mov_b32 s8, {FB + 128*(NCONV+56)}
        s_mul_i32 s6, s{S_WAVE}, 144
        s_add_u32 s6, s6, s2
        s_lshl_b32 s6, s6, 7
        s_add_u32 s6, s6, {FZ}
        s_cmp_ge_u32 s{S_WAVE}, 2
        s_cselect_b32 s7, 0x40000000, 0
        v_mov_b32 v23, s{S_TAG}
        s_add_u32 s56, s{P_WS}, s46
        s_addc_u32 s57, s{P_WS+1}, 0
        s_mov_b32 s58, 4096
        s_mov_b32 s59, 0x20000
        s_bfe_u32 s4, s2, 0x20002
        s_mul_i32 s4, s4, 9
        s_add_u32 s4, s4, s40
        s_lshl_b32 s4, s4, 11
        s_add_u32 s4, s4, {FA}
        """)
        assert WS_U == 0
        srd(a, 52, P_WS, NB_SD, WS_Z)
        hops = self.chops if kw.get('chops', False) else None
        if hops: hops.call(a, 0)
        self.stamp(5)
        self.poll(VPA, 4, sleep=0)
        self.stamp(6)
        a(f"s_add_u32 m0, s45, {4*KSTR + 512}\ns_nop 0")
        for i in range(4):
            a(f"buffer_load_dwordx4 v{VU}, s[56:59], 0 offen offset:{i*1024} sc1 lds")
        AC = 24; FRG = 64
        A = lambda s, m1: FRG + 64*s + 4*m1
        B = lambda s, n1: FRG + 64*s + 32 + 4*n1
        def rdA(m0, n, s):
            R = []
            for x in range(n):
                R.append(f"ds_read_b64 v[{A(s,x)}:{A(s,x)+1}], v{VA} offset:{512*x + 64*m0}")
                R.append(f"ds_read_b64 v[{A(s,x)+2}:{A(s,x)+3}], v{VA} offset:{512*x + 64*m0+8}")
            return R
        def rdB(m0, n, s):
            return [f"ds_read_b128 v[{B(s,x)}:{B(s,x)+3}], v{VB} offset:{512*x + 64*(7-m0)}" for x in range(n)]
        def mf(w, av, bv, first=False):
            a(f"v_mfma_f32_16x16x32_bf16 v[{AC+4*w}:{AC+4*w+3}], v[{av}:{av+3}], v[{bv}:{bv+3}], " + ("0" if first else f"v[{AC+4*w}:{AC+4*w+3}]"))
        def pack(w, t):
            return [f"v_cvt_pk_bf16_f32 v{t}, v{AC+4*w}, v{AC+4*w+2}", f"v_cvt_pk_bf16_f32 v{t+1}, v{AC+4*w+1}, v{AC+4*w+3}",
                    f"ds_write2st64_b32 v{VTW}, v{t}, v{t+1} offset0:{w} offset1:{w+8}"]
        PASS = kw.get('PASS', (0, 4, 8))
        def units(p):
            u0, u1 = 2*PASS[p], 2*PASS[p+1]
            return [(u, u + 4 > u1) for u in range(u0, u1, 4)]
        def trr(p, t):
            R = []
            for i, (u, h) in enumerate(units(p)):
                R += [f"ds_read_b64_tr_b16 v[{t+4*i}:{t+4*i+1}], v{VTR} offset:{128*u}", f"ds_read_b64_tr_b16 v[{t+4*i+2}:{t+4*i+3}], v{VTR} offset:{128*u + 2048}"]
            return R
        def zst(p, t):
            return [(f"s_add_u32 s96, s7, {1024*u}" if h else f"s_mov_b32 s96, {1024*u}") + f"\nbuffer_store_dwordx4 v[{t+4*i}:{t+4*i+3}], v{VZ}, s[52:55], s96 offen sc1" for i, (u, h) in enumerate(units(p))]
        def zfl(p):
            R = ["s_waitcnt vmcnt(0)"]
            for u, h in units(p):
                R.append(f"s_add_u32 s96, s6, {u*144*128}")
                if h: R.append("s_add_u32 s96, s96, s7")
                R.append(f"buffer_store_dword v23, off, s[{S_FL}:{S_FL+3}], s96 sc1")
            return "\n".join(R)
        steps = []
        for p in range(len(PASS) - 1):
            two = PASS[p+1] <= 4
            steps += [(p, m0, two) for m0 in range(0, 8, 2 if two else 1)]
        def rds(p, m0, two, s):
            n = PASS[p+1]; ra, rb = [], []
            for h in range(2 if two else 1):
                for x in range(n):
                    t = 4*h + x
                    ra += [f"ds_read_b64 v[{A(s,t)}:{A(s,t)+1}], v{VA} offset:{512*x + 64*(m0+h)}", f"ds_read_b64 v[{A(s,t)+2}:{A(s,t)+3}], v{VA} offset:{512*x + 64*(m0+h)+8}"]
                    rb += [f"ds_read_b128 v[{B(s,t)}:{B(s,t)+3}], v{VB} offset:{512*x + 64*(7-m0-h)}"]
            return ra, rb
        ra, rb = rds(*steps[0], 0)
        for r in ra: a(r)
        ffn_setup2(a, 12)
        a("s_waitcnt vmcnt(0)")
        self.stamp(7)
        for r in rb: a(r)
        if kw.get('QLATE'): self.q_loads(56, 1)
        cp_ = kw.get('convpf', '')
        if cp_:
            a(f"""
            s_and_b32 s3, s2, 7
            s_lshr_b32 s5, s2, 3
            s_lshl_b32 s5, s5, 2
            s_add_u32 s5, s5, s{S_WAVE}
            """)
        if 'g' in cp_:
            a(f"""
            s_mul_i32 s9, s3, 1152
            s_lshr_b32 s10, s2, 3
            s_lshl_b32 s10, s10, 1
            s_and_b32 s11, s{S_WAVE}, 1
            s_add_u32 s10, s10, s11
            s_mul_i32 s10, s10, {16*9216}
            s_add_u32 s9, s9, s10
            v_and_b32 v1, 15, v{LANE}
            v_mul_u32_u24 v1, 9216, v1
            v_lshrrev_b32 v2, 4, v{LANE}
            v_min_u32 v2, 2, v2
            v_lshrrev_b32 v3, 1, v2
            v_mul_u32_u24 v3, 3, v3
            v_add3_u32 v2, v2, v3, 3
            v_lshl_add_u32 v1, v2, 7, v1
            buffer_load_dword v22, v1, s[{S_W}:{S_W+3}], s9 offen
            """)
        if 'd' in cp_:
            srd(a, 56, P_WD, D*DF*2)
            a(f"""
            s_mul_i32 s9, s3, {576*1152}
            s_mul_i32 s10, s5, 9216
            s_add_u32 s9, s9, s10
            v_lshlrev_b32 v1, 7, v{LANE}
            v_and_b32 v2, 7, v{LANE}
            v_lshlrev_b32 v2, 7, v2
            v_add_u32 v2, 8192, v2
            buffer_load_dword v22, v1, s[56:59], s9 offen
            buffer_load_dword v22, v2, s[56:59], s9 offen
            """)
        NP_ = len(PASS) - 1
        for n_, (p, m0, two) in enumerate(steps):
            s = n_ & 1
            nxt = []
            if n_ + 1 < len(steps):
                ra, rb = rds(*steps[n_+1], 1-s)
                nxt = rb + ra
            ext = []
            a("s_waitcnt lgkmcnt(0)")
            if p:
                if m0 == 0: ext = ['', ''] + sum([pack(w, 4 + 2*(w - PASS[p-1])) for w in range(PASS[p-1], PASS[p])], [])
                if m0 == 1: a("s_barrier"); ext = trr(p-1, 4)
                if m0 == 2: ext = zst(p-1, 4)
                if kw.get('ZPOLL') and m0 >= kw['ZPOLL']:
                    l = self.lab('zf')
                    if m0 == kw['ZPOLL']: a("s_mov_b32 s9, 0")
                    a(f"s_getreg_b32 s10, hwreg(HW_REG_IB_STS, 0, 4)")
                    if m0 == 7: a("s_mov_b32 s10, 0")
                    a(f"s_or_b32 s10, s10, s9\ns_cbranch_scc1 {l}\ns_mov_b32 s9, 1")
                    a(zfl(p-1))
                    if p == 1: self.stamp(28)
                    a(f"{l}:")
                elif not kw.get('ZPOLL') and m0 == kw.get('ZF', 4):
                    a(zfl(p-1))
                    if p == 1: self.stamp(28)
                if p == NP_ - 1 and m0 == kw.get('MCHK', 5):
                    ext += [f"buffer_load_dword v239, v{VHD}, s[{S_FL}:{S_FL+3}], s90 offen sc1", f"buffer_load_dword v22, v{VHD}, s[{S_FL}:{S_FL+3}], s8 offen sc1"]
            def gap():
                k = 2 if (len(nxt) > left[0] and not ext) else 1
                while k and nxt: a(nxt.pop(0)); k -= 1
                if ext:
                    x = ext.pop(0)
                    if x: a(x)
                left[0] -= 1
            pairs = [(m1 + n1, 4*h + m1, 4*h + n1) for h in range(2 if two else 1) for m1 in range(8) for n1 in range(8 - m1) if PASS[p] <= m1 + n1 < PASS[p+1]]
            nd = PASS[p+1] - PASS[p] if m0 == 0 else 0
            left = [len(pairs) + nd - 8]
            for w in range(PASS[p], PASS[p] + nd):
                mf(w, DG, B(s, w), True); gap()
            for w, x, y in pairs:
                mf(w, A(s, x), B(s, y)); gap()
            for x in nxt + ext:
                if x: a(x)
        self.stamp(8)
        a("s_nop 7")
        for w in range(PASS[-2], 8):
            for x in pack(w, 64 + 2*w): a(x)
        a("s_waitcnt lgkmcnt(0)\ns_barrier")
        for x in trr(NP_-1, 80): a(x)
        zs = zst(NP_-1, 80)
        for i, x in enumerate(zs):
            a(f"s_waitcnt lgkmcnt({2*(len(zs)-1-i)})"); a(x)
        self.stamp(9)
        self.stats(0, 150, part=1)
        a(zfl(NP_-1)); a("s_waitcnt lgkmcnt(0)\ns_barrier")
        self.stamp(23)
        a(f"v_cmp_ne_u32 vcc, s{S_TAG}, v239\nv_cmp_ne_u32 s[4:5], s{S_TAG}, v22\ns_nop 1\ns_or_b64 vcc, vcc, s[4:5]\ns_cbranch_vccz L_modok")
        self.poll(VHD, 90, sleep=1)
        self.poll(VHD, 8, sleep=1)
        a("L_modok:")
        for o in self.mod_dma(56): a(o)
        self.stats(0, 150, part=2)

    def side_path(self):
        a = self.a; kw = self.kw
        if kw.get('touch'):
            sh = kw['touch']
            srd(a, 52, P_WS, 0x4000000); srd(a, 56, P_OUT, NB_SD)
            a(f"v_lshlrev_b32 v1, {sh}, v0\nbuffer_load_dword v238, v1, s[52:55], 0 offen\nbuffer_load_dword v238, v1, s[56:59], 0 offen")
            srd(a, 56, P_WD, D*DF*2)
            a(f"buffer_load_dword v238, v1, s[56:59], 0 offen")
        code_srd(a, 56, 4, 'L_common', 'L_code_end')
        srd(a, 52, P_SSMK, NB_SD)
        a(f"""
        s_sub_u32 s47, s2, {NCONV}
        s_lshr_b32 s47, s47, 3
        s_lshl_b32 s47, s47, 2
        s_add_u32 s47, s47, s{S_WAVE}
        v_min_u32 v2, 7, v{LANE}
        s_lshl_b32 s43, s47, 10
        v_lshlrev_b32 v2, 7, v2
        buffer_load_dword v238, v2, s[56:59], s43 offen
        s_mul_i32 s42, s47, 42
        v_min_u32 v1, 41, v{LANE}
        v_add_u32 v1, s42, v1
        v_lshrrev_b32 v2, 7, v1
        v_and_b32 v1, 127, v1
        v_lshlrev_b32 v1, 7, v1
        v_lshl_add_u32 v1, v2, 17, v1
        s_and_b32 s3, s2, 7
        s_lshl_b32 s3, s3, 14
        {'buffer_load_dword v238, v1, s[52:55], s3 offen' if kw.get('pfK', False) else ''}
        s_mul_hi_u32 s42, s47, 0x2aaaaaab
        s_mul_i32 s43, s42, 6
        s_sub_u32 s43, s47, s43
        s_mul_i32 s43, s43, 3072
        s_add_u32 s42, s42, {kw.get('CA', 7)}
        s_mul_i32 s42, s42, {128*1152}
        s_add_u32 s42, s42, s43
        s_and_b32 s3, s2, 7
        s_mul_i32 s3, s3, {16*1152}
        s_add_u32 s42, s42, s3
        v_min_u32 v1, 23, v{LANE}
        v_lshlrev_b32 v1, 7, v1
        """)
        srd(a, 52, P_Q, NB_SD)
        if not kw.get('QLATE'): a("buffer_load_dword v238, v1, s[52:55], s42 offen")
        if kw.get('MODLATE'):
            self.q_loads(56, 146)
            ffn_setup(a, 100)
            self.row_setup(100)
            a("s_waitcnt vmcnt(0)")
            self.stats(0, 150)
        a(f"s_cmp_ge_u32 s2, {NCONV+NMOD}\ns_cbranch_scc1 L_nomod")
        a(f"""
        s_sub_u32 s40, s2, {NCONV}
        v_and_b32 v1, 7, v0
        v_lshrrev_b32 v2, 3, v0
        v_mul_u32_u24 v3, 6912, v2
        v_lshl_add_u32 v3, v1, 4, v3
        s_lshl_b32 s3, s40, 7
        v_add_u32 v3, s3, v3
        v_lshlrev_b32 v4, 1, v0
        """)
        srd(a, 24, P_C, D*2); srd(a, 52, P_WMOD, D*6912); srd(a, 20, P_WS, NB_MOD, WS_MOD)
        a("""
        buffer_load_ushort v5, v4, s[24:27], 0 offen
        buffer_load_ushort v6, v4, s[24:27], 0 offen offset:512
        buffer_load_ushort v7, v4, s[24:27], 0 offen offset:1024
        s_mov_b32 s41, 0
        """)
        a("s_waitcnt vmcnt(0)")
        for i in range(18):
            a(f"buffer_load_dwordx4 v[{32+4*i}:{35+4*i}], v3, s[52:55], s41 offen" + self.nt('m'))
            if i < 17: a(f"s_add_u32 s41, s41, {32*6912}")
        for r in (5, 6, 7):
            a(f"""
            v_lshlrev_b32 v{r}, 16, v{r}
            v_mul_f32 v8, 0xbfb8aa3b, v{r}
            v_exp_f32 v8, v8
            s_nop 0
            v_add_f32 v8, 1.0, v8
            v_rcp_f32 v8, v8
            s_nop 0
            v_mul_f32 v{r}, v{r}, v8
            v_cvt_pk_bf16_f32 v{r}, v{r}, v{r}
            v_lshlrev_b32 v{r}, 16, v{r}
            """)
        a("""
        v_lshlrev_b32 v9, 2, v0
        ds_write_b32 v9, v5
        ds_write_b32 v9, v6 offset:1024
        ds_write_b32 v9, v7 offset:2048
        v_lshlrev_b32 v10, 2, v2
        s_waitcnt lgkmcnt(0)
        s_barrier
        """)
        for i in range(18):
            a(f"ds_read_b32 v{104+2*i}, v10 offset:{128*i}")
        a("s_waitcnt lgkmcnt(0)")
        for i in range(18):
            a(f"s_waitcnt vmcnt({17-i})")
            for x in range(4):
                t = 24 + 2*(x & 1)
                lo(a, t, 32+4*i+x); hi(a, t+1, 32+4*i+x)
                if i == 0: a(f"v_pk_mul_f32 v[{16+2*x}:{17+2*x}], v[{t}:{t+1}], v[{104+2*i}:{105+2*i}] op_sel_hi:[1,0]")
                else:      a(f"v_pk_fma_f32 v[{16+2*x}:{17+2*x}], v[{t}:{t+1}], v[{104+2*i}:{105+2*i}], v[{16+2*x}:{17+2*x}] op_sel_hi:[1,0,1]")
        a("""
        v_lshlrev_b32 v13, 8, v2
        v_lshl_add_u32 v13, v1, 5, v13
        ds_write_b128 v13, v[16:19] offset:4096
        ds_write_b128 v13, v[20:23] offset:4112
        s_waitcnt lgkmcnt(0)
        s_barrier
        """)
        a(f"s_cmp_lg_u32 s{S_WAVE}, 0\ns_cbranch_scc1 L_nomod")
        for i in range(32):
            a(f"ds_read_b32 v{32+i}, v9 offset:{4096 + 256*i}")
        a("s_waitcnt lgkmcnt(0)")
        for st in (16, 8, 4, 2):
            for i in range(0, st, 2):
                a(f"v_pk_add_f32 v[{32+i}:{33+i}], v[{32+i}:{33+i}], v[{32+i+st}:{33+i+st}]")
        a(f"""
        v_add_f32 v32, v32, v33
        s_mov_b32 s3, 0x1c71c71d
        v_cvt_pk_bf16_f32 v32, v32, v32
        s_mul_hi_u32 s41, s40, s3
        s_cmp_eq_u32 s41, 1
        s_cselect_b32 s42, 1.0, 0
        s_cmp_eq_u32 s41, 4
        s_cselect_b32 s42, 1.0, s42
        v_lshlrev_b32 v32, 16, v32
        v_add_f32 v32, s42, v32
        s_cmp_eq_u32 s41, 3
        s_cselect_b32 s43, {f2u(ALPHA):#x}, 1.0
        s_cmp_eq_u32 s41, 5
        s_cselect_b32 s43, {f2u(1/ALPHA**2):#x}, s43
        v_cvt_pk_bf16_f32 v32, v32, v32
        v_lshlrev_b32 v32, 16, v32
        v_mul_f32 v32, s43, v32
        s_lshl_b32 s3, s40, 8
        buffer_store_dword v32, v9, s[20:23], s3 offen sc1
        L_nomod:
        """)
        self.stamp(3)
        self.signal(FB, 2)
        if not kw.get('MODLATE') and kw.get('QLATE') != 2: self.q_loads(56, 146)
        self.stamp(4)
        if kw.get('waitA', True):
            a(f"""
            v_and_b32 v146, 15, v{LANE}
            v_lshlrev_b32 v146, 7, v146
            s_and_b32 s40, s2, 7
            s_lshl_b32 s4, s40, 11
            s_add_u32 s4, s4, {FA}
            """)
            self.poll(146, 4, sleep=2)
        def wpf():
            NCH = kw.get('NCH', 2); per = -(-1152*NCH//56)
            srd(a, 20, P_WG, D*DF*2); srd(a, 24, P_WU, D*DF*2)
            a(f"""
            s_and_b32 s40, s2, 7
            s_mul_i32 s43, s40, 1152
            s_sub_u32 s47, s2, {NCONV}
            s_lshr_b32 s47, s47, 3
            s_lshl_b32 s47, s47, 2
            s_add_u32 s47, s47, s{S_WAVE}
            s_mul_i32 s42, s47, {per}
            v_min_u32 v1, {per-1}, v{LANE}
            v_add_u32 v1, s42, v1
            s_mov_b32 s44, {-(-(1 << 32)//1152):#x}
            v_mul_hi_u32 v3, s44, v1
            v_mul_u32_u24 v4, 1152, v3
            v_sub_u32 v4, v1, v4
            v_lshlrev_b32 v3, 7, v3
            v_and_b32 v5, 1, v4
            v_mul_u32_u24 v5, 640, v5
            v_add_u32 v3, v3, v5
            v_lshrrev_b32 v4, 1, v4
            v_mul_u32_u24 v4, 9216, v4
            v_add_u32 v3, v3, v4
            buffer_load_dword v149, v3, s[20:23], s43 offen{self.nt('w')}
            buffer_load_dword v149, v3, s[24:27], s43 offen{self.nt('w')}
            """)
            npf = 2
            if kw.get('PRE2'):
                npf = 4
                a(f"""
                s_mul_i32 s42, s47, 31
                v_min_u32 v1, 30, v{LANE}
                v_add_u32 v1, s42, v1
                s_mov_b32 s44, 0x55555556
                v_mul_hi_u32 v3, s44, v1
                v_mul_u32_u24 v4, 3, v3
                v_sub_u32 v4, v1, v4
                v_mul_u32_u24 v3, 9216, v3
                v_lshrrev_b32 v5, 1, v4
                v_mul_u32_u24 v5, 3, v5
                v_add3_u32 v4, v4, v5, 3
                v_lshl_add_u32 v3, v4, 7, v3
                buffer_load_dword v149, v3, s[20:23], s43 offen{self.nt('w')}
                buffer_load_dword v149, v3, s[24:27], s43 offen{self.nt('w')}
                """)
            return npf
        if kw.get('QLATE') == 2: self.q_loads(56, 146)
        npf = 0 if (kw.get('waitM') or kw.get('waitQ')) else wpf()
        self.stamp(6)
        if not kw.get('MODLATE'):
            ffn_setup(a, 100)
            self.row_setup(100)
            a(f"s_waitcnt vmcnt({npf})")
            if kw.get('waitQ') == 1: wpf()
            self.stats(0, 150)
            if kw.get('waitQ') == 2: wpf()
        a(f"""
        v_min_u32 v147, {NMOD-1}, v{LANE}
        v_lshlrev_b32 v147, 7, v147
        s_mov_b32 s11, {FB + 128*NCONV}
        """)
        self.poll(147, 11, sleep=2)
        if kw.get('waitM'): wpf()
        for o in self.mod_dma(52): a(o)
        ffn_setup2(a, 100)
        if self.fhops and self.kw.get('sidehops', True):
            for c in range(self.nhc): self.fhops.call(a, c)
        self.stamp(23)

    def row_phase(self, hops):
        a = self.a; kw = self.kw
        NP1 = kw.get('NP1', 3); NP2 = kw.get('NP2', 6)
        PL = kw.get('PL', (3, 0, 0, 3)); pf = [sum(PL[:i]) for i in range(5)]
        ffn_prefill(a, range(pf[0], pf[1]))
        if kw.get('sidefill', False):
            a(f"s_cmp_lt_u32 s2, {NCONV}\ns_cbranch_scc1 L_nofill1")
            ffn_prefill(a, range(pf[3], pf[4]))
            a("L_nofill1:")
        srd(a, S_X, P_WS, NB_X, WS_X)
        srd(a, 52, P_WS, NB_SD, WS_Z)
        a(f"""
        s_mov_b32 s4, {FZ}
        s_mov_b32 s5, 0x4000
        s_mov_b32 s6, 0x80000
        s_mov_b32 s7, 0x84000
        s_add_u32 s8, s{S_OOB}, 0x100000
        s_add_u32 s11, s{S_OOB}, 0x104000
        s_mov_b32 s9, 4096
        s_add_u32 s10, s{S_OOB}, 8192
        """)
        so = ['0', 's5', 's6', 's7', 's8', 's11']
        MV = lambda i, v: 16 + 40*i + 8*v
        for c in kw.get('hopB', ()): hops.call(a, c)
        if kw.get('hopR', False): self.rhops.call(a, 0)
        self.stamp(10)
        self.poll(VRP, 4, sleep=kw.get('sleepB', 1))
        a("s_barrier")
        self.stamp(11)
        for i in range(6):
            a(f"buffer_load_dwordx2 v[{2*i}:{2*i+1}], v{VRZ}, s[52:55], {so[i]} offen sc1")
        ffn_prefill(a, range(pf[1], pf[2]))
        for vs in ((0, 1, 2), (3, 4)):
            for i in range(3):
                for v in vs:
                    for h in range(2):
                        a(f"ds_read_b128 v[{MV(i,v)+4*h}:{MV(i,v)+4*h+3}], v{VRM} offset:{2304*v + 512*i + 16*h}")
        a("s_waitcnt lgkmcnt(12)")
        if kw.get('hopR', False): a.hop = self.rhops
        P = lambda x: f"v[{x}:{x+1}]"
        BC = "op_sel:[0,0,1] op_sel_hi:[1,0,1]"
        for i in range(3):
            a(f"s_waitcnt vmcnt({2*(2-i) + 6*PL[1]})")
            if i == 0: self.stamp(12)
            for c2 in range(0, 4, 2):
                cs = (c2, c2+1); X = {c: 144 + 6*(c & 1) for c in cs}
                for c in cs: lo(a, X[c], QP+4*i+c); hi(a, X[c]+1, QP+4*i+c)
                for c in cs: a(f"v_pk_fma_f32 {P(X[c]+2)}, {P(X[c])}, {P(ST)}, {P(ST)} {BC}")
                for c in cs: lo(a, X[c]+4, 4*i+c); hi(a, X[c]+5, 4*i+c)
                for c in cs: a(f"v_pk_fma_f32 {P(X[c]+2)}, {P(X[c]+2)}, {P(MV(i,1)+2*c)}, {P(MV(i,0)+2*c)}")
                for c in cs: a(f"v_pk_mul_f32 {P(X[c]+2)}, {P(X[c]+2)}, {P(X[c]+4)}")
                for c in cs: a(f"v_pk_fma_f32 {P(X[c]+2)}, {P(X[c]+2)}, {P(MV(i,2)+2*c)}, {P(X[c])}")
                for c in cs: a(f"v_cvt_pk_bf16_f32 v{QP+4*i+c}, v{X[c]+2}, v{X[c]+3}")
        self.stats(256, 160, scale=ALPHA)
        ffn_prefill(a, range(pf[2], pf[3]))
        sh = ['0', 's9', 's10']
        for i in range(3):
            for c2 in range(0, 4, 2):
                cs = (c2, c2+1); X = {c: 144 + 6*(c & 1) for c in cs}
                for c in cs: lo(a, X[c], QP+4*i+c); hi(a, X[c]+1, QP+4*i+c)
                for c in cs: a(f"v_pk_fma_f32 {P(X[c])}, {P(X[c])}, {P(ST)}, {P(ST)} {BC}")
                for c in cs: a(f"v_pk_fma_f32 {P(X[c])}, {P(X[c])}, {P(MV(i,4)+2*c)}, {P(MV(i,3)+2*c)}")
                for c in cs: a(f"v_cvt_pk_bf16_f32 v{4*i+c}, v{X[c]}, v{X[c]+1}")
            a(f"buffer_store_dwordx4 v[{4*i}:{4*i+3}], v{VRH}, s[{S_H}:{S_H+3}], {sh[i]} offen sc1")
        a.hop = None
        self.stamp(13)
        for i in range(12): a(f"v_accvgpr_write_b32 a{X1A+i}, v{QP+i}")
        a(f"s_lshl_b32 s4, s{S_MT}, 4\ns_add_u32 s4, s4, s{S_GI}")
        self.signal(FC, 4)
        if kw.get('sidefill', False): a(f"s_cmp_ge_u32 s2, {NCONV}\ns_cbranch_scc1 L_nofill2")
        ffn_prefill(a, range(pf[3], pf[4]))
        if kw.get('sidefill', False): a("L_nofill2:")
        code_srd(a, 52, 4, 'L_common', 'L_code_end', back=True)
        a(f"v_mov_b32 v{VTAG}, s{S_TAG}")
        ffn_setup3(a)
        self.reduce_setup(100)
        a(f"""
        v_and_b32 v146, 15, v{LANE}
        v_lshlrev_b32 v146, 7, v146
        s_lshl_b32 s9, s{S_MT}, 11
        s_add_u32 s9, s9, {FC}
        """)
        for c in kw.get('hopC', ()): hops.call(a, c)
        self.stamp(14)
        self.poll(146, 9, sleep=0)
        self.stamp(15)

    def reduce_setup(self, t):
        a = self.a
        self.row_ids(t, t+1, t+2)
        a(f"""
        v_mul_u32_u24 v{VEO}, 1152, v{t}
        v_lshl_add_u32 v{VEO}, v{t+1}, 4, v{VEO}
        v_lshrrev_b32 v{VEP}, 5, v{t}
        v_mul_u32_u24 v{VEP}, 9, v{VEP}
        v_lshrrev_b32 v{t+2}, 3, v{t+1}
        v_add_u32 v{VEP}, v{t+2}, v{VEP}
        v_lshlrev_b32 v{VEP}, 12, v{VEP}
        v_bfe_u32 v{t+2}, v{t}, 4, 1
        v_lshl_add_u32 v{VEP}, v{t+2}, 10, v{VEP}
        v_bfe_u32 v{t+2}, v{LANE}, 3, 1
        v_lshl_add_u32 v{VEP}, v{t+2}, 11, v{VEP}
        v_bfe_u32 v{t+2}, v{LANE}, 4, 1
        v_lshl_add_u32 v{VEP}, v{t+2}, 9, v{VEP}
        v_bfe_u32 v{t+2}, v{LANE}, 5, 1
        v_lshl_add_u32 v{VEP}, v{t+2}, 8, v{VEP}
        v_and_b32 v{t+2}, 15, v{t}
        v_lshl_add_u32 v{VEP}, v{t+2}, 4, v{VEP}
        v_lshlrev_b32 v{VEG}, 5, v{t+1}
        v_add_u32 v{VEG}, {MOD_OFF + 5*2304}, v{VEG}
        s_lshl_b32 s3, s{S_MT}, 2
        s_lshr_b32 s4, s{S_GI}, 2
        s_add_u32 s4, s4, s3
        s_lshl_b32 s4, s4, 11
        v_and_b32 v{VEF}, 15, v{LANE}
        v_lshl_add_u32 v{VEF}, v{VEF}, 7, s4
        s_add_u32 s3, s3, s{S_WAVE}
        s_lshl_b32 s3, s3, 4
        s_add_u32 s3, s3, s{S_GI}
        s_lshl_b32 s3, s3, 7
        s_add_u32 s{S_FD}, s3, {FD1}
        """)
    def reduce_phase(self):
        a = self.a; kw = self.kw
        early = kw.get('early', True)
        self.stamp(17)
        srd(a, 12, P_OUT, NB_SD)
        a(f"""
        s_mov_b32 s4, {FD1}
        s_mov_b32 s7, {FD2}
        s_add_u32 s8, s{S_FD}, {FD2 - FD1}
        {f'buffer_load_dword v239, v{VEF}, s[{S_FL}:{S_FL+3}], s4 offen sc1' if early and not kw.get('ASK3') else ''}
        s_mov_b32 s5, 0x3f80
        s_mov_b32 s6, 0x3f800000
        v_add_u32 v222, 8192, v{VEP}
        v_add_u32 v223, 16384, v{VEP}
        v_add_u32 v223, s{S_OOB}, v223
        """)
        for i in range(3):
            for h in range(2):
                a(f"ds_read_b128 v[{192+8*i+4*h}:{195+8*i+4*h}], v{VEG} offset:{512*i + 16*h}")
        va = [VEP, 222, 223]; RD = [32, 64, 128]
        def loads(i):
            a("s_mov_b32 s9, 0")
            for sl in range(8):
                a(f"buffer_load_dwordx4 v[{RD[i]+4*sl}:{RD[i]+4*sl+3}], v{va[i]}, s[{S_P}:{S_P+3}], s9 offen sc1")
                if sl < 7: a(f"s_add_u32 s9, s9, {NB_SD}")
        pub = f"buffer_store_dword v{VTAG}, off, s[{S_FL}:{S_FL+3}], s8 sc1"
        if kw.get('ASK3'):
            a(f"v_cmp_ne_u32 vcc, s{S_TAG}, v239\ns_cbranch_vccnz L_e1late")
            loads(0)
            a(f"s_waitcnt vmcnt(8)\n{pub}\ns_branch L_e1done\nL_e1late:\ns_waitcnt vmcnt(0)\n{pub}")
            self.poll(VEF, 4, sleep=0)
            loads(0)
            a("L_e1done:")
            self.stamp(18)
        else:
            a(f"s_waitcnt vmcnt(0)\n{pub}")
            self.stamp(18)
            if early:
                a(f"v_cmp_ne_u32 vcc, s{S_TAG}, v239\ns_cbranch_vccz L_e1ok")
                self.poll(VEF, 4, sleep=0)
                a("L_e1ok:")
                loads(0)
        AC = 226
        def finish(i, waits):
            for e in range(8): a(f"v_mov_b32 v{AC+e}, 0")
            for sl in range(8):
                if waits is not None: a(f"s_waitcnt vmcnt({waits - sl})")
                for x in range(4):
                    a(f"v_dot2_f32_bf16 v{AC+2*x}, v{RD[i]+4*sl+x}, s5, v{AC+2*x}")
                    a(f"v_dot2_f32_bf16 v{AC+2*x+1}, v{RD[i]+4*sl+x}, s6, v{AC+2*x+1}")
            for x in range(4): a(f"v_accvgpr_read_b32 v{QP+x}, a{X1A+4*i+x}")
            for e in range(4): a(f"v_permlane32_swap_b32 v{AC+e}, v{AC+4+e}")
            for x in range(4):
                lo(a, 234, QP+x); hi(a, 235, QP+x)
                a(f"v_pk_fma_f32 v[234:235], v[{AC+2*x}:{AC+2*x+1}], v[{192+8*i+2*x}:{193+8*i+2*x}], v[234:235]")
                a(f"v_cvt_pk_bf16_f32 v{QP+4+x}, v234, v235")
            a(f"buffer_store_dwordx4 v[{QP+4}:{QP+7}], v{VEO}, s[12:15], {'s%d' % S_OOB if i == 2 else '0'} offen" + (f" offset:{256*i}" if i else "") + kw.get('outfl', ''))
            a("s_nop 1")
        if kw.get('MID'):
            a(f"s_bitcmp1_b32 s{S_WAVE}, 0\ns_cselect_b32 s10, s7, {FD3}")
            self.poll(VEF, 10, sleep=0)
            self.stamp(19)
            loads(1)
            a("s_waitcnt lgkmcnt(0)")
            finish(0, None)
            a(f"s_cmp_lg_u32 s{S_WAVE}, 0\ns_cbranch_scc1 L_e2only")
            self.poll(VEF, 7, sleep=0)
            loads(2)
            finish(1, None)
            finish(2, 8)
            a("s_branch L_edone\nL_e2only:")
            finish(1, 8)
            a("L_edone:")
        else:
            self.poll(VEF, 7, sleep=0)
            self.stamp(19)
            if not early: loads(0)
            loads(1); loads(2)
            a("s_waitcnt lgkmcnt(0)")
            for i in range(3): finish(i, None if (early and i == 0) else 23 - 7*i)
        self.stamp(20)

    def build(self):
        a = self.a; kw = self.kw
        a(kernel_head(NAME))
        if kw.get('fix0'): a("s_memrealtime s[100:101]")
        a(f"""
        s_cmp_ge_u32 s2, 256
        s_cbranch_scc1 L_end
        s_load_dwordx16 s[64:79], s[0:1], 0
        s_load_dwordx8 s[80:87], s[0:1], 64
        s_load_dwordx4 s[88:91], s[0:1], 96
        s_load_dwordx2 s[92:93], s[0:1], 112
        """)
        if self.diag: a(f"v_mov_b32 v{DIAG}, 0")
        code_srd(a, 56, 4, 'L_start', 'L_common')
        a(f"""
        L_start:
        v_lshlrev_b32 v1, 7, v0
        v_lshrrev_b32 v2, 6, v0
        v_and_b32 v{LANE}, 63, v0
        buffer_load_dword v238, v1, s[56:59], 0 offen
        v_readfirstlane_b32 s{S_WAVE}, v2
        s_lshr_b32 s3, s2, 3
        s_lshr_b32 s{S_MT}, s3, 1
        s_add_u32 s6, s{S_MT}, {kw.get('CA', 7)}
        s_sub_u32 s7, s{S_MT}, 9
        s_cmp_lt_u32 s7, {kw.get('CA', 7)}
        s_cselect_b32 s7, s7, s{S_MT}
        s_cmp_lt_u32 s{S_MT}, 9
        s_cselect_b32 s{S_MT}, s6, s7
        s_and_b32 s3, s3, 1
        s_and_b32 s{S_GI}, s2, 7
        s_lshl_b32 s{S_GI}, s{S_GI}, 1
        s_add_u32 s{S_GI}, s{S_GI}, s3
        s_mov_b32 s{S_ONE}, 0x3f803f80
        s_cmp_eq_u32 s{S_WAVE}, 0
        s_cselect_b32 s{S_OOB}, 0, 0x40000000
        s_waitcnt lgkmcnt(0)
        {f's_add_u32 s{P_WS}, s{P_WS}, {kw["wsoff"]:#x}' if kw.get('wsoff') else ''}
        {f's_addc_u32 s{P_WS+1}, s{P_WS+1}, 0' if kw.get('wsoff') else ''}
        s_load_dword s{S_TAG}, s[{P_WS}:{P_WS+1}], {WS_EPOCH:#x}
        """.replace(f"s_load_dword s{S_TAG}, s[{P_WS}:{P_WS+1}], {WS_EPOCH:#x}",
                    f"s_add_u32 s4, s{P_WS}, {WS_EPOCH:#x}\ns_addc_u32 s5, s{P_WS+1}, 0\ns_load_dword s28, s[4:5], 0"))
        srd(a, S_FL, P_WS, 0x120000, WS_FL)
        self.stamp(0)
        a(f"s_cmp_ge_u32 s2, {NCONV}\ns_cbranch_scc1 L_side")
        self.tagfix = True
        orig = self.signal
        first = [True]
        def sig(base, idx):
            if first[0]:
                a(f"s_waitcnt lgkmcnt(0)\ns_add_u32 s{S_TAG}, s28, 1"); first[0] = False
            orig(base, idx)
        self.signal = sig
        self.chops = Hops('L_ch'); self.ahops = Hops('L_ah'); self.rhops = Hops('L_rh')
        self.nhc = kw.get('nhc', 4)
        hops = self.fhops = Hops('L_fh') if kw.get('hops', False) else None
        self.conv_path()
        a("s_branch L_common")
        if kw.get('chops', False): self.chops.ret(a)
        if hops: hops.ret(a)
        if kw.get('hopP', False): self.ahops.ret(a)
        if kw.get('hopR', False): self.rhops.ret(a)
        ffn_slow_paths(a, SPIN_MAX, self.diag)
        a("L_side:")
        first[0] = True
        self.side_path()
        a("L_common:")
        self.row_phase(hops)
        kw['NP2'] = sum(kw.get('PL', (3, 0, 0, 3)))
        fk = {k: v for k, v in kw.items() if k not in ('NP1', 'hops', 'nhc', 'hopA', 'hopB', 'hopC', 'sidehops', 'sleepB', 'chops', 'KEARLY', 'waitA', 'MCHK', 'touch', 'NCH', 'dbg', 'fixdur', 'fix0', 'outfl', 'enc', 'poll1', 'sleepD', 'PL', 'hopP', 'hopR', 'LN1', 'pfK', 'early', 'INLOOP', 'ZF', 'convpf', 'PASS', 'CA', 'sidefill', 'ARR', 'KLATE', 'MODLATE', 'QLATE', 'PRE2', 'wsoff', 'waitM', 'waitQ', 'ZPOLL', 'NT')}
        ffn_main(a, hops=hops, stamper=(lambda: self.stamp(16)), **fk)
        if hops: hops.resolve(a, self.nhc)
        if kw.get('chops', False): self.chops.resolve(a, 1)
        if kw.get('hopP', False): self.ahops.resolve(a, 1)
        if kw.get('hopR', False): self.rhops.resolve(a, 1)
        self.reduce_phase()
        a(f"""
        s_cmp_lg_u32 s2, 0
        s_cbranch_scc1 L_noep
        s_cmp_lg_u32 s{S_WAVE}, 0
        s_cbranch_scc1 L_noep
        """)
        srd(a, 20, P_WS, 4, WS_EPOCH)
        a(f"""
        v_mov_b32 v239, s{S_TAG}
        s_mov_b64 exec, 1
        buffer_store_dword v239, off, s[20:23], 0 sc1
        s_mov_b64 exec, -1
        L_noep:
        """)
        if self.diag:
            a("s_waitcnt vmcnt(0)"); self.stamp(21)
            srd(a, 20, P_WS, 1 << 20, 0x8000000)
            a(f"""
            s_lshl_b32 s3, s2, 2
            s_add_u32 s3, s3, s{S_WAVE}
            s_lshl_b32 s3, s3, 8
            v_lshlrev_b32 v1, 2, v{LANE}
            buffer_store_dword v{DIAG}, v1, s[20:23], s3 offen
            s_add_u32 s3, s3, 0x80000
            buffer_store_dword v253, v1, s[20:23], s3 offen
            """)
            if kw.get('dbg') is not None:
                a(f's_load_dwordx2 s[90:91], s[0:1], {DBG}\ns_waitcnt lgkmcnt(0)')
                srd(a, 20, 90, 256)
                a(f"""
                s_cmp_lg_u32 s2, {kw['dbg']}
                s_cbranch_scc1 L_end
                s_cmp_lg_u32 s{S_WAVE}, 0
                s_cbranch_scc1 L_end
                v_readlane_b32 s3, v{DIAG}, 0
                v_add_u32 v2, -24, v1
                s_nop 1
                v_subrev_u32 v{DIAG}, s3, v{DIAG}
                buffer_store_dword v{DIAG}, v2, s[20:23], 0 offen
                """)
                if kw.get('fixdur'):
                    if kw.get('enc') is not None:
                        a(f"s_nop 1\nv_readlane_b32 s4, v{DIAG}, {kw['enc']}\ns_nop 3\ns_add_u32 s3, s3, s4")
                    a(f"""
                    L_fix:
                    s_memrealtime s[98:99]
                    s_waitcnt lgkmcnt(0)
                    s_sub_u32 s98, s98, {'s100' if kw.get('fix0') else 's3'}
                    s_cmp_lt_u32 s98, {kw['fixdur']}
                    s_cbranch_scc1 L_fix
                    """)
        a("L_end:\ns_endpgm\nL_code_end:")
        REF = 'adaLN_cond__ssm_conv_h3__glu_gated_geglu__prompt.s.ref'
        pre = [l for l in open(REF).read().split('\n') if l.startswith(';') and '@launch' not in l]
        out = pre + [f"; @launch grid=(256,1,1) block=(256,1,1) lds={LDS_TOTAL}", '.amdgcn_target "amdgcn-amd-amdhsa--gfx950"', '.text', a.text(),
                     '.section .rodata,"a"', kernel_desc(NAME, 256 + X1A + 12, 102, 256)]
        return '\n'.join(out) + '\n'

BEST = dict(order=1, GDL=70, FLAG_D=48, ASK2=260, PPACE=6, HPACE=4, ASK_D=48, CPF=6, CPD=2, BG=2, GSPAN=40, NCH=3, PL=(3,0,0,3), waitA=True, waitQ=1, NT='kvmq', outfl=' sc1', KLATE=2, QLATE=2, ZF=5, MCHK=6, PF=default_pf(d=(13, 15)))
if __name__ == '__main__':
    dst = sys.argv[1] if len(sys.argv) > 1 else 'best.s'
    open(dst, 'w').write(G(verbose=True, **BEST).build())
    open('best_d.s', 'w').write(G(diag=True, stagestamp=3, **BEST).build())
```

```python
from fused import *
import ffn, sys
B = BEST
V = eval(open(sys.argv[1]).read())
names = []
for k, kw in V.items():
    open(f's_{k}.s','w').write(G(diag=True, verbose=True, stagestamp=3, **{**B, **kw}).build())
    names.append(f's_{k}.s')
open('s_list.txt','w').write(' '.join(names))
```

```python
import sys
from common import *
from ffn import *
NAME = 'adaLN_cond__ssm_conv_h3__glu_gated_geglu__prompt_kernel'
WS_EPOCH = 0x0A00000
WS_FL = 0x0A10000
FB = 0x8000
FC = 0x10000
FA = 0xE8000
FZ = 0xA0000
NB_MOD = 6*D*4
KSTR = 4160
WAVE_LDS = 4*KSTR + 4608
T_OFF = 4*WAVE_LDS
STAT_OFF = RING
MOD_OFF = RING + 1024
LDS_TOTAL = MOD_OFF + 14848
VRZ, VRM, VRH, VRP = 200, 201, 202, 203
NCONV, NMOD = 144, 54
QP, ST = 240, 252
DIAG = 255
SPIN_MAX = 200000

class G:
    def __init__(self, diag=False, **kw):
        self.a = Asm(); self.diag = diag; self.kw = kw; self.nl = 0; self.nst = 0; self.names = []
    def lab(self, p):
        self.nl += 1; return f"L_{p}{self.nl}"
    def nt(self, c):
        return ' nt' if c in self.kw.get('NT', '') else ''
    def stamp(self, idx):
        if self.diag:
            self.a(f"s_memrealtime s[98:99]\ns_waitcnt lgkmcnt(0)\nv_writelane_b32 v{DIAG}, s98, {idx}")

    def signal(self, base, idx_sgpr):
        a = self.a; l = self.lab('sig')
        a(f"""
        s_waitcnt vmcnt(0)
        s_barrier
        s_cmp_lg_u32 s{S_WAVE}, 0
        s_cbranch_scc1 {l}
        s_lshl_b32 s3, s{idx_sgpr}, 7
        s_add_u32 s3, s3, {base}
        v_mov_b32 v239, s{S_TAG}
        s_mov_b64 exec, 1
        buffer_store_dword v239, off, s[{S_FL}:{S_FL+3}], s3 sc1
        s_mov_b64 exec, -1
        {l}:
        """)
    def signal_wave(self, soff, n=0):
        self.a(f"v_mov_b32 v239, s{S_TAG}\ns_waitcnt vmcnt({n})\nbuffer_store_dword v239, off, s[{S_FL}:{S_FL+3}], s{soff} sc1")
    def poll(self, vaddr, soff, sleep=1):
        a = self.a; l = self.lab('poll'); d = self.lab('pd')
        a(f"""
        s_mov_b32 s{S_SPIN}, 0
        {l}:
        buffer_load_dword v239, v{vaddr}, s[{S_FL}:{S_FL+3}], s{soff} offen sc1
        s_add_u32 s{S_SPIN}, s{S_SPIN}, 1
        s_waitcnt vmcnt(0)
        v_cmp_ne_u32 vcc, s{S_TAG}, v239
        s_cbranch_vccz {d}
        {'s_sleep ' + str(sleep) if sleep else ''}
        s_cmp_lt_u32 s{S_SPIN}, {SPIN_MAX}
        s_cbranch_scc1 {l}
        {d}:
        """)

    def row_ids(self, vr, vp, t):
        self.a(f"""
        s_lshl_b32 s3, s{S_MT}, 4
        s_add_u32 s3, s3, s{S_GI}
        s_lshl_b32 s3, s3, 3
        v_and_b32 v{vr}, 7, v{LANE}
        v_add_u32 v{vr}, s3, v{vr}
        v_bfe_u32 v{vp}, v{LANE}, 3, 1
        v_lshlrev_b32 v{vp}, 2, v{vp}
        v_bfe_u32 v{t}, v{LANE}, 5, 1
        v_lshl_add_u32 v{vp}, v{t}, 1, v{vp}
        v_bfe_u32 v{t}, v{LANE}, 4, 1
        v_add_u32 v{vp}, v{vp}, v{t}
        s_lshr_b32 s3, s{S_WAVE}, 1
        s_mul_i32 s3, s3, 3
        s_add_u32 s3, s3, s{S_WAVE}
        s_lshl_b32 s3, s3, 3
        v_add_u32 v{vp}, s3, v{vp}
        """)
    def q_loads(self, srdq, t):
        a = self.a
        self.row_ids(t, t+1, t+2)
        srd(a, srdq, P_Q, NB_SD)
        a(f"""
        v_mul_u32_u24 v{t}, 1152, v{t}
        v_lshl_add_u32 v{t}, v{t+1}, 4, v{t}
        buffer_load_dwordx4 v[{QP}:{QP+3}], v{t}, s[{srdq}:{srdq+3}], 0 offen{self.nt('q')}
        buffer_load_dwordx4 v[{QP+4}:{QP+7}], v{t}, s[{srdq}:{srdq+3}], 0 offen offset:256{self.nt('q')}
        buffer_load_dwordx4 v[{QP+8}:{QP+11}], v{t}, s[{srdq}:{srdq+3}], s{S_OOB} offen offset:512{self.nt('q')}
        """)
    def stats(self, ldsoff, t, scale=None, part=3):
        real = a = self.a
        if not part & 1: a = Asm()
        a(f"""
        v_mov_b32 v{t}, 0
        v_mov_b32 v{t+1}, 0
        v_bfe_u32 v{t+2}, v{LANE}, 5, 1
        v_and_b32 v{t+3}, 7, v{LANE}
        v_lshl_add_u32 v{t+2}, v{t+2}, 3, v{t+3}
        v_lshlrev_b32 v{t+2}, 4, v{t+2}
        s_lshl_b32 s3, s{S_WAVE}, 2
        v_add_u32 v{t+2}, {STAT_OFF + ldsoff}, v{t+2}
        v_add_u32 v{t+3}, s3, v{t+2}
        """)
        for i in range(12):
            a(f"v_dot2_f32_bf16 v{t}, v{QP+i}, s{S_ONE}, v{t}\nv_dot2_f32_bf16 v{t+1}, v{QP+i}, v{QP+i}, v{t+1}")
        a(f"""
        s_nop 2
        v_permlane32_swap_b32 v{t}, v{t+1}
        s_nop 1
        v_add_f32 v{t}, v{t}, v{t+1}
        v_mov_b32 v{t+1}, v{t}
        s_nop 1
        v_permlane16_swap_b32 v{t}, v{t+1}
        s_nop 1
        v_add_f32 v{t}, v{t}, v{t+1}
        s_nop 1
        v_add_f32_dpp v{t}, v{t}, v{t} row_ror:8 row_mask:0xf bank_mask:0xf
        ds_write_b32 v{t+3}, v{t}
        """)
        a = real
        if part == 3: a("s_waitcnt lgkmcnt(0)\ns_barrier")
        if not part & 2: return
        a(f"""
        ds_read_b128 v[{t+4}:{t+7}], v{t+2}
        s_waitcnt lgkmcnt(0)
        v_add_f32 v{t+4}, v{t+4}, v{t+5}
        v_add_f32 v{t+6}, v{t+6}, v{t+7}
        v_add_f32 v{t}, v{t+4}, v{t+6}
        v_mul_f32 v{t}, 0x3ae38e39, v{t}
        v_mov_b32 v{t+1}, v{t}
        s_nop 1
        v_permlane32_swap_b32 v{t}, v{t+1}
        s_nop 1
        v_fma_f32 v{t+1}, -v{t}, v{t}, v{t+1}
        v_max_f32 v{t+1}, 0, v{t+1}
        v_add_f32 v{t+1}, 0x3727c5ac, v{t+1}
        v_rsq_f32 v{ST}, v{t+1}
        s_nop 0
        """)
        if scale: a(f"v_mul_f32 v{ST}, {f2u(scale):#x}, v{ST}")
        a(f"v_mul_f32 v{ST+1}, v{t}, v{ST}\nv_sub_f32 v{ST+1}, 0, v{ST+1}")

    def stats_parts(self, ldsoff, t):
        A = [f"v_bfe_u32 v{t+2}, v{LANE}, 5, 1", f"v_and_b32 v{t+3}, 7, v{LANE}", f"v_lshl_add_u32 v{t+2}, v{t+2}, 3, v{t+3}",
             f"v_lshlrev_b32 v{t+2}, 4, v{t+2}", f"v_add_u32 v{t+2}, {STAT_OFF + ldsoff}, v{t+2}",
             f"v_mov_b32 v{t+3}, s{S_WAVE}", f"v_lshl_add_u32 v{t+3}, v{t+3}, 2, v{t+2}", f"v_mov_b32 v{t}, 0", f"v_mov_b32 v{t+1}, 0"]
        for i in range(12):
            A += [f"v_lshlrev_b32 v{t+4}, 16, v{QP+i}", f"v_and_b32 v{t+5}, 0xffff0000, v{QP+i}", f"v_add_f32 v{t}, v{t}, v{t+4}",
                  f"v_fmac_f32 v{t+1}, v{t+4}, v{t+4}", f"v_add_f32 v{t}, v{t}, v{t+5}", f"v_fmac_f32 v{t+1}, v{t+5}, v{t+5}"]
        A += ['', '', f"v_permlane32_swap_b32 v{t}, v{t+1}", '', f"v_add_f32 v{t}, v{t}, v{t+1}", f"v_mov_b32 v{t+1}, v{t}", '', '',
              f"v_permlane16_swap_b32 v{t}, v{t+1}", '', f"v_add_f32 v{t}, v{t}, v{t+1}", '', '',
              f"v_add_f32_dpp v{t}, v{t}, v{t} row_ror:8 row_mask:0xf bank_mask:0xf", f"ds_write_b32 v{t+3}, v{t}"]
        B = [f"ds_read_b128 v[{t+4}:{t+7}], v{t+2}"]
        C = [f"v_add_f32 v{t+4}, v{t+4}, v{t+5}", f"v_add_f32 v{t+6}, v{t+6}, v{t+7}", f"v_add_f32 v{t}, v{t+4}, v{t+6}",
             f"v_mul_f32 v{t}, 0x3ae38e39, v{t}", f"v_mov_b32 v{t+1}, v{t}", '', '', f"v_permlane32_swap_b32 v{t}, v{t+1}", '',
             f"v_fma_f32 v{t+1}, -v{t}, v{t}, v{t+1}", f"v_max_f32 v{t+1}, 0, v{t+1}", f"v_add_f32 v{t+1}, 0x3727c5ac, v{t+1}",
             f"v_rsq_f32 v{ST}, v{t+1}", '', f"v_mul_f32 v{ST+1}, v{t}, v{ST}", f"v_sub_f32 v{ST+1}, 0, v{ST+1}"]
        return A, B, C
    def row_setup(self, t):
        a = self.a
        self.row_ids(t, t+1, t+2)
        a(f"""
        v_lshlrev_b32 v{VRZ}, 15, v{t+1}
        v_lshl_add_u32 v{VRZ}, v{t}, 3, v{VRZ}
        v_lshlrev_b32 v{VRM}, 5, v{t+1}
        v_add_u32 v{VRM}, {MOD_OFF}, v{VRM}
        v_lshrrev_b32 v{VRH}, 4, v{t}
        v_mul_u32_u24 v{VRH}, 18432, v{VRH}
        v_lshl_add_u32 v{VRH}, v{t+1}, 8, v{VRH}
        v_and_b32 v{t+2}, 15, v{t}
        v_lshl_add_u32 v{VRH}, v{t+2}, 4, v{VRH}
        s_lshl_b32 s3, s{S_MT}, 2
        s_add_u32 s3, s3, s{S_WAVE}
        s_mul_i32 s3, s3, 36
        v_min_u32 v{VRP}, 35, v{LANE}
        v_add_u32 v{VRP}, s3, v{VRP}
        v_lshlrev_b32 v{VRP}, 7, v{VRP}
        """)
    def mod_dma(self, sr):
        a = self.a
        srd(a, sr, P_WS, NB_MOD, WS_MOD)
        a(f"s_mul_i32 s91, s{S_WAVE}, 3584\ns_add_u32 m0, s91, {MOD_OFF}\ns_nop 0")
        out = []
        for i in range(4):
            out.append(f"buffer_load_dwordx4 v{VL16}, s[{sr}:{sr+3}], s91 offen offset:{1024*i} sc1 lds")
        return out

    def conv_path(self):
        a = self.a; kw = self.kw
        VA, VB, VTW, VTR, VZ, VU, VPA, VHD = 192, 193, 194, 195, 211, 212, 213, 214
        DG = 196
        G4, I16 = 144, 145
        a(f"""
        s_lshr_b32 s40, s2, 4
        s_and_b32 s41, s2, 15
        v_and_b32 v1, 7, v0
        v_lshrrev_b32 v2, 3, v0
        s_lshl_b32 s42, s41, 7
        s_lshl_b32 s43, s40, 7
        v_lshl_add_u32 v3, v2, 2, s42
        v_mul_u32_u24 v3, 1152, v3
        v_lshl_add_u32 v4, v1, 4, s43
        v_add_u32 v13, v3, v4
        v_add_u32 v10, {(-3*1152) & 0xffffffff:#x}, v13
        v_add_u32 v11, {(-2*1152) & 0xffffffff:#x}, v13
        v_add_u32 v12, {(-1*1152) & 0xffffffff:#x}, v13
        v_lshlrev_b32 v5, 2, v4
        """)
        srd(a, 52, P_K, NB_SD); srd(a, 56, P_V, NB_SD); srd(a, 20, P_SK, D*8)
        for j in (3, 4, 5, 6, 0, 1, 2):
            va, o = (10+j, 0) if j < 3 else (13, (j-3)*1152)
            a(f"buffer_load_dwordx4 v[{16+4*j}:{19+4*j}], v{va}, s[52:55], 0 offen" + (f" offset:{o}" if o else "") + self.nt('k'))
        for j in range(4):
            a(f"buffer_load_dwordx4 v[{60+4*j}:{63+4*j}], v5, s[20:23], 0 offen" + (f" offset:{16*j}" if j else ""))
        for j in range(4):
            a(f"buffer_load_dwordx4 v[{44+4*j}:{47+4*j}], v13, s[56:59], 0 offen" + (f" offset:{1152*j}" if j else "") + self.nt('v'))
        a(f"""
        s_lshl_b32 s44, s2, 2
        s_add_u32 s44, s44, s{S_WAVE}
        s_mul_i32 s45, s{S_WAVE}, {WAVE_LDS}
        s_lshl_b32 s46, s44, 12
        s_add_u32 s52, s{P_SSMK}, s46
        s_addc_u32 s53, s{P_SSMK+1}, 0
        s_mov_b32 s54, 4096
        s_mov_b32 s55, 0x20000
        v_lshrrev_b32 v{G4}, 4, v{LANE}
        v_and_b32 v{I16}, 15, v{LANE}
        v_add_u32 v142, v{G4}, v{I16}
        v_add_u32 v142, -16, v142
        v_lshlrev_b32 v142, 1, v142
        s_lshl_b32 s3, s44, 1
        """)
        srd(a, 56, P_SSMD, D*2)
        a(f"""
        v_lshlrev_b32 v143, 4, v{LANE}
        s_mov_b32 s91, s3
        """)
        KR = 152
        def kloads():
            a("buffer_load_ushort v140, v142, s[52:55], 0 offen\nbuffer_load_ushort v141, off, s[56:59], s91")
            for i in range(4):
                a(f"buffer_load_dwordx4 v[{KR+6*i}:{KR+6*i+3}], v143, s[52:55], 0 offen offset:{1024*i}" + self.nt('s'))
                a(f"buffer_load_dwordx2 v[{KR+6*i+4}:{KR+6*i+5}], v143, s[52:55], 0 offen offset:{1024*i+16}" + self.nt('s'))
        KL = kw.get('KLATE', 0)
        if KL == 0: kloads()
        srd(a, 24, P_WS, NB_SD, WS_U)
        a(f"""
        v_lshlrev_b32 v6, 9, v2
        v_lshl_add_u32 v6, v1, 4, v6
        v_add_u32 v6, {T_OFF}, v6
        v_bfe_u32 v7, v{LANE}, 1, 1
        v_lshl_add_u32 v7, v{G4}, 1, v7
        v_lshlrev_b32 v7, 3, v7
        v_bfe_u32 v8, v{LANE}, 2, 2
        v_sub_u32 v7, v7, v8
        v_add_u32 v7, 3, v7
        v_lshlrev_b32 v7, 7, v7
        v_and_b32 v8, 1, v{LANE}
        v_lshl_add_u32 v7, v8, 3, v7
        s_lshl_b32 s3, s{S_WAVE}, 5
        s_add_u32 s3, s3, {T_OFF}
        v_add_u32 v7, s3, v7
        s_lshl_b32 s3, s40, 6
        s_lshl_b32 s47, s{S_WAVE}, 4
        s_add_u32 s3, s3, s47
        v_and_b32 v8, 7, v{LANE}
        v_add_u32 v8, s3, v8
        v_lshlrev_b32 v8, 12, v8
        v_bfe_u32 v9, v{LANE}, 3, 1
        v_lshl_add_u32 v9, v{G4}, 1, v9
        v_lshl_add_u32 v8, v9, 4, v8
        s_lshl_b32 s3, s41, 8
        v_add_u32 v8, s3, v8
        v_add_u32 v9, 0x8000, v8
        v_mov_b32 v146, 0
        v_mov_b32 v147, 0
        v_lshl_add_u32 v148, v{LANE}, 3, s45
        ds_write_b64 v148, v[146:147] offset:{4*KSTR}
        v_mul_u32_u24 v{VHD}, {KSTR}, v{G4}
        v_lshl_add_u32 v{VHD}, v{I16}, 1, v{VHD}
        v_add_u32 v{VHD}, s45, v{VHD}
        v_add_u32 v14, 1, v{I16}
        v_and_b32 v{VA}, 3, v14
        v_mul_u32_u24 v{VA}, {KSTR}, v{VA}
        v_lshrrev_b32 v14, 2, v14
        v_lshl_add_u32 v{VA}, v14, 3, v{VA}
        v_lshlrev_b32 v14, 4, v{G4}
        v_sub_u32 v{VA}, v{VA}, v14
        v_add_u32 v{VA}, 48, v{VA}
        v_add_u32 v{VA}, s45, v{VA}
        v_lshlrev_b32 v{VB}, 5, v{I16}
        v_lshl_add_u32 v{VB}, v{G4}, 4, v{VB}
        s_add_u32 s3, s45, {4*KSTR + 512 - 32 - 448}
        v_add_u32 v{VB}, s3, v{VB}
        v_lshlrev_b32 v{VTW}, 4, v{I16}
        v_lshl_add_u32 v{VTW}, v{G4}, 2, v{VTW}
        s_mul_i32 s3, s{S_WAVE}, {KSTR}
        s_add_u32 s3, s3, {T_OFF}
        v_add_u32 v{VTW}, s3, v{VTW}
        v_bfe_u32 v{VTR}, v{LANE}, 2, 2
        v_mul_u32_u24 v{VTR}, {KSTR}, v{VTR}
        v_lshl_add_u32 v{VTR}, v{G4}, 5, v{VTR}
        v_and_b32 v14, 3, v{LANE}
        v_lshl_add_u32 v{VTR}, v14, 3, v{VTR}
        s_lshl_b32 s3, s{S_WAVE}, 7
        s_add_u32 s3, s3, {T_OFF}
        v_add_u32 v{VTR}, s3, v{VTR}
        s_lshl_b32 s3, s2, 14
        s_lshl_b32 s47, s{S_WAVE}, 10
        s_add_u32 s3, s3, s47
        v_lshl_add_u32 v{VZ}, v{LANE}, 4, s3
        v_lshlrev_b32 v{VU}, 4, v{LANE}
        v_lshlrev_b32 v{VPA}, 7, v{I16}
        """)
        if kw.get('ARR', 1):
            ffn_setup(a, 100)
            self.row_setup(100)
        if KL == 1: kloads()
        self.stamp(1)
        if kw.get('hopP', False): self.ahops.call(a, 0)
        a(f"s_waitcnt vmcnt({14 if KL < 2 else 4})")
        self.stamp(2)
        if kw.get('hopP', False): a.hop = self.ahops
        kd = []
        for c in (0, 2):
            ops = [f"buffer_load_dwordx4 v143, s[52:55], 0 offen offset:{i*1024} lds" for i in range(4)]
            ops[0] = f"s_add_u32 m0, s45, {c*KSTR + 32}\n" + ("v_add_u32 v143, 4, v143\n" if c else "s_nop 0\n") + ops[0]
            kd += ops
        nearly = kw.get('KEARLY', 0)
        early, late = kd[:nearly], kd[nearly:]
        def kdma():
            if early: a(early.pop(0))
        P = lambda x: f"v[{x}:{x+1}]"
        for cp in range(4):
            for j in range(4):
                f = lo if j % 2 == 0 else hi
                f(a, 80+2*j, 60+4*cp+(j >> 1)); f(a, 81+2*j, 62+4*cp+(j >> 1))
            if cp: kdma()
            for i in range(7):
                lo(a, 88+2*i, 16+4*i+cp); hi(a, 89+2*i, 16+4*i+cp)
            if cp: kdma()
            for r in range(4): a(f"v_pk_mul_f32 {P(110+2*r)}, {P(88+2*r)}, {P(86)}")
            for j in (1, 2, 3):
                for r in range(4): a(f"v_pk_fma_f32 {P(110+2*r)}, {P(88+2*(r+j))}, {P(86-2*j)}, {P(110+2*r)}")
            if cp == 0:
                a(f"s_waitcnt vmcnt({10 if KL < 2 else 0})")
                self.stamp(22)
                if KL == 2: kloads()
            kdma()
            for r in range(4):
                lo(a, 102+2*r, 44+4*r+cp); hi(a, 103+2*r, 44+4*r+cp)
            for r in range(4): a(f"v_pk_mul_f32 {P(110+2*r)}, {P(110+2*r)}, {P(102+2*r)}")
            for r in range(4): a(f"v_cvt_pk_bf16_f32 v{120+4*r+cp}, v{110+2*r}, v{111+2*r}")
            kdma()
        for r in range(4):
            a(f"ds_write_b128 v6, v[{120+4*r}:{123+4*r}]" + (f" offset:{128*r}" if r else ""))
        while early: kdma()
        a("s_waitcnt lgkmcnt(0)\ns_barrier")
        n = 0
        for cb in range(2):
            for hq in range(2):
                o = hq*8192 + cb*16
                a(f"ds_read_b64_tr_b16 v[{16+4*n}:{17+4*n}], v7 offset:{o+512}")
                a(f"ds_read_b64_tr_b16 v[{18+4*n}:{19+4*n}], v7 offset:{o}")
                n += 1
        n = 0
        for cb in range(2):
            for hq in range(2):
                a(f"s_waitcnt lgkmcnt({6-2*n})")
                a(f"buffer_store_dwordx4 v[{16+4*n}:{19+4*n}], v{8+cb}, s[24:27], 0 offen" + (" offset:128" if hq else "") + " sc1")
                n += 1
        a.hop = None
        def kcopy():
            a(f"v_lshl_add_u32 v14, v{LANE}, 4, s45")
            for i in range(4):
                for c in range(2):
                    for x in range(4):
                        a(f"v_alignbyte_b32 v{40+8*(i&1)+4*c+x}, v{KR+6*i+x+c+1}, v{KR+6*i+x+c}, 2")
                    a(f"ds_write_b128 v14, v[{40+8*(i&1)+4*c}:{43+8*(i&1)+4*c}] offset:{(1+2*c)*KSTR + 32 + 1024*i}")
            a(f"""
            ds_write_b16 v{VHD}, v140
            v_lshrrev_b32 v10, 3, v{I16}
            v_add_u32 v10, 2, v10
            v_cmp_eq_u32 vcc, v10, v{G4}
            v_and_b32 v11, 7, v{I16}
            v_sub_u32 v11, 7, v11
            v_cndmask_b32 v9, 0, v141, vcc
            v_and_b32 v10, 1, v11
            v_lshlrev_b32 v10, 4, v10
            v_lshlrev_b32 v9, v10, v9
            v_lshrrev_b32 v11, 1, v11
            """)
            for r in range(4):
                a(f"v_cmp_eq_u32 vcc, {r}, v11\ns_nop 1\nv_cndmask_b32 v{DG+r}, 0, v9, vcc")
        self.stamp(3)
        if KL == 3: kloads()
        elif kw.get('ARR', 1):
            a(f"s_waitcnt vmcnt(4)")
            kcopy()
        else:
            ffn_setup(a, 100)
            self.row_setup(100)
        a(f"""
        s_waitcnt lgkmcnt(0)
        s_add_u32 s{S_TAG}, s28, 1
        s_mul_i32 s3, s{S_WAVE}, 144
        s_add_u32 s3, s3, s2
        s_lshl_b32 s3, s3, 7
        s_add_u32 s3, s3, {FA}
        """)
        self.signal_wave(3, 10 if KL == 3 else 0)
        a("s_barrier")
        self.stamp(4)
        if KL == 3: a("s_waitcnt vmcnt(1)")
        for o in late: a(o)
        if KL == 3: kcopy()
        if not kw.get('QLATE'): self.q_loads(56, 1)
        if not kw.get('ARR', 1): kcopy()
        if kw.get('LN1', 'B') == 'A':
            a("s_waitcnt vmcnt(0)")
            self.stats(0, 150)
        a(f"""
        v_min_u32 v{VHD}, 55, v{LANE}
        v_lshlrev_b32 v{VHD}, 7, v{VHD}
        s_mov_b32 s90, {FB + 128*NCONV}
        s_mov_b32 s8, {FB + 128*(NCONV+56)}
        s_mul_i32 s6, s{S_WAVE}, 144
        s_add_u32 s6, s6, s2
        s_lshl_b32 s6, s6, 7
        s_add_u32 s6, s6, {FZ}
        s_cmp_ge_u32 s{S_WAVE}, 2
        s_cselect_b32 s7, 0x40000000, 0
        v_mov_b32 v23, s{S_TAG}
        s_add_u32 s56, s{P_WS}, s46
        s_addc_u32 s57, s{P_WS+1}, 0
        s_mov_b32 s58, 4096
        s_mov_b32 s59, 0x20000
        s_bfe_u32 s4, s2, 0x20002
        s_mul_i32 s4, s4, 9
        s_add_u32 s4, s4, s40
        s_lshl_b32 s4, s4, 11
        s_add_u32 s4, s4, {FA}
        """)
        assert WS_U == 0
        srd(a, 52, P_WS, NB_SD, WS_Z)
        hops = self.chops if kw.get('chops', False) else None
        if hops: hops.call(a, 0)
        self.stamp(5)
        self.poll(VPA, 4, sleep=0)
        self.stamp(6)
        a(f"s_add_u32 m0, s45, {4*KSTR + 512}\ns_nop 0")
        for i in range(4):
            a(f"buffer_load_dwordx4 v{VU}, s[56:59], 0 offen offset:{i*1024} sc1 lds")
        AC = 24; FRG = 64
        A = lambda s, m1: FRG + 64*s + 4*m1
        B = lambda s, n1: FRG + 64*s + 32 + 4*n1
        def rdA(m0, n, s):
            R = []
            for x in range(n):
                R.append(f"ds_read_b64 v[{A(s,x)}:{A(s,x)+1}], v{VA} offset:{512*x + 64*m0}")
                R.append(f"ds_read_b64 v[{A(s,x)+2}:{A(s,x)+3}], v{VA} offset:{512*x + 64*m0+8}")
            return R
        def rdB(m0, n, s):
            return [f"ds_read_b128 v[{B(s,x)}:{B(s,x)+3}], v{VB} offset:{512*x + 64*(7-m0)}" for x in range(n)]
        def mf(w, av, bv, first=False):
            a(f"v_mfma_f32_16x16x32_bf16 v[{AC+4*w}:{AC+4*w+3}], v[{av}:{av+3}], v[{bv}:{bv+3}], " + ("0" if first else f"v[{AC+4*w}:{AC+4*w+3}]"))
        def pack(w, t):
            return [f"v_cvt_pk_bf16_f32 v{t}, v{AC+4*w}, v{AC+4*w+2}", f"v_cvt_pk_bf16_f32 v{t+1}, v{AC+4*w+1}, v{AC+4*w+3}",
                    f"ds_write2st64_b32 v{VTW}, v{t}, v{t+1} offset0:{w} offset1:{w+8}"]
        PASS = kw.get('PASS', (0, 4, 8))
        def units(p):
            u0, u1 = 2*PASS[p], 2*PASS[p+1]
            return [(u, u + 4 > u1) for u in range(u0, u1, 4)]
        def trr(p, t):
            R = []
            for i, (u, h) in enumerate(units(p)):
                R += [f"ds_read_b64_tr_b16 v[{t+4*i}:{t+4*i+1}], v{VTR} offset:{128*u}", f"ds_read_b64_tr_b16 v[{t+4*i+2}:{t+4*i+3}], v{VTR} offset:{128*u + 2048}"]
            return R
        def zst(p, t):
            return [(f"s_add_u32 s96, s7, {1024*u}" if h else f"s_mov_b32 s96, {1024*u}") + f"\nbuffer_store_dwordx4 v[{t+4*i}:{t+4*i+3}], v{VZ}, s[52:55], s96 offen sc1" for i, (u, h) in enumerate(units(p))]
        def zfl(p):
            R = ["s_waitcnt vmcnt(0)"]
            for u, h in units(p):
                R.append(f"s_add_u32 s96, s6, {u*144*128}")
                if h: R.append("s_add_u32 s96, s96, s7")
                R.append(f"buffer_store_dword v23, off, s[{S_FL}:{S_FL+3}], s96 sc1")
            return "\n".join(R)
        steps = []
        for p in range(len(PASS) - 1):
            two = PASS[p+1] <= 4
            steps += [(p, m0, two) for m0 in range(0, 8, 2 if two else 1)]
        def rds(p, m0, two, s):
            n = PASS[p+1]; ra, rb = [], []
            for h in range(2 if two else 1):
                for x in range(n):
                    t = 4*h + x
                    ra += [f"ds_read_b64 v[{A(s,t)}:{A(s,t)+1}], v{VA} offset:{512*x + 64*(m0+h)}", f"ds_read_b64 v[{A(s,t)+2}:{A(s,t)+3}], v{VA} offset:{512*x + 64*(m0+h)+8}"]
                    rb += [f"ds_read_b128 v[{B(s,t)}:{B(s,t)+3}], v{VB} offset:{512*x + 64*(7-m0-h)}"]
            return ra, rb
        ra, rb = rds(*steps[0], 0)
        for r in ra: a(r)
        ffn_setup2(a, 12)
        a("s_waitcnt vmcnt(0)")
        self.stamp(7)
        for r in rb: a(r)
        if kw.get('QLATE'): self.q_loads(56, 1)
        cp_ = kw.get('convpf', '')
        if cp_:
            a(f"""
            s_and_b32 s3, s2, 7
            s_lshr_b32 s5, s2, 3
            s_lshl_b32 s5, s5, 2
            s_add_u32 s5, s5, s{S_WAVE}
            """)
        if 'g' in cp_:
            a(f"""
            s_mul_i32 s9, s3, 1152
            s_lshr_b32 s10, s2, 3
            s_lshl_b32 s10, s10, 1
            s_and_b32 s11, s{S_WAVE}, 1
            s_add_u32 s10, s10, s11
            s_mul_i32 s10, s10, {16*9216}
            s_add_u32 s9, s9, s10
            v_and_b32 v1, 15, v{LANE}
            v_mul_u32_u24 v1, 9216, v1
            v_lshrrev_b32 v2, 4, v{LANE}
            v_min_u32 v2, 2, v2
            v_lshrrev_b32 v3, 1, v2
            v_mul_u32_u24 v3, 3, v3
            v_add3_u32 v2, v2, v3, 3
            v_lshl_add_u32 v1, v2, 7, v1
            buffer_load_dword v22, v1, s[{S_W}:{S_W+3}], s9 offen
            """)
        if 'd' in cp_:
            srd(a, 56, P_WD, D*DF*2)
            a(f"""
            s_mul_i32 s9, s3, {576*1152}
            s_mul_i32 s10, s5, 9216
            s_add_u32 s9, s9, s10
            v_lshlrev_b32 v1, 7, v{LANE}
            v_and_b32 v2, 7, v{LANE}
            v_lshlrev_b32 v2, 7, v2
            v_add_u32 v2, 8192, v2
            buffer_load_dword v22, v1, s[56:59], s9 offen
            buffer_load_dword v22, v2, s[56:59], s9 offen
            """)
        NP_ = len(PASS) - 1
        def modcheck():
            a(f"v_cmp_ne_u32 vcc, s{S_TAG}, v239\nv_cmp_ne_u32 s[4:5], s{S_TAG}, v22\ns_nop 1\ns_or_b64 vcc, vcc, s[4:5]\ns_cbranch_vccz L_modok")
            self.poll(VHD, 90, sleep=1)
            self.poll(VHD, 8, sleep=1)
            a("L_modok:")
        for n_, (p, m0, two) in enumerate(steps):
            s = n_ & 1
            nxt = []
            if n_ + 1 < len(steps):
                ra, rb = rds(*steps[n_+1], 1-s)
                nxt = rb + ra
            ext = []
            a("s_waitcnt lgkmcnt(0)")
            if p:
                if m0 == 0: ext = ['', ''] + sum([pack(w, 4 + 2*(w - PASS[p-1])) for w in range(PASS[p-1], PASS[p])], [])
                if m0 == 1: a("s_barrier"); ext = trr(p-1, 4)
                if m0 == 2: ext = zst(p-1, 4)
                if kw.get('ZPOLL') and m0 >= kw['ZPOLL']:
                    l = self.lab('zf')
                    if m0 == kw['ZPOLL']: a("s_mov_b32 s9, 0")
                    a(f"s_getreg_b32 s10, hwreg(HW_REG_IB_STS, 0, 4)")
                    if m0 == 7: a("s_mov_b32 s10, 0")
                    a(f"s_or_b32 s10, s10, s9\ns_cbranch_scc1 {l}\ns_mov_b32 s9, 1")
                    a(zfl(p-1))
                    if p == 1: self.stamp(28)
                    a(f"{l}:")
                elif not kw.get('ZPOLL') and m0 == kw.get('ZF', 4):
                    a(zfl(p-1))
                    if p == 1: self.stamp(28)
                    if kw.get('EARLYC') and p == NP_ - 1:
                        modcheck(); ext += self.mod_dma(56)
                if p == NP_ - 1 and m0 == kw.get('MCHK', 5):
                    ext += [f"buffer_load_dword v239, v{VHD}, s[{S_FL}:{S_FL+3}], s90 offen sc1", f"buffer_load_dword v22, v{VHD}, s[{S_FL}:{S_FL+3}], s8 offen sc1"]
            def gap():
                k = 2 if (len(nxt) > left[0] and not ext) else 1
                while k and nxt: a(nxt.pop(0)); k -= 1
                if ext:
                    x = ext.pop(0)
                    if x: a(x)
                left[0] -= 1
            pairs = [(m1 + n1, 4*h + m1, 4*h + n1) for h in range(2 if two else 1) for m1 in range(8) for n1 in range(8 - m1) if PASS[p] <= m1 + n1 < PASS[p+1]]
            nd = PASS[p+1] - PASS[p] if m0 == 0 else 0
            left = [len(pairs) + nd - 8]
            for w in range(PASS[p], PASS[p] + nd):
                mf(w, DG, B(s, w), True); gap()
            for w, x, y in pairs:
                mf(w, A(s, x), B(s, y)); gap()
            for x in nxt + ext:
                if x: a(x)
        self.stamp(8)
        a("s_nop 7")
        for w in range(PASS[-2], 8):
            for x in pack(w, 64 + 2*w): a(x)
        a("s_waitcnt lgkmcnt(0)\ns_barrier")
        for x in trr(NP_-1, 80): a(x)
        zs = zst(NP_-1, 80)
        for i, x in enumerate(zs):
            a(f"s_waitcnt lgkmcnt({2*(len(zs)-1-i)})"); a(x)
        self.stamp(9)
        if kw.get('EARLYC'):
            a(f"s_mov_b32 s4, {FZ}\nbuffer_load_dword v22, v{VRP}, s[{S_FL}:{S_FL+3}], s4 offen sc1")
            self.stats(0, 150, part=1)
            a(zfl(NP_-1))
            a(f"v_cmp_ne_u32 vcc, s{S_TAG}, v22\ns_cbranch_vccz L_zok")
            self.poll(VRP, 4, sleep=0)
            a("L_zok:")
            self.row_consts()
            a("s_waitcnt lgkmcnt(0)\ns_barrier")
            self.stamp(23); self.stamp(11)
            self.z_loads()
            n = kw['PL'][0]
            ffn_prefill(a, range(n))
            self.stats(0, 150, part=2)
            self.mod_reads()
            a(f"s_waitcnt vmcnt({6*n})\ns_branch L_rowjoin")
            return
        self.stats(0, 150, part=1)
        a(zfl(NP_-1)); a("s_waitcnt lgkmcnt(0)\ns_barrier")
        self.stamp(23)
        modcheck()
        for o in self.mod_dma(56): a(o)
        self.stats(0, 150, part=2)

    def side_path(self):
        a = self.a; kw = self.kw
        if kw.get('touch'):
            sh = kw['touch']
            srd(a, 52, P_WS, 0x4000000); srd(a, 56, P_OUT, NB_SD)
            a(f"v_lshlrev_b32 v1, {sh}, v0\nbuffer_load_dword v238, v1, s[52:55], 0 offen\nbuffer_load_dword v238, v1, s[56:59], 0 offen")
            srd(a, 56, P_WD, D*DF*2)
            a(f"buffer_load_dword v238, v1, s[56:59], 0 offen")
        code_srd(a, 56, 4, 'L_common', 'L_code_end')
        srd(a, 52, P_SSMK, NB_SD)
        a(f"""
        s_sub_u32 s47, s2, {NCONV}
        s_lshr_b32 s47, s47, 3
        s_lshl_b32 s47, s47, 2
        s_add_u32 s47, s47, s{S_WAVE}
        v_min_u32 v2, 7, v{LANE}
        s_lshl_b32 s43, s47, 10
        v_lshlrev_b32 v2, 7, v2
        buffer_load_dword v238, v2, s[56:59], s43 offen
        s_mul_i32 s42, s47, 42
        v_min_u32 v1, 41, v{LANE}
        v_add_u32 v1, s42, v1
        v_lshrrev_b32 v2, 7, v1
        v_and_b32 v1, 127, v1
        v_lshlrev_b32 v1, 7, v1
        v_lshl_add_u32 v1, v2, 17, v1
        s_and_b32 s3, s2, 7
        s_lshl_b32 s3, s3, 14
        {'buffer_load_dword v238, v1, s[52:55], s3 offen' if kw.get('pfK', False) else ''}
        s_mul_hi_u32 s42, s47, 0x2aaaaaab
        s_mul_i32 s43, s42, 6
        s_sub_u32 s43, s47, s43
        s_mul_i32 s43, s43, 3072
        s_add_u32 s42, s42, {kw.get('CA', 7)}
        s_mul_i32 s42, s42, {128*1152}
        s_add_u32 s42, s42, s43
        s_and_b32 s3, s2, 7
        s_mul_i32 s3, s3, {16*1152}
        s_add_u32 s42, s42, s3
        v_min_u32 v1, 23, v{LANE}
        v_lshlrev_b32 v1, 7, v1
        """)
        srd(a, 52, P_Q, NB_SD)
        if not kw.get('QLATE'): a("buffer_load_dword v238, v1, s[52:55], s42 offen")
        if kw.get('MODLATE'):
            self.q_loads(56, 146)
            ffn_setup(a, 100)
            self.row_setup(100)
            a("s_waitcnt vmcnt(0)")
            self.stats(0, 150)
        a(f"s_cmp_ge_u32 s2, {NCONV+NMOD}\ns_cbranch_scc1 L_nomod")
        a(f"""
        s_sub_u32 s40, s2, {NCONV}
        v_and_b32 v1, 7, v0
        v_lshrrev_b32 v2, 3, v0
        v_mul_u32_u24 v3, 6912, v2
        v_lshl_add_u32 v3, v1, 4, v3
        s_lshl_b32 s3, s40, 7
        v_add_u32 v3, s3, v3
        v_lshlrev_b32 v4, 1, v0
        """)
        srd(a, 24, P_C, D*2); srd(a, 52, P_WMOD, D*6912); srd(a, 20, P_WS, NB_MOD, WS_MOD)
        a("""
        buffer_load_ushort v5, v4, s[24:27], 0 offen
        buffer_load_ushort v6, v4, s[24:27], 0 offen offset:512
        buffer_load_ushort v7, v4, s[24:27], 0 offen offset:1024
        s_mov_b32 s41, 0
        """)
        a("s_waitcnt vmcnt(0)")
        for i in range(18):
            a(f"buffer_load_dwordx4 v[{32+4*i}:{35+4*i}], v3, s[52:55], s41 offen" + self.nt('m'))
            if i < 17: a(f"s_add_u32 s41, s41, {32*6912}")
        for r in (5, 6, 7):
            a(f"""
            v_lshlrev_b32 v{r}, 16, v{r}
            v_mul_f32 v8, 0xbfb8aa3b, v{r}
            v_exp_f32 v8, v8
            s_nop 0
            v_add_f32 v8, 1.0, v8
            v_rcp_f32 v8, v8
            s_nop 0
            v_mul_f32 v{r}, v{r}, v8
            v_cvt_pk_bf16_f32 v{r}, v{r}, v{r}
            v_lshlrev_b32 v{r}, 16, v{r}
            """)
        a("""
        v_lshlrev_b32 v9, 2, v0
        ds_write_b32 v9, v5
        ds_write_b32 v9, v6 offset:1024
        ds_write_b32 v9, v7 offset:2048
        v_lshlrev_b32 v10, 2, v2
        s_waitcnt lgkmcnt(0)
        s_barrier
        """)
        for i in range(18):
            a(f"ds_read_b32 v{104+2*i}, v10 offset:{128*i}")
        a("s_waitcnt lgkmcnt(0)")
        for i in range(18):
            a(f"s_waitcnt vmcnt({17-i})")
            for x in range(4):
                t = 24 + 2*(x & 1)
                lo(a, t, 32+4*i+x); hi(a, t+1, 32+4*i+x)
                if i == 0: a(f"v_pk_mul_f32 v[{16+2*x}:{17+2*x}], v[{t}:{t+1}], v[{104+2*i}:{105+2*i}] op_sel_hi:[1,0]")
                else:      a(f"v_pk_fma_f32 v[{16+2*x}:{17+2*x}], v[{t}:{t+1}], v[{104+2*i}:{105+2*i}], v[{16+2*x}:{17+2*x}] op_sel_hi:[1,0,1]")
        a("""
        v_lshlrev_b32 v13, 8, v2
        v_lshl_add_u32 v13, v1, 5, v13
        ds_write_b128 v13, v[16:19] offset:4096
        ds_write_b128 v13, v[20:23] offset:4112
        s_waitcnt lgkmcnt(0)
        s_barrier
        """)
        a(f"s_cmp_lg_u32 s{S_WAVE}, 0\ns_cbranch_scc1 L_nomod")
        for i in range(32):
            a(f"ds_read_b32 v{32+i}, v9 offset:{4096 + 256*i}")
        a("s_waitcnt lgkmcnt(0)")
        for st in (16, 8, 4, 2):
            for i in range(0, st, 2):
                a(f"v_pk_add_f32 v[{32+i}:{33+i}], v[{32+i}:{33+i}], v[{32+i+st}:{33+i+st}]")
        a(f"""
        v_add_f32 v32, v32, v33
        s_mov_b32 s3, 0x1c71c71d
        v_cvt_pk_bf16_f32 v32, v32, v32
        s_mul_hi_u32 s41, s40, s3
        s_cmp_eq_u32 s41, 1
        s_cselect_b32 s42, 1.0, 0
        s_cmp_eq_u32 s41, 4
        s_cselect_b32 s42, 1.0, s42
        v_lshlrev_b32 v32, 16, v32
        v_add_f32 v32, s42, v32
        s_cmp_eq_u32 s41, 3
        s_cselect_b32 s43, {f2u(ALPHA):#x}, 1.0
        s_cmp_eq_u32 s41, 5
        s_cselect_b32 s43, {f2u(1/ALPHA**2):#x}, s43
        v_cvt_pk_bf16_f32 v32, v32, v32
        v_lshlrev_b32 v32, 16, v32
        v_mul_f32 v32, s43, v32
        s_lshl_b32 s3, s40, 8
        buffer_store_dword v32, v9, s[20:23], s3 offen sc1
        L_nomod:
        """)
        self.stamp(3)
        self.signal(FB, 2)
        if not kw.get('MODLATE') and kw.get('QLATE') != 2: self.q_loads(56, 146)
        self.stamp(4)
        if kw.get('waitA', True):
            a(f"""
            v_and_b32 v146, 15, v{LANE}
            v_lshlrev_b32 v146, 7, v146
            s_and_b32 s40, s2, 7
            s_lshl_b32 s4, s40, 11
            s_add_u32 s4, s4, {FA}
            """)
            self.poll(146, 4, sleep=2)
        def wpf():
            NCH = kw.get('NCH', 2); per = -(-1152*NCH//56)
            srd(a, 20, P_WG, D*DF*2); srd(a, 24, P_WU, D*DF*2)
            a(f"""
            s_and_b32 s40, s2, 7
            s_mul_i32 s43, s40, 1152
            s_sub_u32 s47, s2, {NCONV}
            s_lshr_b32 s47, s47, 3
            s_lshl_b32 s47, s47, 2
            s_add_u32 s47, s47, s{S_WAVE}
            s_mul_i32 s42, s47, {per}
            v_min_u32 v1, {per-1}, v{LANE}
            v_add_u32 v1, s42, v1
            s_mov_b32 s44, {-(-(1 << 32)//1152):#x}
            v_mul_hi_u32 v3, s44, v1
            v_mul_u32_u24 v4, 1152, v3
            v_sub_u32 v4, v1, v4
            v_lshlrev_b32 v3, 7, v3
            v_and_b32 v5, 1, v4
            v_mul_u32_u24 v5, 640, v5
            v_add_u32 v3, v3, v5
            v_lshrrev_b32 v4, 1, v4
            v_mul_u32_u24 v4, 9216, v4
            v_add_u32 v3, v3, v4
            buffer_load_dword v149, v3, s[20:23], s43 offen{self.nt('w')}
            buffer_load_dword v149, v3, s[24:27], s43 offen{self.nt('w')}
            """)
            npf = 2
            if kw.get('PRE2'):
                npf = 4
                a(f"""
                s_mul_i32 s42, s47, 31
                v_min_u32 v1, 30, v{LANE}
                v_add_u32 v1, s42, v1
                s_mov_b32 s44, 0x55555556
                v_mul_hi_u32 v3, s44, v1
                v_mul_u32_u24 v4, 3, v3
                v_sub_u32 v4, v1, v4
                v_mul_u32_u24 v3, 9216, v3
                v_lshrrev_b32 v5, 1, v4
                v_mul_u32_u24 v5, 3, v5
                v_add3_u32 v4, v4, v5, 3
                v_lshl_add_u32 v3, v4, 7, v3
                buffer_load_dword v149, v3, s[20:23], s43 offen{self.nt('w')}
                buffer_load_dword v149, v3, s[24:27], s43 offen{self.nt('w')}
                """)
            return npf
        if kw.get('QLATE') == 2: self.q_loads(56, 146)
        npf = 0 if (kw.get('waitM') or kw.get('waitQ')) else wpf()
        self.stamp(6)
        if not kw.get('MODLATE'):
            ffn_setup(a, 100)
            self.row_setup(100)
            a(f"s_waitcnt vmcnt({npf})")
            if kw.get('waitQ') == 1: wpf()
            self.stats(0, 150)
            if kw.get('waitQ') == 2: wpf()
        a(f"""
        v_min_u32 v147, {NMOD-1}, v{LANE}
        v_lshlrev_b32 v147, 7, v147
        s_mov_b32 s11, {FB + 128*NCONV}
        """)
        self.poll(147, 11, sleep=2)
        if kw.get('waitM'): wpf()
        for o in self.mod_dma(52): a(o)
        ffn_setup2(a, 100)
        if self.fhops and self.kw.get('sidehops', True):
            for c in range(self.nhc): self.fhops.call(a, c)
        self.stamp(23)

    def row_consts(self):
        a = self.a
        srd(a, S_X, P_WS, NB_X, WS_X)
        srd(a, 52, P_WS, NB_SD, WS_Z)
        a(f"""
        s_mov_b32 s4, {FZ}
        s_mov_b32 s5, 0x4000
        s_mov_b32 s6, 0x80000
        s_mov_b32 s7, 0x84000
        s_add_u32 s8, s{S_OOB}, 0x100000
        s_add_u32 s11, s{S_OOB}, 0x104000
        s_mov_b32 s9, 4096
        s_add_u32 s10, s{S_OOB}, 8192
        """)
    def z_loads(self):
        so = ['0', 's5', 's6', 's7', 's8', 's11']
        for i in range(6):
            self.a(f"buffer_load_dwordx2 v[{2*i}:{2*i+1}], v{VRZ}, s[52:55], {so[i]} offen sc1")
    def mod_reads(self):
        MV = lambda i, v: 16 + 40*i + 8*v
        for vs in ((0, 1, 2), (3, 4)):
            for i in range(3):
                for v in vs:
                    for h in range(2):
                        self.a(f"ds_read_b128 v[{MV(i,v)+4*h}:{MV(i,v)+4*h+3}], v{VRM} offset:{2304*v + 512*i + 16*h}")
    def row_phase(self, hops):
        a = self.a; kw = self.kw
        NP1 = kw.get('NP1', 3); NP2 = kw.get('NP2', 6)
        PL = kw.get('PL', (3, 0, 0, 3)); pf = [sum(PL[:i]) for i in range(5)]
        ffn_prefill(a, range(pf[0], pf[1]))
        if kw.get('sidefill', False):
            a(f"s_cmp_lt_u32 s2, {NCONV}\ns_cbranch_scc1 L_nofill1")
            ffn_prefill(a, range(pf[3], pf[4]))
            a("L_nofill1:")
        self.row_consts()
        MV = lambda i, v: 16 + 40*i + 8*v
        self.stamp(10)
        self.poll(VRP, 4, sleep=kw.get('sleepB', 1))
        a("s_barrier")
        self.stamp(11)
        self.z_loads()
        ffn_prefill(a, range(pf[1], pf[2]))
        self.mod_reads()
        if kw.get('EARLYC'): a(f"s_waitcnt vmcnt({6*PL[1]})\nL_rowjoin:")
        a("s_waitcnt lgkmcnt(12)")
        if kw.get('hopR', False): a.hop = self.rhops
        P = lambda x: f"v[{x}:{x+1}]"
        BC = "op_sel:[0,0,1] op_sel_hi:[1,0,1]"
        for i in range(3):
            if not kw.get('EARLYC'): a(f"s_waitcnt vmcnt({2*(2-i) + 6*PL[1]})")
            if i == 0: self.stamp(12)
            for c2 in range(0, 4, 2):
                cs = (c2, c2+1); X = {c: 144 + 6*(c & 1) for c in cs}
                for c in cs: lo(a, X[c], QP+4*i+c); hi(a, X[c]+1, QP+4*i+c)
                for c in cs: a(f"v_pk_fma_f32 {P(X[c]+2)}, {P(X[c])}, {P(ST)}, {P(ST)} {BC}")
                for c in cs: lo(a, X[c]+4, 4*i+c); hi(a, X[c]+5, 4*i+c)
                for c in cs: a(f"v_pk_fma_f32 {P(X[c]+2)}, {P(X[c]+2)}, {P(MV(i,1)+2*c)}, {P(MV(i,0)+2*c)}")
                for c in cs: a(f"v_pk_mul_f32 {P(X[c]+2)}, {P(X[c]+2)}, {P(X[c]+4)}")
                for c in cs: a(f"v_pk_fma_f32 {P(X[c]+2)}, {P(X[c]+2)}, {P(MV(i,2)+2*c)}, {P(X[c])}")
                for c in cs: a(f"v_cvt_pk_bf16_f32 v{QP+4*i+c}, v{X[c]+2}, v{X[c]+3}")
        self.stats(256, 160, scale=ALPHA)
        ffn_prefill(a, range(pf[2], pf[3]))
        sh = ['0', 's9', 's10']
        for i in range(3):
            for c2 in range(0, 4, 2):
                cs = (c2, c2+1); X = {c: 144 + 6*(c & 1) for c in cs}
                for c in cs: lo(a, X[c], QP+4*i+c); hi(a, X[c]+1, QP+4*i+c)
                for c in cs: a(f"v_pk_fma_f32 {P(X[c])}, {P(X[c])}, {P(ST)}, {P(ST)} {BC}")
                for c in cs: a(f"v_pk_fma_f32 {P(X[c])}, {P(X[c])}, {P(MV(i,4)+2*c)}, {P(MV(i,3)+2*c)}")
                for c in cs: a(f"v_cvt_pk_bf16_f32 v{4*i+c}, v{X[c]}, v{X[c]+1}")
            a(f"buffer_store_dwordx4 v[{4*i}:{4*i+3}], v{VRH}, s[{S_H}:{S_H+3}], {sh[i]} offen sc1")
        a.hop = None
        self.stamp(13)
        for i in range(12): a(f"v_accvgpr_write_b32 a{X1A+i}, v{QP+i}")
        a(f"s_lshl_b32 s4, s{S_MT}, 4\ns_add_u32 s4, s4, s{S_GI}")
        self.signal(FC, 4)
        if kw.get('sidefill', False): a(f"s_cmp_ge_u32 s2, {NCONV}\ns_cbranch_scc1 L_nofill2")
        ffn_prefill(a, range(pf[3], pf[4]))
        if kw.get('sidefill', False): a("L_nofill2:")
        code_srd(a, 52, 4, 'L_common', 'L_code_end', back=True)
        a(f"v_mov_b32 v{VTAG}, s{S_TAG}")
        ffn_setup3(a)
        self.reduce_setup(100)
        a(f"""
        v_and_b32 v146, 15, v{LANE}
        v_lshlrev_b32 v146, 7, v146
        s_lshl_b32 s9, s{S_MT}, 11
        s_add_u32 s9, s9, {FC}
        """)
        for c in kw.get('hopC', ()): hops.call(a, c)
        self.stamp(14)
        self.poll(146, 9, sleep=0)
        self.stamp(15)

    def reduce_setup(self, t):
        a = self.a
        self.row_ids(t, t+1, t+2)
        a(f"""
        v_mul_u32_u24 v{VEO}, 1152, v{t}
        v_lshl_add_u32 v{VEO}, v{t+1}, 4, v{VEO}
        v_lshrrev_b32 v{VEP}, 5, v{t}
        v_mul_u32_u24 v{VEP}, 9, v{VEP}
        v_lshrrev_b32 v{t+2}, 3, v{t+1}
        v_add_u32 v{VEP}, v{t+2}, v{VEP}
        v_lshlrev_b32 v{VEP}, 12, v{VEP}
        v_bfe_u32 v{t+2}, v{t}, 4, 1
        v_lshl_add_u32 v{VEP}, v{t+2}, 10, v{VEP}
        v_bfe_u32 v{t+2}, v{LANE}, 3, 1
        v_lshl_add_u32 v{VEP}, v{t+2}, 11, v{VEP}
        v_bfe_u32 v{t+2}, v{LANE}, 4, 1
        v_lshl_add_u32 v{VEP}, v{t+2}, 9, v{VEP}
        v_bfe_u32 v{t+2}, v{LANE}, 5, 1
        v_lshl_add_u32 v{VEP}, v{t+2}, 8, v{VEP}
        v_and_b32 v{t+2}, 15, v{t}
        v_lshl_add_u32 v{VEP}, v{t+2}, 4, v{VEP}
        v_lshlrev_b32 v{VEG}, 5, v{t+1}
        v_add_u32 v{VEG}, {MOD_OFF + 5*2304}, v{VEG}
        s_lshl_b32 s3, s{S_MT}, 2
        s_lshr_b32 s4, s{S_GI}, 2
        s_add_u32 s4, s4, s3
        s_lshl_b32 s4, s4, 11
        v_and_b32 v{VEF}, 15, v{LANE}
        v_lshl_add_u32 v{VEF}, v{VEF}, 7, s4
        s_add_u32 s3, s3, s{S_WAVE}
        s_lshl_b32 s3, s3, 4
        s_add_u32 s3, s3, s{S_GI}
        s_lshl_b32 s3, s3, 7
        s_add_u32 s{S_FD}, s3, {FD1}
        """)
    def reduce_phase(self):
        a = self.a; kw = self.kw
        early = kw.get('early', True)
        self.stamp(17)
        srd(a, 12, P_OUT, NB_SD)
        a(f"""
        s_mov_b32 s4, {FD1}
        s_mov_b32 s7, {FD2}
        s_add_u32 s8, s{S_FD}, {FD2 - FD1}
        {f'buffer_load_dword v239, v{VEF}, s[{S_FL}:{S_FL+3}], s4 offen sc1' if early and not kw.get('ASK3') else ''}
        s_mov_b32 s5, 0x3f80
        s_mov_b32 s6, 0x3f800000
        v_add_u32 v222, 8192, v{VEP}
        v_add_u32 v223, 16384, v{VEP}
        v_add_u32 v223, s{S_OOB}, v223
        """)
        for i in range(3):
            for h in range(2):
                a(f"ds_read_b128 v[{192+8*i+4*h}:{195+8*i+4*h}], v{VEG} offset:{512*i + 16*h}")
        va = [VEP, 222, 223]; RD = [32, 64, 128]
        def loads(i):
            a("s_mov_b32 s9, 0")
            for sl in range(8):
                a(f"buffer_load_dwordx4 v[{RD[i]+4*sl}:{RD[i]+4*sl+3}], v{va[i]}, s[{S_P}:{S_P+3}], s9 offen sc1")
                if sl < 7: a(f"s_add_u32 s9, s9, {NB_SD}")
        pub = f"buffer_store_dword v{VTAG}, off, s[{S_FL}:{S_FL+3}], s8 sc1"
        if kw.get('ASK3'):
            a(f"v_cmp_ne_u32 vcc, s{S_TAG}, v239\ns_cbranch_vccnz L_e1late")
            loads(0)
            a(f"s_waitcnt vmcnt(8)\n{pub}\ns_branch L_e1done\nL_e1late:\ns_waitcnt vmcnt(0)\n{pub}")
            self.poll(VEF, 4, sleep=0)
            loads(0)
            a("L_e1done:")
            self.stamp(18)
        else:
            a(f"s_waitcnt vmcnt(0)\n{pub}")
            self.stamp(18)
            if early:
                a(f"v_cmp_ne_u32 vcc, s{S_TAG}, v239\ns_cbranch_vccz L_e1ok")
                self.poll(VEF, 4, sleep=0)
                a("L_e1ok:")
                loads(0)
        AC = 226
        def finish(i, waits):
            for e in range(8): a(f"v_mov_b32 v{AC+e}, 0")
            for sl in range(8):
                if waits is not None: a(f"s_waitcnt vmcnt({waits - sl})")
                for x in range(4):
                    a(f"v_dot2_f32_bf16 v{AC+2*x}, v{RD[i]+4*sl+x}, s5, v{AC+2*x}")
                    a(f"v_dot2_f32_bf16 v{AC+2*x+1}, v{RD[i]+4*sl+x}, s6, v{AC+2*x+1}")
            for x in range(4): a(f"v_accvgpr_read_b32 v{QP+x}, a{X1A+4*i+x}")
            for e in range(4): a(f"v_permlane32_swap_b32 v{AC+e}, v{AC+4+e}")
            for x in range(4):
                lo(a, 234, QP+x); hi(a, 235, QP+x)
                a(f"v_pk_fma_f32 v[234:235], v[{AC+2*x}:{AC+2*x+1}], v[{192+8*i+2*x}:{193+8*i+2*x}], v[234:235]")
                a(f"v_cvt_pk_bf16_f32 v{QP+4+x}, v234, v235")
            a(f"buffer_store_dwordx4 v[{QP+4}:{QP+7}], v{VEO}, s[12:15], {'s%d' % S_OOB if i == 2 else '0'} offen" + (f" offset:{256*i}" if i else "") + kw.get('outfl', ''))
            a("s_nop 1")
        if kw.get('MID'):
            a(f"s_bitcmp1_b32 s{S_WAVE}, 0\ns_cselect_b32 s10, s7, {FD3}")
            self.poll(VEF, 10, sleep=0)
            self.stamp(19)
            loads(1)
            a("s_waitcnt lgkmcnt(0)")
            finish(0, None)
            a(f"s_cmp_lg_u32 s{S_WAVE}, 0\ns_cbranch_scc1 L_e2only")
            self.poll(VEF, 7, sleep=0)
            loads(2)
            finish(1, None)
            finish(2, 8)
            a("s_branch L_edone\nL_e2only:")
            finish(1, 8)
            a("L_edone:")
        else:
            self.poll(VEF, 7, sleep=0)
            self.stamp(19)
            if not early: loads(0)
            loads(1); loads(2)
            a("s_waitcnt lgkmcnt(0)")
            for i in range(3): finish(i, None if (early and i == 0) else 23 - 7*i)
        self.stamp(20)

    def build(self):
        a = self.a; kw = self.kw
        a(kernel_head(NAME))
        if kw.get('fix0'): a("s_memrealtime s[100:101]")
        a(f"""
        s_cmp_ge_u32 s2, 256
        s_cbranch_scc1 L_end
        s_load_dwordx16 s[64:79], s[0:1], 0
        s_load_dwordx8 s[80:87], s[0:1], 64
        s_load_dwordx4 s[88:91], s[0:1], 96
        s_load_dwordx2 s[92:93], s[0:1], 112
        """)
        if self.diag: a(f"v_mov_b32 v{DIAG}, 0")
        code_srd(a, 56, 4, 'L_start', 'L_common')
        a(f"""
        L_start:
        v_lshlrev_b32 v1, 7, v0
        v_lshrrev_b32 v2, 6, v0
        v_and_b32 v{LANE}, 63, v0
        buffer_load_dword v238, v1, s[56:59], 0 offen
        v_readfirstlane_b32 s{S_WAVE}, v2
        s_lshr_b32 s3, s2, 3
        s_lshr_b32 s{S_MT}, s3, 1
        s_add_u32 s6, s{S_MT}, {kw.get('CA', 7)}
        s_sub_u32 s7, s{S_MT}, 9
        s_cmp_lt_u32 s7, {kw.get('CA', 7)}
        s_cselect_b32 s7, s7, s{S_MT}
        s_cmp_lt_u32 s{S_MT}, 9
        s_cselect_b32 s{S_MT}, s6, s7
        s_and_b32 s3, s3, 1
        s_and_b32 s{S_GI}, s2, 7
        s_lshl_b32 s{S_GI}, s{S_GI}, 1
        s_add_u32 s{S_GI}, s{S_GI}, s3
        s_mov_b32 s{S_ONE}, 0x3f803f80
        s_cmp_eq_u32 s{S_WAVE}, 0
        s_cselect_b32 s{S_OOB}, 0, 0x40000000
        s_waitcnt lgkmcnt(0)
        {f's_add_u32 s{P_WS}, s{P_WS}, {kw["wsoff"]:#x}' if kw.get('wsoff') else ''}
        {f's_addc_u32 s{P_WS+1}, s{P_WS+1}, 0' if kw.get('wsoff') else ''}
        s_load_dword s{S_TAG}, s[{P_WS}:{P_WS+1}], {WS_EPOCH:#x}
        """.replace(f"s_load_dword s{S_TAG}, s[{P_WS}:{P_WS+1}], {WS_EPOCH:#x}",
                    f"s_add_u32 s4, s{P_WS}, {WS_EPOCH:#x}\ns_addc_u32 s5, s{P_WS+1}, 0\ns_load_dword s28, s[4:5], 0"))
        srd(a, S_FL, P_WS, 0x120000, WS_FL)
        self.stamp(0)
        a(f"s_cmp_ge_u32 s2, {NCONV}\ns_cbranch_scc1 L_side")
        self.tagfix = True
        orig = self.signal
        first = [True]
        def sig(base, idx):
            if first[0]:
                a(f"s_waitcnt lgkmcnt(0)\ns_add_u32 s{S_TAG}, s28, 1"); first[0] = False
            orig(base, idx)
        self.signal = sig
        self.chops = Hops('L_ch'); self.ahops = Hops('L_ah'); self.rhops = Hops('L_rh')
        self.nhc = kw.get('nhc', 4)
        hops = self.fhops = Hops('L_fh') if kw.get('hops', False) else None
        self.conv_path()
        a("s_branch L_common")
        if kw.get('chops', False): self.chops.ret(a)
        if hops: hops.ret(a)
        if kw.get('hopP', False): self.ahops.ret(a)
        if kw.get('hopR', False): self.rhops.ret(a)
        ffn_slow_paths(a, SPIN_MAX, self.diag)
        a("L_side:")
        first[0] = True
        self.side_path()
        a("L_common:")
        self.row_phase(hops)
        kw['NP2'] = sum(kw.get('PL', (3, 0, 0, 3)))
        fk = {k: v for k, v in kw.items() if k not in ('NP1', 'hops', 'nhc', 'hopA', 'hopB', 'hopC', 'sidehops', 'sleepB', 'chops', 'KEARLY', 'waitA', 'MCHK', 'touch', 'NCH', 'dbg', 'fixdur', 'fix0', 'outfl', 'enc', 'poll1', 'sleepD', 'PL', 'hopP', 'hopR', 'LN1', 'pfK', 'early', 'INLOOP', 'ZF', 'convpf', 'PASS', 'CA', 'sidefill', 'ARR', 'KLATE', 'MODLATE', 'QLATE', 'PRE2', 'wsoff', 'waitM', 'waitQ', 'ZPOLL', 'NT', 'EARLYC')}
        ffn_main(a, hops=hops, stamper=(lambda: self.stamp(16)), **fk)
        if hops: hops.resolve(a, self.nhc)
        if kw.get('chops', False): self.chops.resolve(a, 1)
        if kw.get('hopP', False): self.ahops.resolve(a, 1)
        if kw.get('hopR', False): self.rhops.resolve(a, 1)
        self.reduce_phase()
        a(f"""
        s_cmp_lg_u32 s2, 0
        s_cbranch_scc1 L_noep
        s_cmp_lg_u32 s{S_WAVE}, 0
        s_cbranch_scc1 L_noep
        """)
        srd(a, 20, P_WS, 4, WS_EPOCH)
        a(f"""
        v_mov_b32 v239, s{S_TAG}
        s_mov_b64 exec, 1
        buffer_store_dword v239, off, s[20:23], 0 sc1
        s_mov_b64 exec, -1
        L_noep:
        """)
        if self.diag:
            a("s_waitcnt vmcnt(0)"); self.stamp(21)
            srd(a, 20, P_WS, 1 << 20, 0x8000000)
            a(f"""
            s_lshl_b32 s3, s2, 2
            s_add_u32 s3, s3, s{S_WAVE}
            s_lshl_b32 s3, s3, 8
            v_lshlrev_b32 v1, 2, v{LANE}
            buffer_store_dword v{DIAG}, v1, s[20:23], s3 offen
            s_add_u32 s3, s3, 0x80000
            buffer_store_dword v253, v1, s[20:23], s3 offen
            """)
            if kw.get('dbg') is not None:
                a(f's_load_dwordx2 s[90:91], s[0:1], {DBG}\ns_waitcnt lgkmcnt(0)')
                srd(a, 20, 90, 256)
                a(f"""
                s_cmp_lg_u32 s2, {kw['dbg']}
                s_cbranch_scc1 L_end
                s_cmp_lg_u32 s{S_WAVE}, 0
                s_cbranch_scc1 L_end
                v_readlane_b32 s3, v{DIAG}, 0
                v_add_u32 v2, -24, v1
                s_nop 1
                v_subrev_u32 v{DIAG}, s3, v{DIAG}
                buffer_store_dword v{DIAG}, v2, s[20:23], 0 offen
                """)
                if kw.get('fixdur'):
                    if kw.get('enc') is not None:
                        a(f"s_nop 1\nv_readlane_b32 s4, v{DIAG}, {kw['enc']}\ns_nop 3\ns_add_u32 s3, s3, s4")
                    a(f"""
                    L_fix:
                    s_memrealtime s[98:99]
                    s_waitcnt lgkmcnt(0)
                    s_sub_u32 s98, s98, {'s100' if kw.get('fix0') else 's3'}
                    s_cmp_lt_u32 s98, {kw['fixdur']}
                    s_cbranch_scc1 L_fix
                    """)
        a("L_end:\ns_endpgm\nL_code_end:")
        REF = 'adaLN_cond__ssm_conv_h3__glu_gated_geglu__prompt.s.ref'
        pre = [l for l in open(REF).read().split('\n') if l.startswith(';') and '@launch' not in l]
        out = pre + [f"; @launch grid=(256,1,1) block=(256,1,1) lds={LDS_TOTAL}", '.amdgcn_target "amdgcn-amd-amdhsa--gfx950"', '.text', a.text(),
                     '.section .rodata,"a"', kernel_desc(NAME, 256 + X1A + 12, 102, 256)]
        return '\n'.join(out) + '\n'

BEST = dict(order=1, GDL=70, FLAG_D=48, ASK2=260, PPACE=6, HPACE=4, ASK_D=48, CPF=6, CPD=2, BG=2, GSPAN=40, NCH=3, PL=(3,0,0,3), waitA=True, waitQ=1, NT='kvmq', outfl=' sc1', KLATE=2, QLATE=2, ZF=4, MCHK=6, CH6=True, dmafl=' sc1', PF=default_pf(d=(13, 15)))
if __name__ == '__main__':
    dst = sys.argv[1] if len(sys.argv) > 1 else 'best.s'
    open(dst, 'w').write(G(verbose=True, **BEST).build())
    open('best_d.s', 'w').write(G(diag=True, stagestamp=3, **BEST).build())
```

```python
import sys
from common import *
from ffn import *
NAME = 'adaLN_cond__ssm_conv_h3__glu_gated_geglu__prompt_kernel'
WS_EPOCH = 0x0A00000
WS_FL = 0x0A10000
FB = 0x8000
FC = 0x10000
FA = 0xE8000
FZ = 0xA0000
NB_MOD = 6*D*4
KSTR = 4160
WAVE_LDS = 4*KSTR + 4608
T_OFF = 4*WAVE_LDS
STAT_OFF = RING
MOD_OFF = RING + 1024
LDS_TOTAL = MOD_OFF + 14848
VRZ, VRM, VRH, VRP = 200, 201, 202, 203
NCONV, NMOD = 144, 54
QP, ST = 240, 252
DIAG = 255
SPIN_MAX = 200000

class G:
    def __init__(self, diag=False, **kw):
        self.a = Asm(); self.diag = diag; self.kw = kw; self.nl = 0; self.nst = 0; self.names = []
    def lab(self, p):
        self.nl += 1; return f"L_{p}{self.nl}"
    def nt(self, c):
        return ' nt' if c in self.kw.get('NT', '') else ''
    def stamp(self, idx):
        if self.diag:
            self.a(f"s_memrealtime s[98:99]\ns_waitcnt lgkmcnt(0)\nv_writelane_b32 v{DIAG}, s98, {idx}")

    def signal(self, base, idx_sgpr):
        a = self.a; l = self.lab('sig')
        a(f"""
        s_waitcnt vmcnt(0)
        s_barrier
        s_cmp_lg_u32 s{S_WAVE}, 0
        s_cbranch_scc1 {l}
        s_lshl_b32 s3, s{idx_sgpr}, 7
        s_add_u32 s3, s3, {base}
        v_mov_b32 v239, s{S_TAG}
        s_mov_b64 exec, 1
        buffer_store_dword v239, off, s[{S_FL}:{S_FL+3}], s3 sc1
        s_mov_b64 exec, -1
        {l}:
        """)
    def signal_wave(self, soff, n=0):
        self.a(f"v_mov_b32 v239, s{S_TAG}\ns_waitcnt vmcnt({n})\nbuffer_store_dword v239, off, s[{S_FL}:{S_FL+3}], s{soff} sc1")
    def poll(self, vaddr, soff, sleep=1):
        a = self.a; l = self.lab('poll'); d = self.lab('pd')
        a(f"""
        s_mov_b32 s{S_SPIN}, 0
        {l}:
        buffer_load_dword v239, v{vaddr}, s[{S_FL}:{S_FL+3}], s{soff} offen sc1
        s_add_u32 s{S_SPIN}, s{S_SPIN}, 1
        s_waitcnt vmcnt(0)
        v_cmp_ne_u32 vcc, s{S_TAG}, v239
        s_cbranch_vccz {d}
        {'s_sleep ' + str(sleep) if sleep else ''}
        s_cmp_lt_u32 s{S_SPIN}, {SPIN_MAX}
        s_cbranch_scc1 {l}
        {d}:
        """)

    def row_ids(self, vr, vp, t):
        self.a(f"""
        s_lshl_b32 s3, s{S_MT}, 4
        s_add_u32 s3, s3, s{S_GI}
        s_lshl_b32 s3, s3, 3
        v_and_b32 v{vr}, 7, v{LANE}
        v_add_u32 v{vr}, s3, v{vr}
        v_bfe_u32 v{vp}, v{LANE}, 3, 1
        v_lshlrev_b32 v{vp}, 2, v{vp}
        v_bfe_u32 v{t}, v{LANE}, 5, 1
        v_lshl_add_u32 v{vp}, v{t}, 1, v{vp}
        v_bfe_u32 v{t}, v{LANE}, 4, 1
        v_add_u32 v{vp}, v{vp}, v{t}
        s_lshr_b32 s3, s{S_WAVE}, 1
        s_mul_i32 s3, s3, 3
        s_add_u32 s3, s3, s{S_WAVE}
        s_lshl_b32 s3, s3, 3
        v_add_u32 v{vp}, s3, v{vp}
        """)
    def q_loads(self, srdq, t):
        a = self.a
        self.row_ids(t, t+1, t+2)
        srd(a, srdq, P_Q, NB_SD)
        a(f"""
        v_mul_u32_u24 v{t}, 1152, v{t}
        v_lshl_add_u32 v{t}, v{t+1}, 4, v{t}
        buffer_load_dwordx4 v[{QP}:{QP+3}], v{t}, s[{srdq}:{srdq+3}], 0 offen{self.nt('q')}
        buffer_load_dwordx4 v[{QP+4}:{QP+7}], v{t}, s[{srdq}:{srdq+3}], 0 offen offset:256{self.nt('q')}
        buffer_load_dwordx4 v[{QP+8}:{QP+11}], v{t}, s[{srdq}:{srdq+3}], s{S_OOB} offen offset:512{self.nt('q')}
        """)
    def stats(self, ldsoff, t, scale=None, part=3):
        real = a = self.a
        if not part & 1: a = Asm()
        a(f"""
        v_mov_b32 v{t}, 0
        v_mov_b32 v{t+1}, 0
        v_bfe_u32 v{t+2}, v{LANE}, 5, 1
        v_and_b32 v{t+3}, 7, v{LANE}
        v_lshl_add_u32 v{t+2}, v{t+2}, 3, v{t+3}
        v_lshlrev_b32 v{t+2}, 4, v{t+2}
        s_lshl_b32 s3, s{S_WAVE}, 2
        v_add_u32 v{t+2}, {STAT_OFF + ldsoff}, v{t+2}
        v_add_u32 v{t+3}, s3, v{t+2}
        """)
        for i in range(12):
            a(f"v_dot2_f32_bf16 v{t}, v{QP+i}, s{S_ONE}, v{t}\nv_dot2_f32_bf16 v{t+1}, v{QP+i}, v{QP+i}, v{t+1}")
        a(f"""
        s_nop 2
        v_permlane32_swap_b32 v{t}, v{t+1}
        s_nop 1
        v_add_f32 v{t}, v{t}, v{t+1}
        v_mov_b32 v{t+1}, v{t}
        s_nop 1
        v_permlane16_swap_b32 v{t}, v{t+1}
        s_nop 1
        v_add_f32 v{t}, v{t}, v{t+1}
        s_nop 1
        v_add_f32_dpp v{t}, v{t}, v{t} row_ror:8 row_mask:0xf bank_mask:0xf
        ds_write_b32 v{t+3}, v{t}
        """)
        a = real
        if part == 3: a("s_waitcnt lgkmcnt(0)\ns_barrier")
        if not part & 2: return
        a(f"""
        ds_read_b128 v[{t+4}:{t+7}], v{t+2}
        s_waitcnt lgkmcnt(0)
        v_add_f32 v{t+4}, v{t+4}, v{t+5}
        v_add_f32 v{t+6}, v{t+6}, v{t+7}
        v_add_f32 v{t}, v{t+4}, v{t+6}
        v_mul_f32 v{t}, 0x3ae38e39, v{t}
        v_mov_b32 v{t+1}, v{t}
        s_nop 1
        v_permlane32_swap_b32 v{t}, v{t+1}
        s_nop 1
        v_fma_f32 v{t+1}, -v{t}, v{t}, v{t+1}
        v_max_f32 v{t+1}, 0, v{t+1}
        v_add_f32 v{t+1}, 0x3727c5ac, v{t+1}
        v_rsq_f32 v{ST}, v{t+1}
        s_nop 0
        """)
        if scale: a(f"v_mul_f32 v{ST}, {f2u(scale):#x}, v{ST}")
        a(f"v_mul_f32 v{ST+1}, v{t}, v{ST}\nv_sub_f32 v{ST+1}, 0, v{ST+1}")

    def stats_parts(self, ldsoff, t):
        A = [f"v_bfe_u32 v{t+2}, v{LANE}, 5, 1", f"v_and_b32 v{t+3}, 7, v{LANE}", f"v_lshl_add_u32 v{t+2}, v{t+2}, 3, v{t+3}",
             f"v_lshlrev_b32 v{t+2}, 4, v{t+2}", f"v_add_u32 v{t+2}, {STAT_OFF + ldsoff}, v{t+2}",
             f"v_mov_b32 v{t+3}, s{S_WAVE}", f"v_lshl_add_u32 v{t+3}, v{t+3}, 2, v{t+2}", f"v_mov_b32 v{t}, 0", f"v_mov_b32 v{t+1}, 0"]
        for i in range(12):
            A += [f"v_lshlrev_b32 v{t+4}, 16, v{QP+i}", f"v_and_b32 v{t+5}, 0xffff0000, v{QP+i}", f"v_add_f32 v{t}, v{t}, v{t+4}",
                  f"v_fmac_f32 v{t+1}, v{t+4}, v{t+4}", f"v_add_f32 v{t}, v{t}, v{t+5}", f"v_fmac_f32 v{t+1}, v{t+5}, v{t+5}"]
        A += ['', '', f"v_permlane32_swap_b32 v{t}, v{t+1}", '', f"v_add_f32 v{t}, v{t}, v{t+1}", f"v_mov_b32 v{t+1}, v{t}", '', '',
              f"v_permlane16_swap_b32 v{t}, v{t+1}", '', f"v_add_f32 v{t}, v{t}, v{t+1}", '', '',
              f"v_add_f32_dpp v{t}, v{t}, v{t} row_ror:8 row_mask:0xf bank_mask:0xf", f"ds_write_b32 v{t+3}, v{t}"]
        B = [f"ds_read_b128 v[{t+4}:{t+7}], v{t+2}"]
        C = [f"v_add_f32 v{t+4}, v{t+4}, v{t+5}", f"v_add_f32 v{t+6}, v{t+6}, v{t+7}", f"v_add_f32 v{t}, v{t+4}, v{t+6}",
             f"v_mul_f32 v{t}, 0x3ae38e39, v{t}", f"v_mov_b32 v{t+1}, v{t}", '', '', f"v_permlane32_swap_b32 v{t}, v{t+1}", '',
             f"v_fma_f32 v{t+1}, -v{t}, v{t}, v{t+1}", f"v_max_f32 v{t+1}, 0, v{t+1}", f"v_add_f32 v{t+1}, 0x3727c5ac, v{t+1}",
             f"v_rsq_f32 v{ST}, v{t+1}", '', f"v_mul_f32 v{ST+1}, v{t}, v{ST}", f"v_sub_f32 v{ST+1}, 0, v{ST+1}"]
        return A, B, C
    def row_setup(self, t):
        a = self.a
        self.row_ids(t, t+1, t+2)
        a(f"""
        v_lshlrev_b32 v{VRZ}, 15, v{t+1}
        v_lshl_add_u32 v{VRZ}, v{t}, 3, v{VRZ}
        v_lshlrev_b32 v{VRM}, 5, v{t+1}
        v_add_u32 v{VRM}, {MOD_OFF}, v{VRM}
        v_lshrrev_b32 v{VRH}, 4, v{t}
        v_mul_u32_u24 v{VRH}, 18432, v{VRH}
        v_lshl_add_u32 v{VRH}, v{t+1}, 8, v{VRH}
        v_and_b32 v{t+2}, 15, v{t}
        v_lshl_add_u32 v{VRH}, v{t+2}, 4, v{VRH}
        s_lshl_b32 s3, s{S_MT}, 2
        s_add_u32 s3, s3, s{S_WAVE}
        s_mul_i32 s3, s3, 36
        v_min_u32 v{VRP}, 35, v{LANE}
        v_add_u32 v{VRP}, s3, v{VRP}
        v_lshlrev_b32 v{VRP}, 7, v{VRP}
        """)
    def mod_dma(self, sr):
        a = self.a
        srd(a, sr, P_WS, NB_MOD, WS_MOD)
        a(f"s_mul_i32 s91, s{S_WAVE}, 3584\ns_add_u32 m0, s91, {MOD_OFF}\ns_nop 0")
        out = []
        for i in range(4):
            out.append(f"buffer_load_dwordx4 v{VL16}, s[{sr}:{sr+3}], s91 offen offset:{1024*i} sc1 lds")
        return out

    def conv_path(self):
        a = self.a; kw = self.kw
        a('; ---- phase A')
        VA, VB, VTW, VTR, VZ, VU, VPA, VHD = 192, 193, 194, 195, 211, 212, 213, 214
        DG = 196
        G4, I16 = 144, 145
        a(f"""
        s_lshr_b32 s40, s2, 4
        s_and_b32 s41, s2, 15
        v_and_b32 v1, 7, v0
        v_lshrrev_b32 v2, 3, v0
        s_lshl_b32 s42, s41, 7
        s_lshl_b32 s43, s40, 7
        v_lshl_add_u32 v3, v2, 2, s42
        v_mul_u32_u24 v3, 1152, v3
        v_lshl_add_u32 v4, v1, 4, s43
        v_add_u32 v13, v3, v4
        v_add_u32 v10, {(-3*1152) & 0xffffffff:#x}, v13
        v_add_u32 v11, {(-2*1152) & 0xffffffff:#x}, v13
        v_add_u32 v12, {(-1*1152) & 0xffffffff:#x}, v13
        v_lshlrev_b32 v5, 2, v4
        """)
        if self.late_entry:
            a("s_waitcnt lgkmcnt(0)"); self.stamp(0)
        srd(a, 52, P_K, NB_SD); srd(a, 56, P_V, NB_SD); srd(a, 20, P_SK, D*8)
        for j in (3, 4, 5, 6, 0, 1, 2):
            va, o = (10+j, 0) if j < 3 else (13, (j-3)*1152)
            a(f"buffer_load_dwordx4 v[{16+4*j}:{19+4*j}], v{va}, s[52:55], 0 offen" + (f" offset:{o}" if o else "") + self.nt('k'))
        for j in range(4):
            a(f"buffer_load_dwordx4 v[{60+4*j}:{63+4*j}], v5, s[20:23], 0 offen" + (f" offset:{16*j}" if j else ""))
        for j in range(4):
            a(f"buffer_load_dwordx4 v[{44+4*j}:{47+4*j}], v13, s[56:59], 0 offen" + (f" offset:{1152*j}" if j else "") + self.nt('v'))
        if self.late_entry: self.late_entry()
        a(f"""
        s_lshl_b32 s44, s2, 2
        s_add_u32 s44, s44, s{S_WAVE}
        s_mul_i32 s45, s{S_WAVE}, {WAVE_LDS}
        s_lshl_b32 s46, s44, 12
        s_add_u32 s52, s{P_SSMK}, s46
        s_addc_u32 s53, s{P_SSMK+1}, 0
        s_mov_b32 s54, 4096
        s_mov_b32 s55, 0x20000
        v_lshrrev_b32 v{G4}, 4, v{LANE}
        v_and_b32 v{I16}, 15, v{LANE}
        v_add_u32 v142, v{G4}, v{I16}
        v_add_u32 v142, -16, v142
        v_lshlrev_b32 v142, 1, v142
        s_lshl_b32 s3, s44, 1
        """)
        srd(a, 56, P_SSMD, D*2)
        a(f"""
        v_lshlrev_b32 v143, 4, v{LANE}
        s_mov_b32 s91, s3
        """)
        KR = 152
        def kloads():
            a("buffer_load_ushort v140, v142, s[52:55], 0 offen\nbuffer_load_ushort v141, off, s[56:59], s91")
            for i in range(4):
                a(f"buffer_load_dwordx4 v[{KR+6*i}:{KR+6*i+3}], v143, s[52:55], 0 offen offset:{1024*i}" + self.nt('s'))
                a(f"buffer_load_dwordx2 v[{KR+6*i+4}:{KR+6*i+5}], v143, s[52:55], 0 offen offset:{1024*i+16}" + self.nt('s'))
        KL = kw.get('KLATE', 0)
        if KL == 0: kloads()
        srd(a, 24, P_WS, NB_SD, WS_U)
        a(f"""
        v_lshlrev_b32 v6, 9, v2
        v_lshl_add_u32 v6, v1, 4, v6
        v_add_u32 v6, {T_OFF}, v6
        v_bfe_u32 v7, v{LANE}, 1, 1
        v_lshl_add_u32 v7, v{G4}, 1, v7
        v_lshlrev_b32 v7, 3, v7
        v_bfe_u32 v8, v{LANE}, 2, 2
        v_sub_u32 v7, v7, v8
        v_add_u32 v7, 3, v7
        v_lshlrev_b32 v7, 7, v7
        v_and_b32 v8, 1, v{LANE}
        v_lshl_add_u32 v7, v8, 3, v7
        s_lshl_b32 s3, s{S_WAVE}, 5
        s_add_u32 s3, s3, {T_OFF}
        v_add_u32 v7, s3, v7
        s_lshl_b32 s3, s40, 6
        s_lshl_b32 s47, s{S_WAVE}, 4
        s_add_u32 s3, s3, s47
        v_and_b32 v8, 7, v{LANE}
        v_add_u32 v8, s3, v8
        v_lshlrev_b32 v8, 12, v8
        v_bfe_u32 v9, v{LANE}, 3, 1
        v_lshl_add_u32 v9, v{G4}, 1, v9
        v_lshl_add_u32 v8, v9, 4, v8
        s_lshl_b32 s3, s41, 8
        v_add_u32 v8, s3, v8
        v_add_u32 v9, 0x8000, v8
        v_mov_b32 v146, 0
        v_mov_b32 v147, 0
        v_lshl_add_u32 v148, v{LANE}, 3, s45
        ds_write_b64 v148, v[146:147] offset:{4*KSTR}
        v_mul_u32_u24 v{VHD}, {KSTR}, v{G4}
        v_lshl_add_u32 v{VHD}, v{I16}, 1, v{VHD}
        v_add_u32 v{VHD}, s45, v{VHD}
        v_add_u32 v14, 1, v{I16}
        v_and_b32 v{VA}, 3, v14
        v_mul_u32_u24 v{VA}, {KSTR}, v{VA}
        v_lshrrev_b32 v14, 2, v14
        v_lshl_add_u32 v{VA}, v14, 3, v{VA}
        v_lshlrev_b32 v14, 4, v{G4}
        v_sub_u32 v{VA}, v{VA}, v14
        v_add_u32 v{VA}, 48, v{VA}
        v_add_u32 v{VA}, s45, v{VA}
        v_lshlrev_b32 v{VB}, 5, v{I16}
        v_lshl_add_u32 v{VB}, v{G4}, 4, v{VB}
        s_add_u32 s3, s45, {4*KSTR + 512 - 32 - 448}
        v_add_u32 v{VB}, s3, v{VB}
        v_lshlrev_b32 v{VTW}, 4, v{I16}
        v_lshl_add_u32 v{VTW}, v{G4}, 2, v{VTW}
        s_mul_i32 s3, s{S_WAVE}, {KSTR}
        s_add_u32 s3, s3, {T_OFF}
        v_add_u32 v{VTW}, s3, v{VTW}
        v_bfe_u32 v{VTR}, v{LANE}, 2, 2
        v_mul_u32_u24 v{VTR}, {KSTR}, v{VTR}
        v_lshl_add_u32 v{VTR}, v{G4}, 5, v{VTR}
        v_and_b32 v14, 3, v{LANE}
        v_lshl_add_u32 v{VTR}, v14, 3, v{VTR}
        s_lshl_b32 s3, s{S_WAVE}, 7
        s_add_u32 s3, s3, {T_OFF}
        v_add_u32 v{VTR}, s3, v{VTR}
        s_lshl_b32 s3, s2, 14
        s_lshl_b32 s47, s{S_WAVE}, 10
        s_add_u32 s3, s3, s47
        v_lshl_add_u32 v{VZ}, v{LANE}, 4, s3
        v_lshlrev_b32 v{VU}, 4, v{LANE}
        v_lshlrev_b32 v{VPA}, 7, v{I16}
        """)
        if kw.get('ARR', 1):
            ffn_setup(a, 100)
            self.row_setup(100)
        if KL == 1: kloads()
        self.stamp(1)
        if kw.get('hopP', False): self.ahops.call(a, 0)
        a(f"s_waitcnt vmcnt({14 if KL < 2 else 4})")
        self.stamp(2)
        if kw.get('hopP', False): a.hop = self.ahops
        kd = []
        for c in (0, 2):
            ops = [f"buffer_load_dwordx4 v143, s[52:55], 0 offen offset:{i*1024} lds" for i in range(4)]
            ops[0] = f"s_add_u32 m0, s45, {c*KSTR + 32}\n" + ("v_add_u32 v143, 4, v143\n" if c else "s_nop 0\n") + ops[0]
            kd += ops
        nearly = kw.get('KEARLY', 0)
        early, late = kd[:nearly], kd[nearly:]
        def kdma():
            if early: a(early.pop(0))
        P = lambda x: f"v[{x}:{x+1}]"
        for cp in range(4):
            for j in range(4):
                f = lo if j % 2 == 0 else hi
                f(a, 80+2*j, 60+4*cp+(j >> 1)); f(a, 81+2*j, 62+4*cp+(j >> 1))
            if cp: kdma()
            for i in range(7):
                lo(a, 88+2*i, 16+4*i+cp); hi(a, 89+2*i, 16+4*i+cp)
            if cp: kdma()
            for r in range(4): a(f"v_pk_mul_f32 {P(110+2*r)}, {P(88+2*r)}, {P(86)}")
            for j in (1, 2, 3):
                for r in range(4): a(f"v_pk_fma_f32 {P(110+2*r)}, {P(88+2*(r+j))}, {P(86-2*j)}, {P(110+2*r)}")
            if cp == 0:
                a(f"s_waitcnt vmcnt({10 if KL < 2 else 0})")
                self.stamp(22)
                if KL == 2: kloads()
            kdma()
            for r in range(4):
                lo(a, 102+2*r, 44+4*r+cp); hi(a, 103+2*r, 44+4*r+cp)
            for r in range(4): a(f"v_pk_mul_f32 {P(110+2*r)}, {P(110+2*r)}, {P(102+2*r)}")
            for r in range(4): a(f"v_cvt_pk_bf16_f32 v{120+4*r+cp}, v{110+2*r}, v{111+2*r}")
            kdma()
        for r in range(4):
            a(f"ds_write_b128 v6, v[{120+4*r}:{123+4*r}]" + (f" offset:{128*r}" if r else ""))
        while early: kdma()
        a("s_waitcnt lgkmcnt(0)\ns_barrier")
        n = 0
        for cb in range(2):
            for hq in range(2):
                o = hq*8192 + cb*16
                a(f"ds_read_b64_tr_b16 v[{16+4*n}:{17+4*n}], v7 offset:{o+512}")
                a(f"ds_read_b64_tr_b16 v[{18+4*n}:{19+4*n}], v7 offset:{o}")
                n += 1
        n = 0
        for cb in range(2):
            for hq in range(2):
                a(f"s_waitcnt lgkmcnt({6-2*n})")
                a(f"buffer_store_dwordx4 v[{16+4*n}:{19+4*n}], v{8+cb}, s[24:27], 0 offen" + (" offset:128" if hq else "") + " sc1")
                n += 1
        a.hop = None
        def kcopy():
            a(f"v_lshl_add_u32 v14, v{LANE}, 4, s45")
            for i in range(4):
                for c in range(2):
                    for x in range(4):
                        a(f"v_alignbyte_b32 v{40+8*(i&1)+4*c+x}, v{KR+6*i+x+c+1}, v{KR+6*i+x+c}, 2")
                    a(f"ds_write_b128 v14, v[{40+8*(i&1)+4*c}:{43+8*(i&1)+4*c}] offset:{(1+2*c)*KSTR + 32 + 1024*i}")
            a(f"""
            ds_write_b16 v{VHD}, v140
            v_lshrrev_b32 v10, 3, v{I16}
            v_add_u32 v10, 2, v10
            v_cmp_eq_u32 vcc, v10, v{G4}
            v_and_b32 v11, 7, v{I16}
            v_sub_u32 v11, 7, v11
            v_cndmask_b32 v9, 0, v141, vcc
            v_and_b32 v10, 1, v11
            v_lshlrev_b32 v10, 4, v10
            v_lshlrev_b32 v9, v10, v9
            v_lshrrev_b32 v11, 1, v11
            """)
            for r in range(4):
                a(f"v_cmp_eq_u32 vcc, {r}, v11\ns_nop 1\nv_cndmask_b32 v{DG+r}, 0, v9, vcc")
        self.stamp(3)
        if KL == 3: kloads()
        elif kw.get('FF', 0) & 1: pass
        elif kw.get('ARR', 1):
            a(f"s_waitcnt vmcnt(4)")
            kcopy()
        else:
            ffn_setup(a, 100)
            self.row_setup(100)
        a(f"""
        s_waitcnt lgkmcnt(0)
        s_add_u32 s{S_TAG}, s28, 1
        s_mul_i32 s3, s{S_WAVE}, 144
        s_add_u32 s3, s3, s2
        s_lshl_b32 s3, s3, 7
        s_add_u32 s3, s3, {FA}
        """)
        self.signal_wave(3, 10 if KL == 3 else 0)
        a("s_barrier")
        self.stamp(4)
        if KL == 3: a("s_waitcnt vmcnt(1)")
        for o in late: a(o)
        if KL == 3 or kw.get('FF', 0) & 1: kcopy()
        if not kw.get('QLATE'): self.q_loads(56, 1)
        if not kw.get('ARR', 1): kcopy()
        if kw.get('LN1', 'B') == 'A':
            a("s_waitcnt vmcnt(0)")
            self.stats(0, 150)
        a(f"""
        v_min_u32 v{VHD}, 55, v{LANE}
        v_lshlrev_b32 v{VHD}, 7, v{VHD}
        s_mov_b32 s90, {FB + 128*NCONV}
        s_mov_b32 s8, {FB + 128*(NCONV+56)}
        s_mul_i32 s6, s{S_WAVE}, 144
        s_add_u32 s6, s6, s2
        s_lshl_b32 s6, s6, 7
        s_add_u32 s6, s6, {FZ}
        s_cmp_ge_u32 s{S_WAVE}, 2
        s_cselect_b32 s7, 0x40000000, 0
        v_mov_b32 v23, s{S_TAG}
        s_add_u32 s56, s{P_WS}, s46
        s_addc_u32 s57, s{P_WS+1}, 0
        s_mov_b32 s58, 4096
        s_mov_b32 s59, 0x20000
        s_bfe_u32 s4, s2, 0x20002
        s_mul_i32 s4, s4, 9
        s_add_u32 s4, s4, s40
        s_lshl_b32 s4, s4, 11
        s_add_u32 s4, s4, {FA}
        """)
        assert WS_U == 0
        srd(a, 52, P_WS, NB_SD, WS_Z)
        hops = self.chops if kw.get('chops', False) else None
        if hops: hops.call(a, 0)
        self.stamp(5)
        self.poll(VPA, 4, sleep=0)
        self.stamp(6)
        a(f"s_add_u32 m0, s45, {4*KSTR + 512}\ns_nop 0")
        for i in range(4):
            a(f"buffer_load_dwordx4 v{VU}, s[56:59], 0 offen offset:{i*1024} sc1 lds")
        AC = 24; FRG = 64
        A = lambda s, m1: FRG + 64*s + 4*m1
        B = lambda s, n1: FRG + 64*s + 32 + 4*n1
        def rdA(m0, n, s):
            R = []
            for x in range(n):
                R.append(f"ds_read_b64 v[{A(s,x)}:{A(s,x)+1}], v{VA} offset:{512*x + 64*m0}")
                R.append(f"ds_read_b64 v[{A(s,x)+2}:{A(s,x)+3}], v{VA} offset:{512*x + 64*m0+8}")
            return R
        def rdB(m0, n, s):
            return [f"ds_read_b128 v[{B(s,x)}:{B(s,x)+3}], v{VB} offset:{512*x + 64*(7-m0)}" for x in range(n)]
        def mf(w, av, bv, first=False):
            a(f"v_mfma_f32_16x16x32_bf16 v[{AC+4*w}:{AC+4*w+3}], v[{av}:{av+3}], v[{bv}:{bv+3}], " + ("0" if first else f"v[{AC+4*w}:{AC+4*w+3}]"))
        def pack(w, t):
            return [f"v_cvt_pk_bf16_f32 v{t}, v{AC+4*w}, v{AC+4*w+2}", f"v_cvt_pk_bf16_f32 v{t+1}, v{AC+4*w+1}, v{AC+4*w+3}",
                    f"ds_write2st64_b32 v{VTW}, v{t}, v{t+1} offset0:{w} offset1:{w+8}"]
        PASS = kw.get('PASS', (0, 4, 8))
        def units(p):
            u0, u1 = 2*PASS[p], 2*PASS[p+1]
            return [(u, u + 4 > u1) for u in range(u0, u1, 4)]
        def trr(p, t):
            R = []
            for i, (u, h) in enumerate(units(p)):
                R += [f"ds_read_b64_tr_b16 v[{t+4*i}:{t+4*i+1}], v{VTR} offset:{128*u}", f"ds_read_b64_tr_b16 v[{t+4*i+2}:{t+4*i+3}], v{VTR} offset:{128*u + 2048}"]
            return R
        def zst(p, t):
            return [(f"s_add_u32 s96, s7, {1024*u}" if h else f"s_mov_b32 s96, {1024*u}") + f"\nbuffer_store_dwordx4 v[{t+4*i}:{t+4*i+3}], v{VZ}, s[52:55], s96 offen sc1" for i, (u, h) in enumerate(units(p))]
        def zfl(p):
            R = ["s_waitcnt vmcnt(0)"]
            for u, h in units(p):
                R.append(f"s_add_u32 s96, s6, {u*144*128}")
                if h: R.append("s_add_u32 s96, s96, s7")
                R.append(f"buffer_store_dword v23, off, s[{S_FL}:{S_FL+3}], s96 sc1")
            return "\n".join(R)
        steps = []
        for p in range(len(PASS) - 1):
            two = PASS[p+1] <= 4
            steps += [(p, m0, two) for m0 in range(0, 8, 2 if two else 1)]
        def rds(p, m0, two, s):
            n = PASS[p+1]; ra, rb = [], []
            for h in range(2 if two else 1):
                for x in range(n):
                    t = 4*h + x
                    ra += [f"ds_read_b64 v[{A(s,t)}:{A(s,t)+1}], v{VA} offset:{512*x + 64*(m0+h)}", f"ds_read_b64 v[{A(s,t)+2}:{A(s,t)+3}], v{VA} offset:{512*x + 64*(m0+h)+8}"]
                    rb += [f"ds_read_b128 v[{B(s,t)}:{B(s,t)+3}], v{VB} offset:{512*x + 64*(7-m0-h)}"]
            return ra, rb
        ra, rb = rds(*steps[0], 0)
        for r in ra: a(r)
        ffn_setup2(a, 12)
        a("s_waitcnt vmcnt(0)")
        self.stamp(7)
        for r in rb: a(r)
        if kw.get('QLATE'): self.q_loads(56, 1)
        cp_ = kw.get('convpf', '')
        if cp_:
            a(f"""
            s_and_b32 s3, s2, 7
            s_lshr_b32 s5, s2, 3
            s_lshl_b32 s5, s5, 2
            s_add_u32 s5, s5, s{S_WAVE}
            """)
        if 'g' in cp_:
            a(f"""
            s_mul_i32 s9, s3, 1152
            s_lshr_b32 s10, s2, 3
            s_lshl_b32 s10, s10, 1
            s_and_b32 s11, s{S_WAVE}, 1
            s_add_u32 s10, s10, s11
            s_mul_i32 s10, s10, {16*9216}
            s_add_u32 s9, s9, s10
            v_and_b32 v1, 15, v{LANE}
            v_mul_u32_u24 v1, 9216, v1
            v_lshrrev_b32 v2, 4, v{LANE}
            v_min_u32 v2, 2, v2
            v_lshrrev_b32 v3, 1, v2
            v_mul_u32_u24 v3, 3, v3
            v_add3_u32 v2, v2, v3, 3
            v_lshl_add_u32 v1, v2, 7, v1
            buffer_load_dword v22, v1, s[{S_W}:{S_W+3}], s9 offen
            """)
        if 'd' in cp_:
            srd(a, 56, P_WD, D*DF*2)
            a(f"""
            s_mul_i32 s9, s3, {576*1152}
            s_mul_i32 s10, s5, 9216
            s_add_u32 s9, s9, s10
            v_lshlrev_b32 v1, 7, v{LANE}
            v_and_b32 v2, 7, v{LANE}
            v_lshlrev_b32 v2, 7, v2
            v_add_u32 v2, 8192, v2
            buffer_load_dword v22, v1, s[56:59], s9 offen
            buffer_load_dword v22, v2, s[56:59], s9 offen
            """)
        NP_ = len(PASS) - 1
        def modcheck():
            a(f"v_cmp_ne_u32 vcc, s{S_TAG}, v239\nv_cmp_ne_u32 s[4:5], s{S_TAG}, v22\ns_nop 1\ns_or_b64 vcc, vcc, s[4:5]\ns_cbranch_vccz L_modok")
            self.poll(VHD, 90, sleep=1)
            self.poll(VHD, 8, sleep=1)
            a("L_modok:")
        for n_, (p, m0, two) in enumerate(steps):
            s = n_ & 1
            nxt = []
            if n_ + 1 < len(steps):
                ra, rb = rds(*steps[n_+1], 1-s)
                nxt = rb + ra
            ext = []
            a("s_waitcnt lgkmcnt(0)")
            if p:
                if m0 == 0: ext = ['', ''] + sum([pack(w, 4 + 2*(w - PASS[p-1])) for w in range(PASS[p-1], PASS[p])], [])
                if m0 == 1: a("s_barrier"); ext = trr(p-1, 4)
                if m0 == 2: ext = zst(p-1, 4)
                if kw.get('ZPOLL') and m0 >= kw['ZPOLL']:
                    l = self.lab('zf')
                    if m0 == kw['ZPOLL']: a("s_mov_b32 s9, 0")
                    a(f"s_getreg_b32 s10, hwreg(HW_REG_IB_STS, 0, 4)")
                    if m0 == 7: a("s_mov_b32 s10, 0")
                    a(f"s_or_b32 s10, s10, s9\ns_cbranch_scc1 {l}\ns_mov_b32 s9, 1")
                    a(zfl(p-1))
                    if p == 1: self.stamp(28)
                    a(f"{l}:")
                elif not kw.get('ZPOLL') and m0 == kw.get('ZF', 4):
                    a(zfl(p-1))
                    if p == 1: self.stamp(28)
                    if kw.get('EARLYC') and p == NP_ - 1:
                        modcheck(); ext += self.mod_dma(56)
                if p == NP_ - 1 and m0 == kw.get('MCHK', 5):
                    ext += [f"buffer_load_dword v239, v{VHD}, s[{S_FL}:{S_FL+3}], s90 offen sc1", f"buffer_load_dword v22, v{VHD}, s[{S_FL}:{S_FL+3}], s8 offen sc1"]
            def gap():
                k = 2 if (len(nxt) > left[0] and not ext) else 1
                while k and nxt: a(nxt.pop(0)); k -= 1
                if ext:
                    x = ext.pop(0)
                    if x: a(x)
                left[0] -= 1
            pairs = [(m1 + n1, 4*h + m1, 4*h + n1) for h in range(2 if two else 1) for m1 in range(8) for n1 in range(8 - m1) if PASS[p] <= m1 + n1 < PASS[p+1]]
            nd = PASS[p+1] - PASS[p] if m0 == 0 else 0
            left = [len(pairs) + nd - 8]
            for w in range(PASS[p], PASS[p] + nd):
                mf(w, DG, B(s, w), True); gap()
            for w, x, y in pairs:
                mf(w, A(s, x), B(s, y)); gap()
            for x in nxt + ext:
                if x: a(x)
        self.stamp(8)
        a("s_nop 7")
        for w in range(PASS[-2], 8):
            for x in pack(w, 64 + 2*w): a(x)
        a("s_waitcnt lgkmcnt(0)\ns_barrier")
        for x in trr(NP_-1, 80): a(x)
        zs = zst(NP_-1, 80)
        for i, x in enumerate(zs):
            a(f"s_waitcnt lgkmcnt({2*(len(zs)-1-i)})"); a(x)
        self.stamp(9)
        if kw.get('EARLYC'):
            a(f"s_mov_b32 s4, {FZ}\nbuffer_load_dword v22, v{VRP}, s[{S_FL}:{S_FL+3}], s4 offen sc1")
            self.stats(0, 150, part=1)
            a(zfl(NP_-1))
            a(f"v_cmp_ne_u32 vcc, s{S_TAG}, v22\ns_cbranch_vccz L_zok")
            self.poll(VRP, 4, sleep=0)
            a("L_zok:")
            self.row_consts()
            a("s_waitcnt lgkmcnt(0)\ns_barrier")
            self.stamp(23); self.stamp(11)
            self.z_loads()
            n = kw['PL'][0]
            ffn_prefill(a, range(n))
            self.stats(0, 150, part=2)
            self.mod_reads()
            a(f"s_waitcnt vmcnt({6*n})\ns_branch L_rowjoin")
            return
        if kw.get('FF', 0) & 2:
            a(zfl(NP_-1)); self.stats(0, 150, part=1)
        else:
            self.stats(0, 150, part=1); a(zfl(NP_-1))
        a("s_waitcnt lgkmcnt(0)\ns_barrier")
        self.stamp(23)
        modcheck()
        for o in self.mod_dma(56): a(o)
        self.stats(0, 150, part=2)

    def side_path(self):
        a = self.a; kw = self.kw
        if self.late_entry:
            a("s_waitcnt lgkmcnt(0)"); self.stamp(0); self.late_entry()
        if kw.get('touch'):
            sh = kw['touch']
            srd(a, 52, P_WS, 0x4000000); srd(a, 56, P_OUT, NB_SD)
            a(f"v_lshlrev_b32 v1, {sh}, v0\nbuffer_load_dword v238, v1, s[52:55], 0 offen\nbuffer_load_dword v238, v1, s[56:59], 0 offen")
            srd(a, 56, P_WD, D*DF*2)
            a(f"buffer_load_dword v238, v1, s[56:59], 0 offen")
        code_srd(a, 56, 4, 'L_common', 'L_code_end')
        srd(a, 52, P_SSMK, NB_SD)
        a(f"""
        s_sub_u32 s47, s2, {NCONV}
        s_lshr_b32 s47, s47, 3
        s_lshl_b32 s47, s47, 2
        s_add_u32 s47, s47, s{S_WAVE}
        v_min_u32 v2, 7, v{LANE}
        s_lshl_b32 s43, s47, 10
        v_lshlrev_b32 v2, 7, v2
        buffer_load_dword v238, v2, s[56:59], s43 offen
        s_mul_i32 s42, s47, 42
        v_min_u32 v1, 41, v{LANE}
        v_add_u32 v1, s42, v1
        v_lshrrev_b32 v2, 7, v1
        v_and_b32 v1, 127, v1
        v_lshlrev_b32 v1, 7, v1
        v_lshl_add_u32 v1, v2, 17, v1
        s_and_b32 s3, s2, 7
        s_lshl_b32 s3, s3, 14
        {'buffer_load_dword v238, v1, s[52:55], s3 offen' if kw.get('pfK', False) else ''}
        s_mul_hi_u32 s42, s47, 0x2aaaaaab
        s_mul_i32 s43, s42, 6
        s_sub_u32 s43, s47, s43
        s_mul_i32 s43, s43, 3072
        s_add_u32 s42, s42, {kw.get('CA', 7)}
        s_mul_i32 s42, s42, {128*1152}
        s_add_u32 s42, s42, s43
        s_and_b32 s3, s2, 7
        s_mul_i32 s3, s3, {16*1152}
        s_add_u32 s42, s42, s3
        v_min_u32 v1, 23, v{LANE}
        v_lshlrev_b32 v1, 7, v1
        """)
        srd(a, 52, P_Q, NB_SD)
        if not kw.get('QLATE'): a("buffer_load_dword v238, v1, s[52:55], s42 offen")
        if kw.get('MODLATE'):
            self.q_loads(56, 146)
            ffn_setup(a, 100)
            self.row_setup(100)
            a("s_waitcnt vmcnt(0)")
            self.stats(0, 150)
        a(f"s_cmp_ge_u32 s2, {NCONV+NMOD}\ns_cbranch_scc1 L_nomod")
        a(f"""
        s_sub_u32 s40, s2, {NCONV}
        v_and_b32 v1, 7, v0
        v_lshrrev_b32 v2, 3, v0
        v_mul_u32_u24 v3, 6912, v2
        v_lshl_add_u32 v3, v1, 4, v3
        s_lshl_b32 s3, s40, 7
        v_add_u32 v3, s3, v3
        v_lshlrev_b32 v4, 1, v0
        """)
        srd(a, 24, P_C, D*2); srd(a, 52, P_WMOD, D*6912); srd(a, 20, P_WS, NB_MOD, WS_MOD)
        a("""
        buffer_load_ushort v5, v4, s[24:27], 0 offen
        buffer_load_ushort v6, v4, s[24:27], 0 offen offset:512
        buffer_load_ushort v7, v4, s[24:27], 0 offen offset:1024
        s_mov_b32 s41, 0
        """)
        a("s_waitcnt vmcnt(0)")
        for i in range(18):
            a(f"buffer_load_dwordx4 v[{32+4*i}:{35+4*i}], v3, s[52:55], s41 offen" + self.nt('m'))
            if i < 17: a(f"s_add_u32 s41, s41, {32*6912}")
        for r in (5, 6, 7):
            a(f"""
            v_lshlrev_b32 v{r}, 16, v{r}
            v_mul_f32 v8, 0xbfb8aa3b, v{r}
            v_exp_f32 v8, v8
            s_nop 0
            v_add_f32 v8, 1.0, v8
            v_rcp_f32 v8, v8
            s_nop 0
            v_mul_f32 v{r}, v{r}, v8
            v_cvt_pk_bf16_f32 v{r}, v{r}, v{r}
            v_lshlrev_b32 v{r}, 16, v{r}
            """)
        a("""
        v_lshlrev_b32 v9, 2, v0
        ds_write_b32 v9, v5
        ds_write_b32 v9, v6 offset:1024
        ds_write_b32 v9, v7 offset:2048
        v_lshlrev_b32 v10, 2, v2
        s_waitcnt lgkmcnt(0)
        s_barrier
        """)
        for i in range(18):
            a(f"ds_read_b32 v{104+2*i}, v10 offset:{128*i}")
        a("s_waitcnt lgkmcnt(0)")
        for i in range(18):
            a(f"s_waitcnt vmcnt({17-i})")
            for x in range(4):
                t = 24 + 2*(x & 1)
                lo(a, t, 32+4*i+x); hi(a, t+1, 32+4*i+x)
                if i == 0: a(f"v_pk_mul_f32 v[{16+2*x}:{17+2*x}], v[{t}:{t+1}], v[{104+2*i}:{105+2*i}] op_sel_hi:[1,0]")
                else:      a(f"v_pk_fma_f32 v[{16+2*x}:{17+2*x}], v[{t}:{t+1}], v[{104+2*i}:{105+2*i}], v[{16+2*x}:{17+2*x}] op_sel_hi:[1,0,1]")
        a("""
        v_lshlrev_b32 v13, 8, v2
        v_lshl_add_u32 v13, v1, 5, v13
        ds_write_b128 v13, v[16:19] offset:4096
        ds_write_b128 v13, v[20:23] offset:4112
        s_waitcnt lgkmcnt(0)
        s_barrier
        """)
        a(f"s_cmp_lg_u32 s{S_WAVE}, 0\ns_cbranch_scc1 L_nomod")
        for i in range(32):
            a(f"ds_read_b32 v{32+i}, v9 offset:{4096 + 256*i}")
        a("s_waitcnt lgkmcnt(0)")
        for st in (16, 8, 4, 2):
            for i in range(0, st, 2):
                a(f"v_pk_add_f32 v[{32+i}:{33+i}], v[{32+i}:{33+i}], v[{32+i+st}:{33+i+st}]")
        a(f"""
        v_add_f32 v32, v32, v33
        s_mov_b32 s3, 0x1c71c71d
        v_cvt_pk_bf16_f32 v32, v32, v32
        s_mul_hi_u32 s41, s40, s3
        s_cmp_eq_u32 s41, 1
        s_cselect_b32 s42, 1.0, 0
        s_cmp_eq_u32 s41, 4
        s_cselect_b32 s42, 1.0, s42
        v_lshlrev_b32 v32, 16, v32
        v_add_f32 v32, s42, v32
        s_cmp_eq_u32 s41, 3
        s_cselect_b32 s43, {f2u(ALPHA):#x}, 1.0
        s_cmp_eq_u32 s41, 5
        s_cselect_b32 s43, {f2u(1/ALPHA**2):#x}, s43
        v_cvt_pk_bf16_f32 v32, v32, v32
        v_lshlrev_b32 v32, 16, v32
        v_mul_f32 v32, s43, v32
        s_lshl_b32 s3, s40, 8
        buffer_store_dword v32, v9, s[20:23], s3 offen sc1
        L_nomod:
        """)
        self.stamp(3)
        self.signal(FB, 2)
        if not kw.get('MODLATE') and kw.get('QLATE') != 2: self.q_loads(56, 146)
        self.stamp(4)
        if kw.get('waitA', True):
            a(f"""
            v_and_b32 v146, 15, v{LANE}
            v_lshlrev_b32 v146, 7, v146
            s_and_b32 s40, s2, 7
            s_lshl_b32 s4, s40, 11
            s_add_u32 s4, s4, {FA}
            """)
            self.poll(146, 4, sleep=2)
        def wpf():
            NCH = kw.get('NCH', 2); per = -(-1152*NCH//56)
            srd(a, 20, P_WG, D*DF*2); srd(a, 24, P_WU, D*DF*2)
            a(f"""
            s_and_b32 s40, s2, 7
            s_mul_i32 s43, s40, 1152
            s_sub_u32 s47, s2, {NCONV}
            s_lshr_b32 s47, s47, 3
            s_lshl_b32 s47, s47, 2
            s_add_u32 s47, s47, s{S_WAVE}
            s_mul_i32 s42, s47, {per}
            v_min_u32 v1, {per-1}, v{LANE}
            v_add_u32 v1, s42, v1
            s_mov_b32 s44, {-(-(1 << 32)//1152):#x}
            v_mul_hi_u32 v3, s44, v1
            v_mul_u32_u24 v4, 1152, v3
            v_sub_u32 v4, v1, v4
            v_lshlrev_b32 v3, 7, v3
            v_and_b32 v5, 1, v4
            v_mul_u32_u24 v5, 640, v5
            v_add_u32 v3, v3, v5
            v_lshrrev_b32 v4, 1, v4
            v_mul_u32_u24 v4, 9216, v4
            v_add_u32 v3, v3, v4
            buffer_load_dword v149, v3, s[20:23], s43 offen{self.nt('w')}
            buffer_load_dword v149, v3, s[24:27], s43 offen{self.nt('w')}
            """)
            npf = 2
            if kw.get('PRE2'):
                npf = 4
                a(f"""
                s_mul_i32 s42, s47, 31
                v_min_u32 v1, 30, v{LANE}
                v_add_u32 v1, s42, v1
                s_mov_b32 s44, 0x55555556
                v_mul_hi_u32 v3, s44, v1
                v_mul_u32_u24 v4, 3, v3
                v_sub_u32 v4, v1, v4
                v_mul_u32_u24 v3, 9216, v3
                v_lshrrev_b32 v5, 1, v4
                v_mul_u32_u24 v5, 3, v5
                v_add3_u32 v4, v4, v5, 3
                v_lshl_add_u32 v3, v4, 7, v3
                buffer_load_dword v149, v3, s[20:23], s43 offen{self.nt('w')}
                buffer_load_dword v149, v3, s[24:27], s43 offen{self.nt('w')}
                """)
            return npf
        if kw.get('QLATE') == 2: self.q_loads(56, 146)
        npf = 0 if (kw.get('waitM') or kw.get('waitQ')) else wpf()
        self.stamp(6)
        if not kw.get('MODLATE'):
            ffn_setup(a, 100)
            self.row_setup(100)
            a(f"s_waitcnt vmcnt({npf})")
            if kw.get('waitQ') == 1: wpf()
            self.stats(0, 150)
            if kw.get('waitQ') == 2: wpf()
        a(f"""
        v_min_u32 v147, {NMOD-1}, v{LANE}
        v_lshlrev_b32 v147, 7, v147
        s_mov_b32 s11, {FB + 128*NCONV}
        """)
        self.poll(147, 11, sleep=2)
        if kw.get('waitM'): wpf()
        for o in self.mod_dma(52): a(o)
        ffn_setup2(a, 100)
        if self.fhops and self.kw.get('sidehops', True):
            for c in range(self.nhc): self.fhops.call(a, c)
        self.stamp(23)

    def row_consts(self):
        a = self.a
        srd(a, S_X, P_WS, NB_X, WS_X)
        srd(a, 52, P_WS, NB_SD, WS_Z)
        a(f"""
        s_mov_b32 s4, {FZ}
        s_mov_b32 s5, 0x4000
        s_mov_b32 s6, 0x80000
        s_mov_b32 s7, 0x84000
        s_add_u32 s8, s{S_OOB}, 0x100000
        s_add_u32 s11, s{S_OOB}, 0x104000
        s_mov_b32 s9, 4096
        s_add_u32 s10, s{S_OOB}, 8192
        """)
    def z_loads(self):
        so = ['0', 's5', 's6', 's7', 's8', 's11']
        for i in range(6):
            self.a(f"buffer_load_dwordx2 v[{2*i}:{2*i+1}], v{VRZ}, s[52:55], {so[i]} offen sc1")
    def mod_reads(self):
        MV = lambda i, v: 16 + 40*i + 8*v
        for vs in ((0, 1, 2), (3, 4)):
            for i in range(3):
                for v in vs:
                    for h in range(2):
                        self.a(f"ds_read_b128 v[{MV(i,v)+4*h}:{MV(i,v)+4*h+3}], v{VRM} offset:{2304*v + 512*i + 16*h}")
    def row_phase(self, hops):
        a = self.a; kw = self.kw
        NP1 = kw.get('NP1', 3); NP2 = kw.get('NP2', 6)
        PL = kw.get('PL', (3, 0, 0, 3)); pf = [sum(PL[:i]) for i in range(5)]
        ffn_prefill(a, range(pf[0], pf[1]))
        if kw.get('sidefill', False):
            a(f"s_cmp_lt_u32 s2, {NCONV}\ns_cbranch_scc1 L_nofill1")
            ffn_prefill(a, range(pf[3], pf[4]))
            a("L_nofill1:")
        self.row_consts()
        MV = lambda i, v: 16 + 40*i + 8*v
        self.stamp(10)
        self.poll(VRP, 4, sleep=kw.get('sleepB', 1))
        a("s_barrier")
        self.stamp(11)
        self.z_loads()
        ffn_prefill(a, range(pf[1], pf[2]))
        self.mod_reads()
        if kw.get('EARLYC'): a(f"s_waitcnt vmcnt({6*PL[1]})\nL_rowjoin:")
        a("s_waitcnt lgkmcnt(12)")
        if kw.get('hopR', False): a.hop = self.rhops
        P = lambda x: f"v[{x}:{x+1}]"
        BC = "op_sel:[0,0,1] op_sel_hi:[1,0,1]"
        for i in range(3):
            if not kw.get('EARLYC'): a(f"s_waitcnt vmcnt({2*(2-i) + 6*PL[1]})")
            if i == 0: self.stamp(12)
            for c2 in range(0, 4, 2):
                cs = (c2, c2+1); X = {c: 144 + 6*(c & 1) for c in cs}
                for c in cs: lo(a, X[c], QP+4*i+c); hi(a, X[c]+1, QP+4*i+c)
                for c in cs: a(f"v_pk_fma_f32 {P(X[c]+2)}, {P(X[c])}, {P(ST)}, {P(ST)} {BC}")
                for c in cs: lo(a, X[c]+4, 4*i+c); hi(a, X[c]+5, 4*i+c)
                for c in cs: a(f"v_pk_fma_f32 {P(X[c]+2)}, {P(X[c]+2)}, {P(MV(i,1)+2*c)}, {P(MV(i,0)+2*c)}")
                for c in cs: a(f"v_pk_mul_f32 {P(X[c]+2)}, {P(X[c]+2)}, {P(X[c]+4)}")
                for c in cs: a(f"v_pk_fma_f32 {P(X[c]+2)}, {P(X[c]+2)}, {P(MV(i,2)+2*c)}, {P(X[c])}")
                for c in cs: a(f"v_cvt_pk_bf16_f32 v{QP+4*i+c}, v{X[c]+2}, v{X[c]+3}")
        self.stats(256, 160, scale=ALPHA)
        ffn_prefill(a, range(pf[2], pf[3]))
        sh = ['0', 's9', 's10']
        for i in range(3):
            for c2 in range(0, 4, 2):
                cs = (c2, c2+1); X = {c: 144 + 6*(c & 1) for c in cs}
                for c in cs: lo(a, X[c], QP+4*i+c); hi(a, X[c]+1, QP+4*i+c)
                for c in cs: a(f"v_pk_fma_f32 {P(X[c])}, {P(X[c])}, {P(ST)}, {P(ST)} {BC}")
                for c in cs: a(f"v_pk_fma_f32 {P(X[c])}, {P(X[c])}, {P(MV(i,4)+2*c)}, {P(MV(i,3)+2*c)}")
                for c in cs: a(f"v_cvt_pk_bf16_f32 v{4*i+c}, v{X[c]}, v{X[c]+1}")
            a(f"buffer_store_dwordx4 v[{4*i}:{4*i+3}], v{VRH}, s[{S_H}:{S_H+3}], {sh[i]} offen sc1")
        a.hop = None
        self.stamp(13)
        for i in range(12): a(f"v_accvgpr_write_b32 a{X1A+i}, v{QP+i}")
        a(f"s_lshl_b32 s4, s{S_MT}, 4\ns_add_u32 s4, s4, s{S_GI}")
        self.signal(FC, 4)
        if kw.get('sidefill', False): a(f"s_cmp_ge_u32 s2, {NCONV}\ns_cbranch_scc1 L_nofill2")
        ffn_prefill(a, range(pf[3], pf[4]))
        if kw.get('sidefill', False): a("L_nofill2:")
        code_srd(a, 52, 4, 'L_common', 'L_code_end', back=True)
        a(f"v_mov_b32 v{VTAG}, s{S_TAG}")
        ffn_setup3(a)
        self.reduce_setup(100)
        a(f"""
        v_and_b32 v146, 15, v{LANE}
        v_lshlrev_b32 v146, 7, v146
        s_lshl_b32 s9, s{S_MT}, 11
        s_add_u32 s9, s9, {FC}
        """)
        for c in kw.get('hopC', ()): hops.call(a, c)
        self.stamp(14)
        self.poll(146, 9, sleep=0)
        self.stamp(15)

    def reduce_setup(self, t):
        a = self.a
        self.row_ids(t, t+1, t+2)
        a(f"""
        v_mul_u32_u24 v{VEO}, 1152, v{t}
        v_lshl_add_u32 v{VEO}, v{t+1}, 4, v{VEO}
        v_lshrrev_b32 v{VEP}, 5, v{t}
        v_mul_u32_u24 v{VEP}, 9, v{VEP}
        v_lshrrev_b32 v{t+2}, 3, v{t+1}
        v_add_u32 v{VEP}, v{t+2}, v{VEP}
        v_lshlrev_b32 v{VEP}, 12, v{VEP}
        v_bfe_u32 v{t+2}, v{t}, 4, 1
        v_lshl_add_u32 v{VEP}, v{t+2}, 10, v{VEP}
        v_bfe_u32 v{t+2}, v{LANE}, 3, 1
        v_lshl_add_u32 v{VEP}, v{t+2}, 11, v{VEP}
        v_bfe_u32 v{t+2}, v{LANE}, 4, 1
        v_lshl_add_u32 v{VEP}, v{t+2}, 9, v{VEP}
        v_bfe_u32 v{t+2}, v{LANE}, 5, 1
        v_lshl_add_u32 v{VEP}, v{t+2}, 8, v{VEP}
        v_and_b32 v{t+2}, 15, v{t}
        v_lshl_add_u32 v{VEP}, v{t+2}, 4, v{VEP}
        v_lshlrev_b32 v{VEG}, 5, v{t+1}
        v_add_u32 v{VEG}, {MOD_OFF + 5*2304}, v{VEG}
        s_lshl_b32 s3, s{S_MT}, 2
        s_lshr_b32 s4, s{S_GI}, 2
        s_add_u32 s4, s4, s3
        s_lshl_b32 s4, s4, 11
        v_and_b32 v{VEF}, 15, v{LANE}
        v_lshl_add_u32 v{VEF}, v{VEF}, 7, s4
        s_add_u32 s3, s3, s{S_WAVE}
        s_lshl_b32 s3, s3, 4
        s_add_u32 s3, s3, s{S_GI}
        s_lshl_b32 s3, s3, 7
        s_add_u32 s{S_FD}, s3, {FD1}
        """)
    def reduce_phase(self):
        a = self.a; kw = self.kw
        early = kw.get('early', True)
        self.stamp(17)
        srd(a, 12, P_OUT, NB_SD)
        a(f"""
        s_mov_b32 s4, {FD1}
        s_mov_b32 s7, {FD2}
        s_add_u32 s8, s{S_FD}, {FD2 - FD1}
        {f'buffer_load_dword v239, v{VEF}, s[{S_FL}:{S_FL+3}], s4 offen sc1' if early and not kw.get('ASK3') else ''}
        s_mov_b32 s5, 0x3f80
        s_mov_b32 s6, 0x3f800000
        v_add_u32 v222, 8192, v{VEP}
        v_add_u32 v223, 16384, v{VEP}
        v_add_u32 v223, s{S_OOB}, v223
        """)
        for i in range(3):
            for h in range(2):
                a(f"ds_read_b128 v[{192+8*i+4*h}:{195+8*i+4*h}], v{VEG} offset:{512*i + 16*h}")
        va = [VEP, 222, 223]; RD = [32, 64, 128]
        def loads(i):
            a("s_mov_b32 s9, 0")
            for sl in range(8):
                a(f"buffer_load_dwordx4 v[{RD[i]+4*sl}:{RD[i]+4*sl+3}], v{va[i]}, s[{S_P}:{S_P+3}], s9 offen sc1")
                if sl < 7: a(f"s_add_u32 s9, s9, {NB_SD}")
        pub = f"buffer_store_dword v{VTAG}, off, s[{S_FL}:{S_FL+3}], s8 sc1"
        if kw.get('ASK3'):
            a(f"v_cmp_ne_u32 vcc, s{S_TAG}, v239\ns_cbranch_vccnz L_e1late")
            loads(0)
            a(f"s_waitcnt vmcnt(8)\n{pub}\ns_branch L_e1done\nL_e1late:\ns_waitcnt vmcnt(0)\n{pub}")
            self.poll(VEF, 4, sleep=0)
            loads(0)
            a("L_e1done:")
            self.stamp(18)
        else:
            a(f"s_waitcnt vmcnt(0)\n{pub}")
            self.stamp(18)
            if early:
                a(f"v_cmp_ne_u32 vcc, s{S_TAG}, v239\ns_cbranch_vccz L_e1ok")
                self.poll(VEF, 4, sleep=0)
                a("L_e1ok:")
                loads(0)
        AC = 226
        def finish(i, waits):
            for e in range(8): a(f"v_mov_b32 v{AC+e}, 0")
            for sl in range(8):
                if waits is not None: a(f"s_waitcnt vmcnt({waits - sl})")
                for x in range(4):
                    a(f"v_dot2_f32_bf16 v{AC+2*x}, v{RD[i]+4*sl+x}, s5, v{AC+2*x}")
                    a(f"v_dot2_f32_bf16 v{AC+2*x+1}, v{RD[i]+4*sl+x}, s6, v{AC+2*x+1}")
            for x in range(4): a(f"v_accvgpr_read_b32 v{QP+x}, a{X1A+4*i+x}")
            for e in range(4): a(f"v_permlane32_swap_b32 v{AC+e}, v{AC+4+e}")
            for x in range(4):
                lo(a, 234, QP+x); hi(a, 235, QP+x)
                a(f"v_pk_fma_f32 v[234:235], v[{AC+2*x}:{AC+2*x+1}], v[{192+8*i+2*x}:{193+8*i+2*x}], v[234:235]")
                a(f"v_cvt_pk_bf16_f32 v{QP+4+x}, v234, v235")
            a(f"buffer_store_dwordx4 v[{QP+4}:{QP+7}], v{VEO}, s[12:15], {'s%d' % S_OOB if i == 2 else '0'} offen" + (f" offset:{256*i}" if i else "") + kw.get('outfl', ''))
            a("s_nop 1")
        if kw.get('MID'):
            a(f"s_bitcmp1_b32 s{S_WAVE}, 0\ns_cselect_b32 s10, s7, {FD3}")
            self.poll(VEF, 10, sleep=0)
            self.stamp(19)
            loads(1)
            a("s_waitcnt lgkmcnt(0)")
            finish(0, None)
            a(f"s_cmp_lg_u32 s{S_WAVE}, 0\ns_cbranch_scc1 L_e2only")
            self.poll(VEF, 7, sleep=0)
            loads(2)
            finish(1, None)
            finish(2, 8)
            a("s_branch L_edone\nL_e2only:")
            finish(1, 8)
            a("L_edone:")
        else:
            self.poll(VEF, 7, sleep=0)
            self.stamp(19)
            if not early: loads(0)
            loads(1); loads(2)
            a("s_waitcnt lgkmcnt(0)")
            for i in range(3): finish(i, None if (early and i == 0) else 23 - 7*i)
        self.stamp(20)

    def build(self):
        a = self.a; kw = self.kw
        a(kernel_head(NAME))
        if kw.get('fix0'): a("s_memrealtime s[100:101]")
        a(f"""
        s_cmp_ge_u32 s2, 256
        s_cbranch_scc1 L_end
        s_load_dwordx16 s[64:79], s[0:1], 0
        s_load_dwordx8 s[80:87], s[0:1], 64
        s_load_dwordx4 s[88:91], s[0:1], 96
        s_load_dwordx2 s[92:93], s[0:1], 112
        """)
        if self.diag: a(f"v_mov_b32 v{DIAG}, 0")
        code_srd(a, 56, 4, 'L_start', 'L_common')
        a(f"""
        L_start:
        v_lshlrev_b32 v1, 7, v0
        v_lshrrev_b32 v2, 6, v0
        v_and_b32 v{LANE}, 63, v0
        buffer_load_dword v238, v1, s[56:59], 0 offen
        v_readfirstlane_b32 s{S_WAVE}, v2
        """)
        def ids():
            a(f"""
            s_lshr_b32 s3, s2, 3
            s_lshr_b32 s{S_MT}, s3, 1
            s_add_u32 s6, s{S_MT}, {kw.get('CA', 7)}
            s_sub_u32 s7, s{S_MT}, 9
            s_cmp_lt_u32 s7, {kw.get('CA', 7)}
            s_cselect_b32 s7, s7, s{S_MT}
            s_cmp_lt_u32 s{S_MT}, 9
            s_cselect_b32 s{S_MT}, s6, s7
            s_and_b32 s3, s3, 1
            s_and_b32 s{S_GI}, s2, 7
            s_lshl_b32 s{S_GI}, s{S_GI}, 1
            s_add_u32 s{S_GI}, s{S_GI}, s3
            s_mov_b32 s{S_ONE}, 0x3f803f80
            s_cmp_eq_u32 s{S_WAVE}, 0
            s_cselect_b32 s{S_OOB}, 0, 0x40000000
            """)
        def epoch():
            a(f"s_add_u32 s4, s{P_WS}, {WS_EPOCH:#x}\ns_addc_u32 s5, s{P_WS+1}, 0\ns_load_dword s28, s[4:5], 0")
            srd(a, S_FL, P_WS, 0x120000, WS_FL)
        self.late_entry = None
        if kw.get('ENTRY'):
            self.late_entry = lambda: (ids(), epoch())
            a(f"s_cmp_ge_u32 s2, {NCONV}\ns_cbranch_scc1 L_side")
        else:
            ids()
            a("s_waitcnt lgkmcnt(0)")
            epoch()
            self.stamp(0)
            a(f"s_cmp_ge_u32 s2, {NCONV}\ns_cbranch_scc1 L_side")
        self.tagfix = True
        orig = self.signal
        first = [True]
        def sig(base, idx):
            if first[0]:
                a(f"s_waitcnt lgkmcnt(0)\ns_add_u32 s{S_TAG}, s28, 1"); first[0] = False
            orig(base, idx)
        self.signal = sig
        self.chops = Hops('L_ch'); self.ahops = Hops('L_ah'); self.rhops = Hops('L_rh')
        self.nhc = kw.get('nhc', 4)
        hops = self.fhops = Hops('L_fh') if kw.get('hops', False) else None
        self.conv_path()
        a("s_branch L_common")
        if kw.get('chops', False): self.chops.ret(a)
        if hops: hops.ret(a)
        if kw.get('hopP', False): self.ahops.ret(a)
        if kw.get('hopR', False): self.rhops.ret(a)
        ffn_slow_paths(a, SPIN_MAX, self.diag)
        a("L_side:")
        first[0] = True
        self.side_path()
        a("L_common:")
        self.row_phase(hops)
        kw['NP2'] = sum(kw.get('PL', (3, 0, 0, 3)))
        fk = {k: v for k, v in kw.items() if k not in ('NP1', 'hops', 'nhc', 'hopA', 'hopB', 'hopC', 'sidehops', 'sleepB', 'chops', 'KEARLY', 'waitA', 'MCHK', 'touch', 'NCH', 'dbg', 'fixdur', 'fix0', 'outfl', 'enc', 'poll1', 'sleepD', 'PL', 'hopP', 'hopR', 'LN1', 'pfK', 'early', 'INLOOP', 'ZF', 'convpf', 'PASS', 'CA', 'sidefill', 'ARR', 'KLATE', 'MODLATE', 'QLATE', 'PRE2', 'wsoff', 'waitM', 'waitQ', 'ZPOLL', 'NT', 'EARLYC', 'FF', 'ENTRY')}
        ffn_main(a, hops=hops, stamper=(lambda: self.stamp(16)), **fk)
        if hops: hops.resolve(a, self.nhc)
        if kw.get('chops', False): self.chops.resolve(a, 1)
        if kw.get('hopP', False): self.ahops.resolve(a, 1)
        if kw.get('hopR', False): self.rhops.resolve(a, 1)
        self.reduce_phase()
        a(f"""
        s_cmp_lg_u32 s2, 0
        s_cbranch_scc1 L_noep
        s_cmp_lg_u32 s{S_WAVE}, 0
        s_cbranch_scc1 L_noep
        """)
        srd(a, 20, P_WS, 4, WS_EPOCH)
        a(f"""
        v_mov_b32 v239, s{S_TAG}
        s_mov_b64 exec, 1
        buffer_store_dword v239, off, s[20:23], 0 sc1
        s_mov_b64 exec, -1
        L_noep:
        """)
        if self.diag:
            a("s_waitcnt vmcnt(0)"); self.stamp(21)
            srd(a, 20, P_WS, 1 << 20, 0x8000000)
            a(f"""
            s_lshl_b32 s3, s2, 2
            s_add_u32 s3, s3, s{S_WAVE}
            s_lshl_b32 s3, s3, 8
            v_lshlrev_b32 v1, 2, v{LANE}
            buffer_store_dword v{DIAG}, v1, s[20:23], s3 offen
            s_add_u32 s3, s3, 0x80000
            buffer_store_dword v253, v1, s[20:23], s3 offen
            """)
            if kw.get('dbg') is not None:
                a(f's_load_dwordx2 s[90:91], s[0:1], {DBG}\ns_waitcnt lgkmcnt(0)')
                srd(a, 20, 90, 256)
                a(f"""
                s_cmp_lg_u32 s2, {kw['dbg']}
                s_cbranch_scc1 L_end
                s_cmp_lg_u32 s{S_WAVE}, 0
                s_cbranch_scc1 L_end
                v_readlane_b32 s3, v{DIAG}, 0
                v_add_u32 v2, -24, v1
                s_nop 1
                v_subrev_u32 v{DIAG}, s3, v{DIAG}
                buffer_store_dword v{DIAG}, v2, s[20:23], 0 offen
                """)
                if kw.get('fixdur'):
                    if kw.get('enc') is not None:
                        a(f"s_nop 1\nv_readlane_b32 s4, v{DIAG}, {kw['enc']}\ns_nop 3\ns_add_u32 s3, s3, s4")
                    a(f"""
                    L_fix:
                    s_memrealtime s[98:99]
                    s_waitcnt lgkmcnt(0)
                    s_sub_u32 s98, s98, {'s100' if kw.get('fix0') else 's3'}
                    s_cmp_lt_u32 s98, {kw['fixdur']}
                    s_cbranch_scc1 L_fix
                    """)
        a("L_end:\ns_endpgm\nL_code_end:")
        REF = 'adaLN_cond__ssm_conv_h3__glu_gated_geglu__prompt.s.ref'
        pre = [l for l in open(REF).read().split('\n') if l.startswith(';') and '@launch' not in l]
        pre += '''; One persistent launch, 256 workgroups (one per CU) of 4 waves; generated by the author's own scheduler script.
;   A  wg<144: kv = shortconv(k)*v for a 128x64 tile, transposed through LDS to [channel][time]      (hand-off A)
;   B  wg<144: causal long convolution of 4 channels as Toeplitz MFMA products (+ D on the diagonal),
;      first 1024 steps published early; wg 144..197: modulation GEMV; wg>=144 warm L2 with weights  (hand-off B)
;   C  all: 8 rows each: LayerNorm 1, x1 = q + ga*h*z, LayerNorm 2 -> h2 in MFMA fragment order      (hand-off C)
;   D  all: 128 rows x 288 hidden columns: gate/up GEMM, tanh-GELU (sigmoid form), hidden activations exchanged
;      with the partner workgroup, down GEMM for half of the output columns, bf16 partial sums        (hand-off D)
;   E  all: 8 rows each: sum of the 8 partial sums, out = x1 + gb*o
; Hand-offs: write-through stores, vmcnt drain, tag words in d_ws; tag = (word found in d_ws at entry) + 1, every spin bounded.
; h2 carries the factor a = (2*sqrt(2/pi)*log2(e)*0.044715)^(1/3); it is removed again through gb/a^2.'''.split('\n')
        out = pre + [f"; @launch grid=(256,1,1) block=(256,1,1) lds={LDS_TOTAL}", '.amdgcn_target "amdgcn-amd-amdhsa--gfx950"', '.text', a.text(),
                     '.section .rodata,"a"', kernel_desc(NAME, 256 + X1A + 12, 102, 256)]
        return '\n'.join(out) + '\n'

BEST = dict(order=1, GDL=70, FLAG_D=48, ASK2=260, PPACE=4, HPACE=5, ASK_D=48, CPF=6, CPD=2, BG=2, GSPAN=40, NCH=3, PL=(3,0,0,3), waitA=True, waitQ=1, NT='kvmq', outfl=' sc1', KLATE=2, QLATE=2, ZF=4, MCHK=6, FF=3, ENTRY=1, CH6=True, dmafl=' sc1', PF=default_pf(d=(13, 15)))
if __name__ == '__main__':
    dst = sys.argv[1] if len(sys.argv) > 1 else 'best.s'
    open(dst, 'w').write(G(verbose=True, **BEST).build())
    open('best_d.s', 'w').write(G(diag=True, stagestamp=3, **BEST).build())
```

```python
from common import *
import math, struct
SLOT = 24576
NSLOT = 6
RING = NSLOT*SLOT
_c1 = 2*math.sqrt(2/math.pi)*math.log2(math.e); _c2 = _c1*0.044715
ALPHA = _c2**(1/3)
KT = _c1/ALPHA
def f2u(x): return struct.unpack('<I', struct.pack('<f', x))[0]

P_Q, P_K, P_V, P_SK, P_SSMK, P_SSMD, P_WG, P_WU, P_WD, P_C, P_WMOD, P_OUT, P_WS = 64, 66, 68, 70, 72, 74, 78, 80, 82, 84, 86, 88, 92
S_TAG, S_WAVE, S_SPIN, S_ONE = 94, 95, 96, 97
S_MT, S_GI, S_OOB = 49, 50, 51
S_FL = 60
LANE = 254
ACC, STG, HH = 0, 64, 128
TMP = 200
RBH = 204
TF, TH, TD = 208, 209, 210
VF, VH, VD = 216, 220, 224
VL16 = 225
VPC = 214
VPF, VPD = 215, 238
RBF = 226
H2 = 0
FR = 144
X1A = 208
S_W, S_D, S_H, S_P = 12, 16, 20, 24
S_M0F, S_M0D = 29, 30
S_BF, S_BH, S_DF, S_DH = 31, 32, 33, 34
S_SO, S_PO, S_KT, S_HO, S_HS, S_SS, S_PD, S_PS = 35, 36, 37, 38, 39, 48, 40, 41
PFN, PFD = 42, 47
OBUF = [ACC+32, STG, STG+32, ACC]
HBUF = [216, 240]
RB2 = [204, 205, 206, 207, 212, 213]
VD2, TD2, VTAG, VCHK = 209, 208, 252, 211
S_X = 56
S_OH, S_PF, S_PH, S_OFH, S_PFH, S_88, S_POH, S_XO, S_XP, S_XS, S_FO, S_FP = 34, 42, 43, 44, 45, 46, 47, 76, 77, 28, 100, 101
WS_X = 0x2400000
NB_X = 256*4*18432
FE = 0x20000
FD1, FD2, FD3 = 0x60000, 0x80000, 0x100000
VEP, VEO, VEG, VEF = 248, 249, 250, 251
S_FD = 90

def isize(ins):
    op = ins.split()[0]
    if op.endswith(':'): return 0
    if op in ('s_waitcnt', 's_barrier', 's_nop', 's_cbranch_scc1', 's_branch'): return 4
    if op in ('v_mul_f32', 'v_add_f32', 'v_rcp_f32', 'v_exp_f32', 'v_lshlrev_b32', 'v_mov_b32', 'v_fmac_f32') and '0x' not in ins and '-' not in ins: return 4
    return 8

class Hops:
    def __init__(self, prefix):
        self.prefix, self.n, self.bytes = prefix, 0, 1 << 20
    def add(self, ins): self.bytes += isize(ins)
    def due(self, margin=40): return self.bytes >= 128 - margin
    def emit(self):
        s = f"{self.prefix}_{self.n}:\ns_cbranch_scc1 @HOP@{self.prefix}@{self.n}@"
        self.n += 1; self.bytes = 4
        return s
    def resolve(self, a, ncall):
        nseg = 4*ncall
        self.start = [self.n*k//nseg for k in range(nseg+1)]
        ends = {self.start[k+1]-1 for k in range(nseg)}
        for i, l in enumerate(a.L):
            if f'@HOP@{self.prefix}@' in l:
                n = int(l.split('@')[3])
                tgt = f"{self.prefix}_ret" if n in ends else f"{self.prefix}_{n+1}"
                a.L[i] = f"s_cbranch_scc1 {tgt}"
            elif f'@CALL@{self.prefix}@' in l:
                c, w = int(l.split('@')[3]), int(l.split('@')[4])
                a.L[i] = f"s_cbranch_scc1 {self.prefix}_in{4*c+w}"
            elif l == f'@STUBS@{self.prefix}':
                a.L[i] = "\n".join(f"{self.prefix}_in{k}:\n  s_cmp_eq_u32 0, 0\n  s_branch {self.prefix}_{self.start[k]}" for k in range(nseg)) + "\n  s_nop 0"
    ncalls = 0
    def call(self, a, c):
        Hops.ncalls += 1
        x = f"{self.prefix}_c{Hops.ncalls}"
        a(f"s_getpc_b64 s[98:99]\n{x}a:\ns_add_u32 s98, s98, {x}b-{x}a\ns_addc_u32 s99, s99, 0")
        for w in range(4):
            a(f"s_cmp_eq_u32 s{S_WAVE}, {w}")
            a.L.append(f"@CALL@{self.prefix}@{c}@{w}@")
        a(f"{x}b:")
    def ret(self, a):
        a.L.append(f'@STUBS@{self.prefix}')
        a(f"{self.prefix}_ret:\ns_setpc_b64 s[98:99]")

def down_items(order=0):
    F_ = lambda b, s_, ks: [('F', b, s_, k) for k in ks]
    H_ = lambda s_, ks: [('H', (s_, k), (s_, k+1)) for k in ks]
    it = F_(0,0,range(6)) + F_(1,0,range(6)) + H_(0,(0,2,4)) + F_(2,0,range(6)) + F_(3,0,range(6))
    for b in range(4): it += F_(b,0,range(6,9))
    it += H_(0,(6,))
    if order == 0:
        it += F_(0,1,range(6)) + F_(1,1,range(6)) + F_(0,1,range(6,9)) + F_(1,1,range(6,9))
    elif order == 1:
        it += F_(0,1,range(9)) + F_(1,1,range(9))
    if order == 2:
        it += F_(0,1,range(6)) + F_(1,1,range(6)) + F_(2,1,range(6)) + F_(0,1,range(6,9)) + F_(1,1,range(6,9)) + F_(2,1,range(6,9))
    else:
        it += F_(2,1,range(9))
    it += F_(3,1,range(9)) + H_(1,(0,2,4,6)) + [('H', (0,8), (1,8))]
    if order == 3:
        it = F_(0,0,range(6)) + F_(1,0,range(6)) + H_(0,(0,2,4)) + F_(0,1,range(6)) + F_(0,0,range(6,9)) + F_(2,0,range(6)) + F_(1,0,range(6,9)) + F_(1,1,range(3))
        it += F_(0,1,range(6,9)) + F_(1,1,range(3,9)) + F_(2,0,range(6,9)) + F_(2,1,range(9)) + F_(3,0,range(9)) + F_(3,1,range(9))
        it += H_(0,(6,)) + H_(1,(0,2,4,6)) + [('H', (0,8), (1,8))]
    if order == 4:
        it = F_(0,0,range(6)) + F_(1,0,range(6)) + H_(0,(0,2,4)) + F_(0,1,range(6)) + F_(0,0,range(6,9)) + F_(1,1,range(6)) + F_(1,0,range(6,9)) + H_(0,(6,)) + H_(1,(0,2))
        it += F_(0,1,range(6,9)) + H_(1,(4,6)) + [('H', (0,8), (1,8))] + F_(1,1,range(6,9)) + F_(2,0,range(9)) + F_(2,1,range(9)) + F_(3,0,range(9)) + F_(3,1,range(9))
    if order == 5:
        it = F_(0,0,range(6)) + F_(1,0,range(6)) + H_(0,(0,2,4)) + F_(0,1,range(6)) + F_(0,0,range(6,9)) + F_(2,0,range(6)) + F_(1,0,range(6,9)) + F_(1,1,range(6))
        it += F_(0,1,range(6,9)) + F_(1,1,range(6,9)) + F_(2,0,range(6,9)) + F_(2,1,range(9)) + F_(3,0,range(9)) + F_(3,1,range(9))
        it += H_(0,(6,)) + H_(1,(0,2,4,6)) + [('H', (0,8), (1,8))]
    if order == 6:
        it = F_(0,0,range(6)) + F_(1,0,range(6)) + H_(0,(0,2,4)) + F_(2,0,range(6)) + F_(0,0,range(6,9)) + F_(0,1,range(6)) + F_(1,0,range(6,9)) + F_(1,1,range(6)) + F_(2,0,range(6,9))
        it += F_(0,1,range(6,9)) + F_(1,1,range(6,9)) + F_(2,1,range(9)) + H_(0,(6,)) + H_(1,(0,2,4,6)) + [('H', (0,8), (1,8))] + F_(3,0,range(9)) + F_(3,1,range(9))
    if order == 7:
        it = []
        for b in range(4): it += F_(b,0,range(6))
        for b in range(4): it += F_(b,0,range(6,9))
        it += F_(0,1,range(6)) + F_(1,1,range(6)) + F_(0,1,range(6,9)) + F_(1,1,range(6,9)) + F_(2,1,range(9)) + F_(3,1,range(9))
        it += [('M', s_, k) for s_ in range(2) for k in range(9)]
        assert len(it) == 90
        return it
    assert len(it) == 81
    return it

def base_ops(dst, T, npair, ntile):
    ops = []
    for p in range(npair):
        ops.append(f"v_add_u32 v{dst+ntile*p}, {2*SLOT*p}, v{T}")
        for t in range(1, ntile):
            ops.append(f"v_xor_b32 v{dst+ntile*p+t}, {32*t}, v{dst+ntile*p}")
    return ops

def dma_ops(st, DI):
    slot = (st % NSLOT)*SLOT
    ops = []
    if st < 27:
        if st < 24:
            base, vv, rs = S_BF, VF, 8*9216
            imm0 = (st // 6)*128 + (st % 6)*96*9216
        else:
            base, vv, rs = S_BH, VH, 16*9216
            imm0 = (st - 24)*192*9216
        for j in range(6):
            sc = []
            if j % 4 == 0:
                sc = [f"s_add_u32 m0, s{S_M0F}, {slot + j*1024}", f"s_add_u32 s{S_SO}, s{base}, {imm0 + j*rs}"]
            o = f" offset:{(j%4)*1024}" if j % 4 else ""
            ops.append((sc, f"buffer_load_dwordx4 v{vv + j%4}, s[{S_W}:{S_W+3}], s{S_SO} offen{o} lds"))
    else:
        for j, it in enumerate(DI[6*(st-27):6*(st-27)+6]):
            if it[0] == 'F':
                _, b, src, k = it
                base, imm, vv = ((S_DF, S_PF)[src], 32*k*1152 + b*128, VD) if k < 8 else ((S_OH, S_PH)[src], b*128, VD)
            elif it[0] == 'M':
                _, src, k = it
                base, imm, vv = ((S_DF, S_PF)[src], 32*k*1152, VD) if k < 8 else ((S_OH, S_PH)[src], 0, VD)
            else:
                src, k = it[1]
                base, imm, vv = ((S_OFH, S_PFH)[src], 32*k*1152, VD2) if k < 8 else (S_88, 0, VD2)
            sc = [f"s_add_u32 m0, s{S_M0D}, {slot + j*4096}", f"s_add_u32 s{S_SO}, s{base}, {imm}"]
            if it[0] == 'M': sc.append(f"s_add_u32 s{S_SO}, s{S_SO}, s{S_DM}")
            ops.append((sc, f"buffer_load_dwordx4 v{vv}, s[{S_D}:{S_D+3}], s{S_SO} offen lds"))
    return ops

def ffn_prefill(a, stages):
    for st in stages:
        for sc, ins in dma_ops(st, None):
            for s_ in sc: a(s_)
            a(ins)

PFWHO = ['early']
DYN = [False]
RM = [204, 205, 206, 207, 212, 213, 214, 215]
S_DM, S_T0, S_PM, S_D1, S_D2, S_N, S_TM = 4, 5, 6, 7, 8, 9, 10
VCK2 = 208
def vst(): return 211 if DYN[0] else 253
def ffn_setup(a, T, srds=True):
    L, T0, T1, T2, T3 = LANE, T, T+1, T+2, T+3
    RS = 8*9216 - 1024; RH = 16*9216 - 1024
    a(f"""
    s_lshr_b32 s4, s{S_GI}, 1
    s_and_b32 s6, s{S_GI}, 1
    s_mul_i32 s7, s4, 576
    s_mul_i32 s8, s6, 320
    s_add_u32 s8, s8, s7
    s_lshl_b32 s9, s6, 5
    s_add_u32 s9, s9, s7
    s_add_u32 s9, s9, 256
    s_lshl_b32 s{S_BF}, s8, 1
    s_lshl_b32 s{S_BH}, s9, 1
    s_lshl_b32 s10, s{S_MT}, 2
    s_add_u32 s10, s10, s{S_WAVE}
    s_mul_i32 s{S_HO}, s10, 36864
    s_mul_i32 s{S_M0F}, s{S_WAVE}, 6144
    s_lshl_b32 s{S_M0D}, s{S_WAVE}, 10
    s_mov_b32 s{S_KT}, {f2u(-KT):#x}
    s_and_b32 s4, s{S_WAVE}, 1
    s_mul_i32 s5, s4, {48*9216}
    s_mul_i32 s6, s4, {96*9216}
    s_mul_i32 s7, s{S_WAVE}, {8*1152}
    v_lshlrev_b32 v{VL16}, 4, v{L}
    v_lshrrev_b32 v{T0}, 3, v{L}
    v_bfe_u32 v{T1}, v{L}, 4, 1
    v_lshlrev_b32 v{T1}, 1, v{T1}
    v_and_b32 v{T2}, 7, v{L}
    v_xor_b32 v{T1}, v{T1}, v{T2}
    v_lshlrev_b32 v{T1}, 4, v{T1}
    v_mul_u32_u24 v{T3}, 9216, v{T0}
    v_add_u32 v{T3}, s5, v{T3}
    v_add_u32 v{VF}, v{T3}, v{T1}
    v_xor_b32 v{T1}, 64, v{T1}
    v_add_u32 v{VF+1}, v{T3}, v{T1}
    v_add_u32 v{VF+2}, {2*RS}, v{VF}
    v_add_u32 v{VF+3}, {3*RS}, v{VF+1}
    v_add_u32 v{VF+1}, {RS}, v{VF+1}
    """)
    if srds:
        a(f"""
        s_cmp_ge_u32 s{S_WAVE}, 2
        s_cselect_b32 s{S_W}, s{P_WU}, s{P_WG}
        s_cselect_b32 s{S_W+1}, s{P_WU+1}, s{P_WG+1}
        s_mov_b32 s{S_W+2}, {D*DF*2:#x}
        s_mov_b32 s{S_W+3}, 0x20000
        """)
        srd(a, S_D, P_WD, D*DF*2)
    a(f"""
    v_lshrrev_b32 v{T0}, 2, v{L}
    v_mul_u32_u24 v{T3}, 9216, v{T0}
    v_add_u32 v{T3}, s6, v{T3}
    v_and_b32 v{T0}, 3, v{L}
    v_lshrrev_b32 v{T1}, 5, v{L}
    v_lshlrev_b32 v{T1}, 1, v{T1}
    v_xor_b32 v{T0}, v{T0}, v{T1}
    v_lshl_add_u32 v{VH}, v{T0}, 4, v{T3}
    v_add_u32 v{VH+1}, {RH}, v{VH}
    v_add_u32 v{VH+2}, {2*RH}, v{VH}
    v_add_u32 v{VH+3}, {3*RH}, v{VH}
    v_lshrrev_b32 v{T0}, 3, v{L}
    v_mul_u32_u24 v{T1}, 1152, v{T0}
    v_add_u32 v{T1}, s7, v{T1}
    v_and_b32 v{T0}, 6, v{T0}
    v_and_b32 v{T2}, 7, v{L}
    v_xor_b32 v{T0}, v{T0}, v{T2}
    v_lshl_add_u32 v{VD}, v{T0}, 4, v{T1}
    v_lshrrev_b32 v{T2}, 4, v{L}
    v_bfe_u32 v{T0}, v{L}, 2, 2
    v_and_b32 v{T3}, 3, v{L}
    v_lshlrev_b32 v{T3}, 3, v{T3}
    v_lshl_add_u32 v{T1}, v{T2}, 3, v{T0}
    v_lshl_add_u32 v{TF}, v{T1}, 7, v{T3}
    v_lshl_add_u32 v{TH}, v{T1}, 6, v{T3}
    v_lshl_add_u32 v{T1}, v{T2}, 2, v{T0}
    v_lshl_add_u32 v{TD}, v{T1}, 7, v{T3}
    v_bfe_u32 v{T1}, v{T1}, 1, 2
    v_lshl_add_u32 v{TD}, v{T1}, 5, v{TD}
    v_and_b32 v{T2}, 1, v{T2}
    v_lshl_add_u32 v{TH}, v{T2}, 5, v{TH}
    v_lshrrev_b32 v{T0}, 1, v{T0}
    v_lshl_add_u32 v{T0}, v{T2}, 1, v{T0}
    v_lshl_add_u32 v{TF}, v{T0}, 5, v{TF}
    """)
    for o in base_ops(RBF, TF, 3, 4) + base_ops(RBH, TH, 2, 2): a(o)
    a(f"""
    v_lshrrev_b32 v{T0}, 4, v{L}
    v_bfe_u32 v{T1}, v{L}, 2, 2
    v_lshl_add_u32 v{T1}, v{T0}, 2, v{T1}
    v_and_b32 v{T2}, 3, v{L}
    v_lshlrev_b32 v{T3}, 3, v{T2}
    v_lshl_add_u32 v{TD2}, v{T1}, 6, v{T3}
    v_and_b32 v{T0}, 1, v{T0}
    v_lshl_add_u32 v{TD2}, v{T0}, 5, v{TD2}
    v_lshlrev_b32 v{T0}, 1, v{T0}
    v_xor_b32 v{T2}, v{T2}, v{T0}
    v_lshrrev_b32 v{T1}, 2, v{L}
    s_lshl_b32 s4, s{S_WAVE}, 4
    v_add_u32 v{T1}, s4, v{T1}
    v_mul_u32_u24 v{T1}, 1152, v{T1}
    v_lshl_add_u32 v{VD2}, v{T2}, 4, v{T1}
    """)
    a(f"""
    {f's_mov_b32 s4, s{S_MT}' if PFWHO[0] == 'early' else f's_add_u32 s4, s{S_MT}, 9'}
    s_and_b32 s4, s4, 15
    s_mul_i32 s4, s4, {2*PFN}
    s_and_b32 s5, s{S_WAVE}, 1
    s_mul_i32 s5, s5, {PFN}
    s_add_u32 s4, s4, s5
    v_min_u32 v{VPF}, {PFN-1}, v{L}
    v_add_u32 v{VPF}, s4, v{VPF}
    v_mul_u32_u24 v{VPF}, 9216, v{VPF}
    """)

def ffn_setup2(a, T):
    if DYN[0]:
        a(f"""
        s_lshl_b32 s4, s{S_MT}, 2
        s_add_u32 s4, s4, s{S_WAVE}
        s_mul_i32 s4, s4, {21*1152}
        s_cmp_ge_u32 s{S_MT}, 7
        s_cselect_b32 s4, 0x40000000, s4
        v_min_u32 v{VPD}, 54, v{LANE}
        v_mul_u32_u24 v{T}, 52, v{VPD}
        v_lshrrev_b32 v{T}, 8, v{T}
        v_mul_u32_u24 v{T+1}, 5, v{T}
        v_sub_u32 v{VPD}, v{VPD}, v{T+1}
        v_lshlrev_b32 v{VPD}, 7, v{VPD}
        v_mul_u32_u24 v{T}, 1152, v{T}
        v_add3_u32 v{VPD}, v{VPD}, v{T}, s4
        s_lshr_b32 s4, s{S_GI}, 1
        s_mul_i32 s4, s4, {576*1152}
        s_and_b32 s5, s{S_GI}, 1
        s_lshl_b32 s5, s5, 9
        s_add_u32 s{S_PD}, s4, s5
        """)
    if not DYN[0]: a(f"""
    {f's_mov_b32 s5, s{S_MT}' if PFWHO[0] == 'early' else f's_add_u32 s5, s{S_MT}, 9'}
    s_and_b32 s5, s5, 15
    s_lshl_b32 s4, s5, 2
    s_add_u32 s4, s4, s{S_WAVE}
    s_mul_i32 s4, s4, {2*PFD}
    s_cmp_ge_u32 s5, 7
    s_cselect_b32 s4, 0x800000, s4
    v_min_u32 v{VPD}, {PFD-1}, v{LANE}
    v_add_u32 v{VPD}, s4, v{VPD}
    v_lshlrev_b32 v{VPD}, 7, v{VPD}
    s_mul_i32 s{S_PD}, s{S_GI}, {288*1152}
    """)
    a(f"""
    s_and_b32 s9, s{S_GI}, 1
    s_lshr_b32 s10, s{S_GI}, 1
    s_mul_i32 s11, s10, {576*1152}
    s_mul_i32 s3, s9, 640
    s_add_u32 s3, s3, s11
    s_mul_i32 s4, s9, {320*1152}
    s_add_u32 s{S_DF}, s3, s4
    s_sub_u32 s4, {320*1152}, s4
    s_add_u32 s{S_PF}, s3, s4
    s_mul_i32 s4, s9, {32*1152}
    s_add_u32 s3, s3, {256*1152}
    s_add_u32 s{S_OH}, s3, s4
    s_sub_u32 s4, {32*1152}, s4
    s_add_u32 s{S_PH}, s3, s4
    s_mul_i32 s3, s9, 576
    s_sub_u32 s3, 512, s3
    s_add_u32 s{S_OFH}, s{S_DF}, s3
    s_add_u32 s{S_PFH}, s{S_PF}, s3
    s_sub_u32 s4, s{S_PH}, {32*1152}
    s_cmp_ge_u32 s{S_WAVE}, 2
    s_cselect_b32 s4, s4, s{S_OH}
    s_add_u32 s{S_88}, s4, s3
    s_lshl_b32 s10, s10, 6
    s_lshl_b32 s3, s{S_MT}, 2
    s_add_u32 s10, s10, s3
    s_add_u32 s10, s10, s{S_WAVE}
    s_mul_i32 s10, s10, 36864
    s_mul_i32 s3, s9, {10*2048}
    s_add_u32 s{S_PO}, s10, s3
    s_lshl_b32 s3, s9, 11
    s_add_u32 s3, s3, {8*2048}
    s_add_u32 s{S_POH}, s10, s3
    s_lshl_b32 s3, s2, 2
    s_add_u32 s3, s3, s{S_WAVE}
    s_xor_b32 s9, s3, {28 if DYN[0] else 32}
    s_mul_i32 s{S_XO}, s3, 18432
    s_mul_i32 s{S_XP}, s9, 18432
    s_lshl_b32 s3, s3, 8
    s_add_u32 s{S_FO}, s3, {FE}
    s_lshl_b32 s9, s9, 8
    s_add_u32 s{S_FP}, s9, {FE}
    """)

    srd(a, S_H, P_WS, NB_SD, WS_H2)
    srd(a, S_P, P_WS, NB_P, WS_P)

def default_pf(c3=(5,), h=(11,), d=(8, 9), c2=()):
    PF = {}
    for w, xs in ((2, c2), (3, c3), (4, h), ('D', d)):
        for pc, x in enumerate(xs): PF.setdefault(x, []).append((w, pc))
    return PF

def ffn_main(a, hops=None, R=16, DBAR=16, RD_MARGIN=6, MINLEAD=5, store_flags=' sc1', order=0, TK=51, KMAX=2, MID=False, CH6=False, dmafl='', ASK3=None, FLAG_D=56, ASK_D=56, ASK1=40, ASK2=290, NPRO=2, verbose=False,
             DEBT=2.0, WM=8, GSPAN=44, HSPAN=30, stamper=None, NP2=6, BG=1, BG0=5, CPF=0, CPD=4, stagestamp=False, nobar=False, nodma=False, nogelu=False, nostore=False, PF=None, GDL=None, PPACE=10, HPACE=None):
    if PF is None: PF = default_pf()
    DI = down_items(order)
    NST = 27 + (len(DI) + 5)//6
    vm = []
    def vm_wait_n(tag):
        idx = [i for i, t in enumerate(vm) if t == tag]
        if not idx: return None
        n = len(vm) - 1 - max(idx)
        assert n <= 63
        return n
    def h2_ops(q):
        ops = []
        for mt in range(2):
            for n, ks in enumerate(range(3*q, 3*q+3)):
                sc = [f"s_add_u32 s{S_HS}, s{S_HO}, {mt*18432 + 3*q*1024}"] if n == 0 else []
                o = f" offset:{n*1024}" if n else ""
                r = H2 + 8*ks + 4*mt
                ops.append((sc, f"buffer_load_dwordx4 a[{r}:{r+3}], v{VL16}, s[{S_H}:{S_H+3}], s{S_HS} offen{o} sc1"))
        return ops
    dq = []
    for q in range(6):
        ops = h2_ops(q)
        if q >= NP2: ops = dma_ops(q, DI) + ops
        if q < NPRO:
            for sc, ins in ops:
                for s_ in sc: a(s_)
                a(ins); vm.append(('D', q))
        else:
            dq += [[q, list(sc), ins] for sc, ins in ops]

    F = []; M = []
    def tile(base, idx): return base + 4*idx
    for st in range(NST):
        if CH6 and 6 <= st < 24:
            if st % 2 == 0: continue
            c = st // 6
            for ft in range(4):
                for mat in range(2):
                    f0 = len(F)
                    for x in range(6):
                        imm = mat*12288 + (x % 3)*4096
                        F.append(dict(st=st - 1 + x//3, rb=ft, imm=(imm, imm + 512)))
                    for mt in range(2):
                        for x in range(6):
                            ks = 3*((st - 1) % 6) + x
                            t = (ft*2 + mat)*2 + mt
                            last = ks == 17
                            M.append(dict(st=st, f=f0+x, B=f"a[{H2+8*ks+4*mt}:{H2+8*ks+4*mt+3}]",
                                          C=None if ks == 0 else tile(ACC, t), D=tile(STG if last else ACC, t),
                                          done=('G', c, ft, mt) if (last and mat == 1) else None))
        elif st < 27:
            full = st < 24
            nks = 3 if full else 6
            nft = 4 if full else 2
            c = st // 6 if full else 4
            k0 = 3*(st % 6) if full else 6*(st - 24)
            rowb = 128 if full else 64
            for kb in range(0, nks, 3):
                for ft in range(nft):
                    for mat in range(2):
                        f0 = len(F)
                        for x in range(3):
                            imm = mat*12288 + (kb + x)*32*rowb
                            F.append(dict(st=st, rb=ft, imm=(imm, imm + 4*rowb)))
                        for mt in range(2):
                            for x in range(3):
                                ks = k0 + kb + x
                                t = (ft*2 + mat)*2 + mt
                                last = ks == 17
                                Dd = tile(STG if (last and full) else ACC, t)
                                M.append(dict(st=st, f=f0+x, B=f"a[{H2+8*ks+4*mt}:{H2+8*ks+4*mt+3}]",
                                              C=None if ks == 0 else tile(ACC, t), D=Dd,
                                              done=('G', c, ft, mt) if (last and mat == 1) else None))
        else:
            items = DI[6*(st-27):6*(st-27)+6]
            def bop(src, k, mt):
                if src == 0: return dict(B=f"v[{HH+8*k+4*mt}:{HH+8*k+4*mt+3}]", hh=(k, mt))
                return dict(B=f"a[{8*k+4*mt}:{8*k+4*mt+3}]", vmneed=('P', k, mt))
            if items[0][0] == 'M':
                if st < NST - 1: continue
                allm = DI[72:]
                for sec in range(4):
                    for g0 in range(0, 18, 6):
                        f0 = len(F)
                        for x in range(6):
                            F.append(dict(st=NST - 3 + g0//6, rb=sec, imm=(x*4096, x*4096 + 2048), kind='M'))
                        for mt in range(2):
                            for x in range(6):
                                _, src, k = allm[g0 + x]
                                t_ = HBUF[sec & 1] + 4*mt
                                M.append(dict(st=st, f=f0+x, C=None if g0 + x == 0 else t_, D=t_, sec=sec if (g0 + x + mt == 0) else None,
                                              done=('M', sec, 0, mt) if g0 + x == 17 else None, **bop(src, k, mt)))
                continue
            j = 0
            while j < len(items):
                n = 1
                if items[j][0] == 'F':
                    b = items[j][1]
                    while n < 3 and j + n < len(items) and items[j+n][:2] == ('F', b): n += 1
                    steps = [(it[2], it[3], (j+x)*4096, 2048) for x, it in enumerate(items[j:j+n])]
                    nct, kind = 4, 'F'
                    tl = lambda ct, mt: tile(OBUF[b], mt*4 + ct)
                else:
                    b = 4
                    steps = [(sk[0], sk[1], j*4096 + x*2048, 1024) for x, sk in enumerate(items[j][1:])]
                    nct, kind = 2, 'H'
                    tl = lambda ct, mt: HBUF[mt] + 4*ct
                for ct in range(nct):
                    f0 = len(F)
                    for (src, k, imm, du) in steps:
                        F.append(dict(st=st, rb=ct, imm=(imm, imm + du), kind=kind))
                    for mt in range(2):
                        for x, (src, k, imm, du) in enumerate(steps):
                            first = (src, k) == (0, 0); last = (src, k) == (1, 8)
                            M.append(dict(st=st, f=f0+x, C=None if first else tl(ct, mt), D=tl(ct, mt),
                                          done=('O', b, ct, mt) if (last and (ct & 1)) else None, **bop(src, k, mt)))
                j += n
    N = len(M)
    assert N == (2016 if DYN[0] else 1944)
    for i, m in enumerate(M): F[m['f']]['last'] = i
    for i, m in reversed(list(enumerate(M))): F[m['f']]['first'] = i
    st_end = {}
    for i, m in enumerate(M): st_end[m['st']] = i + 1

    Q = []
    def add(ins, w, regs, hh=None, ready=0, vmt=None, sc=False):
        Q.append(dict(ins=ins, w=w, regs=regs, hh=hh, ready=ready, vm=vmt, sc=sc))
    def gelu_items(c, ft, mt, ready):
        base = STG if c < 4 else ACC
        G, U = tile(base, (ft*2)*2 + mt), tile(base, (ft*2+1)*2 + mt)
        k = (2*c + (ft >> 1)) if c < 4 else 8
        d = HH + 8*k + 4*mt + 2*(ft & 1)
        E = range(4)
        seq = []
        seq += [(f"v_fma_f32 v{TMP+e}, -v{G+e}, v{G+e}, s{S_KT}", 1) for e in E]
        seq += [(f"v_mul_f32 v{TMP+e}, v{G+e}, v{TMP+e}", 1) for e in E]
        seq += [(f"v_exp_f32 v{TMP+e}, v{TMP+e}", 2) for e in E]
        seq += [(f"v_mul_f32 v{U+e}, v{G+e}, v{U+e}", 1) for e in E]
        seq += [(f"v_add_f32 v{TMP+e}, 1.0, v{TMP+e}", 1) for e in E]
        seq += [(f"v_rcp_f32 v{TMP+e}, v{TMP+e}", 2) for e in E]
        seq += [(f"v_mul_f32 v{U+e}, v{U+e}, v{TMP+e}", 1) for e in E]
        seq += [(f"v_cvt_pk_bf16_f32 v{d+i}, v{U+2*i}, v{U+2*i+1}", 1) for i in range(2)]
        for n, (ins, w) in enumerate(seq):
            add(ins, w, (G, U), hh=(k, mt) if n >= len(seq)-2 else None, ready=ready)
        if ft & 1:
            x = 2*k + mt
            if x % 4 == 0: add(f"s_add_u32 s{S_XS}, s{S_XO}, {x*1024}", 0, ('x',), sc=True)
            o = f" offset:{(x%4)*1024}" if x % 4 else ""
            add(f"buffer_store_dwordx4 v[{HH+4*x}:{HH+4*x+3}], v{VL16}, s[{S_X}:{S_X+3}], s{S_XS} offen{o} sc1", 2, ('x',), vmt=('X', x))
    def out_items(b, ct, mt, ready):
        t0 = tile(OBUF[b], mt*4 + ct - 1) if b < 4 else HBUF[mt]
        regs = (t0, t0+4)
        for x in range(4):
            add(f"v_cvt_pk_bf16_f32 v{t0+x}, v{t0+2*x}, v{t0+2*x+1}", 1, regs, ready=ready)
        ip = ct >> 1
        if ct == 1 and mt == 0:
            add(f"s_add_u32 s{S_SS}, s{S_PO}, {b*4096}" if b < 4 else f"s_mov_b32 s{S_SS}, s{S_POH}", 0, regs, ready=ready, sc=True)
        o = f" offset:{(2*ip+mt)*1024}" if (2*ip+mt) else ""
        add(f"buffer_store_dwordx4 v[{t0}:{t0+3}], v{VL16}, s[{S_P}:{S_P+3}], s{S_SS} offen{o}{store_flags}", 2, regs, ready=ready, vmt=('S', b, ct, mt))

    def mid_items(sec, _, mt, ready):
        t0 = HBUF[sec & 1] + 4*mt
        for x in range(2):
            add(f"v_cvt_pk_bf16_f32 v{t0+x}, v{t0+2*x}, v{t0+2*x+1}", 1, (t0,), ready=ready)
        if sec and mt == 0: add(f"s_add_u32 s{S_PM}, s{S_PM}, s{(S_D1, S_D2, S_D1)[sec-1]}", 0, (t0,), ready=ready, sc=True)
        add(f"buffer_store_dwordx2 v[{t0}:{t0+1}], v{VL16}, s[{S_P}:{S_P+3}], s{S_PM} offen" + (" offset:1024" if mt else "") + store_flags, 2, (t0,), ready=ready, vmt=('S', 4, sec, mt))
    stubs = []
    cnt = [0]; cur = [0]; acts = []; vm_done = [-1]; slow = []
    def vm_wait(tag, extra=''):
        idx = max(i for i, t in enumerate(vm) if t == tag)
        if idx <= vm_done[0] and not extra: return False
        n = len(vm) - 1 - idx
        assert n <= 63
        E_(f"s_waitcnt vmcnt({n}){extra}")
        vm_done[0] = max(vm_done[0], idx)
        return True
    def E_(ins):
        cnt[0] += 1
        if dmafl and ins.startswith('buffer_load') and ins.endswith(' lds'): ins = ins[:-4] + dmafl + ' lds'
        if nodma and ins.startswith('buffer_load') and 'lds' in ins: ins = 's_nop 0'
        if nostore and ins.startswith('buffer_store_dwordx4'): ins = 's_nop 0'
        if nogelu and ins.split()[0] in ('v_fma_f32', 'v_mul_f32', 'v_exp_f32', 'v_rcp_f32', 'v_add_f32'): return
        a(ins)
        if hops: hops.add(ins)
    def emit_q():
        it = Q[0]
        if cnt[0] < it['ready']:
            n = it['ready'] - cnt[0]
            while n > 0:
                k = min(n, 16); E_(f"s_nop {k-1}"); cnt[0] += k-1; n -= k
        Q.pop(0); E_(it['ins'])
        if it['vm']:
            vm.append(it['vm'])
            if it['vm'] == ('X', 11): acts.append([cur[0] + FLAG_D, 'flag', 0, it['vm']])
            if it['vm'] == ('S', 1, 3, 1): acts.append([cur[0] + FLAG_D, 'flag', 2, it['vm']])
            if it['vm'] == ('S', 2, 3, 1) and MID: acts.append([cur[0] + FLAG_D, 'flag', 3, it['vm']])
            if it['vm'] == ('X', 17): acts.append([cur[0] + FLAG_D, 'flag', 1, it['vm']])
        return it
    def needs(m, it):
        if m.get('hh') is not None and it['hh'] == m['hh']: return True
        if m['D'] in it['regs'] and m['D'] != m['C']: return True
        return False
    def deadline(i):
        worst = 0.0; cum = 0; dl_cache = {}
        for it in Q:
            cum += it['w']
            key = (it['regs'], it['hh'])
            if key not in dl_cache:
                dl = None
                for j in range(i+1, min(N, i+400)):
                    if needs(M[j], it): dl = j; break
                dl_cache[key] = dl
            dl = dl_cache[key]
            if GDL is not None and it['vm'] == ('X', 17): dl = st_end[26] + GDL
            if GDL is not None and it['vm'] == ('X', 15): dl = st_end[26] + GDL - 80
            if dl is not None:
                worst = max(worst, cum/max(1, dl - i - 1))
        if Q and worst == 0: worst = cum/max(1, min(N - i, 60))
        return worst

    lds = []; covered = [-1]; rd_next = [0]; rd_gap = {}; enabled = [0]
    def rbreg(fr):
        sl = fr['st'] % NSLOT
        if fr.get('kind') == 'M': return RM[2*fr['rb'] + (sl >> 1) - 1], (sl & 1)*SLOT
        if fr.get('kind') == 'H': return RB2[2*(sl >> 1) + fr['rb']], (sl & 1)*SLOT
        if 24 <= fr['st'] < 27: return RBH + 2*(sl >> 1) + fr['rb'], (sl & 1)*SLOT
        return RBF + 4*(sl >> 1) + fr['rb'], (sl & 1)*SLOT
    def can_read(i):
        j = rd_next[0] >> 1
        if j >= len(F) or F[j]['st'] > enabled[0]: return False
        return j < R or F[j-R]['last'] <= i
    def emit_read(i):
        j, p = rd_next[0] >> 1, rd_next[0] & 1
        f = FR + 4*(j % R) + 2*p
        assert not (F[j]['st'] >= 27 and any(it['regs'] == ('rb',) for it in Q))
        assert not (F[j].get('kind') in ('H', 'M') and any(it['regs'] == ('rb2',) for it in Q))
        r_, o_ = rbreg(F[j])
        E_(f"ds_read_b64_tr_b16 a[{f}:{f+1}], v{r_} offset:{F[j]['imm'][p] + o_}")
        lds.append(j); rd_next[0] += 1
        if p: rd_gap[j] = i
    def emit_wait(i_next, i):
        fj = M[i_next]['f']
        if covered[0] >= fj: return False
        while (rd_next[0] >> 1) <= fj:
            assert can_read(i), (i, fj)
            emit_read(i)
        tgt = fj
        for k in range(fj+1, min(fj+6, len(F))):
            if k in rd_gap and rd_gap[k] <= i - WM: tgt = k
            else: break
        n = sum(1 for j in lds if j > tgt)
        E_(f"s_waitcnt lgkmcnt({min(n, 15)})")
        covered[0] = tgt
        return True

    while can_read(-1) and len(lds) < 12: emit_read(-1)
    E_(f"s_waitcnt vmcnt({vm_wait_n(('D', 0))})")
    if stamper: stamper()
    if stagestamp: E_("s_memtime s[98:99]"); E_("s_waitcnt lgkmcnt(0)"); E_(f"v_writelane_b32 v{vst()}, s98, 63")
    E_("s_cmp_eq_u32 0, 1")
    emit_wait(0, -1)

    stats = dict(over=0, flush=0, late=0)
    pq = []; pnext = [0]
    freed = [-1]; gspan = [HSPAN]; gn = [len(dq)]
    cred_r = 0.0; cred_v = 0.0; cred_g = 0.0
    T0 = st_end[26]
    acts += [[T0 + ASK1, 'ask', 0], [T0 + ASK2, 'ask', 1]]
    if ASK3: acts.append([T0 + ASK3, 'ask3', 0])
    for i in range(N):
        m = M[i]; cur[0] = i
        flushed = False
        while any(needs(m, it) for it in Q):
            stats['flush'] += emit_q()['w']; flushed = True
        if flushed: E_("s_nop 1"); cnt[0] += 1
        if m.get('sec') is not None:
            assert not acts and not dq and not pq
            E_(f"s_cmp_le_u32 s{S_N}, {m['sec']}"); E_(f"s_cbranch_scc1 L_mexit{m['sec']}")
            stubs.append(f"L_mexit{m['sec']}:\ns_nop 7\n" + "\n".join(it['ins'] for it in Q) + "\ns_branch L_ffn_end")
        f = FR + 4*(m['f'] % R)
        Cs = "0" if m['C'] is None else f"v[{m['C']}:{m['C']+3}]"
        E_(f"v_mfma_f32_16x16x32_bf16 v[{m['D']}:{m['D']+3}], a[{f}:{f+3}], {m['B']}, {Cs}")
        if m['done']:
            kind, x, y, mt = m['done']
            dict(G=gelu_items, O=out_items, M=mid_items)[kind](x, y, mt, cnt[0] + 9)
        st = m['st']
        used = 0; sc_used = 0
        if hops and hops.due(24):
            a(hops.emit()); cnt[0] += 1; sc_used = 1
        bar_gap = st_end[st] - DBAR - 1
        if i == bar_gap: a(f"L_st{st}:")
        if DYN[0] and st == 25 and i == bar_gap - 8:
            E_(f"s_memrealtime s[{S_TM}:{S_TM+1}]"); sc_used = 1
        if i == bar_gap and st < NST - 1 and st == enabled[0]:
            nxt_en = min(st + (BG if st >= BG0 else 1), NST - 1)
            if DYN[0] and nxt_en >= NST - 3: nxt_en = NST - 1 if st == NST - 4 else NST - 4
            while (rd_next[0] >> 1) < len(F) and F[rd_next[0] >> 1]['st'] <= st:
                emit_read(i); used += 1
            while any(d[0] <= nxt_en for d in dq):
                d = dq.pop(0)
                for x in d[1]: E_(x)
                E_(d[2]); vm.append(d[3] if len(d) > 3 else ('D', d[0])); used += 2; stats['late'] += 1
            tg = [('D', x) for x in range(nxt_en, st, -1) if ('D', x) in vm]
            if tg: vm_wait(max(tg, key=lambda t: max(i_ for i_, u in enumerate(vm) if u == t)), ' lgkmcnt(0)')
            else: E_("s_waitcnt lgkmcnt(0)")
            if stagestamp == 1:
                E_("s_memtime s[98:99]"); E_("s_waitcnt lgkmcnt(0)"); E_(f"v_writelane_b32 v{vst()}, s98, {st}")
            if stagestamp == 3 and st in (5, 23, 33):
                ix = {5: 24, 23: 25, 33: 26}[st]
                E_("s_memtime s[98:99]"); E_("s_waitcnt lgkmcnt(0)"); E_(f"v_writelane_b32 v{vst()}, s98, {ix}")
                E_("s_memrealtime s[98:99]"); E_("s_waitcnt lgkmcnt(0)"); E_(f"v_writelane_b32 v255, s98, {ix}")
            if not nobar: E_("s_barrier")
            sc_used = 2
            covered[0] = (rd_next[0] >> 1) - 1
            enabled[0] = nxt_en
            for x in range(freed[0] + 1, st + 1):
                if (x in CPF if isinstance(CPF, tuple) else (CPF and x % CPF == 0)) and x + CPD < NST - 1:
                    pq.append([98, [f"s_mov_b32 s{S_PS}, L_st{min(y for y in st_end if y >= x+CPD)}-L_common"], f"buffer_load_dword v239, v{VPC}, s[52:55], s{S_PS} offen", ('pf', 0)])
                for w, pc in PF.get(x, ()):
                    if w == 'D': pq.append([98, [f"s_add_u32 s{S_PS}, s{S_PD}, {pc*11*1152 if DYN[0] else pc*PFD*128}"], f"buffer_load_dword v239, v{VPD}, s[{S_D}:{S_D+3}], s{S_PS} offen", ('pf', 0)])
                    else:
                        sc_ = f"s_add_u32 s{S_PS}, s{S_BF if w < 4 else S_BH}, {(128*w if w < 4 else 0) + pc*PFN*9216}"
                        pq.append([98, [sc_], f"buffer_load_dword v239, v{VPF}, s[{S_W}:{S_W+3}], s{S_PS} offen", ('pf', 0)])
                if x + NSLOT < NST:
                    dq += [[x+NSLOT, list(sc), ins] for sc, ins in dma_ops(x+NSLOT, DI)]
                if x == 23:
                    Q[0:0] = [dict(ins=o, w=1, regs=('rb',), hh=None, ready=0, vm=None, sc=False) for o in base_ops(RBF, TD, 3, 4)]
                if x == 26 and DYN[0]:
                    ops2 = [f"v_xor_b32 v{RM[0]}, s{S_T0}, v{TD}", f"v_add_u32 v{RM[0]}, {2*SLOT}, v{RM[0]}", f"v_add_u32 v{RM[1]}, {2*SLOT}, v{RM[0]}"]
                    ops2 += [f"v_xor_b32 v{RM[2*q_+p_]}, {32*q_}, v{RM[p_]}" for q_ in range(1, 4) for p_ in range(2)]
                    Q[0:0] = [dict(ins=o, w=1, regs=('rb2',), hh=None, ready=0, vm=None, sc=False) for o in ops2]
                if x == 25 and DYN[0]:
                    Q[0:0] = [dict(ins=f"v_mov_b32 v{VTAG+1}, s{S_TM}", w=1, regs=('t',), hh=None, ready=0, vm=None, sc=False)]
                if x == 26 and not DYN[0]:
                    ops2 = []
                    for p in range(3):
                        ops2 += [f"v_add_u32 v{RB2[2*p]}, {2*SLOT*p}, v{TD2}", f"v_xor_b32 v{RB2[2*p+1]}, 32, v{RB2[2*p]}"]
                    Q[0:0] = [dict(ins=o, w=1, regs=('rb2',), hh=None, ready=0, vm=None, sc=False) for o in ops2]
            gspan[0] = GSPAN*(st - freed[0]); gn[0] = len(dq)
            freed[0] = st
        if i + 1 < N and emit_wait(i + 1, i): sc_used += 1
        if i + 1 < N and M[i+1].get('vmneed'):
            while any(d[3] == M[i+1]['vmneed'] for d in pq):
                d = pq.pop(0)
                for x in d[1]: E_(x)
                E_(d[2]); vm.append(d[3] if len(d) > 3 else ('D', d[0])); used += 2; stats['late'] += 1
            if vm_wait(M[i+1]['vmneed']): sc_used += 1
        due = [x for x in acts if x[0] <= i]
        if due and not sc_used and not used:
            act = due[0]; acts.remove(act)
            if act[1] == 'flag':
                vm_wait(act[3])
                if act[2] == 3: E_(f"s_add_u32 s{S_PS}, s{S_FD}, {FD3 - FD1}")
                if act[2] == 1 and DYN[0]: E_(f"buffer_store_dwordx2 v[{VTAG}:{VTAG+1}], off, s[{S_FL}:{S_FL+3}], s{S_FO} offset:128 sc1")
                else: E_(f"buffer_store_dword v{VTAG}, off, s[{S_FL}:{S_FL+3}], s{(S_FO, S_FO, S_FD, S_PS)[act[2]]}" + (" offset:128" if act[2] == 1 else "") + " sc1")
                vm.append(('F', act[2])); stats[f'flag{act[2]}'] = i - T0
            elif act[1] == 'ask3':
                E_(f"s_mov_b32 s{S_PS}, {FD1}")
                E_(f"buffer_load_dword v239, v{VEF}, s[{S_FL}:{S_FL+3}], s{S_PS} offen sc1")
                vm.append(('A', 3))
            elif act[1] == 'ask':
                if DYN[0]: E_(f"buffer_load_dwordx2 v[{VCK2}:{VCK2+1}], off, s[{S_FL}:{S_FL+3}], s{S_FP}" + (" offset:128" if act[2] else "") + " sc1")
                else: E_(f"buffer_load_dword v{VCHK}, off, s[{S_FL}:{S_FL+3}], s{S_FP}" + (" offset:128" if act[2] else "") + " sc1")
                vm.append(('A', act[2])); acts.append([i + ASK_D, 'test', act[2]])
            else:
                vm_wait(('A', act[2]))
                E_(f"v_cmp_ne_u32 vcc, s{S_TAG}, v{VCK2 if DYN[0] else VCHK}")
                E_(f"s_cbranch_vccnz L_xslow{act[2]}")
                a(f"L_xok{act[2]}:")
                if DYN[0] and act[2] == 1:
                    for ins in f"""v_readfirstlane_b32 s3, v{VCK2+1}
                    s_nop 1
                    s_sub_u32 s3, s{S_TM}, s3
                    s_abs_i32 s{S_N}, s3
                    s_min_u32 s{S_N}, s{S_N}, 1000
                    s_add_u32 s{S_N}, s{S_N}, {TK//2}
                    s_mul_i32 s{S_N}, s{S_N}, {65536//TK + 1}
                    s_lshr_b32 s{S_N}, s{S_N}, 16
                    s_min_u32 s{S_N}, s{S_N}, {KMAX}
                    s_sub_u32 s{S_TM+1}, 2, s{S_N}
                    s_add_u32 s{S_N}, s{S_N}, 2
                    s_cmp_gt_i32 s3, 0
                    s_cselect_b32 s{S_N}, s{S_TM+1}, s{S_N}""".split('\n'): E_(ins.strip())
                new = []
                for x in (range(12) if act[2] == 0 else range(12, 18)):
                    sc_ = [f"s_add_u32 s{S_HS}, s{S_XP}, {x*1024}"] if x % 4 == 0 else []
                    o = f" offset:{(x%4)*1024}" if x % 4 else ""
                    new.append([99, sc_, f"buffer_load_dwordx4 a[{4*x}:{4*x+3}], v{VL16}, s[{S_X}:{S_X+3}], s{S_HS} offen{o} sc1", ('P', x >> 1, x & 1)])
                pq.extend(new)
            sc_used = 1; used = 2
        if not sc_used and hops and hops.due(48):
            a(hops.emit()); cnt[0] += 1; sc_used = 1
        if not sc_used and dq and dq[0][1]:
            E_(dq[0][1].pop(0)); sc_used = 1
        if not sc_used and pq and pq[0][1]:
            E_(pq[0][1].pop(0)); sc_used = 1
        if not sc_used and Q and Q[0]['sc'] and cnt[0] >= Q[0]['ready']:
            emit_q(); sc_used = 1
        jn = rd_next[0] >> 1
        lead = (F[jn]['first'] - i) if jn < len(F) else 999
        es = enabled[0]
        rem_r = sum(2 for fr in F[jn:jn+70] if fr['st'] <= es) - (rd_next[0] & 1) if jn < len(F) and F[jn]['st'] <= es else 0
        dl_r = (st_end[es] - DBAR - 1 - RD_MARGIN) if es < NST - 1 else st_end[es] - 10
        cred_r = min(cred_r + rem_r/max(1, dl_r - i), 2.5)
        cred_v += deadline(i)
        npend = len(dq)
        if npend:
            cred_g = min(cred_g + (gn[0]/gspan[0] if st >= 4 else (1/HPACE if HPACE else max(6, npend)/HSPAN)), 1.5)
        want_g = dq and not dq[0][1] and cred_g >= 1 and lead >= 2*MINLEAD
        if want_g and used == 0 and not sc_used:
            d = dq.pop(0)
            E_(d[2]); vm.append(d[3] if len(d) > 3 else ('D', d[0])); cred_g -= 1; used = 2
        if pq and not pq[0][1] and used == 0 and not sc_used and i >= pnext[0] and lead >= 2*MINLEAD:
            d = pq.pop(0)
            E_(d[2]); vm.append(d[3]); used = 2; pnext[0] = i + PPACE
        nd = 0
        if used < 2 and can_read(i):
            head2 = Q and Q[0]['w'] == 2 and cnt[0] >= Q[0]['ready']
            if lead < 2*MINLEAD or cred_r >= 2: nd = 2
            elif cred_r >= 1: nd = 2 if (head2 or want_g) else 1
            elif not Q: nd = 1
            while nd and used < 2 and can_read(i):
                emit_read(i); used += 1; nd -= 1; cred_r -= 1
        while Q and cnt[0] >= Q[0]['ready'] and not Q[0]['sc']:
            w = Q[0]['w']
            if used + w <= 2: pass
            elif cred_v >= DEBT + w and used + w <= 4 and used <= 2: stats['over'] += used + w - 2
            else: break
            emit_q(); used += w; cred_v -= w
        if not Q: cred_v = 0
    while Q: emit_q()
    if DYN[0]: a("L_ffn_end:")
    ffn_main.stubs = stubs
    if stagestamp: E_("s_memtime s[98:99]"); E_("s_waitcnt lgkmcnt(0)"); E_(f"v_writelane_b32 v{vst()}, s98, 62")
    assert not acts and not dq and not pq
    if ASK3: vm_wait(('A', 3))
    if verbose: print('ffn schedule:', stats, 'instr', cnt[0], 'hops', hops.n if hops else 0)

def ffn_slow_paths(a, spin_max, diag=False):
    for p in range(2):
        a(f"""
        L_xslow{p}:
        s_mov_b32 s{S_SPIN}, 0
        L_xspin{p}:
        {f'buffer_load_dwordx2 v[{VCK2}:{VCK2+1}]' if DYN[0] else f'buffer_load_dword v{VCHK}'}, off, s[{S_FL}:{S_FL+3}], s{S_FP}{' offset:128' if p else ''} sc1
        s_add_u32 s{S_SPIN}, s{S_SPIN}, 1
        s_waitcnt vmcnt(0)
        {f'v_writelane_b32 v255, s{S_SPIN}, {30+p}' if diag else ''}
        v_cmp_ne_u32 vcc, s{S_TAG}, v{VCK2 if DYN[0] else VCHK}
        s_cbranch_vccz L_xok{p}
        s_cmp_lt_u32 s{S_SPIN}, {spin_max}
        s_cbranch_scc1 L_xspin{p}
        s_branch L_xok{p}
        """)

def ffn_setup3(a, early_only=False):
    if early_only == 2:
        a(f"""
        s_bfe_u32 s4, s2, 0x10003
        s_lshl_b32 s5, s{S_MT}, 1
        s_add_u32 s4, s4, s5
        s_lshl_b32 s4, s4, 2
        s_add_u32 s4, s4, s{S_WAVE}
        s_lshl_b32 s4, s4, 2
        s_cmp_ge_u32 s{S_MT}, 7
        s_cselect_b32 s4, 0x800000, s4
        v_and_b32 v{VPC}, 3, v{LANE}
        v_add_u32 v{VPC}, s4, v{VPC}
        v_lshlrev_b32 v{VPC}, 7, v{VPC}
        """)
        return
    a(f"""
    s_lshl_b32 s4, s{S_WAVE}, 4
    {f's_cmp_ge_u32 s{S_MT}, 7' if early_only else ''}
    {'s_cselect_b32 s4, 0x800000, s4' if early_only else ''}
    v_and_b32 v{VPC}, 15, v{LANE}
    v_add_u32 v{VPC}, s4, v{VPC}
    v_lshlrev_b32 v{VPC}, 7, v{VPC}
    """)

def ffn_setup4(a):
    a(f"""
    s_and_b32 s3, s{S_GI}, 1
    s_mul_i32 s{S_DM}, s3, 640
    s_sub_u32 s{S_DM}, 512, s{S_DM}
    s_mul_i32 s{S_T0}, s3, 96
    s_mul_i32 s{S_PM}, s3, 8
    s_add_u32 s{S_PM}, s{S_PM}, s{S_POH}
    s_cmp_eq_u32 s3, 0
    s_cselect_b32 s{S_D1}, 8, -8
    s_mov_b32 s{S_D2}, 2040
    s_cselect_b32 s{S_D2}, s{S_D2}, {(-2040) & 0xffffffff:#x}
    """)
```

```python
import sys
from common import *
from ffn import *
NAME = 'adaLN_cond__ssm_conv_h3__glu_gated_geglu__prompt_kernel'
WS_EPOCH = 0x0A00000
WS_FL = 0x0A10000
FB = 0x8000
FC = 0x10000
FA = 0xE8000
FZ = 0xA0000
NB_MOD = 6*D*4
KSTR = 4160
WAVE_LDS = 4*KSTR + 4608
T_OFF = 4*WAVE_LDS
STAT_OFF = RING
MOD_OFF = RING + 1024
LDS_TOTAL = MOD_OFF + 14848
VRZ, VRM, VRH, VRP = 200, 201, 202, 203
NCONV, NMOD = 144, 54
QP, ST = 240, 252
DIAG = 255
SPIN_MAX = 200000

class G:
    def __init__(self, diag=False, **kw):
        DYN[0] = bool(kw.get('DYN'))
        self.a = Asm(); self.diag = diag; self.kw = kw; self.nl = 0; self.nst = 0; self.names = []
    def lab(self, p):
        self.nl += 1; return f"L_{p}{self.nl}"
    def gi_code(self):
        if not DYN[0]:
            return f"s_and_b32 s{S_GI}, s2, 7\ns_lshl_b32 s{S_GI}, s{S_GI}, 1\ns_add_u32 s{S_GI}, s{S_GI}, s3"
        return (f"s_and_b32 s6, s2, 7\ns_xor_b32 s7, s6, 7\ns_min_u32 s7, s6, s7\ns_lshl_b32 s7, s7, 1\ns_add_u32 s7, s7, s3\n"
                f"s_lshl_b32 s7, s7, 1\ns_lshr_b32 s6, s6, 2\ns_add_u32 s{S_GI}, s7, s6")
    def nt(self, c):
        return ' nt' if c in self.kw.get('NT', '') else ''
    def stamp(self, idx):
        if self.diag:
            self.a(f"s_memrealtime s[98:99]\ns_waitcnt lgkmcnt(0)\nv_writelane_b32 v{DIAG}, s98, {idx}")

    def signal(self, base, idx_sgpr):
        a = self.a; l = self.lab('sig')
        a(f"""
        s_waitcnt vmcnt(0)
        s_barrier
        s_cmp_lg_u32 s{S_WAVE}, 0
        s_cbranch_scc1 {l}
        s_lshl_b32 s3, s{idx_sgpr}, 7
        s_add_u32 s3, s3, {base}
        v_mov_b32 v239, s{S_TAG}
        s_mov_b64 exec, 1
        buffer_store_dword v239, off, s[{S_FL}:{S_FL+3}], s3 sc1
        s_mov_b64 exec, -1
        {l}:
        """)
    def signal_wave(self, soff, n=0):
        self.a(f"v_mov_b32 v239, s{S_TAG}\ns_waitcnt vmcnt({n})\nbuffer_store_dword v239, off, s[{S_FL}:{S_FL+3}], s{soff} sc1")
    def poll(self, vaddr, soff, sleep=1):
        a = self.a; l = self.lab('poll'); d = self.lab('pd')
        a(f"""
        s_mov_b32 s{S_SPIN}, 0
        {l}:
        buffer_load_dword v239, v{vaddr}, s[{S_FL}:{S_FL+3}], s{soff} offen sc1
        s_add_u32 s{S_SPIN}, s{S_SPIN}, 1
        s_waitcnt vmcnt(0)
        v_cmp_ne_u32 vcc, s{S_TAG}, v239
        s_cbranch_vccz {d}
        {'s_sleep ' + str(sleep) if sleep else ''}
        s_cmp_lt_u32 s{S_SPIN}, {SPIN_MAX}
        s_cbranch_scc1 {l}
        {d}:
        """)

    def row_ids(self, vr, vp, t):
        self.a(f"""
        s_lshl_b32 s3, s{S_MT}, 4
        s_add_u32 s3, s3, s{S_GI}
        s_lshl_b32 s3, s3, 3
        v_and_b32 v{vr}, 7, v{LANE}
        v_add_u32 v{vr}, s3, v{vr}
        v_bfe_u32 v{vp}, v{LANE}, 3, 1
        v_lshlrev_b32 v{vp}, 2, v{vp}
        v_bfe_u32 v{t}, v{LANE}, 5, 1
        v_lshl_add_u32 v{vp}, v{t}, 1, v{vp}
        v_bfe_u32 v{t}, v{LANE}, 4, 1
        v_add_u32 v{vp}, v{vp}, v{t}
        s_lshr_b32 s3, s{S_WAVE}, 1
        s_mul_i32 s3, s3, 3
        s_add_u32 s3, s3, s{S_WAVE}
        s_lshl_b32 s3, s3, 3
        v_add_u32 v{vp}, s3, v{vp}
        """)
    def q_loads(self, srdq, t):
        a = self.a
        self.row_ids(t, t+1, t+2)
        srd(a, srdq, P_Q, NB_SD)
        a(f"""
        v_mul_u32_u24 v{t}, 1152, v{t}
        v_lshl_add_u32 v{t}, v{t+1}, 4, v{t}
        buffer_load_dwordx4 v[{QP}:{QP+3}], v{t}, s[{srdq}:{srdq+3}], 0 offen{self.nt('q')}
        buffer_load_dwordx4 v[{QP+4}:{QP+7}], v{t}, s[{srdq}:{srdq+3}], 0 offen offset:256{self.nt('q')}
        buffer_load_dwordx4 v[{QP+8}:{QP+11}], v{t}, s[{srdq}:{srdq+3}], s{S_OOB} offen offset:512{self.nt('q')}
        """)
    def stats(self, ldsoff, t, scale=None, part=3):
        real = a = self.a
        if not part & 1: a = Asm()
        a(f"""
        v_mov_b32 v{t}, 0
        v_mov_b32 v{t+1}, 0
        v_bfe_u32 v{t+2}, v{LANE}, 5, 1
        v_and_b32 v{t+3}, 7, v{LANE}
        v_lshl_add_u32 v{t+2}, v{t+2}, 3, v{t+3}
        v_lshlrev_b32 v{t+2}, 4, v{t+2}
        s_lshl_b32 s3, s{S_WAVE}, 2
        v_add_u32 v{t+2}, {STAT_OFF + ldsoff}, v{t+2}
        v_add_u32 v{t+3}, s3, v{t+2}
        """)
        for i in range(12):
            a(f"v_dot2_f32_bf16 v{t}, v{QP+i}, s{S_ONE}, v{t}\nv_dot2_f32_bf16 v{t+1}, v{QP+i}, v{QP+i}, v{t+1}")
        a(f"""
        s_nop 2
        v_permlane32_swap_b32 v{t}, v{t+1}
        s_nop 1
        v_add_f32 v{t}, v{t}, v{t+1}
        v_mov_b32 v{t+1}, v{t}
        s_nop 1
        v_permlane16_swap_b32 v{t}, v{t+1}
        s_nop 1
        v_add_f32 v{t}, v{t}, v{t+1}
        s_nop 1
        v_add_f32_dpp v{t}, v{t}, v{t} row_ror:8 row_mask:0xf bank_mask:0xf
        ds_write_b32 v{t+3}, v{t}
        """)
        a = real
        if part == 3: a("s_waitcnt lgkmcnt(0)\ns_barrier")
        if not part & 2: return
        a(f"""
        ds_read_b128 v[{t+4}:{t+7}], v{t+2}
        s_waitcnt lgkmcnt(0)
        v_add_f32 v{t+4}, v{t+4}, v{t+5}
        v_add_f32 v{t+6}, v{t+6}, v{t+7}
        v_add_f32 v{t}, v{t+4}, v{t+6}
        v_mul_f32 v{t}, 0x3ae38e39, v{t}
        v_mov_b32 v{t+1}, v{t}
        s_nop 1
        v_permlane32_swap_b32 v{t}, v{t+1}
        s_nop 1
        v_fma_f32 v{t+1}, -v{t}, v{t}, v{t+1}
        v_max_f32 v{t+1}, 0, v{t+1}
        v_add_f32 v{t+1}, 0x3727c5ac, v{t+1}
        v_rsq_f32 v{ST}, v{t+1}
        s_nop 0
        """)
        if scale: a(f"v_mul_f32 v{ST}, {f2u(scale):#x}, v{ST}")
        a(f"v_mul_f32 v{ST+1}, v{t}, v{ST}\nv_sub_f32 v{ST+1}, 0, v{ST+1}")

    def stats_parts(self, ldsoff, t):
        A = [f"v_bfe_u32 v{t+2}, v{LANE}, 5, 1", f"v_and_b32 v{t+3}, 7, v{LANE}", f"v_lshl_add_u32 v{t+2}, v{t+2}, 3, v{t+3}",
             f"v_lshlrev_b32 v{t+2}, 4, v{t+2}", f"v_add_u32 v{t+2}, {STAT_OFF + ldsoff}, v{t+2}",
             f"v_mov_b32 v{t+3}, s{S_WAVE}", f"v_lshl_add_u32 v{t+3}, v{t+3}, 2, v{t+2}", f"v_mov_b32 v{t}, 0", f"v_mov_b32 v{t+1}, 0"]
        for i in range(12):
            A += [f"v_lshlrev_b32 v{t+4}, 16, v{QP+i}", f"v_and_b32 v{t+5}, 0xffff0000, v{QP+i}", f"v_add_f32 v{t}, v{t}, v{t+4}",
                  f"v_fmac_f32 v{t+1}, v{t+4}, v{t+4}", f"v_add_f32 v{t}, v{t}, v{t+5}", f"v_fmac_f32 v{t+1}, v{t+5}, v{t+5}"]
        A += ['', '', f"v_permlane32_swap_b32 v{t}, v{t+1}", '', f"v_add_f32 v{t}, v{t}, v{t+1}", f"v_mov_b32 v{t+1}, v{t}", '', '',
              f"v_permlane16_swap_b32 v{t}, v{t+1}", '', f"v_add_f32 v{t}, v{t}, v{t+1}", '', '',
              f"v_add_f32_dpp v{t}, v{t}, v{t} row_ror:8 row_mask:0xf bank_mask:0xf", f"ds_write_b32 v{t+3}, v{t}"]
        B = [f"ds_read_b128 v[{t+4}:{t+7}], v{t+2}"]
        C = [f"v_add_f32 v{t+4}, v{t+4}, v{t+5}", f"v_add_f32 v{t+6}, v{t+6}, v{t+7}", f"v_add_f32 v{t}, v{t+4}, v{t+6}",
             f"v_mul_f32 v{t}, 0x3ae38e39, v{t}", f"v_mov_b32 v{t+1}, v{t}", '', '', f"v_permlane32_swap_b32 v{t}, v{t+1}", '',
             f"v_fma_f32 v{t+1}, -v{t}, v{t}, v{t+1}", f"v_max_f32 v{t+1}, 0, v{t+1}", f"v_add_f32 v{t+1}, 0x3727c5ac, v{t+1}",
             f"v_rsq_f32 v{ST}, v{t+1}", '', f"v_mul_f32 v{ST+1}, v{t}, v{ST}", f"v_sub_f32 v{ST+1}, 0, v{ST+1}"]
        return A, B, C
    def row_setup(self, t):
        a = self.a
        self.row_ids(t, t+1, t+2)
        a(f"""
        v_lshlrev_b32 v{VRZ}, 15, v{t+1}
        v_lshl_add_u32 v{VRZ}, v{t}, 3, v{VRZ}
        v_lshlrev_b32 v{VRM}, 5, v{t+1}
        v_add_u32 v{VRM}, {MOD_OFF}, v{VRM}
        v_lshrrev_b32 v{VRH}, 4, v{t}
        v_mul_u32_u24 v{VRH}, 18432, v{VRH}
        v_lshl_add_u32 v{VRH}, v{t+1}, 8, v{VRH}
        v_and_b32 v{t+2}, 15, v{t}
        v_lshl_add_u32 v{VRH}, v{t+2}, 4, v{VRH}
        s_lshl_b32 s3, s{S_MT}, 2
        s_add_u32 s3, s3, s{S_WAVE}
        s_mul_i32 s3, s3, 36
        v_min_u32 v{VRP}, 35, v{LANE}
        v_add_u32 v{VRP}, s3, v{VRP}
        v_lshlrev_b32 v{VRP}, 7, v{VRP}
        """)
    def mod_dma(self, sr):
        a = self.a
        srd(a, sr, P_WS, NB_MOD, WS_MOD)
        a(f"s_mul_i32 s91, s{S_WAVE}, 3584\ns_add_u32 m0, s91, {MOD_OFF}\ns_nop 0")
        out = []
        for i in range(4):
            out.append(f"buffer_load_dwordx4 v{VL16}, s[{sr}:{sr+3}], s91 offen offset:{1024*i} sc1 lds")
        return out

    def conv_path(self):
        a = self.a; kw = self.kw
        a('; ---- phase A')
        VA, VB, VTW, VTR, VZ, VU, VPA, VHD = 192, 193, 194, 195, 211, 212, 213, 214
        DG = 196
        G4, I16 = 144, 145
        a(f"""
        s_lshr_b32 s40, s2, 4
        s_and_b32 s41, s2, 15
        v_and_b32 v1, 7, v0
        v_lshrrev_b32 v2, 3, v0
        s_lshl_b32 s42, s41, 7
        s_lshl_b32 s43, s40, 7
        v_lshl_add_u32 v3, v2, 2, s42
        v_mul_u32_u24 v3, 1152, v3
        v_lshl_add_u32 v4, v1, 4, s43
        v_add_u32 v13, v3, v4
        v_add_u32 v10, {(-3*1152) & 0xffffffff:#x}, v13
        v_add_u32 v11, {(-2*1152) & 0xffffffff:#x}, v13
        v_add_u32 v12, {(-1*1152) & 0xffffffff:#x}, v13
        v_lshlrev_b32 v5, 2, v4
        """)
        if self.late_entry:
            a("s_waitcnt lgkmcnt(0)"); self.stamp(0)
        srd(a, 52, P_K, NB_SD); srd(a, 56, P_V, NB_SD); srd(a, 20, P_SK, D*8)
        for j in (3, 4, 5, 6, 0, 1, 2):
            va, o = (10+j, 0) if j < 3 else (13, (j-3)*1152)
            a(f"buffer_load_dwordx4 v[{16+4*j}:{19+4*j}], v{va}, s[52:55], 0 offen" + (f" offset:{o}" if o else "") + self.nt('k'))
        for j in range(4):
            a(f"buffer_load_dwordx4 v[{60+4*j}:{63+4*j}], v5, s[20:23], 0 offen" + (f" offset:{16*j}" if j else ""))
        for j in range(4):
            a(f"buffer_load_dwordx4 v[{44+4*j}:{47+4*j}], v13, s[56:59], 0 offen" + (f" offset:{1152*j}" if j else "") + self.nt('v'))
        if self.late_entry: self.late_entry()
        a(f"""
        s_lshl_b32 s44, s2, 2
        s_add_u32 s44, s44, s{S_WAVE}
        s_mul_i32 s45, s{S_WAVE}, {WAVE_LDS}
        s_lshl_b32 s46, s44, 12
        s_add_u32 s52, s{P_SSMK}, s46
        s_addc_u32 s53, s{P_SSMK+1}, 0
        s_mov_b32 s54, 4096
        s_mov_b32 s55, 0x20000
        v_lshrrev_b32 v{G4}, 4, v{LANE}
        v_and_b32 v{I16}, 15, v{LANE}
        v_add_u32 v142, v{G4}, v{I16}
        v_add_u32 v142, -16, v142
        v_lshlrev_b32 v142, 1, v142
        s_lshl_b32 s3, s44, 1
        """)
        srd(a, 56, P_SSMD, D*2)
        a(f"""
        v_lshlrev_b32 v143, 4, v{LANE}
        s_mov_b32 s91, s3
        """)
        KR = 152
        def kloads():
            a("buffer_load_ushort v140, v142, s[52:55], 0 offen\nbuffer_load_ushort v141, off, s[56:59], s91")
            for i in range(4):
                a(f"buffer_load_dwordx4 v[{KR+6*i}:{KR+6*i+3}], v143, s[52:55], 0 offen offset:{1024*i}" + self.nt('s'))
                a(f"buffer_load_dwordx2 v[{KR+6*i+4}:{KR+6*i+5}], v143, s[52:55], 0 offen offset:{1024*i+16}" + self.nt('s'))
        KL = kw.get('KLATE', 0)
        if KL == 0: kloads()
        srd(a, 24, P_WS, NB_SD, WS_U)
        a(f"""
        v_lshlrev_b32 v6, 9, v2
        v_lshl_add_u32 v6, v1, 4, v6
        v_add_u32 v6, {T_OFF}, v6
        v_bfe_u32 v7, v{LANE}, 1, 1
        v_lshl_add_u32 v7, v{G4}, 1, v7
        v_lshlrev_b32 v7, 3, v7
        v_bfe_u32 v8, v{LANE}, 2, 2
        v_sub_u32 v7, v7, v8
        v_add_u32 v7, 3, v7
        v_lshlrev_b32 v7, 7, v7
        v_and_b32 v8, 1, v{LANE}
        v_lshl_add_u32 v7, v8, 3, v7
        s_lshl_b32 s3, s{S_WAVE}, 5
        s_add_u32 s3, s3, {T_OFF}
        v_add_u32 v7, s3, v7
        s_lshl_b32 s3, s40, 6
        s_lshl_b32 s47, s{S_WAVE}, 4
        s_add_u32 s3, s3, s47
        v_and_b32 v8, 7, v{LANE}
        v_add_u32 v8, s3, v8
        v_lshlrev_b32 v8, 12, v8
        v_bfe_u32 v9, v{LANE}, 3, 1
        v_lshl_add_u32 v9, v{G4}, 1, v9
        v_lshl_add_u32 v8, v9, 4, v8
        s_lshl_b32 s3, s41, 8
        v_add_u32 v8, s3, v8
        v_add_u32 v9, 0x8000, v8
        v_mov_b32 v146, 0
        v_mov_b32 v147, 0
        v_lshl_add_u32 v148, v{LANE}, 3, s45
        ds_write_b64 v148, v[146:147] offset:{4*KSTR}
        v_mul_u32_u24 v{VHD}, {KSTR}, v{G4}
        v_lshl_add_u32 v{VHD}, v{I16}, 1, v{VHD}
        v_add_u32 v{VHD}, s45, v{VHD}
        v_add_u32 v14, 1, v{I16}
        v_and_b32 v{VA}, 3, v14
        v_mul_u32_u24 v{VA}, {KSTR}, v{VA}
        v_lshrrev_b32 v14, 2, v14
        v_lshl_add_u32 v{VA}, v14, 3, v{VA}
        v_lshlrev_b32 v14, 4, v{G4}
        v_sub_u32 v{VA}, v{VA}, v14
        v_add_u32 v{VA}, 48, v{VA}
        v_add_u32 v{VA}, s45, v{VA}
        v_lshlrev_b32 v{VB}, 5, v{I16}
        v_lshl_add_u32 v{VB}, v{G4}, 4, v{VB}
        s_add_u32 s3, s45, {4*KSTR + 512 - 32 - 448}
        v_add_u32 v{VB}, s3, v{VB}
        v_lshlrev_b32 v{VTW}, 4, v{I16}
        v_lshl_add_u32 v{VTW}, v{G4}, 2, v{VTW}
        s_mul_i32 s3, s{S_WAVE}, {KSTR}
        s_add_u32 s3, s3, {T_OFF}
        v_add_u32 v{VTW}, s3, v{VTW}
        v_bfe_u32 v{VTR}, v{LANE}, 2, 2
        v_mul_u32_u24 v{VTR}, {KSTR}, v{VTR}
        v_lshl_add_u32 v{VTR}, v{G4}, 5, v{VTR}
        v_and_b32 v14, 3, v{LANE}
        v_lshl_add_u32 v{VTR}, v14, 3, v{VTR}
        s_lshl_b32 s3, s{S_WAVE}, 7
        s_add_u32 s3, s3, {T_OFF}
        v_add_u32 v{VTR}, s3, v{VTR}
        s_lshl_b32 s3, s2, 14
        s_lshl_b32 s47, s{S_WAVE}, 10
        s_add_u32 s3, s3, s47
        v_lshl_add_u32 v{VZ}, v{LANE}, 4, s3
        v_lshlrev_b32 v{VU}, 4, v{LANE}
        v_lshlrev_b32 v{VPA}, 7, v{I16}
        """)
        if kw.get('ARR', 1):
            ffn_setup(a, 100)
            self.row_setup(100)
        if KL == 1: kloads()
        self.stamp(1)
        if kw.get('hopP', False): self.ahops.call(a, 0)
        a(f"s_waitcnt vmcnt({14 if KL < 2 else 4})")
        self.stamp(2)
        if kw.get('hopP', False): a.hop = self.ahops
        kd = []
        for c in (0, 2):
            ops = [f"buffer_load_dwordx4 v143, s[52:55], 0 offen offset:{i*1024} lds" for i in range(4)]
            ops[0] = f"s_add_u32 m0, s45, {c*KSTR + 32}\n" + ("v_add_u32 v143, 4, v143\n" if c else "s_nop 0\n") + ops[0]
            kd += ops
        nearly = kw.get('KEARLY', 0)
        early, late = kd[:nearly], kd[nearly:]
        def kdma():
            if early: a(early.pop(0))
        P = lambda x: f"v[{x}:{x+1}]"
        for cp in range(4):
            for j in range(4):
                f = lo if j % 2 == 0 else hi
                f(a, 80+2*j, 60+4*cp+(j >> 1)); f(a, 81+2*j, 62+4*cp+(j >> 1))
            if cp: kdma()
            for i in range(7):
                lo(a, 88+2*i, 16+4*i+cp); hi(a, 89+2*i, 16+4*i+cp)
            if cp: kdma()
            for r in range(4): a(f"v_pk_mul_f32 {P(110+2*r)}, {P(88+2*r)}, {P(86)}")
            for j in (1, 2, 3):
                for r in range(4): a(f"v_pk_fma_f32 {P(110+2*r)}, {P(88+2*(r+j))}, {P(86-2*j)}, {P(110+2*r)}")
            if cp == 0:
                a(f"s_waitcnt vmcnt({10 if KL < 2 else 0})")
                self.stamp(22)
                if KL == 2: kloads()
            kdma()
            for r in range(4):
                lo(a, 102+2*r, 44+4*r+cp); hi(a, 103+2*r, 44+4*r+cp)
            for r in range(4): a(f"v_pk_mul_f32 {P(110+2*r)}, {P(110+2*r)}, {P(102+2*r)}")
            for r in range(4): a(f"v_cvt_pk_bf16_f32 v{120+4*r+cp}, v{110+2*r}, v{111+2*r}")
            kdma()
        for r in range(4):
            a(f"ds_write_b128 v6, v[{120+4*r}:{123+4*r}]" + (f" offset:{128*r}" if r else ""))
        while early: kdma()
        a("s_waitcnt lgkmcnt(0)\ns_barrier")
        n = 0
        for cb in range(2):
            for hq in range(2):
                o = hq*8192 + cb*16
                a(f"ds_read_b64_tr_b16 v[{16+4*n}:{17+4*n}], v7 offset:{o+512}")
                a(f"ds_read_b64_tr_b16 v[{18+4*n}:{19+4*n}], v7 offset:{o}")
                n += 1
        n = 0
        for cb in range(2):
            for hq in range(2):
                a(f"s_waitcnt lgkmcnt({6-2*n})")
                a(f"buffer_store_dwordx4 v[{16+4*n}:{19+4*n}], v{8+cb}, s[24:27], 0 offen" + (" offset:128" if hq else "") + " sc1")
                n += 1
        a.hop = None
        def kcopy():
            a(f"v_lshl_add_u32 v14, v{LANE}, 4, s45")
            for i in range(4):
                for c in range(2):
                    for x in range(4):
                        a(f"v_alignbyte_b32 v{40+8*(i&1)+4*c+x}, v{KR+6*i+x+c+1}, v{KR+6*i+x+c}, 2")
                    a(f"ds_write_b128 v14, v[{40+8*(i&1)+4*c}:{43+8*(i&1)+4*c}] offset:{(1+2*c)*KSTR + 32 + 1024*i}")
            a(f"""
            ds_write_b16 v{VHD}, v140
            v_lshrrev_b32 v10, 3, v{I16}
            v_add_u32 v10, 2, v10
            v_cmp_eq_u32 vcc, v10, v{G4}
            v_and_b32 v11, 7, v{I16}
            v_sub_u32 v11, 7, v11
            v_cndmask_b32 v9, 0, v141, vcc
            v_and_b32 v10, 1, v11
            v_lshlrev_b32 v10, 4, v10
            v_lshlrev_b32 v9, v10, v9
            v_lshrrev_b32 v11, 1, v11
            """)
            for r in range(4):
                a(f"v_cmp_eq_u32 vcc, {r}, v11\ns_nop 1\nv_cndmask_b32 v{DG+r}, 0, v9, vcc")
        self.stamp(3)
        if KL == 3: kloads()
        elif kw.get('FF', 0) & 1: pass
        elif kw.get('ARR', 1):
            a(f"s_waitcnt vmcnt(4)")
            kcopy()
        else:
            ffn_setup(a, 100)
            self.row_setup(100)
        a(f"""
        s_waitcnt lgkmcnt(0)
        s_add_u32 s{S_TAG}, s28, 1
        s_mul_i32 s3, s{S_WAVE}, 144
        s_add_u32 s3, s3, s2
        s_lshl_b32 s3, s3, 7
        s_add_u32 s3, s3, {FA}
        """)
        self.signal_wave(3, 10 if KL == 3 else 0)
        a("s_barrier")
        self.stamp(4)
        if KL == 3: a("s_waitcnt vmcnt(1)")
        for o in late: a(o)
        if KL == 3 or kw.get('FF', 0) & 1: kcopy()
        if not kw.get('QLATE'): self.q_loads(56, 1)
        if not kw.get('ARR', 1): kcopy()
        if kw.get('LN1', 'B') == 'A':
            a("s_waitcnt vmcnt(0)")
            self.stats(0, 150)
        a(f"""
        v_min_u32 v{VHD}, 55, v{LANE}
        v_lshlrev_b32 v{VHD}, 7, v{VHD}
        s_mov_b32 s90, {FB + 128*NCONV}
        s_mov_b32 s8, {FB + 128*(NCONV+56)}
        s_mul_i32 s6, s{S_WAVE}, 144
        s_add_u32 s6, s6, s2
        s_lshl_b32 s6, s6, 7
        s_add_u32 s6, s6, {FZ}
        s_cmp_ge_u32 s{S_WAVE}, 2
        s_cselect_b32 s7, 0x40000000, 0
        v_mov_b32 v23, s{S_TAG}
        s_add_u32 s56, s{P_WS}, s46
        s_addc_u32 s57, s{P_WS+1}, 0
        s_mov_b32 s58, 4096
        s_mov_b32 s59, 0x20000
        s_bfe_u32 s4, s2, 0x20002
        s_mul_i32 s4, s4, 9
        s_add_u32 s4, s4, s40
        s_lshl_b32 s4, s4, 11
        s_add_u32 s4, s4, {FA}
        """)
        assert WS_U == 0
        srd(a, 52, P_WS, NB_SD, WS_Z)
        hops = self.chops if kw.get('chops', False) else None
        if hops: hops.call(a, 0)
        self.stamp(5)
        self.poll(VPA, 4, sleep=0)
        self.stamp(6)
        a(f"s_add_u32 m0, s45, {4*KSTR + 512}\ns_nop 0")
        for i in range(4):
            a(f"buffer_load_dwordx4 v{VU}, s[56:59], 0 offen offset:{i*1024} sc1 lds")
        AC = 24; FRG = 64
        A = lambda s, m1: FRG + 64*s + 4*m1
        B = lambda s, n1: FRG + 64*s + 32 + 4*n1
        def rdA(m0, n, s):
            R = []
            for x in range(n):
                R.append(f"ds_read_b64 v[{A(s,x)}:{A(s,x)+1}], v{VA} offset:{512*x + 64*m0}")
                R.append(f"ds_read_b64 v[{A(s,x)+2}:{A(s,x)+3}], v{VA} offset:{512*x + 64*m0+8}")
            return R
        def rdB(m0, n, s):
            return [f"ds_read_b128 v[{B(s,x)}:{B(s,x)+3}], v{VB} offset:{512*x + 64*(7-m0)}" for x in range(n)]
        def mf(w, av, bv, first=False):
            a(f"v_mfma_f32_16x16x32_bf16 v[{AC+4*w}:{AC+4*w+3}], v[{av}:{av+3}], v[{bv}:{bv+3}], " + ("0" if first else f"v[{AC+4*w}:{AC+4*w+3}]"))
        def pack(w, t):
            return [f"v_cvt_pk_bf16_f32 v{t}, v{AC+4*w}, v{AC+4*w+2}", f"v_cvt_pk_bf16_f32 v{t+1}, v{AC+4*w+1}, v{AC+4*w+3}",
                    f"ds_write2st64_b32 v{VTW}, v{t}, v{t+1} offset0:{w} offset1:{w+8}"]
        PASS = kw.get('PASS', (0, 4, 8))
        def units(p):
            u0, u1 = 2*PASS[p], 2*PASS[p+1]
            return [(u, u + 4 > u1) for u in range(u0, u1, 4)]
        def trr(p, t):
            R = []
            for i, (u, h) in enumerate(units(p)):
                R += [f"ds_read_b64_tr_b16 v[{t+4*i}:{t+4*i+1}], v{VTR} offset:{128*u}", f"ds_read_b64_tr_b16 v[{t+4*i+2}:{t+4*i+3}], v{VTR} offset:{128*u + 2048}"]
            return R
        def zst(p, t):
            return [(f"s_add_u32 s96, s7, {1024*u}" if h else f"s_mov_b32 s96, {1024*u}") + f"\nbuffer_store_dwordx4 v[{t+4*i}:{t+4*i+3}], v{VZ}, s[52:55], s96 offen sc1" for i, (u, h) in enumerate(units(p))]
        def zfl(p):
            R = ["s_waitcnt vmcnt(0)"]
            for u, h in units(p):
                R.append(f"s_add_u32 s96, s6, {u*144*128}")
                if h: R.append("s_add_u32 s96, s96, s7")
                R.append(f"buffer_store_dword v23, off, s[{S_FL}:{S_FL+3}], s96 sc1")
            return "\n".join(R)
        steps = []
        for p in range(len(PASS) - 1):
            two = PASS[p+1] <= 4
            steps += [(p, m0, two) for m0 in range(0, 8, 2 if two else 1)]
        def rds(p, m0, two, s):
            n = PASS[p+1]; ra, rb = [], []
            for h in range(2 if two else 1):
                for x in range(n):
                    t = 4*h + x
                    ra += [f"ds_read_b64 v[{A(s,t)}:{A(s,t)+1}], v{VA} offset:{512*x + 64*(m0+h)}", f"ds_read_b64 v[{A(s,t)+2}:{A(s,t)+3}], v{VA} offset:{512*x + 64*(m0+h)+8}"]
                    rb += [f"ds_read_b128 v[{B(s,t)}:{B(s,t)+3}], v{VB} offset:{512*x + 64*(7-m0-h)}"]
            return ra, rb
        ra, rb = rds(*steps[0], 0)
        for r in ra: a(r)
        ffn_setup2(a, 12)
        a("s_waitcnt vmcnt(0)")
        self.stamp(7)
        for r in rb: a(r)
        if kw.get('QLATE'): self.q_loads(56, 1)
        cp_ = kw.get('convpf', '')
        if cp_:
            a(f"""
            s_and_b32 s3, s2, 7
            s_lshr_b32 s5, s2, 3
            s_lshl_b32 s5, s5, 2
            s_add_u32 s5, s5, s{S_WAVE}
            """)
        if 'g' in cp_:
            a(f"""
            s_mul_i32 s9, s3, 1152
            s_lshr_b32 s10, s2, 3
            s_lshl_b32 s10, s10, 1
            s_and_b32 s11, s{S_WAVE}, 1
            s_add_u32 s10, s10, s11
            s_mul_i32 s10, s10, {16*9216}
            s_add_u32 s9, s9, s10
            v_and_b32 v1, 15, v{LANE}
            v_mul_u32_u24 v1, 9216, v1
            v_lshrrev_b32 v2, 4, v{LANE}
            v_min_u32 v2, 2, v2
            v_lshrrev_b32 v3, 1, v2
            v_mul_u32_u24 v3, 3, v3
            v_add3_u32 v2, v2, v3, 3
            v_lshl_add_u32 v1, v2, 7, v1
            buffer_load_dword v22, v1, s[{S_W}:{S_W+3}], s9 offen
            """)
        if 'd' in cp_:
            srd(a, 56, P_WD, D*DF*2)
            a(f"""
            s_mul_i32 s9, s3, {576*1152}
            s_mul_i32 s10, s5, 9216
            s_add_u32 s9, s9, s10
            v_lshlrev_b32 v1, 7, v{LANE}
            v_and_b32 v2, 7, v{LANE}
            v_lshlrev_b32 v2, 7, v2
            v_add_u32 v2, 8192, v2
            buffer_load_dword v22, v1, s[56:59], s9 offen
            buffer_load_dword v22, v2, s[56:59], s9 offen
            """)
        NP_ = len(PASS) - 1
        def modcheck():
            a(f"v_cmp_ne_u32 vcc, s{S_TAG}, v239\nv_cmp_ne_u32 s[4:5], s{S_TAG}, v22\ns_nop 1\ns_or_b64 vcc, vcc, s[4:5]\ns_cbranch_vccz L_modok")
            self.poll(VHD, 90, sleep=1)
            self.poll(VHD, 8, sleep=1)
            a("L_modok:")
        for n_, (p, m0, two) in enumerate(steps):
            s = n_ & 1
            nxt = []
            if n_ + 1 < len(steps):
                ra, rb = rds(*steps[n_+1], 1-s)
                nxt = rb + ra
            ext = []
            a("s_waitcnt lgkmcnt(0)")
            if p:
                if m0 == 0: ext = ['', ''] + sum([pack(w, 4 + 2*(w - PASS[p-1])) for w in range(PASS[p-1], PASS[p])], [])
                if m0 == 1: a("s_barrier"); ext = trr(p-1, 4)
                if m0 == 2: ext = zst(p-1, 4)
                if kw.get('ZPOLL') and m0 >= kw['ZPOLL']:
                    l = self.lab('zf')
                    if m0 == kw['ZPOLL']: a("s_mov_b32 s9, 0")
                    a(f"s_getreg_b32 s10, hwreg(HW_REG_IB_STS, 0, 4)")
                    if m0 == 7: a("s_mov_b32 s10, 0")
                    a(f"s_or_b32 s10, s10, s9\ns_cbranch_scc1 {l}\ns_mov_b32 s9, 1")
                    a(zfl(p-1))
                    if p == 1: self.stamp(28)
                    a(f"{l}:")
                elif not kw.get('ZPOLL') and m0 == kw.get('ZF', 4):
                    a(zfl(p-1))
                    if p == 1: self.stamp(28)
                    if kw.get('EARLYC') and p == NP_ - 1:
                        modcheck(); ext += self.mod_dma(56)
                if p == NP_ - 1 and m0 == kw.get('MCHK', 5):
                    ext += [f"buffer_load_dword v239, v{VHD}, s[{S_FL}:{S_FL+3}], s90 offen sc1", f"buffer_load_dword v22, v{VHD}, s[{S_FL}:{S_FL+3}], s8 offen sc1"]
            def gap():
                k = 2 if (len(nxt) > left[0] and not ext) else 1
                while k and nxt: a(nxt.pop(0)); k -= 1
                if ext:
                    x = ext.pop(0)
                    if x: a(x)
                left[0] -= 1
            pairs = [(m1 + n1, 4*h + m1, 4*h + n1) for h in range(2 if two else 1) for m1 in range(8) for n1 in range(8 - m1) if PASS[p] <= m1 + n1 < PASS[p+1]]
            nd = PASS[p+1] - PASS[p] if m0 == 0 else 0
            left = [len(pairs) + nd - 8]
            for w in range(PASS[p], PASS[p] + nd):
                mf(w, DG, B(s, w), True); gap()
            if kw.get('SKIP7') and p == NP_ - 1: pairs = [q_ for q_ in pairs if q_[0] != 7]
            for w, x, y in pairs:
                mf(w, A(s, x), B(s, y)); gap()
            for x in nxt + ext:
                if x: a(x)
        self.stamp(8)
        a("s_nop 7")
        for w in range(PASS[-2], 8):
            for x in pack(w, 64 + 2*w): a(x)
        a("s_waitcnt lgkmcnt(0)\ns_barrier")
        for x in trr(NP_-1, 80): a(x)
        zs = zst(NP_-1, 80)
        for i, x in enumerate(zs):
            a(f"s_waitcnt lgkmcnt({2*(len(zs)-1-i)})"); a(x)
        self.stamp(9)
        if kw.get('EARLYC'):
            a(f"s_mov_b32 s4, {FZ}\nbuffer_load_dword v22, v{VRP}, s[{S_FL}:{S_FL+3}], s4 offen sc1")
            self.stats(0, 150, part=1)
            a(zfl(NP_-1))
            a(f"v_cmp_ne_u32 vcc, s{S_TAG}, v22\ns_cbranch_vccz L_zok")
            self.poll(VRP, 4, sleep=0)
            a("L_zok:")
            self.row_consts()
            a("s_waitcnt lgkmcnt(0)\ns_barrier")
            self.stamp(23); self.stamp(11)
            self.z_loads()
            n = kw['PL'][0]
            ffn_prefill(a, range(n))
            self.stats(0, 150, part=2)
            self.mod_reads()
            a(f"s_waitcnt vmcnt({6*n})\ns_branch L_rowjoin")
            return
        if kw.get('FF', 0) & 2:
            a(zfl(NP_-1)); self.stats(0, 150, part=1)
        else:
            self.stats(0, 150, part=1); a(zfl(NP_-1))
        a("s_waitcnt lgkmcnt(0)\ns_barrier")
        self.stamp(23)
        modcheck()
        for o in self.mod_dma(56): a(o)
        self.stats(0, 150, part=2)

    def side_path(self):
        a = self.a; kw = self.kw
        if self.late_entry:
            a("s_waitcnt lgkmcnt(0)"); self.stamp(0); self.late_entry()
        if kw.get('touch'):
            sh = kw['touch']
            srd(a, 52, P_WS, 0x4000000); srd(a, 56, P_OUT, NB_SD)
            a(f"v_lshlrev_b32 v1, {sh}, v0\nbuffer_load_dword v238, v1, s[52:55], 0 offen\nbuffer_load_dword v238, v1, s[56:59], 0 offen")
            srd(a, 56, P_WD, D*DF*2)
            a(f"buffer_load_dword v238, v1, s[56:59], 0 offen")
        code_srd(a, 56, 4, 'L_common', 'L_code_end')
        srd(a, 52, P_SSMK, NB_SD)
        a(f"""
        s_sub_u32 s47, s2, {NCONV}
        s_lshr_b32 s47, s47, 3
        s_lshl_b32 s47, s47, 2
        s_add_u32 s47, s47, s{S_WAVE}
        v_min_u32 v2, 7, v{LANE}
        s_lshl_b32 s43, s47, 10
        v_lshlrev_b32 v2, 7, v2
        buffer_load_dword v238, v2, s[56:59], s43 offen
        s_mul_i32 s42, s47, 42
        v_min_u32 v1, 41, v{LANE}
        v_add_u32 v1, s42, v1
        v_lshrrev_b32 v2, 7, v1
        v_and_b32 v1, 127, v1
        v_lshlrev_b32 v1, 7, v1
        v_lshl_add_u32 v1, v2, 17, v1
        s_and_b32 s3, s2, 7
        s_lshl_b32 s3, s3, 14
        {'buffer_load_dword v238, v1, s[52:55], s3 offen' if kw.get('pfK', False) else ''}
        s_mul_hi_u32 s42, s47, 0x2aaaaaab
        s_mul_i32 s43, s42, 6
        s_sub_u32 s43, s47, s43
        s_mul_i32 s43, s43, 3072
        s_add_u32 s42, s42, {kw.get('CA', 7)}
        s_mul_i32 s42, s42, {128*1152}
        s_add_u32 s42, s42, s43
        s_and_b32 s3, s2, 7
        s_mul_i32 s3, s3, {16*1152}
        s_add_u32 s42, s42, s3
        v_min_u32 v1, 23, v{LANE}
        v_lshlrev_b32 v1, 7, v1
        """)
        srd(a, 52, P_Q, NB_SD)
        if not kw.get('QLATE'): a("buffer_load_dword v238, v1, s[52:55], s42 offen")
        if kw.get('MODLATE'):
            self.q_loads(56, 146)
            ffn_setup(a, 100)
            self.row_setup(100)
            a("s_waitcnt vmcnt(0)")
            self.stats(0, 150)
        a(f"s_cmp_ge_u32 s2, {NCONV+NMOD}\ns_cbranch_scc1 L_nomod")
        a(f"""
        s_sub_u32 s40, s2, {NCONV}
        v_and_b32 v1, 7, v0
        v_lshrrev_b32 v2, 3, v0
        v_mul_u32_u24 v3, 6912, v2
        v_lshl_add_u32 v3, v1, 4, v3
        s_lshl_b32 s3, s40, 7
        v_add_u32 v3, s3, v3
        v_lshlrev_b32 v4, 1, v0
        """)
        srd(a, 24, P_C, D*2); srd(a, 52, P_WMOD, D*6912); srd(a, 20, P_WS, NB_MOD, WS_MOD)
        a("""
        buffer_load_ushort v5, v4, s[24:27], 0 offen
        buffer_load_ushort v6, v4, s[24:27], 0 offen offset:512
        buffer_load_ushort v7, v4, s[24:27], 0 offen offset:1024
        s_mov_b32 s41, 0
        """)
        a("s_waitcnt vmcnt(0)")
        for i in range(18):
            a(f"buffer_load_dwordx4 v[{32+4*i}:{35+4*i}], v3, s[52:55], s41 offen" + self.nt('m'))
            if i < 17: a(f"s_add_u32 s41, s41, {32*6912}")
        for r in (5, 6, 7):
            a(f"""
            v_lshlrev_b32 v{r}, 16, v{r}
            v_mul_f32 v8, 0xbfb8aa3b, v{r}
            v_exp_f32 v8, v8
            s_nop 0
            v_add_f32 v8, 1.0, v8
            v_rcp_f32 v8, v8
            s_nop 0
            v_mul_f32 v{r}, v{r}, v8
            v_cvt_pk_bf16_f32 v{r}, v{r}, v{r}
            v_lshlrev_b32 v{r}, 16, v{r}
            """)
        a("""
        v_lshlrev_b32 v9, 2, v0
        ds_write_b32 v9, v5
        ds_write_b32 v9, v6 offset:1024
        ds_write_b32 v9, v7 offset:2048
        v_lshlrev_b32 v10, 2, v2
        s_waitcnt lgkmcnt(0)
        s_barrier
        """)
        for i in range(18):
            a(f"ds_read_b32 v{104+2*i}, v10 offset:{128*i}")
        a("s_waitcnt lgkmcnt(0)")
        for i in range(18):
            a(f"s_waitcnt vmcnt({17-i})")
            for x in range(4):
                t = 24 + 2*(x & 1)
                lo(a, t, 32+4*i+x); hi(a, t+1, 32+4*i+x)
                if i == 0: a(f"v_pk_mul_f32 v[{16+2*x}:{17+2*x}], v[{t}:{t+1}], v[{104+2*i}:{105+2*i}] op_sel_hi:[1,0]")
                else:      a(f"v_pk_fma_f32 v[{16+2*x}:{17+2*x}], v[{t}:{t+1}], v[{104+2*i}:{105+2*i}], v[{16+2*x}:{17+2*x}] op_sel_hi:[1,0,1]")
        a("""
        v_lshlrev_b32 v13, 8, v2
        v_lshl_add_u32 v13, v1, 5, v13
        ds_write_b128 v13, v[16:19] offset:4096
        ds_write_b128 v13, v[20:23] offset:4112
        s_waitcnt lgkmcnt(0)
        s_barrier
        """)
        a(f"s_cmp_lg_u32 s{S_WAVE}, 0\ns_cbranch_scc1 L_nomod")
        for i in range(32):
            a(f"ds_read_b32 v{32+i}, v9 offset:{4096 + 256*i}")
        a("s_waitcnt lgkmcnt(0)")
        for st in (16, 8, 4, 2):
            for i in range(0, st, 2):
                a(f"v_pk_add_f32 v[{32+i}:{33+i}], v[{32+i}:{33+i}], v[{32+i+st}:{33+i+st}]")
        a(f"""
        v_add_f32 v32, v32, v33
        s_mov_b32 s3, 0x1c71c71d
        v_cvt_pk_bf16_f32 v32, v32, v32
        s_mul_hi_u32 s41, s40, s3
        s_cmp_eq_u32 s41, 1
        s_cselect_b32 s42, 1.0, 0
        s_cmp_eq_u32 s41, 4
        s_cselect_b32 s42, 1.0, s42
        v_lshlrev_b32 v32, 16, v32
        v_add_f32 v32, s42, v32
        s_cmp_eq_u32 s41, 3
        s_cselect_b32 s43, {f2u(ALPHA):#x}, 1.0
        s_cmp_eq_u32 s41, 5
        s_cselect_b32 s43, {f2u(1/ALPHA**2):#x}, s43
        v_cvt_pk_bf16_f32 v32, v32, v32
        v_lshlrev_b32 v32, 16, v32
        v_mul_f32 v32, s43, v32
        s_lshl_b32 s3, s40, 8
        buffer_store_dword v32, v9, s[20:23], s3 offen sc1
        L_nomod:
        """)
        self.stamp(3)
        self.signal(FB, 2)
        if not kw.get('MODLATE') and kw.get('QLATE') != 2: self.q_loads(56, 146)
        self.stamp(4)
        if kw.get('SPF'):
            ffn_setup(a, 100)
            self.row_setup(100)
        if kw.get('waitA', True):
            a(f"""
            v_and_b32 v146, 15, v{LANE}
            v_lshlrev_b32 v146, 7, v146
            s_and_b32 s40, s2, 7
            s_lshl_b32 s4, s40, 11
            s_add_u32 s4, s4, {FA}
            """)
            self.poll(146, 4, sleep=2)
        def wpf():
            NCH = kw.get('NCH', 2); per = -(-1152*NCH//56)
            srd(a, 20, P_WG, D*DF*2); srd(a, 24, P_WU, D*DF*2)
            a(f"""
            {f's_lshr_b32 s40, s{S_GI}, 2' if DYN[0] else 's_and_b32 s40, s2, 7'}
            s_mul_i32 s43, s40, {2304 if DYN[0] else 1152}
            s_and_b32 s40, s{S_GI}, {1 if DYN[0] else 0}
            s_mul_i32 s40, s40, 640
            s_add_u32 s43, s43, s40
            s_sub_u32 s47, s2, {NCONV}
            s_lshr_b32 s47, s47, 3
            s_lshl_b32 s47, s47, 2
            s_add_u32 s47, s47, s{S_WAVE}
            s_mul_i32 s42, s47, {per}
            v_min_u32 v1, {per-1}, v{LANE}
            v_add_u32 v1, s42, v1
            s_mov_b32 s44, {-(-(1 << 32)//1152):#x}
            v_mul_hi_u32 v3, s44, v1
            v_mul_u32_u24 v4, 1152, v3
            v_sub_u32 v4, v1, v4
            v_lshlrev_b32 v3, 7, v3
            v_and_b32 v5, 1, v4
            v_mul_u32_u24 v5, {1152 if DYN[0] else 640}, v5
            v_add_u32 v3, v3, v5
            v_lshrrev_b32 v4, 1, v4
            v_mul_u32_u24 v4, 9216, v4
            v_add_u32 v3, v3, v4
            buffer_load_dword v149, v3, s[20:23], s43 offen{self.nt('w')}
            buffer_load_dword v149, v3, s[24:27], s43 offen{self.nt('w')}
            """)
            npf = 2
            if kw.get('PRE2'):
                npf = 4
                a(f"""
                s_mul_i32 s42, s47, 31
                v_min_u32 v1, 30, v{LANE}
                v_add_u32 v1, s42, v1
                s_mov_b32 s44, 0x55555556
                v_mul_hi_u32 v3, s44, v1
                v_mul_u32_u24 v4, 3, v3
                v_sub_u32 v4, v1, v4
                v_mul_u32_u24 v3, 9216, v3
                v_lshrrev_b32 v5, 1, v4
                v_mul_u32_u24 v5, 3, v5
                v_add3_u32 v4, v4, v5, 3
                v_lshl_add_u32 v3, v4, 7, v3
                buffer_load_dword v149, v3, s[20:23], s43 offen{self.nt('w')}
                buffer_load_dword v149, v3, s[24:27], s43 offen{self.nt('w')}
                """)
            return npf
        if kw.get('QLATE') == 2: self.q_loads(56, 146)
        nfill = 0
        if kw.get('SPF') == 1:
            nfill = 6*kw['PL'][0]; ffn_prefill(a, range(kw['PL'][0]))
        npf = 0 if (kw.get('waitM') or kw.get('waitQ')) else wpf()
        if kw.get('SPF') == 2:
            nfill = 6*kw['PL'][0]; ffn_prefill(a, range(kw['PL'][0]))
        npf += nfill
        self.stamp(6)
        if not kw.get('MODLATE'):
            if not kw.get('SPF'):
                ffn_setup(a, 100)
                self.row_setup(100)
            a(f"s_waitcnt vmcnt({npf})")
            if kw.get('waitQ') == 1: wpf()
            self.stats(0, 150)
            if kw.get('waitQ') == 2: wpf()
        a(f"""
        v_min_u32 v147, {NMOD-1}, v{LANE}
        v_lshlrev_b32 v147, 7, v147
        s_mov_b32 s11, {FB + 128*NCONV}
        """)
        self.poll(147, 11, sleep=2)
        if kw.get('waitM'): wpf()
        for o in self.mod_dma(52): a(o)
        ffn_setup2(a, 100)
        if self.fhops and self.kw.get('sidehops', True):
            for c in range(self.nhc): self.fhops.call(a, c)
        self.stamp(23)

    def row_consts(self):
        a = self.a
        srd(a, S_X, P_WS, NB_X, WS_X)
        srd(a, 52, P_WS, NB_SD, WS_Z)
        a(f"""
        s_mov_b32 s4, {FZ}
        s_mov_b32 s5, 0x4000
        s_mov_b32 s6, 0x80000
        s_mov_b32 s7, 0x84000
        s_add_u32 s8, s{S_OOB}, 0x100000
        s_add_u32 s11, s{S_OOB}, 0x104000
        s_mov_b32 s9, 4096
        s_add_u32 s10, s{S_OOB}, 8192
        """)
    def z_loads(self):
        so = ['0', 's5', 's6', 's7', 's8', 's11']
        for i in range(6):
            self.a(f"buffer_load_dwordx2 v[{2*i}:{2*i+1}], v{VRZ}, s[52:55], {so[i]} offen sc1")
    def mod_reads(self):
        MV = lambda i, v: 16 + 40*i + 8*v
        for vs in ((0, 1, 2), (3, 4)):
            for i in range(3):
                for v in vs:
                    for h in range(2):
                        self.a(f"ds_read_b128 v[{MV(i,v)+4*h}:{MV(i,v)+4*h+3}], v{VRM} offset:{2304*v + 512*i + 16*h}")
    def row_phase(self, hops):
        a = self.a; kw = self.kw
        NP1 = kw.get('NP1', 3); NP2 = kw.get('NP2', 6)
        PL = kw.get('PL', (3, 0, 0, 3)); pf = [sum(PL[:i]) for i in range(5)]
        if kw.get('SPF'): a(f"s_cmp_ge_u32 s2, {NCONV}\ns_cbranch_scc1 L_nofill0")
        ffn_prefill(a, range(pf[0], pf[1]))
        if kw.get('SPF'): a("L_nofill0:")
        if kw.get('sidefill', False):
            a(f"s_cmp_lt_u32 s2, {NCONV}\ns_cbranch_scc1 L_nofill1")
            ffn_prefill(a, range(pf[3], pf[4]))
            a("L_nofill1:")
        self.row_consts()
        MV = lambda i, v: 16 + 40*i + 8*v
        self.stamp(10)
        self.poll(VRP, 4, sleep=kw.get('sleepB', 1))
        a("s_barrier")
        self.stamp(11)
        self.z_loads()
        ffn_prefill(a, range(pf[1], pf[2]))
        self.mod_reads()
        if kw.get('EARLYC'): a(f"s_waitcnt vmcnt({6*PL[1]})\nL_rowjoin:")
        a("s_waitcnt lgkmcnt(12)")
        if kw.get('hopR', False): a.hop = self.rhops
        P = lambda x: f"v[{x}:{x+1}]"
        BC = "op_sel:[0,0,1] op_sel_hi:[1,0,1]"
        for i in range(3):
            if not kw.get('EARLYC'): a(f"s_waitcnt vmcnt({2*(2-i) + 6*PL[1]})")
            if i == 0: self.stamp(12)
            for c2 in range(0, 4, 2):
                cs = (c2, c2+1); X = {c: 144 + 6*(c & 1) for c in cs}
                for c in cs: lo(a, X[c], QP+4*i+c); hi(a, X[c]+1, QP+4*i+c)
                for c in cs: a(f"v_pk_fma_f32 {P(X[c]+2)}, {P(X[c])}, {P(ST)}, {P(ST)} {BC}")
                for c in cs: lo(a, X[c]+4, 4*i+c); hi(a, X[c]+5, 4*i+c)
                for c in cs: a(f"v_pk_fma_f32 {P(X[c]+2)}, {P(X[c]+2)}, {P(MV(i,1)+2*c)}, {P(MV(i,0)+2*c)}")
                for c in cs: a(f"v_pk_mul_f32 {P(X[c]+2)}, {P(X[c]+2)}, {P(X[c]+4)}")
                for c in cs: a(f"v_pk_fma_f32 {P(X[c]+2)}, {P(X[c]+2)}, {P(MV(i,2)+2*c)}, {P(X[c])}")
                for c in cs: a(f"v_cvt_pk_bf16_f32 v{QP+4*i+c}, v{X[c]+2}, v{X[c]+3}")
        self.stats(256, 160, scale=ALPHA)
        ffn_prefill(a, range(pf[2], pf[3]))
        sh = ['0', 's9', 's10']
        for i in range(3):
            for c2 in range(0, 4, 2):
                cs = (c2, c2+1); X = {c: 144 + 6*(c & 1) for c in cs}
                for c in cs: lo(a, X[c], QP+4*i+c); hi(a, X[c]+1, QP+4*i+c)
                for c in cs: a(f"v_pk_fma_f32 {P(X[c])}, {P(X[c])}, {P(ST)}, {P(ST)} {BC}")
                for c in cs: a(f"v_pk_fma_f32 {P(X[c])}, {P(X[c])}, {P(MV(i,4)+2*c)}, {P(MV(i,3)+2*c)}")
                for c in cs: a(f"v_cvt_pk_bf16_f32 v{4*i+c}, v{X[c]}, v{X[c]+1}")
            a(f"buffer_store_dwordx4 v[{4*i}:{4*i+3}], v{VRH}, s[{S_H}:{S_H+3}], {sh[i]} offen sc1")
        a.hop = None
        self.stamp(13)
        for i in range(12): a(f"v_accvgpr_write_b32 a{X1A+i}, v{QP+i}")
        a(f"s_lshl_b32 s4, s{S_MT}, 4\ns_add_u32 s4, s4, s{S_GI}")
        self.signal(FC, 4)
        if kw.get('sidefill', False): a(f"s_cmp_ge_u32 s2, {NCONV}\ns_cbranch_scc1 L_nofill2")
        ffn_prefill(a, range(pf[3], pf[4]))
        if kw.get('sidefill', False): a("L_nofill2:")
        code_srd(a, 52, 4, 'L_common', 'L_code_end', back=True)
        a(f"v_mov_b32 v{VTAG}, s{S_TAG}")
        ffn_setup3(a, kw.get('CPE', False))
        if kw.get('CPR'): a(f"s_mov_b32 s4, L_st0-L_common\nbuffer_load_dword v149, v{VPC}, s[52:55], s4 offen")
        self.reduce_setup(100)
        if DYN[0]: ffn_setup4(a)
        a(f"""
        v_and_b32 v146, 15, v{LANE}
        v_lshlrev_b32 v146, 7, v146
        s_lshl_b32 s{11 if DYN[0] else 9}, s{S_MT}, 11
        s_add_u32 s{11 if DYN[0] else 9}, s{11 if DYN[0] else 9}, {FC}
        """)
        for c in kw.get('hopC', ()): hops.call(a, c)
        self.stamp(14)
        self.poll(146, 11 if DYN[0] else 9, sleep=0)
        self.stamp(15)

    def reduce_setup(self, t):
        a = self.a
        self.row_ids(t, t+1, t+2)
        a(f"""
        v_mul_u32_u24 v{VEO}, 1152, v{t}
        v_lshl_add_u32 v{VEO}, v{t+1}, 4, v{VEO}
        v_lshrrev_b32 v{VEP}, 5, v{t}
        v_mul_u32_u24 v{VEP}, 9, v{VEP}
        v_lshrrev_b32 v{t+2}, 3, v{t+1}
        v_add_u32 v{VEP}, v{t+2}, v{VEP}
        v_lshlrev_b32 v{VEP}, 12, v{VEP}
        v_bfe_u32 v{t+2}, v{t}, 4, 1
        v_lshl_add_u32 v{VEP}, v{t+2}, 10, v{VEP}
        v_bfe_u32 v{t+2}, v{LANE}, 3, 1
        v_lshl_add_u32 v{VEP}, v{t+2}, 11, v{VEP}
        v_bfe_u32 v{t+2}, v{LANE}, 4, 1
        v_lshl_add_u32 v{VEP}, v{t+2}, 9, v{VEP}
        v_bfe_u32 v{t+2}, v{LANE}, 5, 1
        v_lshl_add_u32 v{VEP}, v{t+2}, 8, v{VEP}
        v_and_b32 v{t+2}, 15, v{t}
        v_lshl_add_u32 v{VEP}, v{t+2}, 4, v{VEP}
        v_lshlrev_b32 v{VEG}, 5, v{t+1}
        v_add_u32 v{VEG}, {MOD_OFF + 5*2304}, v{VEG}
        s_lshl_b32 s3, s{S_MT}, 2
        s_lshr_b32 s4, s{S_GI}, 2
        s_add_u32 s4, s4, s3
        s_lshl_b32 s4, s4, 11
        v_and_b32 v{VEF}, 15, v{LANE}
        v_lshl_add_u32 v{VEF}, v{VEF}, 7, s4
        s_add_u32 s3, s3, s{S_WAVE}
        s_lshl_b32 s3, s3, 4
        s_add_u32 s3, s3, s{S_GI}
        s_lshl_b32 s3, s3, 7
        s_add_u32 s{S_FD}, s3, {FD1}
        """)
    def reduce_phase(self):
        a = self.a; kw = self.kw
        early = kw.get('early', True)
        self.stamp(17)
        srd(a, 12, P_OUT, NB_SD)
        a(f"""
        s_mov_b32 s4, {FD1}
        s_mov_b32 s7, {FD2}
        s_add_u32 s8, s{S_FD}, {FD2 - FD1}
        {f'buffer_load_dword v239, v{VEF}, s[{S_FL}:{S_FL+3}], s4 offen sc1' if early and not kw.get('ASK3') else ''}
        s_mov_b32 s5, 0x3f80
        s_mov_b32 s6, 0x3f800000
        v_add_u32 v222, 8192, v{VEP}
        v_add_u32 v223, 16384, v{VEP}
        v_add_u32 v223, s{S_OOB}, v223
        """)
        for i in range(3):
            for h in range(2):
                a(f"ds_read_b128 v[{192+8*i+4*h}:{195+8*i+4*h}], v{VEG} offset:{512*i + 16*h}")
        va = [VEP, 222, 223]; RD = [32, 64, 128]
        def loads(i):
            a("s_mov_b32 s9, 0")
            for sl in range(8):
                a(f"buffer_load_dwordx4 v[{RD[i]+4*sl}:{RD[i]+4*sl+3}], v{va[i]}, s[{S_P}:{S_P+3}], s9 offen sc1")
                if sl < 7: a(f"s_add_u32 s9, s9, {NB_SD}")
        pub = f"buffer_store_dword v{VTAG}, off, s[{S_FL}:{S_FL+3}], s8 sc1"
        if kw.get('ASK3'):
            a(f"v_cmp_ne_u32 vcc, s{S_TAG}, v239\ns_cbranch_vccnz L_e1late")
            loads(0)
            a(f"s_waitcnt vmcnt(8)\n{pub}\ns_branch L_e1done\nL_e1late:\ns_waitcnt vmcnt(0)\n{pub}")
            self.poll(VEF, 4, sleep=0)
            loads(0)
            a("L_e1done:")
            self.stamp(18)
        else:
            a(f"s_waitcnt vmcnt(0)\n{pub}")
            self.stamp(18)
            if early:
                a(f"v_cmp_ne_u32 vcc, s{S_TAG}, v239\ns_cbranch_vccz L_e1ok")
                self.poll(VEF, 4, sleep=0)
                a("L_e1ok:")
                loads(0)
        AC = 226
        def finish(i, waits):
            for e in range(8): a(f"v_mov_b32 v{AC+e}, 0")
            for sl in range(8):
                if waits is not None: a(f"s_waitcnt vmcnt({waits - sl})")
                for x in range(4):
                    a(f"v_dot2_f32_bf16 v{AC+2*x}, v{RD[i]+4*sl+x}, s5, v{AC+2*x}")
                    a(f"v_dot2_f32_bf16 v{AC+2*x+1}, v{RD[i]+4*sl+x}, s6, v{AC+2*x+1}")
            for x in range(4): a(f"v_accvgpr_read_b32 v{QP+x}, a{X1A+4*i+x}")
            for e in range(4): a(f"v_permlane32_swap_b32 v{AC+e}, v{AC+4+e}")
            for x in range(4):
                lo(a, 234, QP+x); hi(a, 235, QP+x)
                a(f"v_pk_fma_f32 v[234:235], v[{AC+2*x}:{AC+2*x+1}], v[{192+8*i+2*x}:{193+8*i+2*x}], v[234:235]")
                a(f"v_cvt_pk_bf16_f32 v{QP+4+x}, v234, v235")
            a(f"buffer_store_dwordx4 v[{QP+4}:{QP+7}], v{VEO}, s[12:15], {'s%d' % S_OOB if i == 2 else '0'} offen" + (f" offset:{256*i}" if i else "") + kw.get('outfl', ''))
            a("s_nop 1")
        if kw.get('MID'):
            a(f"s_bitcmp1_b32 s{S_WAVE}, 0\ns_cselect_b32 s10, s7, {FD3}")
            self.poll(VEF, 10, sleep=0)
            self.stamp(19)
            loads(1)
            a("s_waitcnt lgkmcnt(0)")
            finish(0, None)
            a(f"s_cmp_lg_u32 s{S_WAVE}, 0\ns_cbranch_scc1 L_e2only")
            self.poll(VEF, 7, sleep=0)
            loads(2)
            finish(1, None)
            finish(2, 8)
            a("s_branch L_edone\nL_e2only:")
            finish(1, 8)
            a("L_edone:")
        else:
            self.poll(VEF, 7, sleep=0)
            self.stamp(19)
            if not early: loads(0)
            loads(1); loads(2)
            a("s_waitcnt lgkmcnt(0)")
            for i in range(3): finish(i, None if (early and i == 0) else 23 - 7*i)
        self.stamp(20)

    def build(self):
        a = self.a; kw = self.kw
        a(kernel_head(NAME))
        if kw.get('fix0'): a("s_memrealtime s[100:101]")
        a(f"""
        s_cmp_ge_u32 s2, 256
        s_cbranch_scc1 L_end
        s_load_dwordx16 s[64:79], s[0:1], 0
        s_load_dwordx8 s[80:87], s[0:1], 64
        s_load_dwordx4 s[88:91], s[0:1], 96
        s_load_dwordx2 s[92:93], s[0:1], 112
        """)
        if self.diag: a(f"v_mov_b32 v{DIAG}, 0")
        code_srd(a, 56, 4, 'L_start', 'L_common')
        a(f"""
        L_start:
        v_lshlrev_b32 v1, 7, v0
        v_lshrrev_b32 v2, 6, v0
        v_and_b32 v{LANE}, 63, v0
        buffer_load_dword v238, v1, s[56:59], 0 offen
        v_readfirstlane_b32 s{S_WAVE}, v2
        """)
        def ids():
            a(f"""
            s_lshr_b32 s3, s2, 3
            s_lshr_b32 s{S_MT}, s3, 1
            s_add_u32 s6, s{S_MT}, {kw.get('CA', 7)}
            s_sub_u32 s7, s{S_MT}, 9
            s_cmp_lt_u32 s7, {kw.get('CA', 7)}
            s_cselect_b32 s7, s7, s{S_MT}
            s_cmp_lt_u32 s{S_MT}, 9
            s_cselect_b32 s{S_MT}, s6, s7
            s_and_b32 s3, s3, 1
            {self.gi_code()}
            s_mov_b32 s{S_ONE}, 0x3f803f80
            s_cmp_eq_u32 s{S_WAVE}, 0
            s_cselect_b32 s{S_OOB}, 0, 0x40000000
            """)
        def epoch():
            a(f"s_add_u32 s4, s{P_WS}, {WS_EPOCH:#x}\ns_addc_u32 s5, s{P_WS+1}, 0\ns_load_dword s28, s[4:5], 0")
            srd(a, S_FL, P_WS, 0x120000, WS_FL)
        self.late_entry = None
        if kw.get('ENTRY'):
            self.late_entry = lambda: (ids(), epoch())
            a(f"s_cmp_ge_u32 s2, {NCONV}\ns_cbranch_scc1 L_side")
        else:
            ids()
            a("s_waitcnt lgkmcnt(0)")
            epoch()
            self.stamp(0)
            a(f"s_cmp_ge_u32 s2, {NCONV}\ns_cbranch_scc1 L_side")
        self.tagfix = True
        orig = self.signal
        first = [True]
        def sig(base, idx):
            if first[0]:
                a(f"s_waitcnt lgkmcnt(0)\ns_add_u32 s{S_TAG}, s28, 1"); first[0] = False
            orig(base, idx)
        self.signal = sig
        self.chops = Hops('L_ch'); self.ahops = Hops('L_ah'); self.rhops = Hops('L_rh')
        self.nhc = kw.get('nhc', 4)
        hops = self.fhops = Hops('L_fh') if kw.get('hops', False) else None
        self.conv_path()
        a("s_branch L_common")
        if kw.get('chops', False): self.chops.ret(a)
        if hops: hops.ret(a)
        if kw.get('hopP', False): self.ahops.ret(a)
        if kw.get('hopR', False): self.rhops.ret(a)
        ffn_slow_paths(a, SPIN_MAX, self.diag)
        a("L_side:")
        first[0] = True
        self.side_path()
        a("L_common:")
        self.row_phase(hops)
        kw['NP2'] = sum(kw.get('PL', (3, 0, 0, 3)))
        fk = {k: v for k, v in kw.items() if k not in ('NP1', 'hops', 'nhc', 'hopA', 'hopB', 'hopC', 'sidehops', 'sleepB', 'chops', 'KEARLY', 'waitA', 'MCHK', 'touch', 'NCH', 'dbg', 'fixdur', 'fix0', 'outfl', 'enc', 'poll1', 'sleepD', 'PL', 'hopP', 'hopR', 'LN1', 'pfK', 'early', 'INLOOP', 'ZF', 'convpf', 'PASS', 'CA', 'sidefill', 'ARR', 'KLATE', 'MODLATE', 'QLATE', 'PRE2', 'wsoff', 'waitM', 'waitQ', 'ZPOLL', 'NT', 'EARLYC', 'FF', 'ENTRY', 'CPE', 'CPR', 'SKIP7', 'DYN', 'SPF')}
        ffn_main(a, hops=hops, stamper=(lambda: self.stamp(16)), **fk)
        if hops: hops.resolve(a, self.nhc)
        if kw.get('chops', False): self.chops.resolve(a, 1)
        if kw.get('hopP', False): self.ahops.resolve(a, 1)
        if kw.get('hopR', False): self.rhops.resolve(a, 1)
        self.reduce_phase()
        a(f"""
        s_cmp_lg_u32 s2, 0
        s_cbranch_scc1 L_noep
        s_cmp_lg_u32 s{S_WAVE}, 0
        s_cbranch_scc1 L_noep
        """)
        srd(a, 20, P_WS, 4, WS_EPOCH)
        a(f"""
        v_mov_b32 v239, s{S_TAG}
        s_mov_b64 exec, 1
        buffer_store_dword v239, off, s[20:23], 0 sc1
        s_mov_b64 exec, -1
        L_noep:
        """)
        if self.diag:
            a("s_waitcnt vmcnt(0)"); self.stamp(21)
            srd(a, 20, P_WS, 1 << 20, 0x8000000)
            a(f"""
            s_lshl_b32 s3, s2, 2
            s_add_u32 s3, s3, s{S_WAVE}
            s_lshl_b32 s3, s3, 8
            v_lshlrev_b32 v1, 2, v{LANE}
            buffer_store_dword v{DIAG}, v1, s[20:23], s3 offen
            s_add_u32 s3, s3, 0x80000
            buffer_store_dword v{vst()}, v1, s[20:23], s3 offen
            """)
            if kw.get('dbg') is not None:
                a(f's_load_dwordx2 s[90:91], s[0:1], {DBG}\ns_waitcnt lgkmcnt(0)')
                srd(a, 20, 90, 256)
                a(f"""
                s_cmp_lg_u32 s2, {kw['dbg']}
                s_cbranch_scc1 L_end
                s_cmp_lg_u32 s{S_WAVE}, 0
                s_cbranch_scc1 L_end
                v_readlane_b32 s3, v{DIAG}, 0
                v_add_u32 v2, -24, v1
                s_nop 1
                v_subrev_u32 v{DIAG}, s3, v{DIAG}
                buffer_store_dword v{DIAG}, v2, s[20:23], 0 offen
                """)
                if kw.get('fixdur'):
                    if kw.get('enc') is not None:
                        a(f"s_nop 1\nv_readlane_b32 s4, v{DIAG}, {kw['enc']}\ns_nop 3\ns_add_u32 s3, s3, s4")
                    a(f"""
                    L_fix:
                    s_memrealtime s[98:99]
                    s_waitcnt lgkmcnt(0)
                    s_sub_u32 s98, s98, {'s100' if kw.get('fix0') else 's3'}
                    s_cmp_lt_u32 s98, {kw['fixdur']}
                    s_cbranch_scc1 L_fix
                    """)
        a("L_end:\ns_endpgm")
        for x in ffn_main.stubs: a(x)
        a("L_code_end:")
        REF = 'adaLN_cond__ssm_conv_h3__glu_gated_geglu__prompt.s.ref'
        pre = [l for l in open(REF).read().split('\n') if l.startswith(';') and '@launch' not in l]
        pre += '''; One persistent launch, 256 workgroups (one per CU) of 4 waves; generated by the author's own scheduler script.
;   A  wg<144: kv = shortconv(k)*v for a 128x64 tile, transposed through LDS to [channel][time]      (hand-off A)
;   B  wg<144: causal long convolution of 4 channels as Toeplitz MFMA products (+ D on the diagonal),
;      first 1024 steps published early; wg 144..197: modulation GEMV; wg>=144 warm L2 with weights  (hand-off B)
;   C  all: 8 rows each: LayerNorm 1, x1 = q + ga*h*z, LayerNorm 2 -> h2 in MFMA fragment order      (hand-off C)
;   D  all: 128 rows x 288 hidden columns: gate/up GEMM, tanh-GELU (sigmoid form), hidden activations exchanged
;      with the partner workgroup, down GEMM for half of the output columns, bf16 partial sums        (hand-off D)
;   E  all: 8 rows each: sum of the 8 partial sums, out = x1 + gb*o
; Hand-offs: write-through stores, vmcnt drain, tag words in d_ws; tag = (word found in d_ws at entry) + 1, every spin bounded.
; h2 carries the factor a = (2*sqrt(2/pi)*log2(e)*0.044715)^(1/3); it is removed again through gb/a^2.'''.split('\n')
        out = pre + [f"; @launch grid=(256,1,1) block=(256,1,1) lds={LDS_TOTAL}", '.amdgcn_target "amdgcn-amd-amdhsa--gfx950"', '.text', a.text(),
                     '.section .rodata,"a"', kernel_desc(NAME, 256 + X1A + 12, 102, 256)]
        return '\n'.join(out) + '\n'

BEST = dict(order=1, GDL=70, FLAG_D=48, ASK2=260, PPACE=4, HPACE=5, ASK_D=48, CPE=2, CPF=(0, 17), CPD=5, BG=2, GSPAN=40, NCH=3, PL=(3,0,0,3), waitA=True, waitQ=0, NT='kvmq', outfl=' sc1', KLATE=2, QLATE=2, ZF=4, MCHK=6, FF=3, ENTRY=1, CH6=True, dmafl=' sc1', PF=default_pf(d=(13, 15)))
if __name__ == '__main__':
    dst = sys.argv[1] if len(sys.argv) > 1 else 'best.s'
    open(dst, 'w').write(G(verbose=True, **BEST).build())
    open('best_d.s', 'w').write(G(diag=True, stagestamp=3, **BEST).build())
```

```python
from common import *
import math, struct
SLOT = 24576
NSLOT = 6
RING = NSLOT*SLOT
_c1 = 2*math.sqrt(2/math.pi)*math.log2(math.e); _c2 = _c1*0.044715
ALPHA = _c2**(1/3)
KT = _c1/ALPHA
def f2u(x): return struct.unpack('<I', struct.pack('<f', x))[0]

P_Q, P_K, P_V, P_SK, P_SSMK, P_SSMD, P_WG, P_WU, P_WD, P_C, P_WMOD, P_OUT, P_WS = 64, 66, 68, 70, 72, 74, 78, 80, 82, 84, 86, 88, 92
S_TAG, S_WAVE, S_SPIN, S_ONE = 94, 95, 96, 97
S_MT, S_GI, S_OOB = 49, 50, 51
S_FL = 60
LANE = 254
ACC, STG, HH = 0, 64, 128
TMP = 200
RBH = 204
TF, TH, TD = 208, 209, 210
VF, VH, VD = 216, 220, 224
VL16 = 225
VPC = 214
VPF, VPD = 215, 238
RBF = 226
H2 = 0
FR = 144
X1A = 208
S_W, S_D, S_H, S_P = 12, 16, 20, 24
S_M0F, S_M0D = 29, 30
S_BF, S_BH, S_DF, S_DH = 31, 32, 33, 34
S_SO, S_PO, S_KT, S_HO, S_HS, S_SS, S_PD, S_PS = 35, 36, 37, 38, 39, 48, 40, 41
PFN, PFD = 42, 47
OBUF = [ACC+32, STG, STG+32, ACC]
HBUF = [216, 240]
RB2 = [204, 205, 206, 207, 212, 213]
VD2, TD2, VTAG, VCHK = 209, 208, 252, 211
S_X = 56
S_OH, S_PF, S_PH, S_OFH, S_PFH, S_88, S_POH, S_XO, S_XP, S_XS, S_FO, S_FP = 34, 42, 43, 44, 45, 46, 47, 76, 77, 28, 100, 101
WS_X = 0x2400000
NB_X = 256*4*18432
FE = 0x20000
FD1, FD2, FD3 = 0x60000, 0x80000, 0x100000
VEP, VEO, VEG, VEF = 248, 249, 250, 251
S_FD = 90

def isize(ins):
    op = ins.split()[0]
    if op.endswith(':'): return 0
    if op in ('s_waitcnt', 's_barrier', 's_nop', 's_cbranch_scc1', 's_branch'): return 4
    if op in ('v_mul_f32', 'v_add_f32', 'v_rcp_f32', 'v_exp_f32', 'v_lshlrev_b32', 'v_mov_b32', 'v_fmac_f32') and '0x' not in ins and '-' not in ins: return 4
    return 8

class Hops:
    def __init__(self, prefix):
        self.prefix, self.n, self.bytes = prefix, 0, 1 << 20
    def add(self, ins): self.bytes += isize(ins)
    def due(self, margin=40): return self.bytes >= 128 - margin
    def emit(self):
        s = f"{self.prefix}_{self.n}:\ns_cbranch_scc1 @HOP@{self.prefix}@{self.n}@"
        self.n += 1; self.bytes = 4
        return s
    def resolve(self, a, ncall):
        nseg = 4*ncall
        self.start = [self.n*k//nseg for k in range(nseg+1)]
        ends = {self.start[k+1]-1 for k in range(nseg)}
        for i, l in enumerate(a.L):
            if f'@HOP@{self.prefix}@' in l:
                n = int(l.split('@')[3])
                tgt = f"{self.prefix}_ret" if n in ends else f"{self.prefix}_{n+1}"
                a.L[i] = f"s_cbranch_scc1 {tgt}"
            elif f'@CALL@{self.prefix}@' in l:
                c, w = int(l.split('@')[3]), int(l.split('@')[4])
                a.L[i] = f"s_cbranch_scc1 {self.prefix}_in{4*c+w}"
            elif l == f'@STUBS@{self.prefix}':
                a.L[i] = "\n".join(f"{self.prefix}_in{k}:\n  s_cmp_eq_u32 0, 0\n  s_branch {self.prefix}_{self.start[k]}" for k in range(nseg)) + "\n  s_nop 0"
    ncalls = 0
    def call(self, a, c):
        Hops.ncalls += 1
        x = f"{self.prefix}_c{Hops.ncalls}"
        a(f"s_getpc_b64 s[98:99]\n{x}a:\ns_add_u32 s98, s98, {x}b-{x}a\ns_addc_u32 s99, s99, 0")
        for w in range(4):
            a(f"s_cmp_eq_u32 s{S_WAVE}, {w}")
            a.L.append(f"@CALL@{self.prefix}@{c}@{w}@")
        a(f"{x}b:")
    def ret(self, a):
        a.L.append(f'@STUBS@{self.prefix}')
        a(f"{self.prefix}_ret:\ns_setpc_b64 s[98:99]")

def down_items(order=0):
    F_ = lambda b, s_, ks: [('F', b, s_, k) for k in ks]
    H_ = lambda s_, ks: [('H', (s_, k), (s_, k+1)) for k in ks]
    it = F_(0,0,range(6)) + F_(1,0,range(6)) + H_(0,(0,2,4)) + F_(2,0,range(6)) + F_(3,0,range(6))
    for b in range(4): it += F_(b,0,range(6,9))
    it += H_(0,(6,))
    if order == 0:
        it += F_(0,1,range(6)) + F_(1,1,range(6)) + F_(0,1,range(6,9)) + F_(1,1,range(6,9))
    elif order == 1:
        it += F_(0,1,range(9)) + F_(1,1,range(9))
    if order == 2:
        it += F_(0,1,range(6)) + F_(1,1,range(6)) + F_(2,1,range(6)) + F_(0,1,range(6,9)) + F_(1,1,range(6,9)) + F_(2,1,range(6,9))
    else:
        it += F_(2,1,range(9))
    it += F_(3,1,range(9)) + H_(1,(0,2,4,6)) + [('H', (0,8), (1,8))]
    if order == 3:
        it = F_(0,0,range(6)) + F_(1,0,range(6)) + H_(0,(0,2,4)) + F_(0,1,range(6)) + F_(0,0,range(6,9)) + F_(2,0,range(6)) + F_(1,0,range(6,9)) + F_(1,1,range(3))
        it += F_(0,1,range(6,9)) + F_(1,1,range(3,9)) + F_(2,0,range(6,9)) + F_(2,1,range(9)) + F_(3,0,range(9)) + F_(3,1,range(9))
        it += H_(0,(6,)) + H_(1,(0,2,4,6)) + [('H', (0,8), (1,8))]
    if order == 4:
        it = F_(0,0,range(6)) + F_(1,0,range(6)) + H_(0,(0,2,4)) + F_(0,1,range(6)) + F_(0,0,range(6,9)) + F_(1,1,range(6)) + F_(1,0,range(6,9)) + H_(0,(6,)) + H_(1,(0,2))
        it += F_(0,1,range(6,9)) + H_(1,(4,6)) + [('H', (0,8), (1,8))] + F_(1,1,range(6,9)) + F_(2,0,range(9)) + F_(2,1,range(9)) + F_(3,0,range(9)) + F_(3,1,range(9))
    if order == 5:
        it = F_(0,0,range(6)) + F_(1,0,range(6)) + H_(0,(0,2,4)) + F_(0,1,range(6)) + F_(0,0,range(6,9)) + F_(2,0,range(6)) + F_(1,0,range(6,9)) + F_(1,1,range(6))
        it += F_(0,1,range(6,9)) + F_(1,1,range(6,9)) + F_(2,0,range(6,9)) + F_(2,1,range(9)) + F_(3,0,range(9)) + F_(3,1,range(9))
        it += H_(0,(6,)) + H_(1,(0,2,4,6)) + [('H', (0,8), (1,8))]
    if order == 6:
        it = F_(0,0,range(6)) + F_(1,0,range(6)) + H_(0,(0,2,4)) + F_(2,0,range(6)) + F_(0,0,range(6,9)) + F_(0,1,range(6)) + F_(1,0,range(6,9)) + F_(1,1,range(6)) + F_(2,0,range(6,9))
        it += F_(0,1,range(6,9)) + F_(1,1,range(6,9)) + F_(2,1,range(9)) + H_(0,(6,)) + H_(1,(0,2,4,6)) + [('H', (0,8), (1,8))] + F_(3,0,range(9)) + F_(3,1,range(9))
    if order == 7:
        it = []
        for b in range(4): it += F_(b,0,range(6))
        for b in range(4): it += F_(b,0,range(6,9))
        it += F_(0,1,range(6)) + F_(1,1,range(6)) + F_(0,1,range(6,9)) + F_(1,1,range(6,9)) + F_(2,1,range(9)) + F_(3,1,range(9))
        it += [('M', s_, k) for s_ in range(2) for k in range(9)]
        assert len(it) == 90
        return it
    assert len(it) == 81
    return it

def base_ops(dst, T, npair, ntile):
    ops = []
    for p in range(npair):
        ops.append(f"v_add_u32 v{dst+ntile*p}, {2*SLOT*p}, v{T}")
        for t in range(1, ntile):
            ops.append(f"v_xor_b32 v{dst+ntile*p+t}, {32*t}, v{dst+ntile*p}")
    return ops

def dma_ops(st, DI):
    slot = (st % NSLOT)*SLOT
    ops = []
    if st < 27:
        if st < 24:
            base, vv, rs = S_BF, VF, 8*9216
            imm0 = (st // 6)*128 + (st % 6)*96*9216
        else:
            base, vv, rs = S_BH, VH, 16*9216
            imm0 = (st - 24)*192*9216
        for j in range(6):
            sc = []
            if j % 4 == 0:
                sc = [f"s_add_u32 m0, s{S_M0F}, {slot + j*1024}", f"s_add_u32 s{S_SO}, s{base}, {imm0 + j*rs}"]
            o = f" offset:{(j%4)*1024}" if j % 4 else ""
            ops.append((sc, f"buffer_load_dwordx4 v{vv + j%4}, s[{S_W}:{S_W+3}], s{S_SO} offen{o} lds"))
    else:
        for j, it in enumerate(DI[6*(st-27):6*(st-27)+6]):
            if it[0] == 'F':
                _, b, src, k = it
                base, imm, vv = ((S_DF, S_PF)[src], 32*k*1152 + b*128, VD) if k < 8 else ((S_OH, S_PH)[src], b*128, VD)
            elif it[0] == 'M':
                _, src, k = it
                base, imm, vv = ((S_DF, S_PF)[src], 32*k*1152, VD) if k < 8 else ((S_OH, S_PH)[src], 0, VD)
            else:
                src, k = it[1]
                base, imm, vv = ((S_OFH, S_PFH)[src], 32*k*1152, VD2) if k < 8 else (S_88, 0, VD2)
            sc = [f"s_add_u32 m0, s{S_M0D}, {slot + j*4096}", f"s_add_u32 s{S_SO}, s{base}, {imm}"]
            if it[0] == 'M': sc.append(f"s_add_u32 s{S_SO}, s{S_SO}, s{S_DM}")
            ops.append((sc, f"buffer_load_dwordx4 v{vv}, s[{S_D}:{S_D+3}], s{S_SO} offen lds"))
    return ops

def ffn_prefill(a, stages):
    for st in stages:
        for sc, ins in dma_ops(st, None):
            for s_ in sc: a(s_)
            a(ins)

VPW, VPR, VPV, VPX = 253, 254, 255, 255
PFWHO = ['early']
DYN = [False]
RM = [204, 205, 206, 207, 212, 213, 214, 215]
S_DM, S_T0, S_PM, S_D1, S_D2, S_N, S_TM = 4, 5, 6, 7, 8, 9, 10
VCK2 = 208
def vst(): return 211 if DYN[0] else 253
def ffn_setup(a, T, srds=True):
    L, T0, T1, T2, T3 = LANE, T, T+1, T+2, T+3
    RS = 8*9216 - 1024; RH = 16*9216 - 1024
    a(f"""
    s_lshr_b32 s4, s{S_GI}, 1
    s_and_b32 s6, s{S_GI}, 1
    s_mul_i32 s7, s4, 576
    s_mul_i32 s8, s6, 320
    s_add_u32 s8, s8, s7
    s_lshl_b32 s9, s6, 5
    s_add_u32 s9, s9, s7
    s_add_u32 s9, s9, 256
    s_lshl_b32 s{S_BF}, s8, 1
    s_lshl_b32 s{S_BH}, s9, 1
    s_lshl_b32 s10, s{S_MT}, 2
    s_add_u32 s10, s10, s{S_WAVE}
    s_mul_i32 s{S_HO}, s10, 36864
    s_mul_i32 s{S_M0F}, s{S_WAVE}, 6144
    s_lshl_b32 s{S_M0D}, s{S_WAVE}, 10
    s_mov_b32 s{S_KT}, {f2u(-KT):#x}
    s_and_b32 s4, s{S_WAVE}, 1
    s_mul_i32 s5, s4, {48*9216}
    s_mul_i32 s6, s4, {96*9216}
    s_mul_i32 s7, s{S_WAVE}, {8*1152}
    v_lshlrev_b32 v{VL16}, 4, v{L}
    v_lshrrev_b32 v{T0}, 3, v{L}
    v_bfe_u32 v{T1}, v{L}, 4, 1
    v_lshlrev_b32 v{T1}, 1, v{T1}
    v_and_b32 v{T2}, 7, v{L}
    v_xor_b32 v{T1}, v{T1}, v{T2}
    v_lshlrev_b32 v{T1}, 4, v{T1}
    v_mul_u32_u24 v{T3}, 9216, v{T0}
    v_add_u32 v{T3}, s5, v{T3}
    v_add_u32 v{VF}, v{T3}, v{T1}
    v_xor_b32 v{T1}, 64, v{T1}
    v_add_u32 v{VF+1}, v{T3}, v{T1}
    v_add_u32 v{VF+2}, {2*RS}, v{VF}
    v_add_u32 v{VF+3}, {3*RS}, v{VF+1}
    v_add_u32 v{VF+1}, {RS}, v{VF+1}
    """)
    if srds:
        a(f"""
        s_cmp_ge_u32 s{S_WAVE}, 2
        s_cselect_b32 s{S_W}, s{P_WU}, s{P_WG}
        s_cselect_b32 s{S_W+1}, s{P_WU+1}, s{P_WG+1}
        s_mov_b32 s{S_W+2}, {D*DF*2:#x}
        s_mov_b32 s{S_W+3}, 0x20000
        """)
        srd(a, S_D, P_WD, D*DF*2)
    a(f"""
    v_lshrrev_b32 v{T0}, 2, v{L}
    v_mul_u32_u24 v{T3}, 9216, v{T0}
    v_add_u32 v{T3}, s6, v{T3}
    v_and_b32 v{T0}, 3, v{L}
    v_lshrrev_b32 v{T1}, 5, v{L}
    v_lshlrev_b32 v{T1}, 1, v{T1}
    v_xor_b32 v{T0}, v{T0}, v{T1}
    v_lshl_add_u32 v{VH}, v{T0}, 4, v{T3}
    v_add_u32 v{VH+1}, {RH}, v{VH}
    v_add_u32 v{VH+2}, {2*RH}, v{VH}
    v_add_u32 v{VH+3}, {3*RH}, v{VH}
    v_lshrrev_b32 v{T0}, 3, v{L}
    v_mul_u32_u24 v{T1}, 1152, v{T0}
    v_add_u32 v{T1}, s7, v{T1}
    v_and_b32 v{T0}, 6, v{T0}
    v_and_b32 v{T2}, 7, v{L}
    v_xor_b32 v{T0}, v{T0}, v{T2}
    v_lshl_add_u32 v{VD}, v{T0}, 4, v{T1}
    v_lshrrev_b32 v{T2}, 4, v{L}
    v_bfe_u32 v{T0}, v{L}, 2, 2
    v_and_b32 v{T3}, 3, v{L}
    v_lshlrev_b32 v{T3}, 3, v{T3}
    v_lshl_add_u32 v{T1}, v{T2}, 3, v{T0}
    v_lshl_add_u32 v{TF}, v{T1}, 7, v{T3}
    v_lshl_add_u32 v{TH}, v{T1}, 6, v{T3}
    v_lshl_add_u32 v{T1}, v{T2}, 2, v{T0}
    v_lshl_add_u32 v{TD}, v{T1}, 7, v{T3}
    v_bfe_u32 v{T1}, v{T1}, 1, 2
    v_lshl_add_u32 v{TD}, v{T1}, 5, v{TD}
    v_and_b32 v{T2}, 1, v{T2}
    v_lshl_add_u32 v{TH}, v{T2}, 5, v{TH}
    v_lshrrev_b32 v{T0}, 1, v{T0}
    v_lshl_add_u32 v{T0}, v{T2}, 1, v{T0}
    v_lshl_add_u32 v{TF}, v{T0}, 5, v{TF}
    """)
    for o in base_ops(RBF, TF, 3, 4) + base_ops(RBH, TH, 2, 2): a(o)
    a(f"""
    v_lshrrev_b32 v{T0}, 4, v{L}
    v_bfe_u32 v{T1}, v{L}, 2, 2
    v_lshl_add_u32 v{T1}, v{T0}, 2, v{T1}
    v_and_b32 v{T2}, 3, v{L}
    v_lshlrev_b32 v{T3}, 3, v{T2}
    v_lshl_add_u32 v{TD2}, v{T1}, 6, v{T3}
    v_and_b32 v{T0}, 1, v{T0}
    v_lshl_add_u32 v{TD2}, v{T0}, 5, v{TD2}
    v_lshlrev_b32 v{T0}, 1, v{T0}
    v_xor_b32 v{T2}, v{T2}, v{T0}
    v_lshrrev_b32 v{T1}, 2, v{L}
    s_lshl_b32 s4, s{S_WAVE}, 4
    v_add_u32 v{T1}, s4, v{T1}
    v_mul_u32_u24 v{T1}, 1152, v{T1}
    v_lshl_add_u32 v{VD2}, v{T2}, 4, v{T1}
    """)
    a(f"""
    {f's_mov_b32 s4, s{S_MT}' if PFWHO[0] == 'early' else f's_add_u32 s4, s{S_MT}, 9'}
    s_and_b32 s4, s4, 15
    s_mul_i32 s4, s4, {2*PFN}
    s_and_b32 s5, s{S_WAVE}, 1
    s_mul_i32 s5, s5, {PFN}
    s_add_u32 s4, s4, s5
    v_min_u32 v{VPF}, {PFN-1}, v{L}
    v_add_u32 v{VPF}, s4, v{VPF}
    v_mul_u32_u24 v{VPF}, 9216, v{VPF}
    """)

def ffn_setup2(a, T):
    if DYN[0]:
        a(f"""
        s_lshl_b32 s4, s{S_MT}, 2
        s_add_u32 s4, s4, s{S_WAVE}
        s_mul_i32 s4, s4, {21*1152}
        s_cmp_ge_u32 s{S_MT}, 7
        s_cselect_b32 s4, 0x40000000, s4
        v_min_u32 v{VPD}, 54, v{LANE}
        v_mul_u32_u24 v{T}, 52, v{VPD}
        v_lshrrev_b32 v{T}, 8, v{T}
        v_mul_u32_u24 v{T+1}, 5, v{T}
        v_sub_u32 v{VPD}, v{VPD}, v{T+1}
        v_lshlrev_b32 v{VPD}, 7, v{VPD}
        v_mul_u32_u24 v{T}, 1152, v{T}
        v_add3_u32 v{VPD}, v{VPD}, v{T}, s4
        s_lshr_b32 s4, s{S_GI}, 1
        s_mul_i32 s4, s4, {576*1152}
        s_and_b32 s5, s{S_GI}, 1
        s_lshl_b32 s5, s5, 9
        s_add_u32 s{S_PD}, s4, s5
        """)
    if not DYN[0]: a(f"""
    {f's_mov_b32 s5, s{S_MT}' if PFWHO[0] == 'early' else f's_add_u32 s5, s{S_MT}, 9'}
    s_and_b32 s5, s5, 15
    s_lshl_b32 s4, s5, 2
    s_add_u32 s4, s4, s{S_WAVE}
    s_mul_i32 s4, s4, {2*PFD}
    s_cmp_ge_u32 s5, 7
    s_cselect_b32 s4, 0x800000, s4
    v_min_u32 v{VPD}, {PFD-1}, v{LANE}
    v_add_u32 v{VPD}, s4, v{VPD}
    v_lshlrev_b32 v{VPD}, 7, v{VPD}
    s_mul_i32 s{S_PD}, s{S_GI}, {288*1152}
    """)
    a(f"""
    s_and_b32 s9, s{S_GI}, 1
    s_lshr_b32 s10, s{S_GI}, 1
    s_mul_i32 s11, s10, {576*1152}
    s_mul_i32 s3, s9, 640
    s_add_u32 s3, s3, s11
    s_mul_i32 s4, s9, {320*1152}
    s_add_u32 s{S_DF}, s3, s4
    s_sub_u32 s4, {320*1152}, s4
    s_add_u32 s{S_PF}, s3, s4
    s_mul_i32 s4, s9, {32*1152}
    s_add_u32 s3, s3, {256*1152}
    s_add_u32 s{S_OH}, s3, s4
    s_sub_u32 s4, {32*1152}, s4
    s_add_u32 s{S_PH}, s3, s4
    s_mul_i32 s3, s9, 576
    s_sub_u32 s3, 512, s3
    s_add_u32 s{S_OFH}, s{S_DF}, s3
    s_add_u32 s{S_PFH}, s{S_PF}, s3
    s_sub_u32 s4, s{S_PH}, {32*1152}
    s_cmp_ge_u32 s{S_WAVE}, 2
    s_cselect_b32 s4, s4, s{S_OH}
    s_add_u32 s{S_88}, s4, s3
    s_lshl_b32 s10, s10, 6
    s_lshl_b32 s3, s{S_MT}, 2
    s_add_u32 s10, s10, s3
    s_add_u32 s10, s10, s{S_WAVE}
    s_mul_i32 s10, s10, 36864
    s_mul_i32 s3, s9, {10*2048}
    s_add_u32 s{S_PO}, s10, s3
    s_lshl_b32 s3, s9, 11
    s_add_u32 s3, s3, {8*2048}
    s_add_u32 s{S_POH}, s10, s3
    s_lshl_b32 s3, s2, 2
    s_add_u32 s3, s3, s{S_WAVE}
    s_xor_b32 s9, s3, {28 if DYN[0] else 32}
    s_mul_i32 s{S_XO}, s3, 18432
    s_mul_i32 s{S_XP}, s9, 18432
    s_lshl_b32 s3, s3, 8
    s_add_u32 s{S_FO}, s3, {FE}
    s_lshl_b32 s9, s9, 8
    s_add_u32 s{S_FP}, s9, {FE}
    """)

    srd(a, S_H, P_WS, NB_SD, WS_H2)
    srd(a, S_P, P_WS, NB_P, WS_P)

def default_pf(c3=(5,), h=(11,), d=(8, 9), c2=()):
    PF = {}
    for w, xs in ((2, c2), (3, c3), (4, h), ('D', d)):
        for pc, x in enumerate(xs): PF.setdefault(x, []).append((w, pc))
    return PF

def ffn_main(a, hops=None, R=16, DBAR=16, RD_MARGIN=6, MINLEAD=5, store_flags=' sc1', order=0, RLX=False, DB2=20, ASKL=10, DDE=True, DDG=True, SKEW=0, TK=51, KMAX=2, MID=False, CH6=False, dmafl='', ASK3=None, FLAG_D=56, ASK_D=56, ASK1=40, ASK2=290, NPRO=2, verbose=False,
             DEBT=2.0, WM=8, GSPAN=44, HSPAN=30, stamper=None, NP2=6, BG=1, BG0=5, CPF=0, CPD=4, stagestamp=False, nobar=False, nodma=False, nogelu=False, nostore=False, PF=None, GDL=None, PPACE=10, HPACE=None):
    if PF is None: PF = default_pf()
    DI = down_items(order)
    NST = 27 + (len(DI) + 5)//6
    vm = []
    def vm_wait_n(tag):
        idx = [i for i, t in enumerate(vm) if t == tag]
        if not idx: return None
        n = len(vm) - 1 - max(idx)
        assert n <= 63
        return n
    def h2_ops(q):
        ops = []
        for mt in range(2):
            for n, ks in enumerate(range(3*q, 3*q+3)):
                sc = [f"s_add_u32 s{S_HS}, s{S_HO}, {mt*18432 + 3*q*1024}"] if n == 0 else []
                o = f" offset:{n*1024}" if n else ""
                r = H2 + 8*ks + 4*mt
                ops.append((sc, f"buffer_load_dwordx4 a[{r}:{r+3}], v{VL16}, s[{S_H}:{S_H+3}], s{S_HS} offen{o} sc1"))
        return ops
    dq = []
    for q in range(6):
        ops = h2_ops(q)
        if q >= NP2: ops = dma_ops(q, DI) + ops
        tagof = lambda ins: ('H', q) if (RLX and not ins.endswith('lds')) else ('D', q)
        if q < NPRO:
            for sc, ins in ops:
                for s_ in sc: a(s_)
                a(ins); vm.append(tagof(ins))
        else:
            dq += [[q, list(sc), ins, tagof(ins)] for sc, ins in ops]

    F = []; M = []
    def tile(base, idx): return base + 4*idx
    for st in range(NST):
        if CH6 and 6 <= st < 24:
            if st % 2 == 0: continue
            c = st // 6
            for ft in range(4):
                for mat in range(2):
                    f0 = len(F)
                    for x in range(6):
                        imm = mat*12288 + (x % 3)*4096
                        F.append(dict(st=st - 1 + x//3, rb=ft, imm=(imm, imm + 512)))
                    for mt in range(2):
                        for x in range(6):
                            ks = 3*((st - 1) % 6) + x
                            t = (ft*2 + mat)*2 + mt
                            last = ks == 17
                            M.append(dict(st=st, f=f0+x, B=f"a[{H2+8*ks+4*mt}:{H2+8*ks+4*mt+3}]",
                                          C=None if ks == 0 else tile(ACC, t), D=tile(STG if last else ACC, t),
                                          done=('G', c, ft, mt) if (last and mat == 1) else None))
        elif st < 27:
            full = st < 24
            nks = 3 if full else 6
            nft = 4 if full else 2
            c = st // 6 if full else 4
            k0 = 3*(st % 6) if full else 6*(st - 24)
            rowb = 128 if full else 64
            for kb in range(0, nks, 3):
                for ft in range(nft):
                    for mat in range(2):
                        f0 = len(F)
                        for x in range(3):
                            imm = mat*12288 + (kb + x)*32*rowb
                            F.append(dict(st=st, rb=ft, imm=(imm, imm + 4*rowb)))
                        for mt in range(2):
                            for x in range(3):
                                ks = k0 + kb + x
                                t = (ft*2 + mat)*2 + mt
                                last = ks == 17
                                Dd = tile(STG if (last and full) else ACC, t)
                                M.append(dict(st=st, f=f0+x, B=f"a[{H2+8*ks+4*mt}:{H2+8*ks+4*mt+3}]",
                                              C=None if ks == 0 else tile(ACC, t), D=Dd,
                                              done=('G', c, ft, mt) if (last and mat == 1) else None))
        else:
            items = DI[6*(st-27):6*(st-27)+6]
            def bop(src, k, mt):
                if src == 0: return dict(B=f"v[{HH+8*k+4*mt}:{HH+8*k+4*mt+3}]", hh=(k, mt))
                return dict(B=f"a[{8*k+4*mt}:{8*k+4*mt+3}]", vmneed=('P', k, mt))
            if items[0][0] == 'M':
                if st < NST - 1: continue
                allm = DI[72:]
                for sec in range(4):
                    for g0 in range(0, 18, 6):
                        f0 = len(F)
                        for x in range(6):
                            F.append(dict(st=NST - 3 + g0//6, rb=sec, imm=(x*4096, x*4096 + 2048), kind='M'))
                        for mt in range(2):
                            for x in range(6):
                                _, src, k = allm[g0 + x]
                                t_ = HBUF[sec & 1] + 4*mt
                                M.append(dict(st=st, f=f0+x, C=None if g0 + x == 0 else t_, D=t_, sec=sec if (g0 + x + mt == 0) else None,
                                              done=('M', sec, 0, mt) if g0 + x == 17 else None, **bop(src, k, mt)))
                continue
            j = 0
            while j < len(items):
                n = 1
                if items[j][0] == 'F':
                    b = items[j][1]
                    while n < 3 and j + n < len(items) and items[j+n][:2] == ('F', b): n += 1
                    steps = [(it[2], it[3], (j+x)*4096, 2048) for x, it in enumerate(items[j:j+n])]
                    nct, kind = 4, 'F'
                    tl = lambda ct, mt: tile(OBUF[b], mt*4 + ct)
                else:
                    b = 4
                    steps = [(sk[0], sk[1], j*4096 + x*2048, 1024) for x, sk in enumerate(items[j][1:])]
                    nct, kind = 2, 'H'
                    tl = lambda ct, mt: HBUF[mt] + 4*ct
                for ct in range(nct):
                    f0 = len(F)
                    for (src, k, imm, du) in steps:
                        F.append(dict(st=st, rb=ct, imm=(imm, imm + du), kind=kind))
                    for mt in range(2):
                        for x, (src, k, imm, du) in enumerate(steps):
                            first = (src, k) == (0, 0); last = (src, k) == (1, 8)
                            M.append(dict(st=st, f=f0+x, C=None if first else tl(ct, mt), D=tl(ct, mt),
                                          done=('O', b, ct, mt) if (last and (ct & 1)) else None, **bop(src, k, mt)))
                j += n
    N = len(M)
    assert N == (2016 if DYN[0] else 1944)
    if RLX:
        for m in M:
            if m['st'] < 6: m['vmneed'] = ('H', m['st'])
    for i, m in enumerate(M): F[m['f']]['last'] = i
    for i, m in reversed(list(enumerate(M))): F[m['f']]['first'] = i
    st_end = {}
    for i, m in enumerate(M): st_end[m['st']] = i + 1

    Q = []
    def add(ins, w, regs, hh=None, ready=0, vmt=None, sc=False):
        Q.append(dict(ins=ins, w=w, regs=regs, hh=hh, ready=ready, vm=vmt, sc=sc))
    def gelu_items(c, ft, mt, ready):
        base = STG if c < 4 else ACC
        G, U = tile(base, (ft*2)*2 + mt), tile(base, (ft*2+1)*2 + mt)
        k = (2*c + (ft >> 1)) if c < 4 else 8
        d = HH + 8*k + 4*mt + 2*(ft & 1)
        E = range(4)
        seq = []
        seq += [(f"v_fma_f32 v{TMP+e}, -v{G+e}, v{G+e}, s{S_KT}", 1) for e in E]
        seq += [(f"v_mul_f32 v{TMP+e}, v{G+e}, v{TMP+e}", 1) for e in E]
        seq += [(f"v_exp_f32 v{TMP+e}, v{TMP+e}", 2) for e in E]
        seq += [(f"v_mul_f32 v{U+e}, v{G+e}, v{U+e}", 1) for e in E]
        seq += [(f"v_add_f32 v{TMP+e}, 1.0, v{TMP+e}", 1) for e in E]
        seq += [(f"v_rcp_f32 v{TMP+e}, v{TMP+e}", 2) for e in E]
        seq += [(f"v_mul_f32 v{U+e}, v{U+e}, v{TMP+e}", 1) for e in E]
        seq += [(f"v_cvt_pk_bf16_f32 v{d+i}, v{U+2*i}, v{U+2*i+1}", 1) for i in range(2)]
        for n, (ins, w) in enumerate(seq):
            add(ins, w, (G, U), hh=(k, mt) if n >= len(seq)-2 else None, ready=ready)
        if ft & 1:
            x = 2*k + mt
            if x % 4 == 0: add(f"s_add_u32 s{S_XS}, s{S_XO}, {x*1024}", 0, ('x',), sc=True)
            o = f" offset:{(x%4)*1024}" if x % 4 else ""
            add(f"buffer_store_dwordx4 v[{HH+4*x}:{HH+4*x+3}], v{VL16}, s[{S_X}:{S_X+3}], s{S_XS} offen{o} sc1", 2, ('x',), vmt=('X', x))
    def out_items(b, ct, mt, ready):
        t0 = tile(OBUF[b], mt*4 + ct - 1) if b < 4 else HBUF[mt]
        regs = (t0, t0+4)
        for x in range(4):
            add(f"v_cvt_pk_bf16_f32 v{t0+x}, v{t0+2*x}, v{t0+2*x+1}", 1, regs, ready=ready)
        ip = ct >> 1
        if ct == 1 and mt == 0:
            add(f"s_add_u32 s{S_SS}, s{S_PO}, {b*4096}" if b < 4 else f"s_mov_b32 s{S_SS}, s{S_POH}", 0, regs, ready=ready, sc=True)
        o = f" offset:{(2*ip+mt)*1024}" if (2*ip+mt) else ""
        add(f"buffer_store_dwordx4 v[{t0}:{t0+3}], v{VL16}, s[{S_P}:{S_P+3}], s{S_SS} offen{o}{store_flags}", 2, regs, ready=ready, vmt=('S', b, ct, mt))

    def mid_items(sec, _, mt, ready):
        t0 = HBUF[sec & 1] + 4*mt
        for x in range(2):
            add(f"v_cvt_pk_bf16_f32 v{t0+x}, v{t0+2*x}, v{t0+2*x+1}", 1, (t0,), ready=ready)
        if sec and mt == 0: add(f"s_add_u32 s{S_PM}, s{S_PM}, s{(S_D1, S_D2, S_D1)[sec-1]}", 0, (t0,), ready=ready, sc=True)
        add(f"buffer_store_dwordx2 v[{t0}:{t0+1}], v{VL16}, s[{S_P}:{S_P+3}], s{S_PM} offen" + (" offset:1024" if mt else "") + store_flags, 2, (t0,), ready=ready, vmt=('S', 4, sec, mt))
    stubs = []
    cnt = [0]; cur = [0]; acts = []; vm_done = [-1]; slow = []
    def vm_wait(tag, extra=''):
        idx = max(i for i, t in enumerate(vm) if t == tag)
        if idx <= vm_done[0] and not extra: return False
        n = len(vm) - 1 - idx
        assert n <= 63
        E_(f"s_waitcnt vmcnt({n}){extra}")
        vm_done[0] = max(vm_done[0], idx)
        return True
    def E_(ins):
        cnt[0] += 1
        if dmafl and ins.startswith('buffer_load') and ins.endswith(' lds'): ins = ins[:-4] + dmafl + ' lds'
        if nodma and ins.startswith('buffer_load') and 'lds' in ins: ins = 's_nop 0'
        if nostore and ins.startswith('buffer_store_dwordx4'): ins = 's_nop 0'
        if nogelu and ins.split()[0] in ('v_fma_f32', 'v_mul_f32', 'v_exp_f32', 'v_rcp_f32', 'v_add_f32'): return
        a(ins)
        if hops: hops.add(ins)
    def emit_q():
        it = Q[0]
        if cnt[0] < it['ready']:
            n = it['ready'] - cnt[0]
            while n > 0:
                k = min(n, 16); E_(f"s_nop {k-1}"); cnt[0] += k-1; n -= k
        Q.pop(0); E_(it['ins'])
        if it['vm']:
            vm.append(it['vm'])
            if it['vm'] == ('X', 11): acts.append([cur[0] + FLAG_D, 'flag', 0, it['vm']])
            if it['vm'] == ('S', 1, 3, 1): acts.append([cur[0] + FLAG_D, 'flag', 2, it['vm']])
            if it['vm'] == ('S', 2, 3, 1) and MID: acts.append([cur[0] + FLAG_D, 'flag', 3, it['vm']])
            if it['vm'] == ('X', 17): acts.append([cur[0] + FLAG_D, 'flag', 1, it['vm']])
        return it
    def needs(m, it):
        if m.get('hh') is not None and it['hh'] == m['hh']: return True
        if m['D'] in it['regs'] and m['D'] != m['C']: return True
        return False
    def deadline(i):
        worst = 0.0; cum = 0; dl_cache = {}
        for it in Q:
            cum += it['w']
            key = (it['regs'], it['hh'])
            if key not in dl_cache:
                dl = None
                for j in range(i+1, min(N, i+400)):
                    if needs(M[j], it): dl = j; break
                dl_cache[key] = dl
            dl = dl_cache[key]
            if GDL is not None and it['vm'] == ('X', 17): dl = st_end[26] + GDL
            if GDL is not None and it['vm'] == ('X', 15): dl = st_end[26] + GDL - 80
            if dl is not None:
                worst = max(worst, cum/max(1, dl - i - 1))
        if Q and worst == 0: worst = cum/max(1, min(N - i, 60))
        return worst

    lds = []; covered = [-1]; rd_next = [0]; rd_gap = {}; enabled = [0]
    def rbreg(fr):
        sl = fr['st'] % NSLOT
        if fr.get('kind') == 'M': return RM[2*fr['rb'] + (sl >> 1) - 1], (sl & 1)*SLOT
        if fr.get('kind') == 'H': return RB2[2*(sl >> 1) + fr['rb']], (sl & 1)*SLOT
        if 24 <= fr['st'] < 27: return RBH + 2*(sl >> 1) + fr['rb'], (sl & 1)*SLOT
        return RBF + 4*(sl >> 1) + fr['rb'], (sl & 1)*SLOT
    def can_read(i):
        j = rd_next[0] >> 1
        if j >= len(F) or F[j]['st'] > enabled[0]: return False
        return j < R or F[j-R]['last'] <= i
    def emit_read(i):
        j, p = rd_next[0] >> 1, rd_next[0] & 1
        f = FR + 4*(j % R) + 2*p
        assert not (F[j]['st'] >= 27 and any(it['regs'] == ('rb',) for it in Q))
        assert not (F[j].get('kind') in ('H', 'M') and any(it['regs'] == ('rb2',) for it in Q))
        r_, o_ = rbreg(F[j])
        E_(f"ds_read_b64_tr_b16 a[{f}:{f+1}], v{r_} offset:{F[j]['imm'][p] + o_}")
        lds.append(j); rd_next[0] += 1
        if p: rd_gap[j] = i
    def emit_wait(i_next, i):
        fj = M[i_next]['f']
        if covered[0] >= fj: return False
        while (rd_next[0] >> 1) <= fj:
            assert can_read(i), (i, fj)
            emit_read(i)
        tgt = fj
        for k in range(fj+1, min(fj+6, len(F))):
            if k in rd_gap and rd_gap[k] <= i - WM: tgt = k
            else: break
        n = len(lds) - 1 - max(p_ for p_ in range(max(0, len(lds) - 80), len(lds)) if lds[p_] == tgt)
        E_(f"s_waitcnt lgkmcnt({min(n, 15)})")
        covered[0] = tgt
        return True

    while can_read(-1) and len(lds) < 12: emit_read(-1)
    if RLX: vm_wait(('H', 0))
    else: E_(f"s_waitcnt vmcnt({vm_wait_n(('D', 0))})")
    if stamper: stamper()
    if stagestamp: E_("s_memtime s[98:99]"); E_("s_waitcnt lgkmcnt(0)"); E_(f"v_writelane_b32 v{vst()}, s98, 63")
    if SKEW: E_(f"s_bitcmp1_b32 s{S_WAVE}, {SKEW-1}"); E_("s_cselect_b64 vcc, -1, 0")
    E_("s_cmp_eq_u32 0, 1")
    emit_wait(0, -1)

    stats = dict(over=0, flush=0, late=0)
    pq = []; pnext = [0]
    freed = [-1]; gspan = [HSPAN]; gn = [len(dq)]
    cred_r = 0.0; cred_v = 0.0; cred_g = 0.0
    def release(st):
        for x in range(freed[0] + 1, st + 1):
            if (x in CPF if isinstance(CPF, tuple) else (CPF and x % CPF == 0)) and x + CPD < NST - 1:
                pq.append([98, [f"s_mov_b32 s{S_PS}, L_st{min(y for y in st_end if y >= x+CPD)}-L_common"], f"buffer_load_dword v239, v{VPC}, s[52:55], s{S_PS} offen", ('pf', 0)])
            for w, pc in PF.get(x, ()):
                if w == 'D': pq.append([98, [f"s_add_u32 s{S_PS}, s{S_PD}, {pc*11*1152 if DYN[0] else pc*PFD*128}"], f"buffer_load_dword v239, v{VPD}, s[{S_D}:{S_D+3}], s{S_PS} offen", ('pf', 0)])
                else:
                    sc_ = f"s_add_u32 s{S_PS}, s{S_BF if w < 4 else S_BH}, {(128*w if w < 4 else 0) + pc*PFN*9216}"
                    pq.append([98, [sc_], f"buffer_load_dword v239, v{VPF}, s[{S_W}:{S_W+3}], s{S_PS} offen", ('pf', 0)])
            if x + NSLOT < NST:
                dq.extend([[x+NSLOT, list(sc), ins] for sc, ins in dma_ops(x+NSLOT, DI)])
            if x == 23:
                Q[0:0] = [dict(ins=o, w=1, regs=('rb',), hh=None, ready=0, vm=None, sc=False) for o in base_ops(RBF, TD, 3, 4)]
            if x == 26 and DYN[0]:
                ops2 = [f"v_xor_b32 v{RM[0]}, s{S_T0}, v{TD}", f"v_add_u32 v{RM[0]}, {2*SLOT}, v{RM[0]}", f"v_add_u32 v{RM[1]}, {2*SLOT}, v{RM[0]}"]
                ops2 += [f"v_xor_b32 v{RM[2*q_+p_]}, {32*q_}, v{RM[p_]}" for q_ in range(1, 4) for p_ in range(2)]
                Q[0:0] = [dict(ins=o, w=1, regs=('rb2',), hh=None, ready=0, vm=None, sc=False) for o in ops2]
            if x == 25 and DYN[0]:
                Q[0:0] = [dict(ins=f"v_mov_b32 v{VTAG+1}, s{S_TM}", w=1, regs=('t',), hh=None, ready=0, vm=None, sc=False)]
            if x == 26 and not DYN[0]:
                ops2 = []
                for p in range(3):
                    ops2 += [f"v_add_u32 v{RB2[2*p]}, {2*SLOT*p}, v{TD2}", f"v_xor_b32 v{RB2[2*p+1]}, 32, v{RB2[2*p]}"]
                Q[0:0] = [dict(ins=o, w=1, regs=('rb2',), hh=None, ready=0, vm=None, sc=False) for o in ops2]
        gspan[0] = GSPAN*(st - freed[0]); gn[0] = len(dq)
        freed[0] = st
    pub = [1]; asked = [0]; askpos = [0]; askgap = [0]; askf = [0]; vm_started = [False]
    lastf = {}
    for j_, fr in enumerate(F): lastf[fr['st']] = j_
    if RLX: enabled[0] = 1
    T0 = st_end[26]
    acts += [[T0 + ASK1, 'ask', 0], [T0 + ASK2, 'ask', 1]]
    if ASK3: acts.append([T0 + ASK3, 'ask3', 0])
    for i in range(N):
        m = M[i]; cur[0] = i
        flushed = False
        while any(needs(m, it) for it in Q):
            stats['flush'] += emit_q()['w']; flushed = True
        if flushed: E_("s_nop 1"); cnt[0] += 1
        if m.get('sec') is not None:
            assert not acts and not dq and not pq
            E_(f"s_cmp_le_u32 s{S_N}, {m['sec']}"); E_(f"s_cbranch_scc1 L_mexit{m['sec']}")
            stubs.append(f"L_mexit{m['sec']}:\ns_nop 7\n" + "\n".join(it['ins'] for it in Q) + "\ns_branch L_ffn_end")
        f = FR + 4*(m['f'] % R)
        Cs = "0" if m['C'] is None else f"v[{m['C']}:{m['C']+3}]"
        E_(f"v_mfma_f32_16x16x32_bf16 v[{m['D']}:{m['D']+3}], a[{f}:{f+3}], {m['B']}, {Cs}")
        if m['done']:
            kind, x, y, mt = m['done']
            dict(G=gelu_items, O=out_items, M=mid_items)[kind](x, y, mt, cnt[0] + 9)
        st = m['st']
        used = 0; sc_used = 0
        if hops and hops.due(24):
            a(hops.emit()); cnt[0] += 1; sc_used = 1
        bar_gap = st_end[st] - DBAR - 1
        if i == bar_gap: a(f"L_st{st}:")
        if DYN[0] and st == 25 and i == bar_gap - 8:
            E_(f"s_memrealtime s[{S_TM}:{S_TM+1}]"); sc_used = 1
        if not RLX and i == bar_gap and st < NST - 1 and st == enabled[0]:
            nxt_en = min(st + (BG if st >= BG0 else 1), NST - 1)
            if DYN[0] and nxt_en >= NST - 3: nxt_en = NST - 1 if st == NST - 4 else NST - 4
            while (rd_next[0] >> 1) < len(F) and F[rd_next[0] >> 1]['st'] <= st:
                emit_read(i); used += 1
            while any(d[0] <= nxt_en for d in dq):
                d = dq.pop(0)
                for x in d[1]: E_(x)
                E_(d[2]); vm.append(d[3] if len(d) > 3 else ('D', d[0])); used += 2; stats['late'] += 1
            tg = [('D', x) for x in range(nxt_en, st, -1) if ('D', x) in vm]
            if tg: vm_wait(max(tg, key=lambda t: max(i_ for i_, u in enumerate(vm) if u == t)), ' lgkmcnt(0)')
            else: E_("s_waitcnt lgkmcnt(0)")
            if stagestamp == 1:
                E_("s_memtime s[98:99]"); E_("s_waitcnt lgkmcnt(0)"); E_(f"v_writelane_b32 v{vst()}, s98, {st}")
            if stagestamp == 3 and st in (5, 23, 33):
                ix = {5: 24, 23: 25, 33: 26}[st]
                E_("s_memtime s[98:99]"); E_("s_waitcnt lgkmcnt(0)"); E_(f"v_writelane_b32 v{vst()}, s98, {ix}")
                E_("s_memrealtime s[98:99]"); E_("s_waitcnt lgkmcnt(0)"); E_(f"v_writelane_b32 v255, s98, {ix}")
            if not nobar: E_("s_barrier")
            if SKEW:
                E_(f"s_cbranch_vccnz L_skew{st}"); a(f"L_skew{st}:")
            sc_used = 2
            covered[0] = (rd_next[0] >> 1) - 1
            enabled[0] = nxt_en
            release(st)
        if RLX:
            s_ = pub[0]
            if s_ < NST and covered[0] >= lastf[s_-1] and not used and not sc_used and asked[0] != enabled[0]:
                while any(d[0] <= s_ + 1 and d[2].endswith('lds') for d in dq):
                    d = dq.pop(0)
                    for x in d[1]: E_(x)
                    E_(d[2]); vm.append(d[3] if len(d) > 3 else ('D', d[0])); stats['late'] += 1
                if ('D', s_ + 1) in vm: vm_wait(('D', s_ + 1))
                elif s_ + 1 < 6 and not vm_started[0]: pass
                E_(f"v_mov_b32 v{VPV}, {s_}"); E_(f"ds_write_b8 v{VPW}, v{VPV}")
                lds.append((rd_next[0] >> 1) - 0.5 + (rd_next[0] & 1)); used = 2; sc_used = 1; pub[0] += 1
            c_ = enabled[0]
            if c_ < NST - 1 and c_ >= 1 and pub[0] > c_:
                if asked[0] < c_ and i >= st_end[c_] - DB2 - ASKL and used < 2:
                    E_(f"ds_read_u8 v{VPX}, v{VPR}")
                    lds.append((rd_next[0] >> 1) - 0.5 + (rd_next[0] & 1)); askpos[0] = len(lds); askgap[0] = i; askf[0] = (rd_next[0] >> 1) - 1
                    asked[0] = c_; used += 1
                elif asked[0] == c_ and i >= askgap[0] + ASKL and used < 2 and not sc_used:
                    E_(f"s_waitcnt lgkmcnt({min(15, len(lds) - askpos[0])})")
                    covered[0] = max(covered[0], askf[0])
                    E_(f"v_cmp_gt_u32 vcc, {c_}, v{VPX}"); E_(f"s_cbranch_vccnz L_rslow{c_}"); a(f"L_rok{c_}:")
                    stubs.append(f"L_rslow{c_}:\ns_mov_b32 s{S_SPIN}, 0\nL_rspin{c_}:\nds_read_u8 v{VPX}, v{VPR}\ns_add_u32 s{S_SPIN}, s{S_SPIN}, 1\ns_waitcnt lgkmcnt(0)\n"
                                 f"v_cmp_gt_u32 vcc, {c_}, v{VPX}\ns_cbranch_vccz L_rok{c_}\ns_cmp_lt_u32 s{S_SPIN}, 0x100000\ns_cbranch_scc1 L_rspin{c_}\ns_branch L_rok{c_}")
                    used += 1; sc_used = 2
                    enabled[0] = c_ + 1
                    release(c_ - 1)
        if i + 1 < N and emit_wait(i + 1, i): sc_used += 1
        if i + 1 < N and M[i+1].get('vmneed'):
            while any(len(d) > 3 and d[3] == M[i+1]['vmneed'] for d in pq + dq):
                d = (pq if M[i+1]['vmneed'][0] == 'P' else dq).pop(0)
                for x in d[1]: E_(x)
                E_(d[2]); vm.append(d[3] if len(d) > 3 else ('D', d[0])); used += 2; stats['late'] += 1
            if vm_wait(M[i+1]['vmneed']): sc_used += 1
        due = [x for x in acts if x[0] <= i]
        if due and not sc_used and not used:
            act = due[0]; acts.remove(act)
            if act[1] == 'flag':
                vm_wait(act[3])
                if act[2] == 3: E_(f"s_add_u32 s{S_PS}, s{S_FD}, {FD3 - FD1}")
                if act[2] == 1 and DYN[0]: E_(f"buffer_store_dwordx2 v[{VTAG}:{VTAG+1}], off, s[{S_FL}:{S_FL+3}], s{S_FO} offset:128 sc1")
                else: E_(f"buffer_store_dword v{VTAG}, off, s[{S_FL}:{S_FL+3}], s{(S_FO, S_FO, S_FD, S_PS)[act[2]]}" + (" offset:128" if act[2] == 1 else "") + " sc1")
                vm.append(('F', act[2])); stats[f'flag{act[2]}'] = i - T0
            elif act[1] == 'ask3':
                E_(f"s_mov_b32 s{S_PS}, {FD1}")
                E_(f"buffer_load_dword v239, v{VEF}, s[{S_FL}:{S_FL+3}], s{S_PS} offen sc1")
                vm.append(('A', 3))
            elif act[1] == 'ask':
                if DYN[0]: E_(f"buffer_load_dwordx2 v[{VCK2}:{VCK2+1}], off, s[{S_FL}:{S_FL+3}], s{S_FP}" + (" offset:128" if act[2] else "") + " sc1")
                else: E_(f"buffer_load_dword v{VCHK}, off, s[{S_FL}:{S_FL+3}], s{S_FP}" + (" offset:128" if act[2] else "") + " sc1")
                vm.append(('A', act[2])); acts.append([i + ASK_D, 'test', act[2]])
            else:
                vm_wait(('A', act[2]))
                E_(f"v_cmp_ne_u32 vcc, s{S_TAG}, v{VCK2 if DYN[0] else VCHK}")
                E_(f"s_cbranch_vccnz L_xslow{act[2]}")
                a(f"L_xok{act[2]}:")
                if SKEW: E_(f"s_bitcmp1_b32 s{S_WAVE}, {SKEW-1}"); E_("s_cselect_b64 vcc, -1, 0")
                if DYN[0] and act[2] == 1:
                    for ins in f"""v_readfirstlane_b32 s3, v{VCK2+1}
                    s_nop 1
                    s_sub_u32 s3, s{S_TM}, s3
                    s_abs_i32 s{S_N}, s3
                    s_min_u32 s{S_N}, s{S_N}, 1000
                    s_add_u32 s{S_N}, s{S_N}, {TK//2}
                    s_mul_i32 s{S_N}, s{S_N}, {65536//TK + 1}
                    s_lshr_b32 s{S_N}, s{S_N}, 16
                    s_min_u32 s{S_N}, s{S_N}, {KMAX}
                    s_sub_u32 s{S_TM+1}, 2, s{S_N}
                    s_add_u32 s{S_N}, s{S_N}, 2
                    s_cmp_gt_i32 s3, 0
                    s_cselect_b32 s{S_N}, s{S_TM+1}, s{S_N}""".split('\n'): E_(ins.strip())
                new = []
                for x in (range(12) if act[2] == 0 else range(12, 18)):
                    sc_ = [f"s_add_u32 s{S_HS}, s{S_XP}, {x*1024}"] if x % 4 == 0 else []
                    o = f" offset:{(x%4)*1024}" if x % 4 else ""
                    new.append([99, sc_, f"buffer_load_dwordx4 a[{4*x}:{4*x+3}], v{VL16}, s[{S_X}:{S_X+3}], s{S_HS} offen{o} sc1", ('P', x >> 1, x & 1)])
                pq.extend(new)
            sc_used = 1; used = 2
        if not sc_used and hops and hops.due(48):
            a(hops.emit()); cnt[0] += 1; sc_used = 1
        if not sc_used and dq and dq[0][1]:
            E_(dq[0][1].pop(0)); sc_used = 1
        if not sc_used and pq and pq[0][1]:
            E_(pq[0][1].pop(0)); sc_used = 1
        if not sc_used and Q and Q[0]['sc'] and cnt[0] >= Q[0]['ready']:
            emit_q(); sc_used = 1
        jn = rd_next[0] >> 1
        lead = (F[jn]['first'] - i) if jn < len(F) else 999
        es = enabled[0]
        rem_r = sum(2 for fr in F[jn:jn+70] if fr['st'] <= es) - (rd_next[0] & 1) if jn < len(F) and F[jn]['st'] <= es else 0
        dl_r = (st_end[es] - (DB2 if RLX else DBAR + 1 + RD_MARGIN)) if es < NST - 1 else st_end[es] - 10
        cred_r = min(cred_r + rem_r/max(1, dl_r - i), 2.5)
        cred_v += deadline(i)
        npend = len(dq)
        if npend:
            cred_g = min(cred_g + (gn[0]/gspan[0] if st >= 4 else (1/HPACE if HPACE else max(6, npend)/HSPAN)), 1.5)
        want_g = dq and not dq[0][1] and cred_g >= 1 and lead >= 2*MINLEAD
        if want_g and used == 0 and not sc_used:
            d = dq.pop(0)
            E_(d[2]); vm.append(d[3] if len(d) > 3 else ('D', d[0])); cred_g -= 1; used = 2
        if pq and not pq[0][1] and used == 0 and not sc_used and i >= pnext[0] and lead >= 2*MINLEAD:
            d = pq.pop(0)
            E_(d[2]); vm.append(d[3]); used = 2; pnext[0] = i + PPACE
        nd = 0
        if used < 2 and can_read(i):
            head2 = Q and Q[0]['w'] == 2 and cnt[0] >= Q[0]['ready']
            if lead < 2*MINLEAD or cred_r >= 2: nd = 2
            elif cred_r >= 1: nd = 2 if ((head2 and DDE) or (want_g and DDG)) else 1
            elif not Q: nd = 1
            while nd and used < 2 and can_read(i):
                emit_read(i); used += 1; nd -= 1; cred_r -= 1
        while Q and cnt[0] >= Q[0]['ready'] and not Q[0]['sc']:
            w = Q[0]['w']
            if used + w <= 2: pass
            elif not DDE and w == 2 and used == 1 and cred_v >= 0: stats['over'] += 1
            elif cred_v >= DEBT + w and used + w <= 4 and used <= 2: stats['over'] += used + w - 2
            else: break
            emit_q(); used += w; cred_v -= w
        if not Q: cred_v = 0
    while Q: emit_q()
    if DYN[0]: a("L_ffn_end:")
    ffn_main.stubs = stubs
    if stagestamp: E_("s_memtime s[98:99]"); E_("s_waitcnt lgkmcnt(0)"); E_(f"v_writelane_b32 v{vst()}, s98, 62")
    assert not acts and not dq and not pq
    if ASK3: vm_wait(('A', 3))
    if verbose: print('ffn schedule:', stats, 'instr', cnt[0], 'hops', hops.n if hops else 0)

def ffn_slow_paths(a, spin_max, diag=False):
    for p in range(2):
        a(f"""
        L_xslow{p}:
        s_mov_b32 s{S_SPIN}, 0
        L_xspin{p}:
        {f'buffer_load_dwordx2 v[{VCK2}:{VCK2+1}]' if DYN[0] else f'buffer_load_dword v{VCHK}'}, off, s[{S_FL}:{S_FL+3}], s{S_FP}{' offset:128' if p else ''} sc1
        s_add_u32 s{S_SPIN}, s{S_SPIN}, 1
        s_waitcnt vmcnt(0)
        {f'v_writelane_b32 v255, s{S_SPIN}, {30+p}' if diag else ''}
        v_cmp_ne_u32 vcc, s{S_TAG}, v{VCK2 if DYN[0] else VCHK}
        s_cbranch_vccz L_xok{p}
        s_cmp_lt_u32 s{S_SPIN}, {spin_max}
        s_cbranch_scc1 L_xspin{p}
        s_branch L_xok{p}
        """)

def ffn_setup3(a, early_only=False):
    if early_only == 2:
        a(f"""
        s_bfe_u32 s4, s2, 0x10003
        s_lshl_b32 s5, s{S_MT}, 1
        s_add_u32 s4, s4, s5
        s_lshl_b32 s4, s4, 2
        s_add_u32 s4, s4, s{S_WAVE}
        s_lshl_b32 s4, s4, 2
        s_cmp_ge_u32 s{S_MT}, 7
        s_cselect_b32 s4, 0x800000, s4
        v_and_b32 v{VPC}, 3, v{LANE}
        v_add_u32 v{VPC}, s4, v{VPC}
        v_lshlrev_b32 v{VPC}, 7, v{VPC}
        """)
        return
    a(f"""
    s_lshl_b32 s4, s{S_WAVE}, 4
    {f's_cmp_ge_u32 s{S_MT}, 7' if early_only else ''}
    {'s_cselect_b32 s4, 0x800000, s4' if early_only else ''}
    v_and_b32 v{VPC}, 15, v{LANE}
    v_add_u32 v{VPC}, s4, v{VPC}
    v_lshlrev_b32 v{VPC}, 7, v{VPC}
    """)

def ffn_setup4(a):
    a(f"""
    s_and_b32 s3, s{S_GI}, 1
    s_mul_i32 s{S_DM}, s3, 640
    s_sub_u32 s{S_DM}, 512, s{S_DM}
    s_mul_i32 s{S_T0}, s3, 96
    s_mul_i32 s{S_PM}, s3, 8
    s_add_u32 s{S_PM}, s{S_PM}, s{S_POH}
    s_cmp_eq_u32 s3, 0
    s_cselect_b32 s{S_D1}, 8, -8
    s_mov_b32 s{S_D2}, 2040
    s_cselect_b32 s{S_D2}, s{S_D2}, {(-2040) & 0xffffffff:#x}
    """)

def ffn_setup5(a, off, part):
    if part == 0:
        a(f"""
        v_lshlrev_b32 v{VPW}, 2, v{LANE}
        v_add_u32 v{VPW}, {off}, v{VPW}
        v_add_u32 v{VPW}, s{S_WAVE}, v{VPW}
        v_mov_b32 v{VPV}, 0
        ds_write_b8 v{VPW}, v{VPV}
        s_waitcnt lgkmcnt(0)
        """)
    else:
        a(f"""
        v_and_b32 v{VPV}, 3, v{LANE}
        v_lshl_add_u32 v{VPR}, v{LANE}, 2, v{VPV}
        v_add_u32 v{VPR}, {off}, v{VPR}
        """)
```

```python
import sys
from common import *
from ffn import *
NAME = 'adaLN_cond__ssm_conv_h3__glu_gated_geglu__prompt_kernel'
WS_EPOCH = 0x0A00000
WS_FL = 0x0A10000
FB = 0x8000
FC = 0x10000
FA = 0xE8000
FZ = 0xA0000
NB_MOD = 6*D*4
KSTR = 4160
WAVE_LDS = 4*KSTR + 4608
T_OFF = 4*WAVE_LDS
STAT_OFF = RING
MOD_OFF = RING + 1024
LDS_TOTAL = MOD_OFF + 14848
VRZ, VRM, VRH, VRP = 200, 201, 202, 203
NCONV, NMOD = 144, 54
QP, ST = 240, 252
DIAG = 255
SPIN_MAX = 200000

class G:
    def __init__(self, diag=False, **kw):
        DYN[0] = bool(kw.get('DYN'))
        self.a = Asm(); self.diag = diag; self.kw = kw; self.nl = 0; self.nst = 0; self.names = []
    def lab(self, p):
        self.nl += 1; return f"L_{p}{self.nl}"
    def gi_code(self):
        if not DYN[0]:
            return f"s_and_b32 s{S_GI}, s2, 7\ns_lshl_b32 s{S_GI}, s{S_GI}, 1\ns_add_u32 s{S_GI}, s{S_GI}, s3"
        return (f"s_and_b32 s6, s2, 7\ns_xor_b32 s7, s6, 7\ns_min_u32 s7, s6, s7\ns_lshl_b32 s7, s7, 1\ns_add_u32 s7, s7, s3\n"
                f"s_lshl_b32 s7, s7, 1\ns_lshr_b32 s6, s6, 2\ns_add_u32 s{S_GI}, s7, s6")
    def nt(self, c):
        return ' nt' if c in self.kw.get('NT', '') else ''
    def stamp(self, idx):
        if self.diag:
            self.a(f"s_memrealtime s[98:99]\ns_waitcnt lgkmcnt(0)\nv_writelane_b32 v{DIAG}, s98, {idx}")

    def signal(self, base, idx_sgpr):
        a = self.a; l = self.lab('sig')
        a(f"""
        s_waitcnt vmcnt(0)
        s_barrier
        s_cmp_lg_u32 s{S_WAVE}, 0
        s_cbranch_scc1 {l}
        s_lshl_b32 s3, s{idx_sgpr}, 7
        s_add_u32 s3, s3, {base}
        v_mov_b32 v239, s{S_TAG}
        s_mov_b64 exec, 1
        buffer_store_dword v239, off, s[{S_FL}:{S_FL+3}], s3 sc1
        s_mov_b64 exec, -1
        {l}:
        """)
    def signal_wave(self, soff, n=0):
        self.a(f"v_mov_b32 v239, s{S_TAG}\ns_waitcnt vmcnt({n})\nbuffer_store_dword v239, off, s[{S_FL}:{S_FL+3}], s{soff} sc1")
    def poll(self, vaddr, soff, sleep=1):
        a = self.a; l = self.lab('poll'); d = self.lab('pd')
        a(f"""
        s_mov_b32 s{S_SPIN}, 0
        {l}:
        buffer_load_dword v239, v{vaddr}, s[{S_FL}:{S_FL+3}], s{soff} offen sc1
        s_add_u32 s{S_SPIN}, s{S_SPIN}, 1
        s_waitcnt vmcnt(0)
        v_cmp_ne_u32 vcc, s{S_TAG}, v239
        s_cbranch_vccz {d}
        {'s_sleep ' + str(sleep) if sleep else ''}
        s_cmp_lt_u32 s{S_SPIN}, {SPIN_MAX}
        s_cbranch_scc1 {l}
        {d}:
        """)

    def row_ids(self, vr, vp, t):
        self.a(f"""
        s_lshl_b32 s3, s{S_MT}, 4
        s_add_u32 s3, s3, s{S_GI}
        s_lshl_b32 s3, s3, 3
        v_and_b32 v{vr}, 7, v{LANE}
        v_add_u32 v{vr}, s3, v{vr}
        v_bfe_u32 v{vp}, v{LANE}, 3, 1
        v_lshlrev_b32 v{vp}, 2, v{vp}
        v_bfe_u32 v{t}, v{LANE}, 5, 1
        v_lshl_add_u32 v{vp}, v{t}, 1, v{vp}
        v_bfe_u32 v{t}, v{LANE}, 4, 1
        v_add_u32 v{vp}, v{vp}, v{t}
        s_lshr_b32 s3, s{S_WAVE}, 1
        s_mul_i32 s3, s3, 3
        s_add_u32 s3, s3, s{S_WAVE}
        s_lshl_b32 s3, s3, 3
        v_add_u32 v{vp}, s3, v{vp}
        """)
    def q_loads(self, srdq, t):
        a = self.a
        self.row_ids(t, t+1, t+2)
        srd(a, srdq, P_Q, NB_SD)
        a(f"""
        v_mul_u32_u24 v{t}, 1152, v{t}
        v_lshl_add_u32 v{t}, v{t+1}, 4, v{t}
        buffer_load_dwordx4 v[{QP}:{QP+3}], v{t}, s[{srdq}:{srdq+3}], 0 offen{self.nt('q')}
        buffer_load_dwordx4 v[{QP+4}:{QP+7}], v{t}, s[{srdq}:{srdq+3}], 0 offen offset:256{self.nt('q')}
        buffer_load_dwordx4 v[{QP+8}:{QP+11}], v{t}, s[{srdq}:{srdq+3}], s{S_OOB} offen offset:512{self.nt('q')}
        """)
    def stats(self, ldsoff, t, scale=None, part=3):
        real = a = self.a
        if not part & 1: a = Asm()
        a(f"""
        v_mov_b32 v{t}, 0
        v_mov_b32 v{t+1}, 0
        v_bfe_u32 v{t+2}, v{LANE}, 5, 1
        v_and_b32 v{t+3}, 7, v{LANE}
        v_lshl_add_u32 v{t+2}, v{t+2}, 3, v{t+3}
        v_lshlrev_b32 v{t+2}, 4, v{t+2}
        s_lshl_b32 s3, s{S_WAVE}, 2
        v_add_u32 v{t+2}, {STAT_OFF + ldsoff}, v{t+2}
        v_add_u32 v{t+3}, s3, v{t+2}
        """)
        for i in range(12):
            a(f"v_dot2_f32_bf16 v{t}, v{QP+i}, s{S_ONE}, v{t}\nv_dot2_f32_bf16 v{t+1}, v{QP+i}, v{QP+i}, v{t+1}")
        a(f"""
        s_nop 2
        v_permlane32_swap_b32 v{t}, v{t+1}
        s_nop 1
        v_add_f32 v{t}, v{t}, v{t+1}
        v_mov_b32 v{t+1}, v{t}
        s_nop 1
        v_permlane16_swap_b32 v{t}, v{t+1}
        s_nop 1
        v_add_f32 v{t}, v{t}, v{t+1}
        s_nop 1
        v_add_f32_dpp v{t}, v{t}, v{t} row_ror:8 row_mask:0xf bank_mask:0xf
        ds_write_b32 v{t+3}, v{t}
        """)
        a = real
        if part == 3: a("s_waitcnt lgkmcnt(0)\ns_barrier")
        if not part & 2: return
        a(f"""
        ds_read_b128 v[{t+4}:{t+7}], v{t+2}
        s_waitcnt lgkmcnt(0)
        v_add_f32 v{t+4}, v{t+4}, v{t+5}
        v_add_f32 v{t+6}, v{t+6}, v{t+7}
        v_add_f32 v{t}, v{t+4}, v{t+6}
        v_mul_f32 v{t}, 0x3ae38e39, v{t}
        v_mov_b32 v{t+1}, v{t}
        s_nop 1
        v_permlane32_swap_b32 v{t}, v{t+1}
        s_nop 1
        v_fma_f32 v{t+1}, -v{t}, v{t}, v{t+1}
        v_max_f32 v{t+1}, 0, v{t+1}
        v_add_f32 v{t+1}, 0x3727c5ac, v{t+1}
        v_rsq_f32 v{ST}, v{t+1}
        s_nop 0
        """)
        if scale: a(f"v_mul_f32 v{ST}, {f2u(scale):#x}, v{ST}")
        a(f"v_mul_f32 v{ST+1}, v{t}, v{ST}\nv_sub_f32 v{ST+1}, 0, v{ST+1}")

    def stats_parts(self, ldsoff, t):
        A = [f"v_bfe_u32 v{t+2}, v{LANE}, 5, 1", f"v_and_b32 v{t+3}, 7, v{LANE}", f"v_lshl_add_u32 v{t+2}, v{t+2}, 3, v{t+3}",
             f"v_lshlrev_b32 v{t+2}, 4, v{t+2}", f"v_add_u32 v{t+2}, {STAT_OFF + ldsoff}, v{t+2}",
             f"v_mov_b32 v{t+3}, s{S_WAVE}", f"v_lshl_add_u32 v{t+3}, v{t+3}, 2, v{t+2}", f"v_mov_b32 v{t}, 0", f"v_mov_b32 v{t+1}, 0"]
        for i in range(12):
            A += [f"v_lshlrev_b32 v{t+4}, 16, v{QP+i}", f"v_and_b32 v{t+5}, 0xffff0000, v{QP+i}", f"v_add_f32 v{t}, v{t}, v{t+4}",
                  f"v_fmac_f32 v{t+1}, v{t+4}, v{t+4}", f"v_add_f32 v{t}, v{t}, v{t+5}", f"v_fmac_f32 v{t+1}, v{t+5}, v{t+5}"]
        A += ['', '', f"v_permlane32_swap_b32 v{t}, v{t+1}", '', f"v_add_f32 v{t}, v{t}, v{t+1}", f"v_mov_b32 v{t+1}, v{t}", '', '',
              f"v_permlane16_swap_b32 v{t}, v{t+1}", '', f"v_add_f32 v{t}, v{t}, v{t+1}", '', '',
              f"v_add_f32_dpp v{t}, v{t}, v{t} row_ror:8 row_mask:0xf bank_mask:0xf", f"ds_write_b32 v{t+3}, v{t}"]
        B = [f"ds_read_b128 v[{t+4}:{t+7}], v{t+2}"]
        C = [f"v_add_f32 v{t+4}, v{t+4}, v{t+5}", f"v_add_f32 v{t+6}, v{t+6}, v{t+7}", f"v_add_f32 v{t}, v{t+4}, v{t+6}",
             f"v_mul_f32 v{t}, 0x3ae38e39, v{t}", f"v_mov_b32 v{t+1}, v{t}", '', '', f"v_permlane32_swap_b32 v{t}, v{t+1}", '',
             f"v_fma_f32 v{t+1}, -v{t}, v{t}, v{t+1}", f"v_max_f32 v{t+1}, 0, v{t+1}", f"v_add_f32 v{t+1}, 0x3727c5ac, v{t+1}",
             f"v_rsq_f32 v{ST}, v{t+1}", '', f"v_mul_f32 v{ST+1}, v{t}, v{ST}", f"v_sub_f32 v{ST+1}, 0, v{ST+1}"]
        return A, B, C
    def row_setup(self, t):
        a = self.a
        self.row_ids(t, t+1, t+2)
        a(f"""
        v_lshlrev_b32 v{VRZ}, 15, v{t+1}
        v_lshl_add_u32 v{VRZ}, v{t}, 3, v{VRZ}
        v_lshlrev_b32 v{VRM}, 5, v{t+1}
        v_add_u32 v{VRM}, {MOD_OFF}, v{VRM}
        v_lshrrev_b32 v{VRH}, 4, v{t}
        v_mul_u32_u24 v{VRH}, 18432, v{VRH}
        v_lshl_add_u32 v{VRH}, v{t+1}, 8, v{VRH}
        v_and_b32 v{t+2}, 15, v{t}
        v_lshl_add_u32 v{VRH}, v{t+2}, 4, v{VRH}
        s_lshl_b32 s3, s{S_MT}, 2
        s_add_u32 s3, s3, s{S_WAVE}
        s_mul_i32 s3, s3, 36
        v_min_u32 v{VRP}, 35, v{LANE}
        v_add_u32 v{VRP}, s3, v{VRP}
        v_lshlrev_b32 v{VRP}, 7, v{VRP}
        """)
    def mod_dma(self, sr):
        a = self.a
        srd(a, sr, P_WS, NB_MOD, WS_MOD)
        a(f"s_mul_i32 s91, s{S_WAVE}, 3584\ns_add_u32 m0, s91, {MOD_OFF}\ns_nop 0")
        out = []
        for i in range(4):
            out.append(f"buffer_load_dwordx4 v{VL16}, s[{sr}:{sr+3}], s91 offen offset:{1024*i} sc1 lds")
        return out

    def conv_path(self):
        a = self.a; kw = self.kw
        a('; ---- phase A')
        VA, VB, VTW, VTR, VZ, VU, VPA, VHD = 192, 193, 194, 195, 211, 212, 213, 214
        DG = 196
        G4, I16 = 144, 145
        a(f"""
        s_lshr_b32 s40, s2, 4
        s_and_b32 s41, s2, 15
        v_and_b32 v1, 7, v0
        v_lshrrev_b32 v2, 3, v0
        s_lshl_b32 s42, s41, 7
        s_lshl_b32 s43, s40, 7
        v_lshl_add_u32 v3, v2, 2, s42
        v_mul_u32_u24 v3, 1152, v3
        v_lshl_add_u32 v4, v1, 4, s43
        v_add_u32 v13, v3, v4
        v_add_u32 v10, {(-3*1152) & 0xffffffff:#x}, v13
        v_add_u32 v11, {(-2*1152) & 0xffffffff:#x}, v13
        v_add_u32 v12, {(-1*1152) & 0xffffffff:#x}, v13
        v_lshlrev_b32 v5, 2, v4
        """)
        if self.late_entry:
            a("s_waitcnt lgkmcnt(0)"); self.stamp(0)
        srd(a, 52, P_K, NB_SD); srd(a, 56, P_V, NB_SD); srd(a, 20, P_SK, D*8)
        for j in (3, 4, 5, 6, 0, 1, 2):
            va, o = (10+j, 0) if j < 3 else (13, (j-3)*1152)
            a(f"buffer_load_dwordx4 v[{16+4*j}:{19+4*j}], v{va}, s[52:55], 0 offen" + (f" offset:{o}" if o else "") + self.nt('k'))
        for j in range(4):
            a(f"buffer_load_dwordx4 v[{60+4*j}:{63+4*j}], v5, s[20:23], 0 offen" + (f" offset:{16*j}" if j else ""))
        for j in range(4):
            a(f"buffer_load_dwordx4 v[{44+4*j}:{47+4*j}], v13, s[56:59], 0 offen" + (f" offset:{1152*j}" if j else "") + self.nt('v'))
        if self.late_entry: self.late_entry()
        a(f"""
        s_lshl_b32 s44, s2, 2
        s_add_u32 s44, s44, s{S_WAVE}
        s_mul_i32 s45, s{S_WAVE}, {WAVE_LDS}
        s_lshl_b32 s46, s44, 12
        s_add_u32 s52, s{P_SSMK}, s46
        s_addc_u32 s53, s{P_SSMK+1}, 0
        s_mov_b32 s54, 4096
        s_mov_b32 s55, 0x20000
        v_lshrrev_b32 v{G4}, 4, v{LANE}
        v_and_b32 v{I16}, 15, v{LANE}
        v_add_u32 v142, v{G4}, v{I16}
        v_add_u32 v142, -16, v142
        v_lshlrev_b32 v142, 1, v142
        s_lshl_b32 s3, s44, 1
        """)
        srd(a, 56, P_SSMD, D*2)
        a(f"""
        v_lshlrev_b32 v143, 4, v{LANE}
        s_mov_b32 s91, s3
        """)
        KR = 152
        def kloads():
            a("buffer_load_ushort v140, v142, s[52:55], 0 offen\nbuffer_load_ushort v141, off, s[56:59], s91")
            for i in range(4):
                a(f"buffer_load_dwordx4 v[{KR+6*i}:{KR+6*i+3}], v143, s[52:55], 0 offen offset:{1024*i}" + self.nt('s'))
                a(f"buffer_load_dwordx2 v[{KR+6*i+4}:{KR+6*i+5}], v143, s[52:55], 0 offen offset:{1024*i+16}" + self.nt('s'))
        KL = kw.get('KLATE', 0)
        if KL == 0: kloads()
        srd(a, 24, P_WS, NB_SD, WS_U)
        a(f"""
        v_lshlrev_b32 v6, 9, v2
        v_lshl_add_u32 v6, v1, 4, v6
        v_add_u32 v6, {T_OFF}, v6
        v_bfe_u32 v7, v{LANE}, 1, 1
        v_lshl_add_u32 v7, v{G4}, 1, v7
        v_lshlrev_b32 v7, 3, v7
        v_bfe_u32 v8, v{LANE}, 2, 2
        v_sub_u32 v7, v7, v8
        v_add_u32 v7, 3, v7
        v_lshlrev_b32 v7, 7, v7
        v_and_b32 v8, 1, v{LANE}
        v_lshl_add_u32 v7, v8, 3, v7
        s_lshl_b32 s3, s{S_WAVE}, 5
        s_add_u32 s3, s3, {T_OFF}
        v_add_u32 v7, s3, v7
        s_lshl_b32 s3, s40, 6
        s_lshl_b32 s47, s{S_WAVE}, 4
        s_add_u32 s3, s3, s47
        v_and_b32 v8, 7, v{LANE}
        v_add_u32 v8, s3, v8
        v_lshlrev_b32 v8, 12, v8
        v_bfe_u32 v9, v{LANE}, 3, 1
        v_lshl_add_u32 v9, v{G4}, 1, v9
        v_lshl_add_u32 v8, v9, 4, v8
        s_lshl_b32 s3, s41, 8
        v_add_u32 v8, s3, v8
        v_add_u32 v9, 0x8000, v8
        v_mov_b32 v146, 0
        v_mov_b32 v147, 0
        v_lshl_add_u32 v148, v{LANE}, 3, s45
        ds_write_b64 v148, v[146:147] offset:{4*KSTR}
        v_mul_u32_u24 v{VHD}, {KSTR}, v{G4}
        v_lshl_add_u32 v{VHD}, v{I16}, 1, v{VHD}
        v_add_u32 v{VHD}, s45, v{VHD}
        v_add_u32 v14, 1, v{I16}
        v_and_b32 v{VA}, 3, v14
        v_mul_u32_u24 v{VA}, {KSTR}, v{VA}
        v_lshrrev_b32 v14, 2, v14
        v_lshl_add_u32 v{VA}, v14, 3, v{VA}
        v_lshlrev_b32 v14, 4, v{G4}
        v_sub_u32 v{VA}, v{VA}, v14
        v_add_u32 v{VA}, 48, v{VA}
        v_add_u32 v{VA}, s45, v{VA}
        v_lshlrev_b32 v{VB}, 5, v{I16}
        v_lshl_add_u32 v{VB}, v{G4}, 4, v{VB}
        s_add_u32 s3, s45, {4*KSTR + 512 - 32 - 448}
        v_add_u32 v{VB}, s3, v{VB}
        v_lshlrev_b32 v{VTW}, 4, v{I16}
        v_lshl_add_u32 v{VTW}, v{G4}, 2, v{VTW}
        s_mul_i32 s3, s{S_WAVE}, {KSTR}
        s_add_u32 s3, s3, {T_OFF}
        v_add_u32 v{VTW}, s3, v{VTW}
        v_bfe_u32 v{VTR}, v{LANE}, 2, 2
        v_mul_u32_u24 v{VTR}, {KSTR}, v{VTR}
        v_lshl_add_u32 v{VTR}, v{G4}, 5, v{VTR}
        v_and_b32 v14, 3, v{LANE}
        v_lshl_add_u32 v{VTR}, v14, 3, v{VTR}
        s_lshl_b32 s3, s{S_WAVE}, 7
        s_add_u32 s3, s3, {T_OFF}
        v_add_u32 v{VTR}, s3, v{VTR}
        s_lshl_b32 s3, s2, 14
        s_lshl_b32 s47, s{S_WAVE}, 10
        s_add_u32 s3, s3, s47
        v_lshl_add_u32 v{VZ}, v{LANE}, 4, s3
        v_lshlrev_b32 v{VU}, 4, v{LANE}
        v_lshlrev_b32 v{VPA}, 7, v{I16}
        """)
        if kw.get('ARR', 1):
            ffn_setup(a, 100)
            self.row_setup(100)
        if KL == 1: kloads()
        self.stamp(1)
        if kw.get('hopP', False): self.ahops.call(a, 0)
        a(f"s_waitcnt vmcnt({14 if KL < 2 else 4})")
        self.stamp(2)
        if kw.get('hopP', False): a.hop = self.ahops
        kd = []
        for c in (0, 2):
            ops = [f"buffer_load_dwordx4 v143, s[52:55], 0 offen offset:{i*1024} lds" for i in range(4)]
            ops[0] = f"s_add_u32 m0, s45, {c*KSTR + 32}\n" + ("v_add_u32 v143, 4, v143\n" if c else "s_nop 0\n") + ops[0]
            kd += ops
        nearly = kw.get('KEARLY', 0)
        early, late = kd[:nearly], kd[nearly:]
        def kdma():
            if early: a(early.pop(0))
        P = lambda x: f"v[{x}:{x+1}]"
        for cp in range(4):
            for j in range(4):
                f = lo if j % 2 == 0 else hi
                f(a, 80+2*j, 60+4*cp+(j >> 1)); f(a, 81+2*j, 62+4*cp+(j >> 1))
            if cp: kdma()
            for i in range(7):
                lo(a, 88+2*i, 16+4*i+cp); hi(a, 89+2*i, 16+4*i+cp)
            if cp: kdma()
            for r in range(4): a(f"v_pk_mul_f32 {P(110+2*r)}, {P(88+2*r)}, {P(86)}")
            for j in (1, 2, 3):
                for r in range(4): a(f"v_pk_fma_f32 {P(110+2*r)}, {P(88+2*(r+j))}, {P(86-2*j)}, {P(110+2*r)}")
            if cp == 0:
                a(f"s_waitcnt vmcnt({10 if KL < 2 else 0})")
                self.stamp(22)
                if KL == 2: kloads()
            kdma()
            for r in range(4):
                lo(a, 102+2*r, 44+4*r+cp); hi(a, 103+2*r, 44+4*r+cp)
            for r in range(4): a(f"v_pk_mul_f32 {P(110+2*r)}, {P(110+2*r)}, {P(102+2*r)}")
            for r in range(4): a(f"v_cvt_pk_bf16_f32 v{120+4*r+cp}, v{110+2*r}, v{111+2*r}")
            kdma()
        for r in range(4):
            a(f"ds_write_b128 v6, v[{120+4*r}:{123+4*r}]" + (f" offset:{128*r}" if r else ""))
        while early: kdma()
        a("s_waitcnt lgkmcnt(0)\ns_barrier")
        n = 0
        for cb in range(2):
            for hq in range(2):
                o = hq*8192 + cb*16
                a(f"ds_read_b64_tr_b16 v[{16+4*n}:{17+4*n}], v7 offset:{o+512}")
                a(f"ds_read_b64_tr_b16 v[{18+4*n}:{19+4*n}], v7 offset:{o}")
                n += 1
        n = 0
        for cb in range(2):
            for hq in range(2):
                a(f"s_waitcnt lgkmcnt({6-2*n})")
                a(f"buffer_store_dwordx4 v[{16+4*n}:{19+4*n}], v{8+cb}, s[24:27], 0 offen" + (" offset:128" if hq else "") + " sc1")
                n += 1
        a.hop = None
        def kcopy():
            a(f"v_lshl_add_u32 v14, v{LANE}, 4, s45")
            for i in range(4):
                for c in range(2):
                    for x in range(4):
                        a(f"v_alignbyte_b32 v{40+8*(i&1)+4*c+x}, v{KR+6*i+x+c+1}, v{KR+6*i+x+c}, 2")
                    a(f"ds_write_b128 v14, v[{40+8*(i&1)+4*c}:{43+8*(i&1)+4*c}] offset:{(1+2*c)*KSTR + 32 + 1024*i}")
            a(f"""
            ds_write_b16 v{VHD}, v140
            v_lshrrev_b32 v10, 3, v{I16}
            v_add_u32 v10, 2, v10
            v_cmp_eq_u32 vcc, v10, v{G4}
            v_and_b32 v11, 7, v{I16}
            v_sub_u32 v11, 7, v11
            v_cndmask_b32 v9, 0, v141, vcc
            v_and_b32 v10, 1, v11
            v_lshlrev_b32 v10, 4, v10
            v_lshlrev_b32 v9, v10, v9
            v_lshrrev_b32 v11, 1, v11
            """)
            for r in range(4):
                a(f"v_cmp_eq_u32 vcc, {r}, v11\ns_nop 1\nv_cndmask_b32 v{DG+r}, 0, v9, vcc")
        self.stamp(3)
        if KL == 3: kloads()
        elif kw.get('FF', 0) & 1: pass
        elif kw.get('ARR', 1):
            a(f"s_waitcnt vmcnt(4)")
            kcopy()
        else:
            ffn_setup(a, 100)
            self.row_setup(100)
        a(f"""
        s_waitcnt lgkmcnt(0)
        s_add_u32 s{S_TAG}, s28, 1
        s_mul_i32 s3, s{S_WAVE}, 144
        s_add_u32 s3, s3, s2
        s_lshl_b32 s3, s3, 7
        s_add_u32 s3, s3, {FA}
        """)
        self.signal_wave(3, 10 if KL == 3 else 0)
        a("s_barrier")
        self.stamp(4)
        if KL == 3: a("s_waitcnt vmcnt(1)")
        for o in late: a(o)
        if KL == 3 or kw.get('FF', 0) & 1: kcopy()
        if not kw.get('QLATE'): self.q_loads(56, 1)
        if not kw.get('ARR', 1): kcopy()
        if kw.get('LN1', 'B') == 'A':
            a("s_waitcnt vmcnt(0)")
            self.stats(0, 150)
        a(f"""
        v_min_u32 v{VHD}, 55, v{LANE}
        v_lshlrev_b32 v{VHD}, 7, v{VHD}
        s_mov_b32 s90, {FB + 128*NCONV}
        s_mov_b32 s8, {FB + 128*(NCONV+56)}
        s_mul_i32 s6, s{S_WAVE}, 144
        s_add_u32 s6, s6, s2
        s_lshl_b32 s6, s6, 7
        s_add_u32 s6, s6, {FZ}
        s_cmp_ge_u32 s{S_WAVE}, 2
        s_cselect_b32 s7, 0x40000000, 0
        v_mov_b32 v23, s{S_TAG}
        s_add_u32 s56, s{P_WS}, s46
        s_addc_u32 s57, s{P_WS+1}, 0
        s_mov_b32 s58, 4096
        s_mov_b32 s59, 0x20000
        s_bfe_u32 s4, s2, 0x20002
        s_mul_i32 s4, s4, 9
        s_add_u32 s4, s4, s40
        s_lshl_b32 s4, s4, 11
        s_add_u32 s4, s4, {FA}
        """)
        assert WS_U == 0
        srd(a, 52, P_WS, NB_SD, WS_Z)
        hops = self.chops if kw.get('chops', False) else None
        if hops: hops.call(a, 0)
        self.stamp(5)
        self.poll(VPA, 4, sleep=0)
        self.stamp(6)
        a(f"s_add_u32 m0, s45, {4*KSTR + 512}\ns_nop 0")
        for i in range(4):
            a(f"buffer_load_dwordx4 v{VU}, s[56:59], 0 offen offset:{i*1024} sc1 lds")
        AC = 24; FRG = 64
        A = lambda s, m1: FRG + 64*s + 4*m1
        B = lambda s, n1: FRG + 64*s + 32 + 4*n1
        def rdA(m0, n, s):
            R = []
            for x in range(n):
                R.append(f"ds_read_b64 v[{A(s,x)}:{A(s,x)+1}], v{VA} offset:{512*x + 64*m0}")
                R.append(f"ds_read_b64 v[{A(s,x)+2}:{A(s,x)+3}], v{VA} offset:{512*x + 64*m0+8}")
            return R
        def rdB(m0, n, s):
            return [f"ds_read_b128 v[{B(s,x)}:{B(s,x)+3}], v{VB} offset:{512*x + 64*(7-m0)}" for x in range(n)]
        def mf(w, av, bv, first=False):
            a(f"v_mfma_f32_16x16x32_bf16 v[{AC+4*w}:{AC+4*w+3}], v[{av}:{av+3}], v[{bv}:{bv+3}], " + ("0" if first else f"v[{AC+4*w}:{AC+4*w+3}]"))
        def pack(w, t):
            return [f"v_cvt_pk_bf16_f32 v{t}, v{AC+4*w}, v{AC+4*w+2}", f"v_cvt_pk_bf16_f32 v{t+1}, v{AC+4*w+1}, v{AC+4*w+3}",
                    f"ds_write2st64_b32 v{VTW}, v{t}, v{t+1} offset0:{w} offset1:{w+8}"]
        PASS = kw.get('PASS', (0, 4, 8))
        def units(p):
            u0, u1 = 2*PASS[p], 2*PASS[p+1]
            return [(u, u + 4 > u1) for u in range(u0, u1, 4)]
        def trr(p, t):
            R = []
            for i, (u, h) in enumerate(units(p)):
                R += [f"ds_read_b64_tr_b16 v[{t+4*i}:{t+4*i+1}], v{VTR} offset:{128*u}", f"ds_read_b64_tr_b16 v[{t+4*i+2}:{t+4*i+3}], v{VTR} offset:{128*u + 2048}"]
            return R
        def zst(p, t):
            return [(f"s_add_u32 s96, s7, {1024*u}" if h else f"s_mov_b32 s96, {1024*u}") + f"\nbuffer_store_dwordx4 v[{t+4*i}:{t+4*i+3}], v{VZ}, s[52:55], s96 offen sc1" for i, (u, h) in enumerate(units(p))]
        def zfl(p):
            R = ["s_waitcnt vmcnt(0)"]
            for u, h in units(p):
                R.append(f"s_add_u32 s96, s6, {u*144*128}")
                if h: R.append("s_add_u32 s96, s96, s7")
                R.append(f"buffer_store_dword v23, off, s[{S_FL}:{S_FL+3}], s96 sc1")
            return "\n".join(R)
        steps = []
        for p in range(len(PASS) - 1):
            two = PASS[p+1] <= 4
            steps += [(p, m0, two) for m0 in range(0, 8, 2 if two else 1)]
        def rds(p, m0, two, s):
            n = PASS[p+1]; ra, rb = [], []
            for h in range(2 if two else 1):
                for x in range(n):
                    t = 4*h + x
                    ra += [f"ds_read_b64 v[{A(s,t)}:{A(s,t)+1}], v{VA} offset:{512*x + 64*(m0+h)}", f"ds_read_b64 v[{A(s,t)+2}:{A(s,t)+3}], v{VA} offset:{512*x + 64*(m0+h)+8}"]
                    rb += [f"ds_read_b128 v[{B(s,t)}:{B(s,t)+3}], v{VB} offset:{512*x + 64*(7-m0-h)}"]
            return ra, rb
        ra, rb = rds(*steps[0], 0)
        for r in ra: a(r)
        ffn_setup2(a, 12)
        a("s_waitcnt vmcnt(0)")
        self.stamp(7)
        for r in rb: a(r)
        if kw.get('QLATE'): self.q_loads(56, 1)
        cp_ = kw.get('convpf', '')
        if cp_:
            a(f"""
            s_and_b32 s3, s2, 7
            s_lshr_b32 s5, s2, 3
            s_lshl_b32 s5, s5, 2
            s_add_u32 s5, s5, s{S_WAVE}
            """)
        if 'g' in cp_:
            a(f"""
            s_mul_i32 s9, s3, 1152
            s_lshr_b32 s10, s2, 3
            s_lshl_b32 s10, s10, 1
            s_and_b32 s11, s{S_WAVE}, 1
            s_add_u32 s10, s10, s11
            s_mul_i32 s10, s10, {16*9216}
            s_add_u32 s9, s9, s10
            v_and_b32 v1, 15, v{LANE}
            v_mul_u32_u24 v1, 9216, v1
            v_lshrrev_b32 v2, 4, v{LANE}
            v_min_u32 v2, 2, v2
            v_lshrrev_b32 v3, 1, v2
            v_mul_u32_u24 v3, 3, v3
            v_add3_u32 v2, v2, v3, 3
            v_lshl_add_u32 v1, v2, 7, v1
            buffer_load_dword v22, v1, s[{S_W}:{S_W+3}], s9 offen
            """)
        if 'd' in cp_:
            srd(a, 56, P_WD, D*DF*2)
            a(f"""
            s_mul_i32 s9, s3, {576*1152}
            s_mul_i32 s10, s5, 9216
            s_add_u32 s9, s9, s10
            v_lshlrev_b32 v1, 7, v{LANE}
            v_and_b32 v2, 7, v{LANE}
            v_lshlrev_b32 v2, 7, v2
            v_add_u32 v2, 8192, v2
            buffer_load_dword v22, v1, s[56:59], s9 offen
            buffer_load_dword v22, v2, s[56:59], s9 offen
            """)
        NP_ = len(PASS) - 1
        def modcheck():
            a(f"v_cmp_ne_u32 vcc, s{S_TAG}, v239\nv_cmp_ne_u32 s[4:5], s{S_TAG}, v22\ns_nop 1\ns_or_b64 vcc, vcc, s[4:5]\ns_cbranch_vccz L_modok")
            self.poll(VHD, 90, sleep=1)
            self.poll(VHD, 8, sleep=1)
            a("L_modok:")
        for n_, (p, m0, two) in enumerate(steps):
            s = n_ & 1
            nxt = []
            if n_ + 1 < len(steps):
                ra, rb = rds(*steps[n_+1], 1-s)
                nxt = rb + ra
            ext = []
            a("s_waitcnt lgkmcnt(0)")
            if p:
                if m0 == 0: ext = ['', ''] + sum([pack(w, 4 + 2*(w - PASS[p-1])) for w in range(PASS[p-1], PASS[p])], [])
                if m0 == 1: a("s_barrier"); ext = trr(p-1, 4)
                if m0 == 2: ext = zst(p-1, 4)
                if kw.get('ZPOLL') and m0 >= kw['ZPOLL']:
                    l = self.lab('zf')
                    if m0 == kw['ZPOLL']: a("s_mov_b32 s9, 0")
                    a(f"s_getreg_b32 s10, hwreg(HW_REG_IB_STS, 0, 4)")
                    if m0 == 7: a("s_mov_b32 s10, 0")
                    a(f"s_or_b32 s10, s10, s9\ns_cbranch_scc1 {l}\ns_mov_b32 s9, 1")
                    a(zfl(p-1))
                    if p == 1: self.stamp(28)
                    a(f"{l}:")
                elif not kw.get('ZPOLL') and m0 == kw.get('ZF', 4):
                    a(zfl(p-1))
                    if p == 1: self.stamp(28)
                    if kw.get('EARLYC') and p == NP_ - 1:
                        modcheck(); ext += self.mod_dma(56)
                if p == NP_ - 1 and m0 == kw.get('MCHK', 5):
                    ext += [f"buffer_load_dword v239, v{VHD}, s[{S_FL}:{S_FL+3}], s90 offen sc1", f"buffer_load_dword v22, v{VHD}, s[{S_FL}:{S_FL+3}], s8 offen sc1"]
            def gap():
                k = 2 if (len(nxt) > left[0] and not ext) else 1
                while k and nxt: a(nxt.pop(0)); k -= 1
                if ext:
                    x = ext.pop(0)
                    if x: a(x)
                left[0] -= 1
            pairs = [(m1 + n1, 4*h + m1, 4*h + n1) for h in range(2 if two else 1) for m1 in range(8) for n1 in range(8 - m1) if PASS[p] <= m1 + n1 < PASS[p+1]]
            nd = PASS[p+1] - PASS[p] if m0 == 0 else 0
            left = [len(pairs) + nd - 8]
            for w in range(PASS[p], PASS[p] + nd):
                mf(w, DG, B(s, w), True); gap()
            if kw.get('SKIP7') and p == NP_ - 1: pairs = [q_ for q_ in pairs if q_[0] != 7]
            for w, x, y in pairs:
                mf(w, A(s, x), B(s, y)); gap()
            for x in nxt + ext:
                if x: a(x)
        self.stamp(8)
        a("s_nop 7")
        for w in range(PASS[-2], 8):
            for x in pack(w, 64 + 2*w): a(x)
        a("s_waitcnt lgkmcnt(0)\ns_barrier")
        for x in trr(NP_-1, 80): a(x)
        zs = zst(NP_-1, 80)
        for i, x in enumerate(zs):
            a(f"s_waitcnt lgkmcnt({2*(len(zs)-1-i)})"); a(x)
        self.stamp(9)
        if kw.get('EARLYC'):
            a(f"s_mov_b32 s4, {FZ}\nbuffer_load_dword v22, v{VRP}, s[{S_FL}:{S_FL+3}], s4 offen sc1")
            self.stats(0, 150, part=1)
            a(zfl(NP_-1))
            a(f"v_cmp_ne_u32 vcc, s{S_TAG}, v22\ns_cbranch_vccz L_zok")
            self.poll(VRP, 4, sleep=0)
            a("L_zok:")
            self.row_consts()
            a("s_waitcnt lgkmcnt(0)\ns_barrier")
            self.stamp(23); self.stamp(11)
            self.z_loads()
            n = kw['PL'][0]
            ffn_prefill(a, range(n))
            self.stats(0, 150, part=2)
            self.mod_reads()
            a(f"s_waitcnt vmcnt({6*n})\ns_branch L_rowjoin")
            return
        if kw.get('FF', 0) & 2:
            a(zfl(NP_-1)); self.stats(0, 150, part=1)
        else:
            self.stats(0, 150, part=1); a(zfl(NP_-1))
        a("s_waitcnt lgkmcnt(0)\ns_barrier")
        self.stamp(23)
        modcheck()
        for o in self.mod_dma(56): a(o)
        self.stats(0, 150, part=2)

    def side_path(self):
        a = self.a; kw = self.kw
        if self.late_entry:
            a("s_waitcnt lgkmcnt(0)"); self.stamp(0); self.late_entry()
        if kw.get('touch'):
            sh = kw['touch']
            srd(a, 52, P_WS, 0x4000000); srd(a, 56, P_OUT, NB_SD)
            a(f"v_lshlrev_b32 v1, {sh}, v0\nbuffer_load_dword v238, v1, s[52:55], 0 offen\nbuffer_load_dword v238, v1, s[56:59], 0 offen")
            srd(a, 56, P_WD, D*DF*2)
            a(f"buffer_load_dword v238, v1, s[56:59], 0 offen")
        code_srd(a, 56, 4, 'L_common', 'L_code_end')
        srd(a, 52, P_SSMK, NB_SD)
        a(f"""
        s_sub_u32 s47, s2, {NCONV}
        s_lshr_b32 s47, s47, 3
        s_lshl_b32 s47, s47, 2
        s_add_u32 s47, s47, s{S_WAVE}
        v_min_u32 v2, 7, v{LANE}
        s_lshl_b32 s43, s47, 10
        v_lshlrev_b32 v2, 7, v2
        buffer_load_dword v238, v2, s[56:59], s43 offen
        s_mul_i32 s42, s47, 42
        v_min_u32 v1, 41, v{LANE}
        v_add_u32 v1, s42, v1
        v_lshrrev_b32 v2, 7, v1
        v_and_b32 v1, 127, v1
        v_lshlrev_b32 v1, 7, v1
        v_lshl_add_u32 v1, v2, 17, v1
        s_and_b32 s3, s2, 7
        s_lshl_b32 s3, s3, 14
        {'buffer_load_dword v238, v1, s[52:55], s3 offen' if kw.get('pfK', False) else ''}
        s_mul_hi_u32 s42, s47, 0x2aaaaaab
        s_mul_i32 s43, s42, 6
        s_sub_u32 s43, s47, s43
        s_mul_i32 s43, s43, 3072
        s_add_u32 s42, s42, {kw.get('CA', 7)}
        s_mul_i32 s42, s42, {128*1152}
        s_add_u32 s42, s42, s43
        s_and_b32 s3, s2, 7
        s_mul_i32 s3, s3, {16*1152}
        s_add_u32 s42, s42, s3
        v_min_u32 v1, 23, v{LANE}
        v_lshlrev_b32 v1, 7, v1
        """)
        srd(a, 52, P_Q, NB_SD)
        if not kw.get('QLATE'): a("buffer_load_dword v238, v1, s[52:55], s42 offen")
        if kw.get('MODLATE'):
            self.q_loads(56, 146)
            ffn_setup(a, 100)
            self.row_setup(100)
            a("s_waitcnt vmcnt(0)")
            self.stats(0, 150)
        a(f"s_cmp_ge_u32 s2, {NCONV+NMOD}\ns_cbranch_scc1 L_nomod")
        a(f"""
        s_sub_u32 s40, s2, {NCONV}
        v_and_b32 v1, 7, v0
        v_lshrrev_b32 v2, 3, v0
        v_mul_u32_u24 v3, 6912, v2
        v_lshl_add_u32 v3, v1, 4, v3
        s_lshl_b32 s3, s40, 7
        v_add_u32 v3, s3, v3
        v_lshlrev_b32 v4, 1, v0
        """)
        srd(a, 24, P_C, D*2); srd(a, 52, P_WMOD, D*6912); srd(a, 20, P_WS, NB_MOD, WS_MOD)
        a("""
        buffer_load_ushort v5, v4, s[24:27], 0 offen
        buffer_load_ushort v6, v4, s[24:27], 0 offen offset:512
        buffer_load_ushort v7, v4, s[24:27], 0 offen offset:1024
        s_mov_b32 s41, 0
        """)
        a("s_waitcnt vmcnt(0)")
        for i in range(18):
            a(f"buffer_load_dwordx4 v[{32+4*i}:{35+4*i}], v3, s[52:55], s41 offen" + self.nt('m'))
            if i < 17: a(f"s_add_u32 s41, s41, {32*6912}")
        for r in (5, 6, 7):
            a(f"""
            v_lshlrev_b32 v{r}, 16, v{r}
            v_mul_f32 v8, 0xbfb8aa3b, v{r}
            v_exp_f32 v8, v8
            s_nop 0
            v_add_f32 v8, 1.0, v8
            v_rcp_f32 v8, v8
            s_nop 0
            v_mul_f32 v{r}, v{r}, v8
            v_cvt_pk_bf16_f32 v{r}, v{r}, v{r}
            v_lshlrev_b32 v{r}, 16, v{r}
            """)
        a("""
        v_lshlrev_b32 v9, 2, v0
        ds_write_b32 v9, v5
        ds_write_b32 v9, v6 offset:1024
        ds_write_b32 v9, v7 offset:2048
        v_lshlrev_b32 v10, 2, v2
        s_waitcnt lgkmcnt(0)
        s_barrier
        """)
        for i in range(18):
            a(f"ds_read_b32 v{104+2*i}, v10 offset:{128*i}")
        a("s_waitcnt lgkmcnt(0)")
        for i in range(18):
            a(f"s_waitcnt vmcnt({17-i})")
            for x in range(4):
                t = 24 + 2*(x & 1)
                lo(a, t, 32+4*i+x); hi(a, t+1, 32+4*i+x)
                if i == 0: a(f"v_pk_mul_f32 v[{16+2*x}:{17+2*x}], v[{t}:{t+1}], v[{104+2*i}:{105+2*i}] op_sel_hi:[1,0]")
                else:      a(f"v_pk_fma_f32 v[{16+2*x}:{17+2*x}], v[{t}:{t+1}], v[{104+2*i}:{105+2*i}], v[{16+2*x}:{17+2*x}] op_sel_hi:[1,0,1]")
        a("""
        v_lshlrev_b32 v13, 8, v2
        v_lshl_add_u32 v13, v1, 5, v13
        ds_write_b128 v13, v[16:19] offset:4096
        ds_write_b128 v13, v[20:23] offset:4112
        s_waitcnt lgkmcnt(0)
        s_barrier
        """)
        a(f"s_cmp_lg_u32 s{S_WAVE}, 0\ns_cbranch_scc1 L_nomod")
        for i in range(32):
            a(f"ds_read_b32 v{32+i}, v9 offset:{4096 + 256*i}")
        a("s_waitcnt lgkmcnt(0)")
        for st in (16, 8, 4, 2):
            for i in range(0, st, 2):
                a(f"v_pk_add_f32 v[{32+i}:{33+i}], v[{32+i}:{33+i}], v[{32+i+st}:{33+i+st}]")
        a(f"""
        v_add_f32 v32, v32, v33
        s_mov_b32 s3, 0x1c71c71d
        v_cvt_pk_bf16_f32 v32, v32, v32
        s_mul_hi_u32 s41, s40, s3
        s_cmp_eq_u32 s41, 1
        s_cselect_b32 s42, 1.0, 0
        s_cmp_eq_u32 s41, 4
        s_cselect_b32 s42, 1.0, s42
        v_lshlrev_b32 v32, 16, v32
        v_add_f32 v32, s42, v32
        s_cmp_eq_u32 s41, 3
        s_cselect_b32 s43, {f2u(ALPHA):#x}, 1.0
        s_cmp_eq_u32 s41, 5
        s_cselect_b32 s43, {f2u(1/ALPHA**2):#x}, s43
        v_cvt_pk_bf16_f32 v32, v32, v32
        v_lshlrev_b32 v32, 16, v32
        v_mul_f32 v32, s43, v32
        s_lshl_b32 s3, s40, 8
        buffer_store_dword v32, v9, s[20:23], s3 offen sc1
        L_nomod:
        """)
        self.stamp(3)
        self.signal(FB, 2)
        if not kw.get('MODLATE') and kw.get('QLATE') != 2: self.q_loads(56, 146)
        self.stamp(4)
        if kw.get('SPF'):
            ffn_setup(a, 100)
            self.row_setup(100)
        if kw.get('waitA', True):
            a(f"""
            v_and_b32 v146, 15, v{LANE}
            v_lshlrev_b32 v146, 7, v146
            s_and_b32 s40, s2, 7
            s_lshl_b32 s4, s40, 11
            s_add_u32 s4, s4, {FA}
            """)
            self.poll(146, 4, sleep=2)
        def wpf():
            NCH = kw.get('NCH', 2); per = -(-1152*NCH//56)
            srd(a, 20, P_WG, D*DF*2); srd(a, 24, P_WU, D*DF*2)
            a(f"""
            {f's_lshr_b32 s40, s{S_GI}, 2' if DYN[0] else 's_and_b32 s40, s2, 7'}
            s_mul_i32 s43, s40, {2304 if DYN[0] else 1152}
            s_and_b32 s40, s{S_GI}, {1 if DYN[0] else 0}
            s_mul_i32 s40, s40, 640
            s_add_u32 s43, s43, s40
            s_sub_u32 s47, s2, {NCONV}
            s_lshr_b32 s47, s47, 3
            s_lshl_b32 s47, s47, 2
            s_add_u32 s47, s47, s{S_WAVE}
            s_mul_i32 s42, s47, {per}
            v_min_u32 v1, {per-1}, v{LANE}
            v_add_u32 v1, s42, v1
            s_mov_b32 s44, {-(-(1 << 32)//1152):#x}
            v_mul_hi_u32 v3, s44, v1
            v_mul_u32_u24 v4, 1152, v3
            v_sub_u32 v4, v1, v4
            v_lshlrev_b32 v3, 7, v3
            v_and_b32 v5, 1, v4
            v_mul_u32_u24 v5, {1152 if DYN[0] else 640}, v5
            v_add_u32 v3, v3, v5
            v_lshrrev_b32 v4, 1, v4
            v_mul_u32_u24 v4, 9216, v4
            v_add_u32 v3, v3, v4
            buffer_load_dword v149, v3, s[20:23], s43 offen{self.nt('w')}
            buffer_load_dword v149, v3, s[24:27], s43 offen{self.nt('w')}
            """)
            npf = 2
            if kw.get('PRE2'):
                npf = 4
                a(f"""
                s_mul_i32 s42, s47, 31
                v_min_u32 v1, 30, v{LANE}
                v_add_u32 v1, s42, v1
                s_mov_b32 s44, 0x55555556
                v_mul_hi_u32 v3, s44, v1
                v_mul_u32_u24 v4, 3, v3
                v_sub_u32 v4, v1, v4
                v_mul_u32_u24 v3, 9216, v3
                v_lshrrev_b32 v5, 1, v4
                v_mul_u32_u24 v5, 3, v5
                v_add3_u32 v4, v4, v5, 3
                v_lshl_add_u32 v3, v4, 7, v3
                buffer_load_dword v149, v3, s[20:23], s43 offen{self.nt('w')}
                buffer_load_dword v149, v3, s[24:27], s43 offen{self.nt('w')}
                """)
            return npf
        if kw.get('QLATE') == 2: self.q_loads(56, 146)
        nfill = 0
        if kw.get('SPF') == 1:
            nfill = 6*kw['PL'][0]; ffn_prefill(a, range(kw['PL'][0]))
        npf = 0 if (kw.get('waitM') or kw.get('waitQ')) else wpf()
        if kw.get('SPF') == 2:
            nfill = 6*kw['PL'][0]; ffn_prefill(a, range(kw['PL'][0]))
        npf += nfill
        self.stamp(6)
        if not kw.get('MODLATE'):
            if not kw.get('SPF'):
                ffn_setup(a, 100)
                self.row_setup(100)
            a(f"s_waitcnt vmcnt({npf})")
            if kw.get('waitQ') == 1: wpf()
            self.stats(0, 150)
            if kw.get('waitQ') == 2: wpf()
        a(f"""
        v_min_u32 v147, {NMOD-1}, v{LANE}
        v_lshlrev_b32 v147, 7, v147
        s_mov_b32 s11, {FB + 128*NCONV}
        """)
        self.poll(147, 11, sleep=2)
        if kw.get('waitM'): wpf()
        for o in self.mod_dma(52): a(o)
        ffn_setup2(a, 100)
        if self.fhops and self.kw.get('sidehops', True):
            for c in range(self.nhc): self.fhops.call(a, c)
        self.stamp(23)

    def row_consts(self):
        a = self.a
        srd(a, S_X, P_WS, NB_X, WS_X)
        srd(a, 52, P_WS, NB_SD, WS_Z)
        a(f"""
        s_mov_b32 s4, {FZ}
        s_mov_b32 s5, 0x4000
        s_mov_b32 s6, 0x80000
        s_mov_b32 s7, 0x84000
        s_add_u32 s8, s{S_OOB}, 0x100000
        s_add_u32 s11, s{S_OOB}, 0x104000
        s_mov_b32 s9, 4096
        s_add_u32 s10, s{S_OOB}, 8192
        """)
    def z_loads(self):
        so = ['0', 's5', 's6', 's7', 's8', 's11']
        for i in range(6):
            self.a(f"buffer_load_dwordx2 v[{2*i}:{2*i+1}], v{VRZ}, s[52:55], {so[i]} offen sc1")
    def mod_reads(self):
        MV = lambda i, v: 16 + 40*i + 8*v
        for vs in ((0, 1, 2), (3, 4)):
            for i in range(3):
                for v in vs:
                    for h in range(2):
                        self.a(f"ds_read_b128 v[{MV(i,v)+4*h}:{MV(i,v)+4*h+3}], v{VRM} offset:{2304*v + 512*i + 16*h}")
    def row_phase(self, hops):
        a = self.a; kw = self.kw
        NP1 = kw.get('NP1', 3); NP2 = kw.get('NP2', 6)
        PL = kw.get('PL', (3, 0, 0, 3)); pf = [sum(PL[:i]) for i in range(5)]
        if kw.get('SPF'): a(f"s_cmp_ge_u32 s2, {NCONV}\ns_cbranch_scc1 L_nofill0")
        ffn_prefill(a, range(pf[0], pf[1]))
        if kw.get('SPF'): a("L_nofill0:")
        if kw.get('sidefill', False):
            a(f"s_cmp_lt_u32 s2, {NCONV}\ns_cbranch_scc1 L_nofill1")
            ffn_prefill(a, range(pf[3], pf[4]))
            a("L_nofill1:")
        self.row_consts()
        MV = lambda i, v: 16 + 40*i + 8*v
        self.stamp(10)
        self.poll(VRP, 4, sleep=kw.get('sleepB', 1))
        a("s_barrier")
        self.stamp(11)
        self.z_loads()
        ffn_prefill(a, range(pf[1], pf[2]))
        self.mod_reads()
        if kw.get('EARLYC'): a(f"s_waitcnt vmcnt({6*PL[1]})\nL_rowjoin:")
        a("s_waitcnt lgkmcnt(12)")
        if kw.get('hopR', False): a.hop = self.rhops
        P = lambda x: f"v[{x}:{x+1}]"
        BC = "op_sel:[0,0,1] op_sel_hi:[1,0,1]"
        for i in range(3):
            if not kw.get('EARLYC'): a(f"s_waitcnt vmcnt({2*(2-i) + 6*PL[1]})")
            if i == 0: self.stamp(12)
            for c2 in range(0, 4, 2):
                cs = (c2, c2+1); X = {c: 144 + 6*(c & 1) for c in cs}
                for c in cs: lo(a, X[c], QP+4*i+c); hi(a, X[c]+1, QP+4*i+c)
                for c in cs: a(f"v_pk_fma_f32 {P(X[c]+2)}, {P(X[c])}, {P(ST)}, {P(ST)} {BC}")
                for c in cs: lo(a, X[c]+4, 4*i+c); hi(a, X[c]+5, 4*i+c)
                for c in cs: a(f"v_pk_fma_f32 {P(X[c]+2)}, {P(X[c]+2)}, {P(MV(i,1)+2*c)}, {P(MV(i,0)+2*c)}")
                for c in cs: a(f"v_pk_mul_f32 {P(X[c]+2)}, {P(X[c]+2)}, {P(X[c]+4)}")
                for c in cs: a(f"v_pk_fma_f32 {P(X[c]+2)}, {P(X[c]+2)}, {P(MV(i,2)+2*c)}, {P(X[c])}")
                for c in cs: a(f"v_cvt_pk_bf16_f32 v{QP+4*i+c}, v{X[c]+2}, v{X[c]+3}")
        self.stats(256, 160, scale=ALPHA)
        ffn_prefill(a, range(pf[2], pf[3]))
        sh = ['0', 's9', 's10']
        for i in range(3):
            for c2 in range(0, 4, 2):
                cs = (c2, c2+1); X = {c: 144 + 6*(c & 1) for c in cs}
                for c in cs: lo(a, X[c], QP+4*i+c); hi(a, X[c]+1, QP+4*i+c)
                for c in cs: a(f"v_pk_fma_f32 {P(X[c])}, {P(X[c])}, {P(ST)}, {P(ST)} {BC}")
                for c in cs: a(f"v_pk_fma_f32 {P(X[c])}, {P(X[c])}, {P(MV(i,4)+2*c)}, {P(MV(i,3)+2*c)}")
                for c in cs: a(f"v_cvt_pk_bf16_f32 v{4*i+c}, v{X[c]}, v{X[c]+1}")
            a(f"buffer_store_dwordx4 v[{4*i}:{4*i+3}], v{VRH}, s[{S_H}:{S_H+3}], {sh[i]} offen sc1")
        a.hop = None
        self.stamp(13)
        for i in range(12): a(f"v_accvgpr_write_b32 a{X1A+i}, v{QP+i}")
        a(f"s_lshl_b32 s4, s{S_MT}, 4\ns_add_u32 s4, s4, s{S_GI}")
        if kw.get('RLX'): ffn_setup5(a, STAT_OFF + 512, 0)
        self.signal(FC, 4)
        if kw.get('sidefill', False): a(f"s_cmp_ge_u32 s2, {NCONV}\ns_cbranch_scc1 L_nofill2")
        ffn_prefill(a, range(pf[3], pf[4]))
        if kw.get('sidefill', False): a("L_nofill2:")
        code_srd(a, 52, 4, 'L_common', 'L_code_end', back=True)
        a(f"v_mov_b32 v{VTAG}, s{S_TAG}")
        ffn_setup3(a, kw.get('CPE', False))
        if kw.get('CPR'): a(f"s_mov_b32 s4, L_st0-L_common\nbuffer_load_dword v149, v{VPC}, s[52:55], s4 offen")
        self.reduce_setup(100)
        if DYN[0]: ffn_setup4(a)
        a(f"""
        v_and_b32 v146, 15, v{LANE}
        v_lshlrev_b32 v146, 7, v146
        s_lshl_b32 s{11 if DYN[0] else 9}, s{S_MT}, 11
        s_add_u32 s{11 if DYN[0] else 9}, s{11 if DYN[0] else 9}, {FC}
        """)
        if kw.get('RLX'): ffn_setup5(a, STAT_OFF + 512, 1)
        self.stamp(14)
        self.poll(146, 11 if DYN[0] else 9, sleep=0)
        self.stamp(15)

    def reduce_setup(self, t):
        a = self.a
        self.row_ids(t, t+1, t+2)
        a(f"""
        v_mul_u32_u24 v{VEO}, 1152, v{t}
        v_lshl_add_u32 v{VEO}, v{t+1}, 4, v{VEO}
        v_lshrrev_b32 v{VEP}, 5, v{t}
        v_mul_u32_u24 v{VEP}, 9, v{VEP}
        v_lshrrev_b32 v{t+2}, 3, v{t+1}
        v_add_u32 v{VEP}, v{t+2}, v{VEP}
        v_lshlrev_b32 v{VEP}, 12, v{VEP}
        v_bfe_u32 v{t+2}, v{t}, 4, 1
        v_lshl_add_u32 v{VEP}, v{t+2}, 10, v{VEP}
        v_bfe_u32 v{t+2}, v{LANE}, 3, 1
        v_lshl_add_u32 v{VEP}, v{t+2}, 11, v{VEP}
        v_bfe_u32 v{t+2}, v{LANE}, 4, 1
        v_lshl_add_u32 v{VEP}, v{t+2}, 9, v{VEP}
        v_bfe_u32 v{t+2}, v{LANE}, 5, 1
        v_lshl_add_u32 v{VEP}, v{t+2}, 8, v{VEP}
        v_and_b32 v{t+2}, 15, v{t}
        v_lshl_add_u32 v{VEP}, v{t+2}, 4, v{VEP}
        v_lshlrev_b32 v{VEG}, 5, v{t+1}
        v_add_u32 v{VEG}, {MOD_OFF + 5*2304}, v{VEG}
        s_lshl_b32 s3, s{S_MT}, 2
        s_lshr_b32 s4, s{S_GI}, 2
        s_add_u32 s4, s4, s3
        s_lshl_b32 s4, s4, 11
        v_and_b32 v{VEF}, 15, v{LANE}
        v_lshl_add_u32 v{VEF}, v{VEF}, 7, s4
        s_add_u32 s3, s3, s{S_WAVE}
        s_lshl_b32 s3, s3, 4
        s_add_u32 s3, s3, s{S_GI}
        s_lshl_b32 s3, s3, 7
        s_add_u32 s{S_FD}, s3, {FD1}
        """)
    def reduce_phase(self):
        a = self.a; kw = self.kw
        early = kw.get('early', True)
        self.stamp(17)
        srd(a, 12, P_OUT, NB_SD)
        a(f"""
        s_mov_b32 s4, {FD1}
        s_mov_b32 s7, {FD2}
        s_add_u32 s8, s{S_FD}, {FD2 - FD1}
        {f'buffer_load_dword v239, v{VEF}, s[{S_FL}:{S_FL+3}], s4 offen sc1' if early and not kw.get('ASK3') else ''}
        s_mov_b32 s5, 0x3f80
        s_mov_b32 s6, 0x3f800000
        v_add_u32 v222, 8192, v{VEP}
        v_add_u32 v223, 16384, v{VEP}
        v_add_u32 v223, s{S_OOB}, v223
        """)
        for i in range(3):
            for h in range(2):
                a(f"ds_read_b128 v[{192+8*i+4*h}:{195+8*i+4*h}], v{VEG} offset:{512*i + 16*h}")
        va = [VEP, 222, 223]; RD = [32, 64, 128]
        def loads(i):
            a("s_mov_b32 s9, 0")
            for sl in range(8):
                a(f"buffer_load_dwordx4 v[{RD[i]+4*sl}:{RD[i]+4*sl+3}], v{va[i]}, s[{S_P}:{S_P+3}], s9 offen sc1")
                if sl < 7: a(f"s_add_u32 s9, s9, {NB_SD}")
        pub = f"buffer_store_dword v{VTAG}, off, s[{S_FL}:{S_FL+3}], s8 sc1"
        if kw.get('ASK3'):
            a(f"v_cmp_ne_u32 vcc, s{S_TAG}, v239\ns_cbranch_vccnz L_e1late")
            loads(0)
            a(f"s_waitcnt vmcnt(8)\n{pub}\ns_branch L_e1done\nL_e1late:\ns_waitcnt vmcnt(0)\n{pub}")
            self.poll(VEF, 4, sleep=0)
            loads(0)
            a("L_e1done:")
            self.stamp(18)
        else:
            a(f"s_waitcnt vmcnt(0)\n{pub}")
            self.stamp(18)
            if early:
                a(f"v_cmp_ne_u32 vcc, s{S_TAG}, v239\ns_cbranch_vccz L_e1ok")
                self.poll(VEF, 4, sleep=0)
                a("L_e1ok:")
                loads(0)
        AC = 226
        def finish(i, waits):
            for e in range(8): a(f"v_mov_b32 v{AC+e}, 0")
            for sl in range(8):
                if waits is not None: a(f"s_waitcnt vmcnt({waits - sl})")
                for x in range(4):
                    a(f"v_dot2_f32_bf16 v{AC+2*x}, v{RD[i]+4*sl+x}, s5, v{AC+2*x}")
                    a(f"v_dot2_f32_bf16 v{AC+2*x+1}, v{RD[i]+4*sl+x}, s6, v{AC+2*x+1}")
            for x in range(4): a(f"v_accvgpr_read_b32 v{QP+x}, a{X1A+4*i+x}")
            for e in range(4): a(f"v_permlane32_swap_b32 v{AC+e}, v{AC+4+e}")
            for x in range(4):
                lo(a, 234, QP+x); hi(a, 235, QP+x)
                a(f"v_pk_fma_f32 v[234:235], v[{AC+2*x}:{AC+2*x+1}], v[{192+8*i+2*x}:{193+8*i+2*x}], v[234:235]")
                a(f"v_cvt_pk_bf16_f32 v{QP+4+x}, v234, v235")
            a(f"buffer_store_dwordx4 v[{QP+4}:{QP+7}], v{VEO}, s[12:15], {'s%d' % S_OOB if i == 2 else '0'} offen" + (f" offset:{256*i}" if i else "") + kw.get('outfl', ''))
            a("s_nop 1")
        if kw.get('MID'):
            a(f"s_bitcmp1_b32 s{S_WAVE}, 0\ns_cselect_b32 s10, s7, {FD3}")
            self.poll(VEF, 10, sleep=0)
            self.stamp(19)
            loads(1)
            a("s_waitcnt lgkmcnt(0)")
            finish(0, None)
            a(f"s_cmp_lg_u32 s{S_WAVE}, 0\ns_cbranch_scc1 L_e2only")
            self.poll(VEF, 7, sleep=0)
            loads(2)
            finish(1, None)
            finish(2, 8)
            a("s_branch L_edone\nL_e2only:")
            finish(1, 8)
            a("L_edone:")
        else:
            self.poll(VEF, 7, sleep=0)
            self.stamp(19)
            if not early: loads(0)
            loads(1); loads(2)
            a("s_waitcnt lgkmcnt(0)")
            for i in range(3): finish(i, None if (early and i == 0) else 23 - 7*i)
        self.stamp(20)

    def build(self):
        a = self.a; kw = self.kw
        a(kernel_head(NAME))
        if kw.get('fix0'): a("s_memrealtime s[100:101]")
        a(f"""
        s_cmp_ge_u32 s2, 256
        s_cbranch_scc1 L_end
        s_load_dwordx16 s[64:79], s[0:1], 0
        s_load_dwordx8 s[80:87], s[0:1], 64
        s_load_dwordx4 s[88:91], s[0:1], 96
        s_load_dwordx2 s[92:93], s[0:1], 112
        """)
        if self.diag: a(f"v_mov_b32 v{DIAG}, 0")
        code_srd(a, 56, 4, 'L_start', 'L_common')
        a(f"""
        L_start:
        v_lshlrev_b32 v1, 7, v0
        v_lshrrev_b32 v2, 6, v0
        v_and_b32 v{LANE}, 63, v0
        buffer_load_dword v238, v1, s[56:59], 0 offen
        v_readfirstlane_b32 s{S_WAVE}, v2
        """)
        def ids():
            a(f"""
            s_lshr_b32 s3, s2, 3
            s_lshr_b32 s{S_MT}, s3, 1
            s_add_u32 s6, s{S_MT}, {kw.get('CA', 7)}
            s_sub_u32 s7, s{S_MT}, 9
            s_cmp_lt_u32 s7, {kw.get('CA', 7)}
            s_cselect_b32 s7, s7, s{S_MT}
            s_cmp_lt_u32 s{S_MT}, 9
            s_cselect_b32 s{S_MT}, s6, s7
            s_and_b32 s3, s3, 1
            {self.gi_code()}
            s_mov_b32 s{S_ONE}, 0x3f803f80
            s_cmp_eq_u32 s{S_WAVE}, 0
            s_cselect_b32 s{S_OOB}, 0, 0x40000000
            """)
        def epoch():
            a(f"s_add_u32 s4, s{P_WS}, {WS_EPOCH:#x}\ns_addc_u32 s5, s{P_WS+1}, 0\ns_load_dword s28, s[4:5], 0")
            srd(a, S_FL, P_WS, 0x120000, WS_FL)
        self.late_entry = None
        if kw.get('ENTRY'):
            self.late_entry = lambda: (ids(), epoch())
            a(f"s_cmp_ge_u32 s2, {NCONV}\ns_cbranch_scc1 L_side")
        else:
            ids()
            a("s_waitcnt lgkmcnt(0)")
            epoch()
            self.stamp(0)
            a(f"s_cmp_ge_u32 s2, {NCONV}\ns_cbranch_scc1 L_side")
        self.tagfix = True
        orig = self.signal
        first = [True]
        def sig(base, idx):
            if first[0]:
                a(f"s_waitcnt lgkmcnt(0)\ns_add_u32 s{S_TAG}, s28, 1"); first[0] = False
            orig(base, idx)
        self.signal = sig
        self.chops = Hops('L_ch'); self.ahops = Hops('L_ah'); self.rhops = Hops('L_rh')
        self.nhc = kw.get('nhc', 4)
        hops = self.fhops = Hops('L_fh') if kw.get('hops', False) else None
        self.conv_path()
        a("s_branch L_common")
        if kw.get('chops', False): self.chops.ret(a)
        if hops: hops.ret(a)
        if kw.get('hopP', False): self.ahops.ret(a)
        if kw.get('hopR', False): self.rhops.ret(a)
        ffn_slow_paths(a, SPIN_MAX, self.diag)
        a("L_side:")
        first[0] = True
        self.side_path()
        a("L_common:")
        self.row_phase(hops)
        kw['NP2'] = sum(kw.get('PL', (3, 0, 0, 3)))
        fk = {k: v for k, v in kw.items() if k not in ('NP1', 'hops', 'nhc', 'hopA', 'hopB', 'hopC', 'sidehops', 'sleepB', 'chops', 'KEARLY', 'waitA', 'MCHK', 'touch', 'NCH', 'dbg', 'fixdur', 'fix0', 'outfl', 'enc', 'poll1', 'sleepD', 'PL', 'hopP', 'hopR', 'LN1', 'pfK', 'early', 'INLOOP', 'ZF', 'convpf', 'PASS', 'CA', 'sidefill', 'ARR', 'KLATE', 'MODLATE', 'QLATE', 'PRE2', 'wsoff', 'waitM', 'waitQ', 'ZPOLL', 'NT', 'EARLYC', 'FF', 'ENTRY', 'CPE', 'CPR', 'SKIP7', 'DYN', 'SPF', 'PRIO')}
        if kw.get('PRIO'):
            for w, p in enumerate(kw['PRIO']):
                if p: a(f"s_cmp_lg_u32 s{S_WAVE}, {w}\ns_cbranch_scc1 L_prio{w}\ns_setprio {p}\nL_prio{w}:")
        ffn_main(a, hops=hops, stamper=(lambda: self.stamp(16)), **fk)
        if hops: hops.resolve(a, self.nhc)
        if kw.get('chops', False): self.chops.resolve(a, 1)
        if kw.get('hopP', False): self.ahops.resolve(a, 1)
        if kw.get('hopR', False): self.rhops.resolve(a, 1)
        self.reduce_phase()
        a(f"""
        s_cmp_lg_u32 s2, 0
        s_cbranch_scc1 L_noep
        s_cmp_lg_u32 s{S_WAVE}, 0
        s_cbranch_scc1 L_noep
        """)
        srd(a, 20, P_WS, 4, WS_EPOCH)
        a(f"""
        v_mov_b32 v239, s{S_TAG}
        s_mov_b64 exec, 1
        buffer_store_dword v239, off, s[20:23], 0 sc1
        s_mov_b64 exec, -1
        L_noep:
        """)
        if self.diag:
            a("s_waitcnt vmcnt(0)"); self.stamp(21)
            srd(a, 20, P_WS, 1 << 20, 0x8000000)
            a(f"""
            s_lshl_b32 s3, s2, 2
            s_add_u32 s3, s3, s{S_WAVE}
            s_lshl_b32 s3, s3, 8
            v_lshlrev_b32 v1, 2, v{LANE}
            buffer_store_dword v{DIAG}, v1, s[20:23], s3 offen
            s_add_u32 s3, s3, 0x80000
            buffer_store_dword v{vst()}, v1, s[20:23], s3 offen
            """)
            if kw.get('dbg') is not None:
                a(f's_load_dwordx2 s[90:91], s[0:1], {DBG}\ns_waitcnt lgkmcnt(0)')
                srd(a, 20, 90, 256)
                a(f"""
                s_cmp_lg_u32 s2, {kw['dbg']}
                s_cbranch_scc1 L_end
                s_cmp_lg_u32 s{S_WAVE}, 0
                s_cbranch_scc1 L_end
                v_readlane_b32 s3, v{DIAG}, 0
                v_add_u32 v2, -24, v1
                s_nop 1
                v_subrev_u32 v{DIAG}, s3, v{DIAG}
                buffer_store_dword v{DIAG}, v2, s[20:23], 0 offen
                """)
                if kw.get('fixdur'):
                    if kw.get('enc') is not None:
                        a(f"s_nop 1\nv_readlane_b32 s4, v{DIAG}, {kw['enc']}\ns_nop 3\ns_add_u32 s3, s3, s4")
                    a(f"""
                    L_fix:
                    s_memrealtime s[98:99]
                    s_waitcnt lgkmcnt(0)
                    s_sub_u32 s98, s98, {'s100' if kw.get('fix0') else 's3'}
                    s_cmp_lt_u32 s98, {kw['fixdur']}
                    s_cbranch_scc1 L_fix
                    """)
        a("L_end:\ns_endpgm")
        for x in ffn_main.stubs: a(x)
        a("L_code_end:")
        REF = 'adaLN_cond__ssm_conv_h3__glu_gated_geglu__prompt.s.ref'
        pre = [l for l in open(REF).read().split('\n') if l.startswith(';') and '@launch' not in l]
        pre += '''; One persistent launch, 256 workgroups (one per CU) of 4 waves; generated by the author's own scheduler script.
;   A  wg<144: kv = shortconv(k)*v for a 128x64 tile, transposed through LDS to [channel][time]      (hand-off A)
;   B  wg<144: causal long convolution of 4 channels as Toeplitz MFMA products (+ D on the diagonal),
;      first 1024 steps published early; wg 144..197: modulation GEMV; wg>=144 warm L2 with weights  (hand-off B)
;   C  all: 8 rows each: LayerNorm 1, x1 = q + ga*h*z, LayerNorm 2 -> h2 in MFMA fragment order      (hand-off C)
;   D  all: 128 rows x 288 hidden columns: gate/up GEMM, tanh-GELU (sigmoid form), hidden activations exchanged
;      with the partner workgroup, down GEMM for half of the output columns, bf16 partial sums        (hand-off D)
;   E  all: 8 rows each: sum of the 8 partial sums, out = x1 + gb*o
; Hand-offs: write-through stores, vmcnt drain, tag words in d_ws; tag = (word found in d_ws at entry) + 1, every spin bounded.
; h2 carries the factor a = (2*sqrt(2/pi)*log2(e)*0.044715)^(1/3); it is removed again through gb/a^2.'''.split('\n')
        out = pre + [f"; @launch grid=(256,1,1) block=(256,1,1) lds={LDS_TOTAL}", '.amdgcn_target "amdgcn-amd-amdhsa--gfx950"', '.text', a.text(),
                     '.section .rodata,"a"', kernel_desc(NAME, 256 + X1A + 12, 102, 256)]
        return '\n'.join(out) + '\n'

BEST = dict(order=1, GDL=70, FLAG_D=48, ASK2=260, PPACE=4, HPACE=5, ASK_D=48, CPE=2, CPF=(0, 17), CPD=5, BG=2, GSPAN=40, NCH=3, PL=(3,0,0,3), waitA=True, waitQ=0, NT='kvmq', outfl=' sc1', KLATE=2, QLATE=2, ZF=4, MCHK=6, FF=3, ENTRY=1, CH6=True, dmafl=' sc1', PF=default_pf(d=(13, 15)))
if __name__ == '__main__':
    dst = sys.argv[1] if len(sys.argv) > 1 else 'best.s'
    open(dst, 'w').write(G(verbose=True, **BEST).build())
    open('best_d.s', 'w').write(G(diag=True, stagestamp=3, **BEST).build())
```

```python
from fused import *
import sys, os, glob
from concurrent.futures import ProcessPoolExecutor
V = eval(open(sys.argv[1]).read())
def one(item):
    k, kw = item
    open(f'n_{k}.s','w').write(G(**{**BEST, **kw}).build())
    return f'n_{k}.s'
if __name__ == '__main__':
    with ProcessPoolExecutor(8) as ex: names = list(ex.map(one, V.items()))
    open('n_list.txt','w').write(' '.join(names))
    os.system('cd exp && tar czf n_files.tgz n_list.txt ' + ' '.join(names))
```
